```python
import torch

def _softmax(x, axis=-1):
    return torch.softmax(x, dim=axis)
def _gelu(x):
    return torch.nn.functional.gelu(x, approximate="tanh")
def _silu(x):
    return torch.nn.functional.silu(x)
def _sigmoid(x):
    return torch.sigmoid(x)
def _layernorm(x, axis=-1, eps=1e-5):
    m = x.mean(dim=axis, keepdim=True)
    v = x.var(dim=axis, keepdim=True, unbiased=False)
    return (x - m) / torch.sqrt(v + eps)
def _scatter_add(tgt, idx, src, axis=0):
    return tgt.clone().index_add_(axis, idx, src)
def _segment_sum(src, seg, n):
    out = torch.zeros((n,) + src.shape[1:], dtype=src.dtype)
    return out.index_add_(0, seg, src)
def _pad(x, pw):
    flat = tuple(v for pair in reversed(pw) for v in pair)
    return torch.nn.functional.pad(x, flat)

kernel_name = 'parallel_sum__compressed_kv_cla__dense_activation_gelu__prompt'

def setup_inputs():

    _w = (lambda a: (lambda t: t.to(torch.bfloat16) if t.is_floating_point() else t)(torch.as_tensor(a)))
    def _A_setup():
        B, H, Sq, Sk, D, M = 1, 32, 2048, 2048, 128, 512
        Dc = 4 * D
        return {
            "x": _w((lambda *s: torch.randn(*s, dtype=torch.bfloat16) * 0.05)(B, Sq, M)),
            "c_kv": _w((lambda *s: torch.randn(*s, dtype=torch.bfloat16) * 0.4)(B, Sk, Dc)),
            "w_q": _w((lambda *s: torch.randn(*s, dtype=torch.bfloat16) * 3.2)(M, H, D) * (M ** -0.5)),
            "w_uk": _w((lambda *s: torch.randn(*s, dtype=torch.bfloat16) * 3.2)(Dc, H, D) * (Dc ** -0.5)),
            "w_uv": _w((lambda *s: torch.randn(*s, dtype=torch.bfloat16) * 0.4)(Dc, H, D) * (Dc ** -0.5)),
            "w_o": _w((lambda *s: torch.randn(*s, dtype=torch.bfloat16) * 0.4)(H, D, M) * ((H * D) ** -0.5)),
        }
    _A_in = _A_setup()

    def _B_setup():
        B, S, D, F = 1, 2048, 512, 1792
        return {
            "x": _w((lambda *s: torch.randn(*s, dtype=torch.bfloat16) * 0.05)(B, S, D)),
            "w1": _w((lambda *s: torch.randn(*s, dtype=torch.bfloat16) * 0.8)(D, F) * (D ** -0.5)),
            "b1": _w((lambda *s: torch.randn(*s, dtype=torch.bfloat16) * 12.8)(F) * 0.01),
            "w2": _w((lambda *s: torch.randn(*s, dtype=torch.bfloat16) * 0.2)(F, D) * (F ** -0.5)),
            "b2": _w((lambda *s: torch.randn(*s, dtype=torch.bfloat16) * 3.2)(D) * 0.01),
        }
    _B_in = _B_setup()

    return {
        "A_x": _A_in["x"],
        "A_c_kv": _A_in["c_kv"],
        "A_w_q": _A_in["w_q"],
        "A_w_uk": _A_in["w_uk"],
        "A_w_uv": _A_in["w_uv"],
        "A_w_o": _A_in["w_o"],
        "B_x": _B_in["x"],
        "B_w1": _B_in["w1"],
        "B_b1": _B_in["b1"],
        "B_w2": _B_in["w2"],
        "B_b2": _B_in["b2"],
    }

def reference(A_x, A_c_kv, A_w_q, A_w_uk, A_w_uv, A_w_o, B_x, B_w1, B_b1, B_w2, B_b2):
    def _A_ref(x, c_kv, w_q, w_uk, w_uv, w_o):
        B, Sq, M = x.shape[0], x.shape[1], x.shape[2]
        Sk = c_kv.shape[1]
        H, D = w_q.shape[1], w_q.shape[2]
        q = torch.einsum("bqm,mhd->bhqd", x, w_q)
        k = torch.einsum("bkc,chd->bhkd", c_kv, w_uk)
        v = torch.einsum("bkc,chd->bhkd", c_kv, w_uv)
        scores = torch.einsum("bhqd,bhkd->bhqk", q, k) * (D ** -0.5)
        off = Sk - Sq
        qi = torch.arange(Sq)[:, None]
        kj = torch.arange(Sk)[None, :]
        cmask = kj <= (qi + off)
        scores = torch.where(cmask[None, None], scores, -1e9)
        p = _softmax(scores, axis=-1)
        ctx = torch.einsum("bhqk,bhkd->bhqd", p, v)
        return torch.einsum("bhqd,hdm->bqm", ctx, w_o)

    def _B_ref(x, w1, b1, w2, b2):
        h = torch.einsum("bsd,df->bsf", x, w1) + b1
        h = _gelu(h)
        return torch.einsum("bsf,fd->bsd", h, w2) + b2

    x = A_x
    xn = _layernorm(x, axis=-1)
    return x + _A_ref(xn, A_c_kv, A_w_q, A_w_uk, A_w_uv, A_w_o) + _B_ref(xn, B_w1, B_b1, B_w2, B_b2)
```

```python
import re

_REG = re.compile(r'\b([vas])\[(\d+):(\d+)\]|\b([vas])(\d+)\b|\b(vcc|exec|m0|scc)\b')

def regs_in(s):
    out = []
    for m in _REG.finditer(s):
        if m.group(1):
            out += [f"{m.group(1)}{i}" for i in range(int(m.group(2)), int(m.group(3)) + 1)]
        elif m.group(4):
            out.append(f"{m.group(4)}{m.group(5)}")
        else:
            out.append(m.group(6))
    return out

TRANS = ('v_exp_f32', 'v_log_f32', 'v_rcp_f32', 'v_rsq_f32', 'v_sqrt_f32', 'v_sin_f32', 'v_cos_f32')

class Ins:
    __slots__ = ('txt', 'op', 'kind', 'wr', 'rd', 'passes', 'A', 'B', 'C', 'D', 'tag', 'states', 'wide')
    def __init__(self, txt, tag=None):
        self.txt = txt.strip()
        self.tag = tag
        self.passes = 0
        self.A = self.B = self.C = self.D = ()
        self.states = 1
        self.wide = False
        t = self.txt.split(';')[0].strip()
        if t.endswith(':') or t.startswith('.') or not t:
            self.op = 'label'; self.kind = 'label'; self.wr = set(); self.rd = set(); self.states = 0
            return
        parts = t.split(None, 1)
        op = parts[0]; self.op = op
        rest = parts[1] if len(parts) > 1 else ''
        ops = [o.strip() for o in re.split(r',(?![^\[]*\])', rest)] if rest else []
        R = lambda i: regs_in(ops[i]) if i < len(ops) else []
        allr = lambda a: [r for o in ops[a:] for r in regs_in(o)]
        wr, rd = [], []
        if op.startswith('v_mfma'):
            self.kind = 'mfma'
            self.passes = 8 if '32x32x16' in op else 4
            self.D, self.A, self.B, self.C = tuple(R(0)), tuple(R(1)), tuple(R(2)), tuple(R(3))
            wr = list(self.D); rd = list(self.A + self.B + self.C)
        elif op.startswith('v_cmp'):
            self.kind = 'valu'; wr = R(0); rd = allr(1)
        elif op.startswith('v_permlane') and 'swap' in op:
            self.kind = 'valu'; wr = R(0) + R(1); rd = R(0) + R(1)
        elif op.startswith('v_'):
            self.kind = 'trans' if any(op.startswith(x) for x in TRANS) else 'valu'
            wr = R(0); rd = allr(1)
            if op.startswith(('v_fmac', 'v_dot2c', 'v_writelane')): rd += R(0)
            if op.startswith(('v_add_co', 'v_sub_co', 'v_addc_co')): wr += R(1); rd = allr(2)
            if op.startswith('v_cndmask') and len(ops) == 3: rd.append('vcc')
            if 'dpp' in t or 'row_' in t or 'quad_perm' in t: rd += R(0)
        elif op.startswith('ds_read') or op.startswith('ds_bpermute') or op.startswith('ds_swizzle'):
            self.kind = 'dsr'; wr = R(0); rd = allr(1)
        elif op.startswith('ds_write'):
            self.kind = 'dsw'; rd = allr(0)
        elif op.startswith(('buffer_load', 'global_load')):
            if re.search(r'\blds\b', t):
                self.kind = 'dma'; rd = allr(0) + ['m0']
            else:
                self.kind = 'vld'; wr = R(0); rd = allr(1)
        elif op.startswith(('buffer_store', 'global_store')):
            self.kind = 'vst'; rd = allr(0)
            self.wide = op.endswith(('x4', 'x3'))
            self.D = tuple(R(0))
        elif op.startswith('buffer_') or op.startswith('global_'):
            self.kind = 'vmisc'; rd = allr(0)
        elif op == 's_waitcnt':
            self.kind = 'wait'
        elif op == 's_barrier':
            self.kind = 'barrier'
        elif op == 's_nop':
            self.kind = 'nop'; self.states = int(ops[0], 0) + 1
        elif op.startswith(('s_cbranch', 's_branch', 's_setpc', 's_call', 's_swappc', 's_endpgm')):
            self.kind = 'branch'; rd = allr(0)
            if op.startswith('s_call'): wr = R(0); rd = []
        elif op.startswith(('s_load', 's_memtime', 's_memrealtime')):
            self.kind = 'smem'; wr = R(0); rd = allr(1)
        elif op.startswith('s_cmp') or op.startswith('s_bitcmp'):
            self.kind = 'salu'; rd = allr(0); wr = ['scc']
        elif op.startswith('s_'):
            self.kind = 'salu'; wr = R(0); rd = allr(1)
            if op.startswith(('s_addk', 's_mulk')): rd += R(0)
        else:
            raise ValueError("unknown instruction: " + txt)
        self.wr = set(wr); self.rd = set(rd)
    def __repr__(self): return self.txt

def I(txt, tag=None): return Ins(txt, tag)

def _need(p, c):
    n = 0
    pv = p.kind in ('valu', 'trans')
    cv = c.kind in ('valu', 'trans')
    if pv:
        vw = {r for r in p.wr if r[0] in 'va' and r != 'vcc'}
        sw = p.wr - vw
        if c.kind == 'mfma' and vw & c.rd: n = max(n, 2)
        if p.kind == 'trans' and c.kind == 'valu' and vw & c.rd: n = max(n, 1)
        if p.kind == 'trans' and c.kind in ('vst', 'dsw') and vw & c.rd: n = max(n, 1)
        if c.op.startswith('v_permlane') and vw & c.rd: n = max(n, 2)
        if c.op.startswith(('v_readlane', 'v_readfirstlane')) and vw & c.rd: n = max(n, 1)
        if cv and ('dpp' in c.txt or 'row_' in c.txt or 'quad_perm' in c.txt) and vw & c.rd: n = max(n, 2)
        if sw & c.rd:
            if cv: n = max(n, 2)
            if c.kind in ('vld', 'vst', 'dma', 'vmisc'): n = max(n, 5)
            if c.kind in ('salu', 'branch'): n = max(n, 1)
        if 'exec' in p.wr and c.kind == 'mfma': n = max(n, 4)
    if p.kind == 'mfma':
        big = 12 if p.passes == 8 else 8
        D = set(p.D)
        if c.kind == 'mfma':
            if D & set(c.A + c.B): n = max(n, big)
            if D & set(c.C):
                if not (tuple(c.C) == tuple(p.D) and c.passes == p.passes): n = max(n, big - 2)
            elif D & set(c.D): n = max(n, big - 2)
        elif c.kind in ('valu', 'trans'):
            if D & (c.rd | c.wr): n = max(n, big)
            if set(p.C) & c.wr: n = max(n, 7 if p.passes == 8 else 3)
        elif c.kind in ('vst', 'dsw', 'dma', 'vmisc'):
            if D & c.rd: n = max(n, big)
        elif c.kind in ('vld', 'dsr'):
            if D & (c.rd | c.wr): n = max(n, big)
            if set(p.C) & c.wr: n = max(n, 7 if p.passes == 8 else 3)
    if p.kind == 'vst' and p.wide and set(p.D) & c.wr:
        n = max(n, 2)
    if p.kind == 'salu' and 'm0' in p.wr and c.kind == 'dma': n = max(n, 1)
    return n

def pad_hazards(ins, prev=None, verbose=None):
    out = []
    hist = list(prev[-24:]) if prev else []
    npad = 0
    for c in ins:
        if c.kind == 'label':
            out.append(c); continue
        need = 0; dist = 0; why = None
        for p in reversed(hist):
            if dist >= 20: break
            n = _need(p, c)
            if n - dist > need: need = n - dist; why = p
            dist += p.states
        while need > 0:
            k = min(need, 16)
            nop = Ins(f"s_nop {k-1}")
            out.append(nop); hist.append(nop); need -= k; npad += k
            if verbose is not None: verbose.append((k, why.txt, c.txt))
        out.append(c); hist.append(c)
        if len(hist) > 64: hist = hist[-32:]
    return out, npad

def insert_lgkm(ins, init=None):
    q = [set(x) for x in (init or [])]
    out = []
    for c in ins:
        if c.kind == 'wait':
            m = re.search(r'lgkmcnt\((\d+)\)', c.txt)
            if m:
                k = int(m.group(1))
                while len(q) > k: q.pop(0)
            out.append(c); continue
        touched = c.rd | c.wr
        if c.kind == 'label' and c.tag and c.tag[0] == 'needlg': touched = c.tag[1]
        pos = -1
        for i, s in enumerate(q):
            if s & touched: pos = i
        if pos >= 0:
            n = len(q) - pos - 1
            n = min(n, 15)
            out.append(Ins(f"s_waitcnt lgkmcnt({n})"))
            while len(q) > n: q.pop(0)
        if c.kind == 'dsr': q.append(set(c.wr))
        elif c.kind == 'dsw': q.append(set())
        elif c.kind == 'smem':
            assert not q, "smem with ds ops outstanding"

        out.append(c)
    return out, q

def insert_vm(ins, init=None):
    q = list(init or [])
    out = []
    for c in ins:
        if c.kind == 'wait':
            m = re.search(r'vmcnt\((\d+)\)', c.txt)
            if m:
                k = int(m.group(1))
                while len(q) > k: q.pop(0)
            out.append(c); continue
        pos = -1
        if c.kind == 'label' and c.tag and c.tag[0] == 'needvm':
            names = c.tag[1:]
            for i, (s, nm) in enumerate(q):
                if nm in names: pos = i
            if pos >= 0:
                n = min(len(q) - pos - 1, 63)
                out.append(Ins(f"s_waitcnt vmcnt({n})"))
                while len(q) > n: q.pop(0)
            continue
        touched = c.rd | c.wr
        for i, (s, nm) in enumerate(q):
            if s & touched: pos = i
        if pos >= 0:
            n = min(len(q) - pos - 1, 63)
            out.append(Ins(f"s_waitcnt vmcnt({n})"))
            while len(q) > n: q.pop(0)
        if c.kind in ('vld', 'dma', 'vst', 'vmisc'):
            nm = c.tag[1] if (c.tag and c.tag[0] == 'vm') else None
            q.append((set(c.wr) if c.kind == 'vld' else set(), nm))
            assert len(q) <= 63, "too many vmem outstanding"
        out.append(c)
    return out, q

def needlg(regs): return Ins("", tag=('needlg', set(regs)))
def needvm(*names): return Ins("", tag=('needvm',) + names)

def cost(c):
    if isinstance(c, list): return sum(cost(x) for x in c)
    if c.kind == 'trans': return 2
    if c.kind == 'label': return 0
    return 1

def weave(mfmas, post, valu, budget, start_budget=None):
    out = []
    vi = 0
    for g, m in enumerate(mfmas):
        out.append(m)
        p = post.get(g, [])
        out += p
        b = budget(g, p)
        while vi < len(valu) and valu[vi][0] <= g and b >= cost(valu[vi][1]):
            b -= cost(valu[vi][1])
            it = valu[vi][1]
            if isinstance(it, list): out += it
            else: out.append(it)
            vi += 1
    left = []
    for x in valu[vi:]:
        left += x[1] if isinstance(x[1], list) else [x[1]]
    out += left
    return out, len(left)

def text(ins):
    return "\n".join((c.txt if c.kind == 'label' else "    " + c.txt) for c in ins if c.txt)
```

```python
import sys, math, struct
from asmlib import *

NAME = "parallel_sum__compressed_kv_cla__dense_activation_gelu__prompt"
MB = 1 << 20
WS_K, WS_V, WS_XN, WS_H, WS_CTX, WS_P = 0, 16*MB, 32*MB, 34*MB, 48*MB, 64*MB
A_X, A_CKV, A_WQ, A_WUK, A_WUV, A_WO, A_BX, A_W1, A_B1, A_W2, A_B2, A_OUT, A_DBG, A_WS = [8*i for i in range(14)]

def f32(x): return "0x%08x" % struct.unpack("<I", struct.pack("<f", x))[0]
QSCALE = (128 ** -0.5) * math.log2(math.e)

def srd(dst, ptr, size, add=0):
    L = []
    if add:
        L += [I(f"s_add_u32 s{dst}, s{ptr}, {add:#x}"), I(f"s_addc_u32 s{dst+1}, s{ptr+1}, 0")]
    else:
        L += [I(f"s_mov_b32 s{dst}, s{ptr}"), I(f"s_mov_b32 s{dst+1}, s{ptr+1}")]
    L += [I(f"s_mov_b32 s{dst+2}, {size:#x}"), I(f"s_mov_b32 s{dst+3}, 0x20000")]
    return L

def finish(ins, lg_init=None, vm_init=None, prev=None, name=""):
    ins, q1 = insert_vm(ins, vm_init)
    ins, q2 = insert_lgkm(ins, lg_init)
    vb = []
    ins, npad = pad_hazards(ins, prev, vb)
    if npad and VERBOSE:
        print(f"[{name}] padded {npad} wait states", file=sys.stderr)
        for k, a, b in vb[:VERBOSE]: print(f"    {k}: {a}  ->  {b}", file=sys.stderr)
    return ins, q2, q1
VERBOSE = 6

def kernel_text(name, body, vgpr, accum, sgpr=102):
    return f""".text
.globl {name}
.p2align 8
.type {name},@function
{name}:
{body}
.section .rodata,"a"
.p2align 6
.amdhsa_kernel {name}
  .amdhsa_next_free_vgpr {vgpr}
  .amdhsa_next_free_sgpr {sgpr}
  .amdhsa_accum_offset {accum}
  .amdhsa_group_segment_fixed_size 0
  .amdhsa_kernarg_size 112
  .amdhsa_user_sgpr_count 2
  .amdhsa_user_sgpr_kernarg_segment_ptr 1
  .amdhsa_system_sgpr_workgroup_id_x 1
.end_amdhsa_kernel
"""

M16 = "v_mfma_f32_16x16x32_bf16"
M32 = "v_mfma_f32_32x32x16_bf16"
def vr(b, n=4): return f"v[{b}:{b+n-1}]"
def ar(b, n=4): return f"a[{b}:{b+n-1}]"

PROF = False
PROF_BASE = 128*MB
def stamp(k):
    if not PROF: return []
    return [I("s_waitcnt lgkmcnt(0)"), I(f"s_memrealtime s[{64+4*k}:{65+4*k}]"), I(f"s_memtime s[{66+4*k}:{67+4*k}]"), I("s_waitcnt lgkmcnt(0)")]
def stamp_out(n, wsptr, kidx, vt=0):
    if not PROF: return []
    L = [I("s_waitcnt vmcnt(0) lgkmcnt(0)")] + stamp(n - 1)
    L += srd(60, wsptr, MB, PROF_BASE + kidx*65536)
    L += [I(f"v_mov_b32 v{vt+2}, 0")]
    for k in range(n):
        L += [I(f"v_mov_b32 v{vt}, s{64+4*k}"), I(f"v_mov_b32 v{vt+1}, s{66+4*k}"),
              I(f"buffer_store_dwordx2 v[{vt}:{vt+1}], v{vt+2}, s[60:63], s99 offen offset:{8*k}"), I("s_nop 1")]
    return L
def stamp_init(swave):
    if not PROF: return []
    return [I("s_lshl_b32 s99, s2, 2"), I(f"s_add_u32 s99, s99, s{swave}"), I("s_lshl_b32 s99, s99, 6")]

ST_FLAGS = "sc0 sc1"

def lane_consts_wtr(vdst, base, tmp, natural=True):
    ln = tmp + 4
    L = [
        I(f"v_lshrrev_b32 v{tmp}, 4, v{ln}"),
        I(f"v_bfe_u32 v{tmp+1}, v{ln}, 2, 2"),
        I(f"v_and_b32 v{tmp+2}, 1, v{tmp}"),
        I(f"v_lshl_add_u32 v{tmp+1}, v{tmp+2}, 2, v{tmp+1}"),
        I(f"v_lshrrev_b32 v{tmp}, 1, v{tmp}"),
        I(f"v_lshlrev_b32 v{tmp}, {11 if natural else 10}, v{tmp}"),
        I(f"v_lshl_add_u32 v{tmp}, v{tmp+1}, 7, v{tmp}"),
        I(f"v_and_b32 v{tmp+2}, 1, v{ln}"),
        I(f"v_lshl_add_u32 v{tmp}, v{tmp+2}, 3, v{tmp}"),
        I(f"v_bfe_u32 v{tmp+2}, v{ln}, 1, 1"),
        I(f"v_lshl_add_u32 v{tmp}, v{tmp+2}, 4, v{tmp}"),
        I(f"v_add_u32 v{tmp}, {base}, v{tmp}") if base else I(f"v_mov_b32 v{tmp}, v{tmp}"),
        I(f"v_and_b32 v{tmp+1}, 6, v{tmp+1}"),
    ]
    for c in range(4):
        L += [I(f"v_xor_b32 v{tmp+2}, {2*c}, v{tmp+1}"),
              I(f"v_lshl_add_u32 v{vdst+c}, v{tmp+2}, 4, v{tmp}")]
    return L

def lane_consts_wdma(vdst, rowstride, tmp, natural=True, nblk=4):
    ln = tmp + 4
    L = [I(f"v_lshrrev_b32 v{tmp}, 3, v{ln}"),
         I(f"v_and_b32 v{tmp+1}, 7, v{ln}"),
         I(f"v_and_b32 v{tmp+2}, 6, v{tmp}"),
         I(f"v_xor_b32 v{tmp+1}, v{tmp+1}, v{tmp+2}"),
         I(f"v_lshlrev_b32 v{tmp+1}, 4, v{tmp+1}")]
    if natural:
        L += [I(f"v_and_b32 v{tmp+2}, 4, v{tmp}"),
              I(f"v_add_u32 v{tmp}, v{tmp}, v{tmp+2}")]
    L += [I(f"s_mov_b32 s98, {rowstride}"),
          I(f"v_mul_lo_u32 v{tmp}, v{tmp}, s98"),
          I(f"v_add_u32 v{tmp}, v{tmp}, v{tmp+1}")]
    for b in range(nblk):
        rows = (4*(b % 2) + 16*(b // 2)) if natural else 8*b
        off = rows * rowstride - 1024 * b
        L.append(I(f"v_add_u32 v{vdst+b}, {off}, v{tmp}") if off else I(f"v_mov_b32 v{vdst+b}, v{tmp}"))
    return L

def place_dma(dmaq, addpost, step=2):
    nxt = 0
    for g, items in sorted(dmaq, key=lambda x: x[0]):
        g = max(g, nxt)
        k = 0
        while items[k].kind == 'salu': k += 1
        addpost(g, items[:k+1])
        for it in items[k+1:]:
            g += step; addpost(g, [it])
        nxt = g + step
    return nxt

def bf16_round(dst, src):
    return [I(f"v_cvt_pk_bf16_f32 v{dst}, v{src}, v{src}"), I(f"v_and_b32 v{dst}, 0xffff0000, v{dst}")]

def sum32(v, t):
    return [I(f"v_add_f32_dpp v{v}, v{v}, v{v} quad_perm:[1,0,3,2] row_mask:0xf bank_mask:0xf"),
            I(f"v_add_f32_dpp v{v}, v{v}, v{v} quad_perm:[2,3,0,1] row_mask:0xf bank_mask:0xf"),
            I(f"v_add_f32_dpp v{v}, v{v}, v{v} row_half_mirror row_mask:0xf bank_mask:0xf"),
            I(f"v_add_f32_dpp v{v}, v{v}, v{v} row_mirror row_mask:0xf bank_mask:0xf"),
            I(f"v_mov_b32 v{t}, v{v}"),
            I(f"v_permlane16_swap_b32 v{v}, v{t}"),
            I(f"v_add_f32 v{v}, v{v}, v{t}")]

def gen_k1():
    sX, sC, sW, sO, sXN = 8, 12, 16, 20, 24
    sWave, sWoff, sCoff, sOb, sT, sM0c = 28, 29, 30, 31, 32, 33
    sScale = 34
    ACC = [0, 64]; WF = 128; PK = 192
    vWtr = [224, 228, 232]
    vWd = 236; vCd = 240; vCr = 244; vL16 = 246; TMP = 248
    P = []
    P += [I("s_cmp_ge_u32 s2, 256"), I("s_cbranch_scc1 K1_end"),
          I(f"s_load_dwordx4 s[36:39], s[0:1], {A_X}"),
          I(f"s_load_dwordx4 s[40:43], s[0:1], {A_WUK}"),
          I(f"s_load_dwordx2 s[44:45], s[0:1], {A_WS}"),
          I(f"v_and_b32 v{TMP+4}, 63, v0"),
          I(f"v_lshrrev_b32 v{TMP}, 6, v0"),
          I(f"v_lshlrev_b32 v{vL16}, 4, v{TMP+4}"),
          I(f"v_readfirstlane_b32 s{sWave}, v{TMP}"),
          I("s_and_b32 s46, s2, 7"),
          I("s_lshr_b32 s47, s2, 3"),
          I("s_lshr_b32 s48, s47, 2"),
          I("s_bfe_u32 s49, s47, 0x10001"),
          I("s_and_b32 s50, s47, 1"),
          I("s_lshl_b32 s51, s46, 2"), I("s_lshl_b32 s50, s50, 1"), I("s_add_u32 s51, s51, s50"),
          I(f"s_mov_b32 s{sScale}, {f32(QSCALE)}"),
          ]
    P += lane_consts_wdma(vWd, 8192, TMP, natural=True)
    ln = TMP + 4
    P += [I(f"v_lshrrev_b32 v{TMP}, 3, v{ln}"), I(f"v_and_b32 v{TMP+1}, 7, v{ln}"),
          I(f"v_lshrrev_b32 v{TMP+2}, 1, v{TMP}"), I(f"v_xor_b32 v{TMP+1}, v{TMP+1}, v{TMP+2}"),
          I(f"v_lshlrev_b32 v{TMP}, 10, v{TMP}")]
    for b in range(4):
        P += [I(f"v_xor_b32 v{TMP+2}, {4*(b%2)}, v{TMP+1}"),
              I(f"v_lshl_add_u32 v{vCd+b}, v{TMP+2}, 4, v{TMP}")]
        if b: P.append(I(f"v_add_u32 v{vCd+b}, {8*b*1024 - 1024*b}, v{vCd+b}"))
    P += [I("s_waitcnt lgkmcnt(0)")]
    P += stamp(0) + stamp_init(sWave)
    P += srd(sX, 36, 2*MB) + srd(sC, 38, 2*MB)
    P += [I("s_cmp_eq_u32 s49, 0"), I("s_cselect_b64 s[40:41], s[40:41], s[42:43]")]
    P += srd(sW, 40, 4*MB)
    P += [I(f"s_cselect_b32 s52, {WS_K}, {WS_V}"),
          I(f"s_add_u32 s{sO}, s44, s52"), I(f"s_addc_u32 s{sO+1}, s45, 0"),
          I(f"s_mov_b32 s{sO+2}, {16*MB:#x}"), I(f"s_mov_b32 s{sO+3}, 0x20000")]
    P += srd(sXN, 44, 2*MB, WS_XN)
    P += [I(f"s_lshl_b32 s{sWoff}, s{sWave}, 18"), I("s_lshl_b32 s52, s51, 8"), I(f"s_add_u32 s{sWoff}, s{sWoff}, s52"),
          I(f"s_lshl_b32 s{sCoff}, s48, 18"), I(f"s_lshl_b32 s52, s{sWave}, 16"), I(f"s_add_u32 s{sCoff}, s{sCoff}, s52"),
          I(f"s_lshl_b32 s{sOb}, s51, 5"), I("s_lshl_b32 s52, s48, 2"), I(f"s_add_u32 s{sOb}, s{sOb}, s52"),
          I(f"s_add_u32 s{sOb}, s{sOb}, s{sWave}"), I(f"s_lshl_b32 s{sOb}, s{sOb}, 14"),
          I(f"s_mul_i32 s{sM0c}, s{sWave}, 24576"),
          I(f"s_lshl_b32 s53, s{sWave}, 12"),
          ]
    XR = 128
    P += [I("s_lshl_b32 s54, s2, 3"), I(f"s_lshl_b32 s55, s{sWave}, 1"), I("s_add_u32 s54, s54, s55"),
          I("s_lshl_b32 s55, s54, 10"),
          I(f"buffer_load_dwordx4 {vr(XR)}, v{vL16}, s[{sX}:{sX+3}], s55 offen"),
          ]
    P.pop()
    P += [I(f"v_lshrrev_b32 v{TMP}, 5, v{ln}"), I(f"v_and_b32 v{TMP+1}, 31, v{ln}"),
          I(f"v_lshlrev_b32 v{TMP+2}, 4, v{TMP+1}"), I(f"v_lshl_add_u32 v{TMP+2}, v{TMP}, 10, v{TMP+2}"),
          I(f"buffer_load_dwordx4 {vr(XR)}, v{TMP+2}, s[{sX}:{sX+3}], s55 offen"),
          I(f"buffer_load_dwordx4 {vr(XR+4)}, v{TMP+2}, s[{sX}:{sX+3}], s55 offen offset:512")]
    vXS = 152
    P += [I(f"v_add_u32 v{TMP}, s54, v{TMP}"),
          I(f"v_lshrrev_b32 v{TMP+2}, 4, v{TMP}"), I(f"v_lshlrev_b32 v{vXS}, 14, v{TMP+2}"),
          I(f"v_and_b32 v{TMP}, 15, v{TMP}"), I(f"v_lshl_add_u32 v{vXS}, v{TMP}, 4, v{vXS}"),
          I(f"v_lshrrev_b32 v{TMP+2}, 2, v{TMP+1}"), I(f"v_lshl_add_u32 v{vXS}, v{TMP+2}, 10, v{vXS}"),
          I(f"v_and_b32 v{TMP+2}, 3, v{TMP+1}"), I(f"v_lshl_add_u32 v{vXS}, v{TMP+2}, 8, v{vXS}")]

    def c_dma(ch):
        L = []
        for grp in range(2):
            L += [I(f"s_add_u32 m0, s{sM0c}, {(ch % 3)*8192 + grp*4096}"),
                  I(f"s_add_u32 s{sT}, s{sCoff}, {ch*128 + grp*32768}")]
            for b in range(4):
                L.append(I(f"buffer_load_dwordx4 v{vCd+b}, s[{sC}:{sC+3}], s{sT} offen offset:{1024*b} lds", tag=('vm', f'c{ch}')))
        return L
    wslot = {}
    def w_dma(u, slot):
        wslot[u] = slot
        cp, kq = divmod(u, 4)
        L = [I(f"s_add_u32 m0, s53, {slot*16384}"),
             I(f"s_add_u32 s{sT}, s{sWoff}, {kq*4*262144 + cp*128}")]
        for b in range(4):
            L.append(I(f"buffer_load_dwordx4 v{vWd+b}, s[{sW}:{sW+3}], s{sT} offen offset:{1024*b} lds", tag=('vm', f'w{u}')))
        return L
    P += c_dma(0) + w_dma(0, 6) + c_dma(1) + w_dma(1, 7) + c_dma(2) + w_dma(2, 8) + w_dma(3, 9)
    for k in range(3):
        P += lane_consts_wtr(vWtr[k], 65536*k, TMP, natural=True)
    P += [I(f"v_and_b32 v{TMP}, 15, v{ln}"),
          I(f"v_bfe_u32 v{TMP+1}, v{ln}, 2, 1"), I(f"v_bfe_u32 v{TMP+2}, v{ln}, 3, 1"),
          I(f"v_xor_b32 v{TMP+1}, v{TMP+1}, v{TMP+2}"),
          I(f"v_mul_u32_u24 v{TMP+1}, 12, v{TMP+1}"),
          I(f"v_mul_lo_u32 v{TMP+1}, v{TMP+1}, s49"),
          I(f"v_xor_b32 v{TMP}, v{TMP}, v{TMP+1}"),
          I(f"v_lshrrev_b32 v{TMP+1}, 1, v{TMP}"), I(f"v_lshrrev_b32 v{TMP+2}, 4, v{ln}"),
          I(f"v_xor_b32 v{TMP+1}, v{TMP+1}, v{TMP+2}"),
          I(f"v_lshlrev_b32 v{TMP}, 7, v{TMP}"), I(f"v_add_u32 v{TMP}, s{sM0c}, v{TMP}"),
          I(f"v_lshl_add_u32 v{vCr}, v{TMP+1}, 4, v{TMP}"),
          I(f"v_xor_b32 v{TMP+1}, 4, v{TMP+1}"),
          I(f"v_lshl_add_u32 v{vCr+1}, v{TMP+1}, 4, v{TMP}")]
    U = 136; S = 153; T2 = 154; MB_ = 155; RS = 156
    for k in range(8):
        P += [I(f"v_lshlrev_b32 v{U+2*k}, 16, v{XR+k}"), I(f"v_and_b32 v{U+2*k+1}, 0xffff0000, v{XR+k}")]
    P += [I(f"v_add_f32 v{S}, v{U}, v{U+1}")] + [I(f"v_add_f32 v{S}, v{S}, v{U+k}") for k in range(2, 16)]
    P += sum32(S, T2)
    P += [I(f"v_mul_f32 v{S}, {f32(1/512)}, v{S}")]
    P += bf16_round(MB_, S)
    P += [I(f"v_sub_f32 v{T2}, v{U}, v{S}"), I(f"v_mul_f32 v{RS}, v{T2}, v{T2}")]
    for k in range(1, 16):
        P += [I(f"v_sub_f32 v{T2}, v{U+k}, v{S}"), I(f"v_fmac_f32 v{RS}, v{T2}, v{T2}")]
    P += sum32(RS, T2)
    P += [I(f"v_mul_f32 v{RS}, {f32(1/512)}, v{RS}")]
    P += bf16_round(RS, RS)
    P += [I(f"v_add_f32 v{RS}, {f32(1e-5)}, v{RS}")]
    P += bf16_round(RS, RS)
    P += [I(f"v_sqrt_f32 v{RS}, v{RS}")]
    P += bf16_round(RS, RS)
    P += [I(f"v_rcp_f32 v{RS}, v{RS}")]
    for k in range(8):
        a, b = U+2*k, U+2*k+1
        P += [I(f"v_sub_f32 v{a}, v{a}, v{MB_}"), I(f"v_sub_f32 v{b}, v{b}, v{MB_}"),
              I(f"v_cvt_pk_bf16_f32 v{T2}, v{a}, v{b}"),
              I(f"v_lshlrev_b32 v{a}, 16, v{T2}"), I(f"v_and_b32 v{b}, 0xffff0000, v{T2}"),
              I(f"v_mul_f32 v{a}, v{a}, v{RS}"), I(f"v_mul_f32 v{b}, v{b}, v{RS}"),
              I(f"v_cvt_pk_bf16_f32 v{XR+k}, v{a}, v{b}")]
    P += [I("s_movk_i32 s56, 0x2000"),
          I(f"buffer_store_dwordx4 {vr(XR)}, v{vXS}, s[{sXN}:{sXN+3}], 0 offen"),
          I(f"buffer_store_dwordx4 {vr(XR+4)}, v{vXS}, s[{sXN}:{sXN+3}], s56 offen"),
          I("s_cmp_eq_u32 s49, 0"), I("s_cbranch_scc0 K1_V")]
    P, lgq, vmq = finish(P, name="k1 pro")
    wslot0 = dict(wslot)

    def c_reads(ch):
        L = []
        for ks2 in range(2):
            for kb in range(4):
                a = (kb*16 + 2*ch + ks2) * 4
                L.append(I(f"ds_read_b128 {ar(a)}, v{vCr+ks2} offset:{(ch % 3)*8192 + kb*2048}"))
        return L
    def w_reads(n):
        u, rem = divmod(n, 16); ksl, c = divmod(rem, 4)
        off = wslot[u]*16384 + ksl*4096
        base, off = divmod(off, 65536)
        r = WF + (n % 16)*4
        return [I(f"ds_read_b64_tr_b16 {vr(r,2)}, v{vWtr[base]+c} offset:{off}"),
                I(f"ds_read_b64_tr_b16 {vr(r+2,2)}, v{vWtr[base]+c} offset:{off+1024}")]
    def epilogue(cp, isV):
        acc = ACC[cp % 2]
        V = []
        for f in range(8):
            if isV:
                kb, dbl = divmod(f, 2)
                X = acc + ((2*dbl)*4 + kb)*4; Y = acc + ((2*dbl+1)*4 + kb)*4
                soff = (cp//2)*32*16384 + kb*4096; ioff = (2*(cp % 2) + dbl)*1024
            else:
                kb32, c = divmod(f, 4)
                X = acc + (c*4 + 2*kb32)*4; Y = acc + (c*4 + 2*kb32 + 1)*4
                soff = (cp//2)*32*16384 + kb32*8192 + (cp % 2)*4096; ioff = c*1024
            T = PK + f*4
            if not isV:
                for r in list(range(X, X+4)) + list(range(Y, Y+4)):
                    V.append(I(f"v_mul_f32 v{r}, s{sScale}, v{r}"))
            V += [I(f"v_cvt_pk_bf16_f32 v{T}, v{X}, v{X+1}"), I(f"v_cvt_pk_bf16_f32 v{T+2}, v{Y}, v{Y+1}"),
                  I(f"v_cvt_pk_bf16_f32 v{T+1}, v{X+2}, v{X+3}"), I(f"v_cvt_pk_bf16_f32 v{T+3}, v{Y+2}, v{Y+3}"),
                  I(f"s_add_u32 s57, s{sOb}, {soff}"),
                  I(f"v_permlane16_swap_b32 v{T}, v{T+2}"), I(f"v_permlane16_swap_b32 v{T+1}, v{T+3}"),
                  I(f"buffer_store_dwordx4 {vr(T)}, v{vL16}, s[{sO}:{sO+3}], s57 offen offset:{ioff} {ST_FLAGS}")]
        return V

    def main(isV):
        wslot.clear(); wslot.update(wslot0)
        PF = 4
        plan = {4: (2, 6), 5: (3, 7), 6: (4, 8), 7: (5, 9), 8: (5, 0), 9: (6, 1), 10: (6, 2), 11: (7, 3), 12: (7, 4),
                13: (8, 5), 14: (8, 6), 15: (9, 7)}
        for u, (b, s) in plan.items(): wslot[u] = s
        L = stamp(1) + [needvm('c0')] + c_reads(0) + [needvm('w0'), I("s_barrier")] + stamp(2)
        for n in range(PF): L += w_reads(n)
        mf = []; post = {}; valu = []; dmaq = []
        def addpost(g, items): post.setdefault(g, []).extend(items)
        for n in range(256):
            u, rem = divmod(n, 16); ksl, c = divmod(rem, 4); cp, kq = divmod(u, 4); ks = 4*kq + ksl
            acc = ACC[cp % 2]
            wf = vr(WF + (n % 16)*4)
            for kb in range(4):
                d = vr(acc + (c*4 + kb)*4); cf = ar((kb*16 + ks)*4)
                cin = "0" if ks == 0 else d
                mf.append(I(f"{M16} {d}, {cf}, {wf}, {cin}" if isV else f"{M16} {d}, {wf}, {cf}, {cin}"))
            g0 = 4*n
            m = n + PF
            if m < 256:
                if m % 16 == 0:
                    um = m // 16
                    addpost(g0, [needvm(f'w{um}'), I("s_barrier")])
                    for uu, (b, s) in plan.items():
                        if b == um: dmaq.append((g0 + 2, w_dma(uu, s)))
                rd = w_reads(m)
                addpost(g0 + 1, rd[:1]); addpost(g0 + 2, rd[1:])
            if cp == 0 and n % 8 == 2 and n // 8 + 1 < 8:
                ch = n // 8 + 1
                rd = c_reads(ch)
                addpost(g0, [needvm(f'c{ch}')])
                for k, r in enumerate(rd): addpost(g0 + 3 + 2*k - (k % 2), [r])
            if cp == 0 and n % 8 == 5 and n // 8 + 3 < 8:
                dm = c_dma(n // 8 + 3)
                dmaq.append((g0 + 3, dm[:6])); dmaq.append((g0 + 3, dm[6:]))
        place_dma(dmaq, addpost)
        for k in range(3): addpost(256*(k+1) - 1, stamp(3 + k))
        for cp in range(3):
            for v in epilogue(cp, isV): valu.append((256*(cp+1) + 8, v))
        body, left = weave(mf, post, valu, lambda g, p: 1 if any(x.kind in ('dsr', 'dma') for x in p) else 2)
        assert left == 0
        L += body + stamp(6) + epilogue(3, isV) + stamp_out(8, 44, 0) + [I("s_endpgm")]
        L, _, _ = finish(L, lgq, vmq, P, name="k1 " + ("V" if isV else "K"))
        return L
    body = text(P) + "\n" + text(main(False)) + "\nK1_V:\n" + text(main(True)) + "\nK1_end:\n    s_endpgm\n"
    return kernel_text("k1_kernel", body, 512, 256)

HEADER = open(f"cdna_kernels/{NAME}.s.ref").read().split("; Override")[0]

def build(kernels):
    launches = {"k1": ("k1_kernel", 256, 256, 163840), "k2": ("k2_kernel", 256, 256, 163840),
                "k3": ("k3_kernel", 256, 256, 131072), "k4": ("k4_kernel", 256, 256, 0)}
    gens = {"k1": gen_k1}
    import importlib
    for k in ("k2", "k3", "k4"):
        if k in kernels: gens[k] = getattr(importlib.import_module("gen_k2" if k == "k2" else "gen_k34"), "gen_" + k)
    s = HEADER
    for k in kernels:
        n, g, b, l = launches[k]
        s += f"; @launch kernel={n} grid=({g},1,1) block=({b},1,1) lds={l}\n"
    s += '.amdgcn_target "amdgcn-amd-amdhsa--gfx950"\n'
    for k in dict.fromkeys(kernels): s += gens[k]()
    return s

def main():
    global PROF
    out = sys.argv[1]; ks = sys.argv[2].split(",")
    PROF = "--prof" in sys.argv
    open(out, "w").write(build(ks))
if __name__ == "__main__":
    import gen
    gen.main()
```

```python
import re

_REG = re.compile(r'\b([vas])\[(\d+):(\d+)\]|\b([vas])(\d+)\b|\b(vcc|exec|m0|scc)\b')

def regs_in(s):
    out = []
    for m in _REG.finditer(s):
        if m.group(1):
            out += [f"{m.group(1)}{i}" for i in range(int(m.group(2)), int(m.group(3)) + 1)]
        elif m.group(4):
            out.append(f"{m.group(4)}{m.group(5)}")
        else:
            out.append(m.group(6))
    return out

TRANS = ('v_exp_f32', 'v_log_f32', 'v_rcp_f32', 'v_rsq_f32', 'v_sqrt_f32', 'v_sin_f32', 'v_cos_f32')

class Ins:
    __slots__ = ('txt', 'op', 'kind', 'wr', 'rd', 'passes', 'A', 'B', 'C', 'D', 'tag', 'states', 'wide')
    def __init__(self, txt, tag=None):
        self.txt = txt.strip()
        self.tag = tag
        self.passes = 0
        self.A = self.B = self.C = self.D = ()
        self.states = 1
        self.wide = False
        t = self.txt.split(';')[0].strip()
        if t.endswith(':') or t.startswith('.') or not t:
            self.op = 'label'; self.kind = 'label'; self.wr = set(); self.rd = set(); self.states = 0
            return
        parts = t.split(None, 1)
        op = parts[0]; self.op = op
        rest = parts[1] if len(parts) > 1 else ''
        ops = [o.strip() for o in re.split(r',(?![^\[]*\])', rest)] if rest else []
        R = lambda i: regs_in(ops[i]) if i < len(ops) else []
        allr = lambda a: [r for o in ops[a:] for r in regs_in(o)]
        wr, rd = [], []
        if op.startswith('v_mfma'):
            self.kind = 'mfma'
            self.passes = 8 if '32x32x16' in op else 4
            self.D, self.A, self.B, self.C = tuple(R(0)), tuple(R(1)), tuple(R(2)), tuple(R(3))
            wr = list(self.D); rd = list(self.A + self.B + self.C)
        elif op.startswith('v_cmp'):
            self.kind = 'valu'; wr = R(0); rd = allr(1)
        elif op.startswith('v_permlane') and 'swap' in op:
            self.kind = 'valu'; wr = R(0) + R(1); rd = R(0) + R(1)
        elif op.startswith('v_'):
            self.kind = 'trans' if any(op.startswith(x) for x in TRANS) else 'valu'
            wr = R(0); rd = allr(1)
            if op.startswith(('v_fmac', 'v_dot2c', 'v_writelane')): rd += R(0)
            if op.startswith(('v_add_co', 'v_sub_co', 'v_addc_co')): wr += R(1); rd = allr(2)
            if op.startswith('v_cndmask') and len(ops) == 3: rd.append('vcc')
            if 'dpp' in t or 'row_' in t or 'quad_perm' in t: rd += R(0)
        elif op.startswith('ds_read') or op.startswith('ds_bpermute') or op.startswith('ds_swizzle'):
            self.kind = 'dsr'; wr = R(0); rd = allr(1)
        elif op.startswith('ds_write'):
            self.kind = 'dsw'; rd = allr(0)
        elif op.startswith(('buffer_load', 'global_load')):
            if re.search(r'\blds\b', t):
                self.kind = 'dma'; rd = allr(0) + ['m0']
            else:
                self.kind = 'vld'; wr = R(0); rd = allr(1)
        elif op.startswith(('buffer_store', 'global_store')):
            self.kind = 'vst'; rd = allr(0)
            self.wide = op.endswith(('x4', 'x3'))
            self.D = tuple(R(0))
        elif op.startswith('buffer_') or op.startswith('global_'):
            self.kind = 'vmisc'; rd = allr(0)
        elif op in ('s_sleep', 's_setprio'):
            self.kind = 'salu'
        elif op == 's_waitcnt':
            self.kind = 'wait'
        elif op == 's_barrier':
            self.kind = 'barrier'
        elif op == 's_nop':
            self.kind = 'nop'; self.states = int(ops[0], 0) + 1
        elif op.startswith(('s_cbranch', 's_branch', 's_setpc', 's_call', 's_swappc', 's_endpgm')):
            self.kind = 'branch'; rd = allr(0)
            if op.startswith('s_call'): wr = R(0); rd = []
        elif op.startswith(('s_load', 's_memtime', 's_memrealtime')):
            self.kind = 'smem'; wr = R(0); rd = allr(1)
        elif op.startswith('s_cmp') or op.startswith('s_bitcmp'):
            self.kind = 'salu'; rd = allr(0); wr = ['scc']
        elif op.startswith('s_'):
            self.kind = 'salu'; wr = R(0); rd = allr(1)
            if op.startswith(('s_addk', 's_mulk')): rd += R(0)
        else:
            raise ValueError("unknown instruction: " + txt)
        self.wr = set(wr); self.rd = set(rd)
    def __repr__(self): return self.txt

def I(txt, tag=None): return Ins(txt, tag)

def _need(p, c):
    n = 0
    pv = p.kind in ('valu', 'trans')
    cv = c.kind in ('valu', 'trans')
    if pv:
        vw = {r for r in p.wr if r[0] in 'va' and r != 'vcc'}
        sw = p.wr - vw
        if c.kind == 'mfma' and vw & c.rd: n = max(n, 2)
        if p.kind == 'trans' and c.kind == 'valu' and vw & c.rd: n = max(n, 1)
        if p.kind == 'trans' and c.kind in ('vst', 'dsw') and vw & c.rd: n = max(n, 1)
        if c.op.startswith('v_permlane') and vw & c.rd: n = max(n, 2)
        if c.op.startswith(('v_readlane', 'v_readfirstlane')) and vw & c.rd: n = max(n, 1)
        if cv and ('dpp' in c.txt or 'row_' in c.txt or 'quad_perm' in c.txt) and vw & c.rd: n = max(n, 2)
        if sw & c.rd:
            if cv: n = max(n, 2)
            if c.kind in ('vld', 'vst', 'dma', 'vmisc'): n = max(n, 5)
            if c.kind in ('salu', 'branch'): n = max(n, 1)
        if 'exec' in p.wr and c.kind == 'mfma': n = max(n, 4)
    if p.kind == 'mfma':
        big = 12 if p.passes == 8 else 8
        D = set(p.D)
        if c.kind == 'mfma':
            if D & set(c.A + c.B): n = max(n, big)
            if D & set(c.C):
                if not (tuple(c.C) == tuple(p.D) and c.passes == p.passes): n = max(n, big - 2)
            elif D & set(c.D): n = max(n, big - 2)
        elif c.kind in ('valu', 'trans'):
            if D & (c.rd | c.wr): n = max(n, big)
            if set(p.C) & c.wr: n = max(n, 7 if p.passes == 8 else 3)
        elif c.kind in ('vst', 'dsw', 'dma', 'vmisc'):
            if D & c.rd: n = max(n, big)
        elif c.kind in ('vld', 'dsr'):
            if D & (c.rd | c.wr): n = max(n, big)
            if set(p.C) & c.wr: n = max(n, 7 if p.passes == 8 else 3)
    if p.kind == 'vst' and p.wide and set(p.D) & c.wr:
        n = max(n, 2)
    if p.kind == 'salu' and 'm0' in p.wr and c.kind == 'dma': n = max(n, 1)
    return n

def pad_hazards(ins, prev=None, verbose=None):
    out = []
    hist = list(prev[-24:]) if prev else []
    npad = 0
    for c in ins:
        if c.kind == 'label':
            out.append(c); continue
        need = 0; dist = 0; why = None
        for p in reversed(hist):
            if dist >= 20: break
            n = _need(p, c)
            if n - dist > need: need = n - dist; why = p
            dist += p.states
        while need > 0:
            k = min(need, 16)
            nop = Ins(f"s_nop {k-1}")
            out.append(nop); hist.append(nop); need -= k; npad += k
            if verbose is not None: verbose.append((k, why.txt, c.txt))
        out.append(c); hist.append(c)
        if len(hist) > 64: hist = hist[-32:]
    return out, npad

def insert_lgkm(ins, init=None):
    q = [set(x) for x in (init or [])]
    out = []
    for c in ins:
        if c.kind == 'wait':
            m = re.search(r'lgkmcnt\((\d+)\)', c.txt)
            if m:
                k = int(m.group(1))
                while len(q) > k: q.pop(0)
            out.append(c); continue
        touched = c.rd | c.wr
        if c.kind == 'label' and c.tag and c.tag[0] == 'needlg': touched = c.tag[1]
        pos = -1
        for i, s in enumerate(q):
            if s & touched: pos = i
        if pos >= 0:
            n = len(q) - pos - 1
            n = min(n, 15)
            out.append(Ins(f"s_waitcnt lgkmcnt({n})"))
            while len(q) > n: q.pop(0)
        if c.kind == 'dsr': q.append(set(c.wr))
        elif c.kind == 'dsw': q.append(set())
        elif c.kind == 'smem':
            assert not q, "smem with ds ops outstanding"

        out.append(c)
    return out, q

def insert_vm(ins, init=None):
    q = list(init or [])
    out = []
    for c in ins:
        if c.tag and c.tag[0] == 'novm':
            out.append(c); continue
        if c.kind == 'wait':
            m = re.search(r'vmcnt\((\d+)\)', c.txt)
            if m:
                k = int(m.group(1))
                while len(q) > k: q.pop(0)
            out.append(c); continue
        pos = -1
        if c.kind == 'label' and c.tag and c.tag[0] == 'needvm':
            names = c.tag[1:]
            for i, (s, nm) in enumerate(q):
                if nm in names: pos = i
            if pos >= 0:
                n = min(len(q) - pos - 1, 63)
                out.append(Ins(f"s_waitcnt vmcnt({n})"))
                while len(q) > n: q.pop(0)
            continue
        touched = c.rd | c.wr
        for i, (s, nm) in enumerate(q):
            if s & touched: pos = i
        if pos >= 0:
            n = min(len(q) - pos - 1, 63)
            out.append(Ins(f"s_waitcnt vmcnt({n})"))
            while len(q) > n: q.pop(0)
        if c.kind in ('vld', 'dma', 'vst', 'vmisc'):
            nm = c.tag[1] if (c.tag and c.tag[0] == 'vm') else None
            if len(q) >= 60:
                out.append(Ins("s_waitcnt vmcnt(52)"))
                while len(q) > 52: q.pop(0)
            q.append((set(c.wr) if c.kind == 'vld' else set(), nm))
        out.append(c)
    return out, q

def needlg(regs): return Ins("", tag=('needlg', set(regs)))
def needvm(*names): return Ins("", tag=('needvm',) + names)

def cost(c):
    if isinstance(c, list): return sum(cost(x) for x in c)
    if c.kind == 'trans': return 2
    if c.kind == 'label': return 1 if (c.tag and c.tag[0] == 'pad') else 0
    return 1

def weave(mfmas, post, valu, budget, flush_dep=False):
    out = []
    vi = 0
    for g, m in enumerate(mfmas):
        if flush_dep:
            need = set(m.A) | set(m.B); k = -1
            for j in range(vi, len(valu)):
                it = valu[j][1]
                if not isinstance(it, list) and it.wr & need: k = j
            while vi <= k:
                it = valu[vi][1]
                assert valu[vi][0] <= g, "forced flush violates min gap"
                out += it if isinstance(it, list) else [it]
                vi += 1
        out.append(m)
        p = post.get(g, [])
        out += p
        b = budget(g, p)
        while vi < len(valu) and valu[vi][0] <= g and b >= cost(valu[vi][1]):
            b -= cost(valu[vi][1])
            it = valu[vi][1]
            if isinstance(it, list): out += it
            else: out.append(it)
            vi += 1
    left = []
    for x in valu[vi:]:
        left += x[1] if isinstance(x[1], list) else [x[1]]
    out += left
    return out, len(left)

def text(ins):
    return "\n".join((c.txt if c.kind == 'label' else " " + c.txt) for c in ins if c.txt)
```

```python
import sys, math, struct
from asmlib import *

NAME = "parallel_sum__compressed_kv_cla__dense_activation_gelu__prompt"
MB = 1 << 20
WS_K, WS_V, WS_XN, WS_H, WS_CTX, WS_P, WS_F = 0, 16*MB, 32*MB, 34*MB, 48*MB, 64*MB, 80*MB
WS_SIZE = 81*MB
A_X, A_CKV, A_WQ, A_WUK, A_WUV, A_WO, A_BX, A_W1, A_B1, A_W2, A_B2, A_OUT, A_DBG, A_WS = [8*i for i in range(14)]
def f32(x): return "0x%08x" % struct.unpack("<I", struct.pack("<f", x))[0]
QSCALE = (128 ** -0.5) * math.log2(math.e)
M16 = "v_mfma_f32_16x16x32_bf16"
M32 = "v_mfma_f32_32x32x16_bf16"
def vr(b, n=4): return f"v[{b}:{b+n-1}]"
def ar(b, n=4): return f"a[{b}:{b+n-1}]"
def sr(b, n=4): return f"s[{b}:{b+n-1}]"
ST = "sc0 sc1"
LD = "sc1"

class Opt:
    prof = False
    verbose = 4
OPT = Opt()
def flag(n): return ('--' + n) in sys.argv
def val(n, d):
    for a in sys.argv:
        if a.startswith('--' + n + '='): return type(d)(a.split('=')[1])
    return d

sWS, sX, sC, sWkv, sWQ, sW1, sB1, sKS, sVS, sWO, sW2, sB2, sOUT, sDBG = [8 + 4*i for i in range(14)]
sWave, sXcd, sI, sHl, sT, sT2, sT3, sW4096, sW1024, sFlagMe = range(64, 74)
PROF_BASE = 128*MB
vPR, vPC = 254, 255

def stamp(k):
    if not OPT.prof: return []
    return [I("s_waitcnt lgkmcnt(0)"), I("s_memrealtime s[0:1]"), I("s_memtime s[100:101]"), I("s_waitcnt lgkmcnt(0)"),
            I(f"v_writelane_b32 v{vPR}, s0, {k}"), I(f"v_writelane_b32 v{vPC}, s100, {k}")]
def stamp_out(k):
    if not OPT.prof: return []
    return [I("s_waitcnt vmcnt(0)")] + stamp(k) + [
        I(f"s_mov_b32 s{sWS+2}, {PROF_BASE + MB:#x}"),
        I("v_mbcnt_lo_u32_b32 v0, -1, 0"), I("v_mbcnt_hi_u32_b32 v0, -1, v0"), I("v_lshlrev_b32 v0, 3, v0"),
        I(f"s_lshl_b32 s4, s2, 2"), I(f"s_add_u32 s4, s4, s{sWave}"), I("s_lshl_b32 s4, s4, 9"), I(f"s_add_u32 s4, s4, {PROF_BASE:#x}"),
        I(f"buffer_store_dwordx2 v[{vPR}:{vPC}], v0, {sr(sWS)}, s4 offen")]

def finish(ins, lg_init=None, vm_init=None, prev=None, name="", vm=True):
    q1 = None
    if vm: ins, q1 = insert_vm(ins, vm_init)
    ins, q2 = insert_lgkm(ins, lg_init)
    vb = []
    ins, npad = pad_hazards(ins, prev, vb)
    if npad and OPT.verbose:
        print(f"[{name}] padded {npad} wait states", file=sys.stderr)
        for k, a, b in vb[:OPT.verbose]: print(f"    {k}: {a}  ->  {b}", file=sys.stderr)
    return ins, q2, q1

def place_dma(dmaq, addpost, step=2, ok=lambda g: True):
    nxt = 0
    for g, items in sorted(dmaq, key=lambda x: x[0]):
        g = max(g, nxt)
        while not ok(g): g += 1
        k = 0
        while items[k].kind == 'salu': k += 1
        if k == 1 and 'm0' in items[0].wr:
            addpost(g, items[:1]); g += 1
            while not ok(g): g += 1
            addpost(g, items[1:2])
        else:
            addpost(g, items[:k+1])
        for it in items[k+1:]:
            g += step
            while not ok(g): g += 1
            addpost(g, [it])
        nxt = g + step
    return nxt

def lane_wtr(vdst, base, tmp, ln, natural=True):
    L = [I(f"v_lshrrev_b32 v{tmp}, 4, v{ln}"), I(f"v_bfe_u32 v{tmp+1}, v{ln}, 2, 2"), I(f"v_and_b32 v{tmp+2}, 1, v{tmp}"),
         I(f"v_lshl_add_u32 v{tmp+1}, v{tmp+2}, 2, v{tmp+1}"), I(f"v_lshrrev_b32 v{tmp}, 1, v{tmp}"),
         I(f"v_lshlrev_b32 v{tmp}, {11 if natural else 10}, v{tmp}"), I(f"v_lshl_add_u32 v{tmp}, v{tmp+1}, 7, v{tmp}"),
         I(f"v_and_b32 v{tmp+2}, 1, v{ln}"), I(f"v_lshl_add_u32 v{tmp}, v{tmp+2}, 3, v{tmp}"),
         I(f"v_bfe_u32 v{tmp+2}, v{ln}, 1, 1"), I(f"v_lshl_add_u32 v{tmp}, v{tmp+2}, 4, v{tmp}")]
    if base: L.append(I(f"v_add_u32 v{tmp}, {base}, v{tmp}"))
    L.append(I(f"v_and_b32 v{tmp+1}, 6, v{tmp+1}"))
    for c in range(4):
        L += [I(f"v_xor_b32 v{tmp+2}, {2*c}, v{tmp+1}"), I(f"v_lshl_add_u32 v{vdst+c}, v{tmp+2}, 4, v{tmp}")]
    return L

def lane_wdma(vdst, rowstride, tmp, ln, natural=True, nblk=4):
    L = [I(f"v_lshrrev_b32 v{tmp}, 3, v{ln}"), I(f"v_and_b32 v{tmp+1}, 7, v{ln}"), I(f"v_and_b32 v{tmp+2}, 6, v{tmp}"),
         I(f"v_xor_b32 v{tmp+1}, v{tmp+1}, v{tmp+2}"), I(f"v_lshlrev_b32 v{tmp+1}, 4, v{tmp+1}")]
    if natural:
        L += [I(f"v_and_b32 v{tmp+2}, 4, v{tmp}"), I(f"v_add_u32 v{tmp}, v{tmp}, v{tmp+2}")]
    L += [I(f"v_mul_u32_u24 v{tmp}, {rowstride}, v{tmp}"), I(f"v_add_u32 v{tmp}, v{tmp}, v{tmp+1}")]
    for b in range(nblk):
        rows = (4*(b % 2) + 16*(b // 2)) if natural else 8*b
        off = rows * rowstride - 1024 * b
        L.append(I(f"v_add_u32 v{vdst+b}, {off}, v{tmp}") if off else I(f"v_mov_b32 v{vdst+b}, v{tmp}"))
    return L

def pf_load(vj, voff, srd_, soff, extra=""):
    i = I(f"buffer_load_dword v{vj}, v{voff}, {sr(srd_)}, {soff} offen {extra}")
    i.wr = set()
    return i

_poll = [0]
def poll_issue(vp, vaddr, srd_, soff):
    return I(f"buffer_load_dword v{vp}, v{vaddr}, {sr(srd_)}, {soff} offen sc1")
def poll_check(vp, vaddr, srd_, soff, level, sc, inv=False):
    _poll[0] += 1; u = _poll[0]
    spin = [I(f"v_cmp_gt_u32 vcc, {level}, v{vp}"), I(f"s_cbranch_vccz PL_ok{u}"),
            I(f"s_mov_b32 s{sc}, 0x40000"), I(f"PL_sp{u}:"), I("s_sleep 2"),
            I(f"buffer_load_dword v{vp}, v{vaddr}, {sr(srd_)}, {soff} offen sc1", tag=('novm',)),
            I("s_waitcnt vmcnt(0)", tag=('novm',)),
            I(f"v_cmp_gt_u32 vcc, {level}, v{vp}"), I(f"s_cbranch_vccz PL_ok{u}"),
            I(f"s_sub_u32 s{sc}, s{sc}, 1"), I(f"s_cbranch_scc0 PL_sp{u}"), I(f"PL_ok{u}:")]
    if inv: spin.append(I("buffer_inv sc1"))
    return spin

def kernel_text(name, body, vgpr, accum, sgpr=102):
    return f""".text
.globl {name}
.p2align 8
.type {name},@function
{name}:
{body}
.section .rodata,"a"
.p2align 6
.amdhsa_kernel {name}
  .amdhsa_next_free_vgpr {vgpr}
  .amdhsa_next_free_sgpr {sgpr}
  .amdhsa_accum_offset {accum}
  .amdhsa_group_segment_fixed_size 0
  .amdhsa_kernarg_size 112
  .amdhsa_user_sgpr_count 2
  .amdhsa_user_sgpr_kernarg_segment_ptr 1
  .amdhsa_system_sgpr_workgroup_id_x 1
.end_amdhsa_kernel
"""
```

```python
from f_common import *

GC0 = -2.0 * math.sqrt(2.0 / math.pi) * math.log2(math.e)
GC1 = GC0 * 0.044715
sWoff, sCoff, sOb, sM0c, sScale, sType, s1o, sQo, sXL, sXH, sXLc, sXHc, sHL, sHH, sGC0, sB1o, sSt = range(74, 91)
sXrow, sWpf = 98, 99
sKt, sKm, sVt, sVm = 91, 92, 93, 94
sCL, sCH = 95, 96
ACCB = [0, 64, 0, 64, 0, 64, 128]
WF = 192; NWF = 8
vL16, vWtr, vWd, vW1d, vCd, vCr = 224, 225, 229, 233, 237, 241
vXo2 = 243; vJ = 187; vZero = 184; vOne = 185; vF1 = 186
GT = 236; GP = [244, 248]; vGC1 = 252
vKVd = 233
PK = 128; BIAS = 160; BRAW = 176
QF = lambda qb, ks: 128 + (qb*8 + ks)*4
XF = lambda b, ks: (b*16 + ks)*4

def bf16_round(dst, src):
    return [I(f"v_cvt_pk_bf16_f32 v{dst}, v{src}, v{src}"), I(f"v_and_b32 v{dst}, 0xffff0000, v{dst}")]
def sum32(v, t):
    return [I(f"v_add_f32_dpp v{v}, v{v}, v{v} quad_perm:[1,0,3,2] row_mask:0xf bank_mask:0xf"),
            I(f"v_add_f32_dpp v{v}, v{v}, v{v} quad_perm:[2,3,0,1] row_mask:0xf bank_mask:0xf"),
            I(f"v_add_f32_dpp v{v}, v{v}, v{v} row_half_mirror row_mask:0xf bank_mask:0xf"),
            I(f"v_add_f32_dpp v{v}, v{v}, v{v} row_mirror row_mask:0xf bank_mask:0xf"),
            I(f"v_mov_b32 v{t}, v{v}"), I(f"v_permlane16_swap_b32 v{v}, v{t}"), I(f"v_add_f32 v{v}, v{v}, v{t}")]

def c_dma(ch):
    gs = []
    for grp in range(2):
        L = [I(f"s_add_u32 m0, s{sM0c}, {(ch % 3)*8192 + grp*4096}"), I(f"s_add_u32 s{sT}, s{sCoff}, {ch*128 + grp*32768}")]
        L += [I(f"buffer_load_dwordx4 v{vCd+b}, {sr(sC)}, s{sT} offen offset:{1024*b} lds", tag=('vm', f'c{ch}')) for b in range(4)]
        gs.append(L)
    return gs
PLAN = {0: (0, 6), 1: (0, 7), 2: (0, 8), 3: (0, 9), 4: (2, 6), 5: (3, 7), 6: (4, 8), 7: (5, 9), 8: (5, 0), 9: (6, 1), 10: (6, 2), 11: (7, 3),
        12: (8, 4), 13: (9, 5), 14: (10, 6), 15: (11, 7), 16: (12, 8), 17: (13, 9), 18: (14, 0), 19: (15, 1), 20: (16, 2),
        21: (17, 5), 22: (18, 6), 23: (19, 7), 24: (20, 8), 25: (21, 9), 26: (22, 3), 27: (23, 5)}
def check_plan():
    held = {}
    for u in sorted(PLAN):
        b, s = PLAN[u]
        if s in held: assert b >= held[s] + 2, u
        elif s < 6: assert b >= 5, u
        held[s] = u
check_plan()
def w_dma(u):
    cp, kq = divmod(u, 4); slot = PLAN[u][1]
    if cp < 4: srd_, vo, so, off = sWkv, vWd, sWoff, kq*4*262144 + cp*128
    elif cp == 4: srd_, vo, so, off = sW1, vW1d, s1o, kq*4*32*3584
    else: srd_, vo, so, off = sWQ, vWd, sQo, kq*4*262144 + (cp - 5)*128
    L = [I(f"s_add_u32 m0, s{sW4096}, {slot*16384}"), I(f"s_add_u32 s{sT}, s{so}, {off}")]
    L += [I(f"buffer_load_dwordx4 v{vo+b}, {sr(srd_)}, s{sT} offen offset:{1024*b} lds", tag=('vm', f'w{u}')) for b in range(4)]
    return L
def kv_dma(which, tag=None):
    srd_, t, m = (sKS, sKt, sKm) if which == 'K' else (sVS, sVt, sVm)
    L = [I(f"s_mov_b32 m0, s{m}") if which == 'K' else I(f"s_add_u32 m0, s{m}, 0x10000"),
         I(f"s_mov_b32 s{sT2}, s{t}"),
         I(f"s_add_u32 s{t}, s{t}, 0x4000"), I(f"s_add_u32 s{m}, s{m}, 0x4000"), I(f"s_and_b32 s{m}, s{m}, 0xffff")]
    L += [I(f"buffer_load_dwordx4 v{vKVd}, {sr(srd_)}, s{sT2} offen offset:{1024*b} {LD} lds", tag=('vm', tag)) for b in range(4)]
    return L

def prologue():
    TMP = 184; ln = 188
    P = [I("s_cmp_ge_u32 s2, 256"), I("s_cbranch_scc1 F_end")]
    for s_, off in ((sX, A_X), (sC, A_CKV), (sWkv, A_WUK), (4, A_WUV), (sWS, A_WS), (sDBG, A_DBG), (sWQ, A_WQ), (sW1, A_W1), (sB1, A_B1),
                    (sWO, A_WO), (sW2, A_W2), (sB2, A_B2), (sOUT, A_OUT)):
        P.append(I(f"s_load_dwordx2 s[{s_}:{s_+1}], s[0:1], {off}"))
    P += [I(f"v_and_b32 v{ln}, 63, v0"), I(f"v_lshrrev_b32 v{TMP}, 6, v0"), I(f"v_lshlrev_b32 v{vL16}, 4, v{ln}"),
          I(f"v_readfirstlane_b32 s{sWave}, v{TMP}"),
          I(f"s_and_b32 s{sXcd}, s2, 7"), I(f"s_lshr_b32 s{sI}, s2, 5"), I(f"s_bfe_u32 s{sHl}, s2, 0x20003"),
          I(f"s_lshr_b32 s{sType}, s{sHl}, 1"),
          I(f"s_lshl_b32 s{sW4096}, s{sWave}, 12"), I(f"s_lshl_b32 s{sW1024}, s{sWave}, 10"),
          I(f"s_mul_i32 s{sM0c}, s{sWave}, 24576"),
          I(f"s_and_b32 s3, s{sHl}, 1"), I("s_lshl_b32 s3, s3, 1"), I(f"s_lshl_b32 s{sT}, s{sXcd}, 2"), I(f"s_add_u32 s3, s3, s{sT}"),
          I(f"s_lshl_b32 s{sWoff}, s{sWave}, 18"), I(f"s_lshl_b32 s{sT}, s3, 8"), I(f"s_add_u32 s{sWoff}, s{sWoff}, s{sT}"),
          I(f"s_lshl_b32 s{sCoff}, s{sI}, 18"), I(f"s_lshl_b32 s{sT}, s{sWave}, 16"), I(f"s_add_u32 s{sCoff}, s{sCoff}, s{sT}"),
          I(f"s_lshl_b32 s{sT3}, s2, 3"), I(f"s_lshl_b32 s{sT}, s{sWave}, 1"), I(f"s_add_u32 s{sT3}, s{sT3}, s{sT}"),
          I(f"s_lshl_b32 s{sT2}, s{sT3}, 10"),
          I(f"v_lshrrev_b32 v{TMP+5}, 5, v{ln}"), I(f"v_and_b32 v{TMP+6}, 31, v{ln}"),
          I(f"v_lshlrev_b32 v{TMP+7}, 4, v{TMP+6}"), I(f"v_lshl_add_u32 v{TMP+7}, v{TMP+5}, 10, v{TMP+7}")]
    P += [I(f"v_lshrrev_b32 v{TMP}, 3, v{ln}"), I(f"v_and_b32 v{TMP+1}, 7, v{ln}"),
          I(f"v_lshrrev_b32 v{TMP+2}, 1, v{TMP}"), I(f"v_xor_b32 v{TMP+1}, v{TMP+1}, v{TMP+2}"), I(f"v_lshlrev_b32 v{TMP}, 10, v{TMP}")]
    for b in range(4):
        P += [I(f"v_xor_b32 v{TMP+2}, {4*(b%2)}, v{TMP+1}"), I(f"v_lshl_add_u32 v{vCd+b}, v{TMP+2}, 4, v{TMP}")]
        if b: P.append(I(f"v_add_u32 v{vCd+b}, {7*b*1024}, v{vCd+b}"))
    P += lane_wdma(vWd, 8192, TMP, ln)
    for s_, size in ((sX, 2*MB), (sC, 2*MB), (sWkv, 4*MB), (sWS, WS_SIZE), (sDBG, 256), (sWQ, 4*MB), (sW1, 512*3584), (sB1, 3584),
                     (sWO, 4*MB), (sW2, 1792*1024), (sB2, 1024), (sOUT, 2*MB)):
        P += [I(f"s_mov_b32 s{s_+2}, {size:#x}"), I(f"s_mov_b32 s{s_+3}, 0x20000")]
    P += [I("s_waitcnt lgkmcnt(0)")] + stamp(0)
    if val('wsbase', 0):
        P += [I(f"s_add_u32 s{sWS}, s{sWS}, {val('wsbase', 0)*MB:#x}"), I(f"s_addc_u32 s{sWS+1}, s{sWS+1}, 0")]
    P += [I(f"s_cmp_eq_u32 s{sType}, 0"), I(f"s_cselect_b64 s[{sWkv}:{sWkv+1}], s[{sWkv}:{sWkv+1}], s[4:5]")]
    c0 = c_dma(0)
    P += c0[0] + c0[1] + w_dma(0)
    P += [I(f"v_mov_b32 v144, v{TMP+7}"), I(f"s_mov_b32 s{sXrow}, s{sT2}")]
    for ch in (1, 2):
        g = c_dma(ch); P += g[0] + g[1] + w_dma(ch)
    P += w_dma(3)
    P += [I(f"s_lshr_b32 s{sT}, s2, 3"), I(f"s_lshl_b32 s{sT}, s{sT}, 2"), I(f"s_add_u32 s97, s{sT}, s{sWave}"),
          I(f"v_lshlrev_b32 v{TMP}, 7, v{ln}"), I(f"s_lshl_b32 s{sT}, s97, 14"),
          *([] if flag('nopfc') else [pf_load(vJ, TMP, sC, f"s{sT}"), I(f"s_add_u32 s{sT}, s{sT}, 8192"), pf_load(vJ, TMP, sC, f"s{sT}")]),
          I(f"s_lshl_b32 s{sT}, s{sI}, 1"), I(f"s_and_b32 s{sT2}, s{sHl}, 1"), I(f"s_add_u32 s{sT}, s{sT}, s{sT2}"),
          I(f"s_lshl_b32 s{sT}, s{sT}, 2"), I(f"s_add_u32 s{sT}, s{sT}, s{sWave}"), I(f"s_lshl_b32 s{sT}, s{sT}, 16"),
          I(f"s_lshl_b32 s{sT2}, s{sXcd}, 10"), I(f"s_add_u32 s{sT}, s{sT}, s{sT2}"),
          I(f"v_lshrrev_b32 v{TMP+1}, 3, v{ln}"), I(f"v_lshlrev_b32 v{TMP+1}, 13, v{TMP+1}"),
          I(f"v_and_b32 v{TMP+2}, 7, v{ln}"), I(f"v_lshl_add_u32 v{TMP+1}, v{TMP+2}, 7, v{TMP+1}"),
          I(f"v_mov_b32 v145, v{TMP+1}"), I(f"s_mov_b32 s{sWpf}, s{sT}"),
          I("s_getpc_b64 s[6:7]"), I("F_pc:"),
          I(f"s_lshl_b32 s{sT}, s97, 12"), I(f"v_lshlrev_b32 v{TMP+2}, 6, v{ln}"), I(f"v_add_u32 v{TMP+2}, s{sT}, v{TMP+2}"),
          I(f"v_min_u32 v{TMP+2}, F_end-F_pc, v{TMP+2}"),
          ]
    cl = I(f"global_load_dword v{vJ}, v{TMP+2}, s[6:7]"); cl.wr = set()
    if not flag('nopfcode'): P.append(cl)
    P += [I(f"s_lshl_b32 s{sFlagMe}, s2, 2"), I(f"s_add_u32 s{sFlagMe}, s{sFlagMe}, s{sWave}"), I(f"s_lshl_b32 s{sFlagMe}, s{sFlagMe}, 2"),
          I(f"s_add_u32 s{sFlagMe}, s{sFlagMe}, {WS_F:#x}"),
          I(f"v_and_b32 v146, 3, v{ln}"), I(f"v_min_u32 v146, 2, v146"), I(f"v_lshlrev_b32 v146, 12, v146"),
          I(f"s_bfe_u32 s{sT}, s2, 0x20003"), I(f"s_lshl_b32 s{sT}, s{sT}, 6"), I(f"v_mov_b32 v147, s{sT}"),
          I(f"v_and_b32 v148, 3, v{ln}"), I(f"v_lshlrev_b32 v148, 6, v148")]
    P += [I(f"s_mov_b32 s{sScale}, {f32(QSCALE)}"), I(f"s_mov_b32 s{sGC0}, {f32(GC0)}"),
          I(f"s_lshl_b32 s{sOb}, s3, 5"), I(f"s_lshl_b32 s{sT}, s{sI}, 2"), I(f"s_add_u32 s{sOb}, s{sOb}, s{sT}"),
          I(f"s_add_u32 s{sOb}, s{sOb}, s{sWave}"), I(f"s_lshl_b32 s{sOb}, s{sOb}, 14"),
          I(f"s_lshl_b32 s{sT}, s{sType}, 24"), I(f"s_add_u32 s{sOb}, s{sOb}, s{sT}"),
          I(f"s_lshl_b32 s3, s{sXcd}, 2"), I(f"s_add_u32 s3, s3, s{sHl}"),
          I(f"s_lshl_b32 s4, s{sHl}, 1"), I("s_min_u32 s4, s4, 5"), I(f"s_mul_i32 s{sT}, s{sXcd}, 7"), I(f"s_add_u32 s4, s4, s{sT}"),
          I(f"s_lshl_b32 s{sXL}, s{sI}, 3"), I(f"s_lshl_b32 s{sT}, s{sWave}, 1"), I(f"s_add_u32 s{sXL}, s{sXL}, s{sT}"),
          I(f"s_sub_u32 s{sXH}, 15, s{sI}"), I(f"s_lshl_b32 s{sXH}, s{sXH}, 3"), I(f"s_add_u32 s{sXH}, s{sXH}, s{sT}")]
    for d, q in ((sHL, sXL), (sHH, sXH)):
        P += [I(f"s_mul_i32 s{d}, s{q}, 56"), I(f"s_add_u32 s{d}, s{d}, s4"), I(f"s_lshl_b32 s{d}, s{d}, 10"), I(f"s_add_u32 s{d}, s{d}, {WS_H:#x}")]
    P += [I(f"s_lshl_b32 s{sT}, s3, 12"), I(f"s_add_u32 s{sT}, s{sT}, {WS_CTX:#x}")]
    for d, q in ((sCL, sXL), (sCH, sXH)):
        P += [I(f"s_lshl_b32 s{d}, s{q}, 17"), I(f"s_add_u32 s{d}, s{d}, s{sT}"),
              I(f"s_lshl_b32 s{q}, s{q}, 14"), I(f"s_add_u32 s{q}, s{q}, {WS_XN:#x}")]
    P += [I(f"s_lshl_b32 s{sQo}, s{sWave}, 18"), I(f"s_lshl_b32 s{sT}, s3, 8"), I(f"s_add_u32 s{sQo}, s{sQo}, s{sT}"),
          I(f"s_lshl_b32 s{sB1o}, s4, 6"), I(f"s_mul_i32 s{s1o}, s{sWave}, {32*3584}"), I(f"s_add_u32 s{s1o}, s{s1o}, s{sB1o}"),
          I(f"s_lshl_b32 s{sT}, s3, 19"),
          I(f"s_add_u32 s{sKS}, s{sWS}, s{sT}"), I(f"s_addc_u32 s{sKS+1}, s{sWS+1}, 0"),
          I(f"s_add_u32 s{sVS}, s{sKS}, {WS_V:#x}"), I(f"s_addc_u32 s{sVS+1}, s{sKS+1}, 0"),
          I(f"s_sub_u32 s{sT}, 16, s{sI}"), I(f"s_lshl_b32 s{sKS+2}, s{sT}, 15"), I(f"s_mov_b32 s{sVS+2}, s{sKS+2}"),
          I(f"s_mov_b32 s{sKS+3}, 0x20000"), I(f"s_mov_b32 s{sVS+3}, 0x20000"),
          I(f"s_mov_b32 s{sKt}, 0"), I(f"s_mov_b32 s{sVt}, 0"), I(f"s_mov_b32 s{sKm}, s{sW4096}"), I(f"s_mov_b32 s{sVm}, s{sW4096}")]
    vXS = 152
    P += [I(f"v_add_u32 v{TMP}, s{sT3}, v{TMP+5}"),
          I(f"v_lshrrev_b32 v{TMP+2}, 4, v{TMP}"), I(f"v_lshlrev_b32 v{vXS}, 14, v{TMP+2}"),
          I(f"v_and_b32 v{TMP}, 15, v{TMP}"), I(f"v_lshl_add_u32 v{vXS}, v{TMP}, 4, v{vXS}"),
          I(f"v_lshrrev_b32 v{TMP+2}, 2, v{TMP+6}"), I(f"v_lshl_add_u32 v{vXS}, v{TMP+2}, 10, v{vXS}"),
          I(f"v_and_b32 v{TMP+2}, 3, v{TMP+6}"), I(f"v_lshl_add_u32 v{vXS}, v{TMP+2}, 8, v{vXS}")]
    P += lane_wtr(vWtr, PLAN[0][1]*16384, TMP, ln)
    P += lane_wdma(vW1d, 3584, TMP, ln)
    P += [I(f"v_and_b32 v{TMP}, 15, v{ln}"), I(f"v_bfe_u32 v{TMP+1}, v{ln}, 2, 1"), I(f"v_bfe_u32 v{TMP+2}, v{ln}, 3, 1"),
          I(f"v_xor_b32 v{TMP+1}, v{TMP+1}, v{TMP+2}"), I(f"v_mul_u32_u24 v{TMP+1}, 12, v{TMP+1}"),
          I(f"v_mul_lo_u32 v{TMP+1}, v{TMP+1}, s{sType}"), I(f"v_xor_b32 v{TMP}, v{TMP}, v{TMP+1}"),
          I(f"v_lshrrev_b32 v{TMP+1}, 1, v{TMP}"), I(f"v_lshrrev_b32 v{TMP+2}, 4, v{ln}"), I(f"v_xor_b32 v{TMP+1}, v{TMP+1}, v{TMP+2}"),
          I(f"v_lshlrev_b32 v{TMP}, 7, v{TMP}"), I(f"v_add_u32 v{TMP}, s{sM0c}, v{TMP}"),
          I(f"v_lshl_add_u32 v{vCr}, v{TMP+1}, 4, v{TMP}"), I(f"v_xor_b32 v{TMP+1}, 4, v{TMP+1}"),
          I(f"v_lshl_add_u32 v{vCr+1}, v{TMP+1}, 4, v{TMP}"),
          I(f"v_add_u32 v{vXo2}, 16384, v{vL16}"), I(f"v_mov_b32 v{vGC1}, {f32(GC1)}"),
          I(f"v_lshrrev_b32 v189, 4, v{ln}"), I(f"v_lshlrev_b32 v190, 13, v189"), I(f"v_mul_u32_u24 v191, 3584, v189"),
          I(f"v_lshlrev_b32 v189, 3, v189"),
          I(f"v_and_b32 v{TMP}, 15, v{ln}"), I(f"v_lshl_add_u32 v190, v{TMP}, 6, v190"), I(f"v_lshl_add_u32 v191, v{TMP}, 5, v191"),
          I(f"v_mov_b32 v{vZero}, 0"), I(f"v_mov_b32 v{vOne}, 1"),
          I(f"s_cmp_eq_u32 s{sType}, 0"), I("s_cbranch_scc0 F_V")]
    return P

def ln_stream():
    XR = 160; U = 168; vXS = 152; S = 153; T2 = 154; MB_ = 155; RS = 156
    P = []
    for k in range(8): P += [I(f"v_lshlrev_b32 v{U+2*k}, 16, v{XR+k}"), I(f"v_and_b32 v{U+2*k+1}, 0xffff0000, v{XR+k}")]
    P += [I(f"v_add_f32 v{S}, v{U}, v{U+1}")] + [I(f"v_add_f32 v{S}, v{S}, v{U+k}") for k in range(2, 16)]
    P += sum32(S, T2) + [I(f"v_mul_f32 v{S}, {f32(1/512)}, v{S}")] + bf16_round(MB_, S)
    P += [I(f"v_sub_f32 v{T2}, v{U}, v{S}"), I(f"v_mul_f32 v{RS}, v{T2}, v{T2}")]
    for k in range(1, 16): P += [I(f"v_sub_f32 v{T2}, v{U+k}, v{S}"), I(f"v_fmac_f32 v{RS}, v{T2}, v{T2}")]
    P += sum32(RS, T2) + [I(f"v_mul_f32 v{RS}, {f32(1/512)}, v{RS}")] + bf16_round(RS, RS)
    P += [I(f"v_add_f32 v{RS}, {f32(1e-5)}, v{RS}")] + bf16_round(RS, RS) + [I(f"v_sqrt_f32 v{RS}, v{RS}")] + bf16_round(RS, RS)
    P += [I(f"v_rcp_f32 v{RS}, v{RS}")]
    for k in range(8):
        a, b = U+2*k, U+2*k+1
        P += [I(f"v_sub_f32 v{a}, v{a}, v{MB_}"), I(f"v_sub_f32 v{b}, v{b}, v{MB_}"), I(f"v_cvt_pk_bf16_f32 v{T2}, v{a}, v{b}"),
              I(f"v_lshlrev_b32 v{a}, 16, v{T2}"), I(f"v_and_b32 v{b}, 0xffff0000, v{T2}"),
              I(f"v_mul_f32 v{a}, v{a}, v{RS}"), I(f"v_mul_f32 v{b}, v{b}, v{RS}"), I(f"v_cvt_pk_bf16_f32 v{XR+k}, v{a}, v{b}")]
    P += [I(f"buffer_store_dword v{vZero}, v146, {sr(sWS)}, s{sFlagMe} offen {ST}"),
          I(f"s_mov_b32 s{sSt}, {WS_XN:#x}"),
          I(f"buffer_store_dwordx4 {vr(XR)}, v{vXS}, {sr(sWS)}, s{sSt} offen {'' if flag('xnplain') else ST}", tag=('vm', 'xnst')),
          I(f"s_mov_b32 s{sSt}, {WS_XN + 8192:#x}"),
          I(f"buffer_store_dwordx4 {vr(XR+4)}, v{vXS}, {sr(sWS)}, s{sSt} offen {'' if flag('xnplain') else ST}", tag=('vm', 'xnst'))]
    return P

def pack_swap(T, X, Y):
    return [I(f"v_cvt_pk_bf16_f32 v{T}, v{X}, v{X+1}"), I(f"v_cvt_pk_bf16_f32 v{T+2}, v{Y}, v{Y+1}"),
            I(f"v_cvt_pk_bf16_f32 v{T+1}, v{X+2}, v{X+3}"), I(f"v_cvt_pk_bf16_f32 v{T+3}, v{Y+2}, v{Y+3}")], \
           [I(f"v_permlane16_swap_b32 v{T}, v{T+2}"), I(f"v_permlane16_swap_b32 v{T+1}, v{T+3}")]

def kv_epilogue(cp, isV):
    acc = ACCB[cp]; V = []
    for f in range(8):
        if isV:
            kb, dbl = divmod(f, 2)
            X = acc + ((2*dbl)*4 + kb)*4; Y = X + 16
            soff = (cp//2)*32*16384 + kb*4096; ioff = (2*(cp % 2) + dbl)*1024
        else:
            kb32, c = divmod(f, 4)
            X = acc + (c*4 + 2*kb32)*4; Y = X + 4
            soff = (cp//2)*32*16384 + kb32*8192 + (cp % 2)*4096; ioff = c*1024
        T = PK + (f % 4)*4
        if not isV: V += [I(f"v_mul_f32 v{r}, s{sScale}, v{r}") for r in list(range(X, X+4)) + list(range(Y, Y+4))]
        else: V += [I("", tag=('pad',)) for r in range(8)]
        a, b = pack_swap(T, X, Y)
        V += a + [I(f"s_add_u32 s{sSt}, s{sOb}, {soff}")] + b
        V += [I(f"buffer_store_dwordx4 {vr(T)}, v{vL16}, {sr(sWS)}, s{sSt} offen offset:{ioff} {'' if flag('kvplain') else ST}", tag=('vm', 'kvst'))]
    return V

def gelu_stream():
    P = []
    for b in range(4):
        for fs in range(2):
            X = ACCB[4] + ((2*fs)*4 + b)*4; Y = X + 16; T = GP[(b*2 + fs) % 2]
            regs = list(range(X, X+4)) + list(range(Y, Y+4)); tt = list(range(GT, GT + 8))
            P += [I(f"v_mul_f32 v{t}, v{r}, v{r}") for t, r in zip(tt, regs)]
            P += [I(f"v_fma_f32 v{t}, v{t}, v{vGC1}, s{sGC0}") for t in tt]
            P += [I(f"v_mul_f32 v{t}, v{t}, v{r}") for t, r in zip(tt, regs)]
            P += [I(f"v_exp_f32 v{t}, v{t}") for t in tt]
            P += [I(f"v_add_f32 v{t}, 1.0, v{t}") for t in tt]
            P += [I(f"v_rcp_f32 v{t}, v{t}") for t in tt]
            P += [I(f"v_mul_f32 v{t}, v{t}, v{r}") for t, r in zip(tt, regs)]
            P += [I(f"v_cvt_pk_bf16_f32 v{T+j}, v{tt[2*j]}, v{tt[2*j+1]}") for j in range(4)]
            P += [I(f"s_add_u32 s{sSt}, s{sHL if b < 2 else sHH}, {(b % 2)*56*1024}"),
                  I(f"buffer_store_dwordx4 {vr(T)}, v{vL16}, {sr(sWS)}, s{sSt} offen offset:{fs*1024} {ST}")]
    return P

def qconv(cp, qb, c):
    X = ACCB[cp] + (c*4 + 2*qb)*4; T = GP[c % 2]
    a, b = pack_swap(T, X, X + 4)
    return a + b + [I(f"v_accvgpr_write_b32 a{QF(qb, 4*(cp-5) + c)+j}, v{T+j}") for j in range(4)]

def engine(isV):
    PF = 4; NF = 7*64
    def c_reads(ch):
        return [I(f"ds_read_b128 {ar(XF(kb, 2*ch + ks2))}, v{vCr+ks2} offset:{(ch % 3)*8192 + kb*2048}") for ks2 in range(2) for kb in range(4)]
    def w_reads(n):
        u, rem = divmod(n, 16); ksl, c = divmod(rem, 4); r = WF + (n % NWF)*4
        return [I(f"ds_read_b64_tr_b16 {vr(r,2)}, v{vWtr+c} offset:{ksl*4096}"), I(f"ds_read_b64_tr_b16 {vr(r+2,2)}, v{vWtr+c} offset:{ksl*4096+1024}")]
    head = stamp(1) + [needvm('c0')] + c_reads(0) + [needvm('w0'), I("s_barrier")] + stamp(2)
    for n in range(PF): head += w_reads(n)
    mf = []; post = {}; valu = []; dmaq = []
    def addpost(g, items): post.setdefault(g, []).extend(items)
    def add(mg, items):
        for it in items: valu.append((mg, it))
    for n in range(NF):
        u, rem = divmod(n, 16); ksl, c = divmod(rem, 4); cp, kq = divmod(u, 4); ks = 4*kq + ksl
        wf = vr(WF + (n % NWF)*4)
        for kb in range(4):
            d = vr(ACCB[cp] + (c*4 + kb)*4); cf = ar(XF(kb, ks))
            cin = d if ks else (vr(BIAS + 4*c) if cp == 4 else "0")
            mf.append(I(f"{M16} {d}, {cf}, {wf}, {cin}" if (isV and cp < 4) else f"{M16} {d}, {wf}, {cf}, {cin}"))
        g0 = 4*n; m = n + PF
        if n + 1 < NF: addpost(g0 + 3, [needlg(regs_in(vr(WF + ((n + 1) % NWF)*4)))])
        if m < NF:
            if m % 16 == 0:
                um = m // 16
                extra = {8: ['xnst'], 20: ['kvst']}.get(um, [])
                delta = (PLAN[um][1] - PLAN[um-1][1])*16384
                addpost(g0 - 2, [I(f"v_add_u32 v{vWtr+k}, {delta & 0xffffffff:#x}, v{vWtr+k}") for k in range(2)])
                addpost(g0 - 1, [I(f"v_add_u32 v{vWtr+k}, {delta & 0xffffffff:#x}, v{vWtr+k}") for k in range(2, 4)])
                addpost(g0 - 1, [needvm(f'w{um}', *extra), I("s_barrier")] + (stamp(20 + um) if flag('fine') else []))
                for uu, (b, s) in PLAN.items():
                    if b == um and uu > 3: dmaq.append((g0 + 1, w_dma(uu)))
                if um == 8:
                    addpost(g0 + 1, [I(f"s_cmp_eq_u32 s{sWave}, 0"), I(f"s_cbranch_scc0 F_s0{int(isV)}"), I("s_mov_b64 exec, 1"),
                                     I(f"buffer_atomic_add v{vOne}, v147, {sr(sDBG)}, 0 offen sc1", tag=('novm',)),
                                     I("s_mov_b64 exec, -1"), I(f"F_s0{int(isV)}:")])
                if um == 20:
                    addpost(g0 + 1, [I(f"buffer_store_dword v{vOne}, v{vZero}, {sr(sWS)}, s{sFlagMe} offen {ST}")])
            addpost(g0, w_reads(m))
        if cp == 0 and n % 8 == 2 and n // 8 + 1 < 8:
            ch = n // 8 + 1
            addpost(g0 + 1, [needvm(f'c{ch}')])
            rd = c_reads(ch)
            for k in range(4): addpost(g0 + 2 + 4*k, rd[2*k:2*k+2])
        if cp == 0 and n % 8 == 5 and n // 8 + 3 < 8:
            for g in c_dma(n // 8 + 3): dmaq.append((g0 + 1, g))
        if cp == 3 and c == 3:
            L = []
            if ks % 4 == 0: L += [I(f"s_add_u32 s{sXLc}, s{sXL}, {(ks//4)*4096}"), I(f"s_add_u32 s{sXHc}, s{sXH}, {(ks//4)*4096}")]
            L += [I(f"buffer_load_dwordx4 {ar(XF(b, ks))}, v{vXo2 if b % 2 else vL16}, {sr(sWS)}, s{sXHc if b >= 2 else sXLc} offen offset:{(ks % 4)*1024} {LD}") for b in range(4)]
            dmaq.append((max(g0 + 5, 768 + 17 + val('xrate', 26)*ks), L))
    if not flag('nopfq'): dmaq.append((4*val('pfq', 70), [I(f"s_lshl_b32 s{sT}, s97, 15"), I(f"s_lshl_b32 s{sT2}, s{sXcd}, 10"), I(f"s_add_u32 s{sT}, s{sT}, s{sT2}"), pf_load(vJ, 190, sWQ, f"s{sT}")]))
    if not flag('nopfq'): dmaq.append((4*val('pfq', 70) + 8, [I(f"s_mul_i32 s{sT}, s97, {4*3584}"), I(f"s_mul_i32 s{sT2}, s{sXcd}, 448"), I(f"s_add_u32 s{sT}, s{sT}, s{sT2}"), pf_load(vJ, 191, sW1, f"s{sT}")]))
    dmaq.append((4*140, [I(f"buffer_load_dwordx2 v[{BRAW+2*c}:{BRAW+2*c+1}], v189, {sr(sB1)}, s{sB1o} offen offset:{32*c}") for c in range(4)]))
    if not flag('nopfw'): dmaq.append((4*val('pfw', 10), [pf_load(vJ, 145, sWkv, f"s{sWpf}")]))
    dmaq.append((4*22, [I(f"buffer_load_dwordx4 {vr(160)}, v144, {sr(sX)}, s{sXrow} offen"),
                        I(f"buffer_load_dwordx4 {vr(164)}, v144, {sr(sX)}, s{sXrow} offen offset:512")]))
    dmaq.append((4*172, [poll_issue(vJ, 148, sDBG, "0")]))
    addpost(4*192 + 2, stamp(50) + poll_check(vJ, 148, sDBG, "0", "64", sT2) + stamp(51))
    add(4*42, ln_stream())
    for cp in range(4): add(256*(cp+1) + 8, kv_epilogue(cp, isV)) if cp != 2 else add(256*(cp+1) + 8, kv_epilogue(cp, isV) + sum(
        [[I(f"v_lshlrev_b32 v{BIAS+2*k}, 16, v{BRAW+k}"), I(f"v_and_b32 v{BIAS+2*k+1}, 0xffff0000, v{BRAW+k}")] for k in range(8)], []))
    add(256*4 + 200, [I(f"v_bfe_u32 v{vF1}, v{vL16}, 4, 4"), I(f"v_lshlrev_b32 v{vF1}, 8, v{vF1}"),
                      I(f"s_lshr_b32 s{sSt}, s{sHl}, 1"), I(f"s_lshl_b32 s{sSt}, s{sSt}, 3"), I(f"s_add_u32 s{sSt}, s{sSt}, s{sXcd}"),
                      I(f"s_lshl_b32 s{sSt}, s{sSt}, 4"), I(f"s_lshl_b32 s{sT3}, s{sWave}, 2"), I(f"s_add_u32 s{sSt}, s{sSt}, s{sT3}"), I(f"v_add_u32 v{vF1}, s{sSt}, v{vF1}"), I(f"v_add_u32 v{vF1}, {WS_F:#x}, v{vF1}")])
    add(256*5 + 8, gelu_stream())
    for qb in range(2):
        for c in range(4): add(256*6 + 16*(8*qb + c) + 18, qconv(5, qb, c))
    dmaq.append((4*362, [poll_issue(vJ, vF1, sWS, "0")]))
    addpost(4*383 + 1, stamp(48) + poll_check(vJ, vF1, sWS, "0", "1", sT2) + stamp(49) + [I(f"v_add_u32 v{vKVd}, s{sW4096}, v{vL16}")])
    for k, wh in enumerate("KVKK"): dmaq.append((4*(386 + 10*k), kv_dma(wh, f'kv{k}')))
    if not flag('nopfo'): dmaq.append((4*330, [I(f"s_lshl_b32 s{sT}, s{sXcd}, 19"), I(f"s_lshl_b32 s{sT2}, s97, 12"), I(f"s_add_u32 s{sT}, s{sT}, s{sT2}"), pf_load(vJ, 150, sWO, f"s{sT}")]))
    if not flag('nopfo'): dmaq.append((4*332, [I(f"s_mul_i32 s{sT}, s{sXcd}, {224*1024}"), I(f"s_mul_i32 s{sT2}, s97, 1792"), I(f"s_add_u32 s{sT}, s{sT}, s{sT2}"), pf_load(vJ, 151, sW2, f"s{sT}")]))
    add2 = [I(f"v_lshlrev_b32 v150, 2, v{vL16}"), I(f"v_lshlrev_b32 v151, 1, v{vL16}")]
    addpost(4*326 + 1, add2)
    place_dma(dmaq, addpost, step=1, ok=lambda g: g % 4 in (1, 2))
    for k in range(6): addpost(256*(k+1) - 1, stamp(3 + k))
    valu.sort(key=lambda x: 0)
    def budget(g, p):
        if any(x.kind == 'dsr' for x in p): return 0
        n = sum(1 for x in p if x.txt or (x.tag and x.tag[0] != 'needvm'))
        nd = sum(1 for x in p if x.kind in ('dma', 'vld', 'vst'))
        return max(0, 2 - max(0, n - 1) - nd)
    body, left = weave(mf, post, valu, budget)
    if OPT.verbose: print(f"[engine] leftover valu {left}", file=sys.stderr)
    idx = [k for k, x in enumerate(body) if x.kind == 'mfma'][256*5]
    return head + body[:idx], body[idx:]
```

```python
from f_common import *
import f_p1 as P1
from f_p1 import QF, kv_dma, sKt, sKm, sVt, sVm, sCL, sCH, vL16, vKVd, qconv

THRESH = 30.0
sCnt, sFlag, sKr, sVr, sThr, sOffA, sOffB = range(74, 81)
sRet = 82; MK = [84, 86, 88, 98]
sWoO, sW2o, sHLo, sHHo, sPo, sCc, sCc2 = 76, 77, 78, 79, 80, 81, 90
sSib = [84, 85, 86]
sWoS = [87, 88, 89]
NEG = [128, 144]; T0 = 160
vK, vV, vL16V = 192, 193, 194
Lr = [[196, 197], [198, 199]]; vMx = [200, 201]; vF = [202, 203]; vThr, vNinf, vTm = 204, 205, 206
vPo, vF2, vF3, vZ = 207, 208, 209, 210
vWtr3, vWd3, vC2, vH2 = 212, 216, 217, 218
PKT = 236
OA = lambda qb, db: (qb*4 + db)*16
RING = 192
NPRE = 8

def blk_q(typ, blk): return (blk % 2) if typ == 'A' else 1
def qk_mfmas(typ, S):
    L = []
    if typ == 'A':
        for kb in range(2):
            for ks in range(8):
                for qb in range(2):
                    d = vr(S + (2*kb + qb)*16, 16)
                    L.append((d, kb*8 + ks, ar(QF(qb, ks)), d if ks else vr(NEG[qb], 16)))
    else:
        for kb in range(4):
            for ks in range(8):
                d = vr(S + kb*16, 16)
                L.append((d, kb*8 + ks, ar(QF(1, ks)), d if ks else vr(NEG[1], 16)))
    return L
def pv_mfmas(typ, S):
    L = []
    if typ == 'A':
        for ks4 in range(4):
            for db in range(4):
                for qb in range(2):
                    d = ar(OA(qb, db), 16)
                    L.append((d, ks4*4 + db, vr(S + (2*(ks4//2) + qb)*16 + 8*(ks4 % 2)), d))
    else:
        for ks8 in range(8):
            for db in range(4):
                d = ar(OA(1, db), 16)
                L.append((d, ks8*4 + db, vr(S + (ks8//2)*16 + 8*(ks8 % 2)), d))
    return L
def expblk(S, l):
    L = []
    for j in range(8):
        a, b = S + 2*j, S + 2*j + 1
        L += [I(f"v_exp_f32 v{a}, v{a}"), I(f"v_exp_f32 v{b}, v{b}"),
              I(f"v_add_f32 v{l[0]}, v{l[0]}, v{a}"), I(f"v_add_f32 v{l[1]}, v{l[1]}, v{b}"),
              I(f"v_cvt_pk_bf16_f32 v{S + 8*(j//4) + j % 4}, v{a}, v{b}")]
    return L
def maxblk(S, mx, first):
    L = []; r = list(range(S, S + 16))
    if first: L.append(I(f"v_max3_f32 v{mx}, v{r[0]}, v{r[1]}, v{r[2]}")); r = r[3:]
    while len(r) >= 2: L.append(I(f"v_max3_f32 v{mx}, v{mx}, v{r[0]}, v{r[1]}")); r = r[2:]
    if r: L.append(I(f"v_max_f32 v{mx}, v{mx}, v{r[0]}"))
    return L
def maskblk(S, kbg, soff=None):
    L = []
    if soff is not None:
        L.append(I(f"v_add_u32 v{vTm}, s{soff}, v{vThr}"))
        if kbg: L.append(I(f"v_subrev_u32 v{vTm}, {32*kbg}, v{vTm}"))
        t = vTm
    elif kbg: L.append(I(f"v_subrev_u32 v{vTm}, {32*kbg}, v{vThr}")); t = vTm
    else: t = vThr
    for r0 in range(0, 16, 4):
        L += [I(f"v_cmp_le_i32 s[{MK[k]}:{MK[k]+1}], {8*((r0+k)//4) + (r0+k) % 4}, v{t}") for k in range(4)]
        L += [I(f"v_cndmask_b32 v{S+r0+k}, v{vNinf}, v{S+r0+k}, s[{MK[k]}:{MK[k]+1}]") for k in range(4)]
    return L
def xmax(v, t): return [I(f"v_mov_b32 v{t}, v{v}"), I(f"v_permlane32_swap_b32 v{v}, v{t}"), I(f"v_max_f32 v{v}, v{v}, v{t}")]
def kread(f, slot): return I(f"ds_read_b128 {ar(RING + (slot % 16)*4)}, v{vK} offset:{f*1024}")
def vread(f, slot): return I(f"ds_read_b128 {ar(RING + (slot % 16)*4)}, v{vV} offset:{f*1024}")
def kv_dma2(which):
    srd_, t, m = (sKS, sKt, sKm) if which == 'K' else (sVS, sVt, sVm)
    base = 0 if which == 'K' else 0x10000
    d = lambda so: [I(f"buffer_load_dwordx4 v{vKVd}, {sr(srd_)}, s{so} offen offset:{1024*b} {LD} lds") for b in range(4)]
    return [[I(f"s_add_u32 m0, s{m}, {base:#x}")] + d(t),
            [I(f"s_add_u32 m0, s{m}, {base + 0x4000:#x}"), I(f"s_add_u32 s{sT2}, s{t}, 0x4000"),
             I(f"s_add_u32 s{t}, s{t}, 0x8000"), I(f"s_xor_b32 s{m}, s{m}, 0x8000")] + d(sT2)]

uid = [0]
def step(cur, nxt, p, kadv, mask=None, xwait=16, name="", extra_dma=None):
    uid[0] += 1; u = uid[0]
    Sc, Sn = 64*p, 64*(1 - p)
    mf = []; use = []
    qk = qk_mfmas(nxt, Sn) if nxt else []
    nK = (16 if nxt == 'A' else 32) if nxt else 0
    for d, f, q, cin in qk:
        mf.append(I(f"{M32} {d}, {ar(RING + (f % 16)*4)}, {q}, {cin}")); use.append(f)
    for d, f, pf, cin in pv_mfmas(cur, Sc):
        mf.append(I(f"{M32} {d}, {ar(RING + ((nK + f) % 16)*4)}, {pf}, {cin}")); use.append(nK + f)
    nV = 16 if cur == 'A' else 32
    NG = len(mf); fu = {}
    for g, f in enumerate(use): fu.setdefault(f, g)
    post = {}; dmaq = []
    def addpost(g, items): post.setdefault(g, []).extend(items)
    D = 8
    hasY = nxt is not None and (cur == 'B' or nxt == 'B')
    pre = []
    ring = lambda f: regs_in(ar(RING + (f % 16)*4))
    for f in range(0, nK + nV, 2):
        if fu[f] > 0: addpost(fu[f] - 1, [needlg(ring(f) + ring(f + 1))])
    last = -2
    for f in range(NPRE if nxt else 0, nK, 2):
        last = max(fu[f] - D, last + 1, 0)
        addpost(last, [kread(f, f), kread(f + 1, f + 1)])
    vadv = [I(f"v_add_u32 v{vV}, s{sVr}, v{vL16V}"),
            I(f"s_add_u32 s{sVr}, s{sVr}, {0x4000 if cur == 'A' else 0x8000}"), I(f"s_and_b32 s{sVr}, s{sVr}, 0xffff")]
    vf0 = 0
    if nxt is None:
        pre += vadv[:1] + [vread(f, nK + f) for f in range(8)]; vf0 = 8
    else:
        addpost(last + 1, vadv)
        if hasY:
            gY = last + 3
            addpost(gY, [I("s_waitcnt vmcnt(16) lgkmcnt(0)" if cur == 'B' else "s_waitcnt lgkmcnt(0)"), I("s_barrier")])
            last = gY
        else: last = last + 1
    for f in range(vf0, nV, 2):
        last = max(fu[nK + f] - D, last + 1, 0)
        addpost(last, [vread(f, nK + f), vread(f + 1, nK + f + 1)])
    gX = NG
    if nxt is not None:
        gX = last + 3
        addpost(gX - 1, [I(f"v_add_u32 v{vK}, s{sKr}, v{vL16}")] +
                ([I(f"s_add_u32 s{sKr}, s{sKr}, {kadv*0x4000}"), I(f"s_and_b32 s{sKr}, s{sKr}, 0xffff")] if kadv else []))
        addpost(gX, [I(f"s_waitcnt vmcnt({xwait}) lgkmcnt(0)"), I("s_barrier")])
        gs = [gX + 1, gX + 2, gX + 4, gX + 6] if gX + 6 < NG else [gX + 1, gX + 2, gX + 3, gX + 4]
        assert gs[-1] < NG, (name, gX, NG)
        for j in range(NPRE // 2): addpost(gs[j], [kread(2*j, 2*j), kread(2*j + 1, 2*j + 1)])
    dstep = 2
    if cur == 'A' and nxt == 'A': dmaq = [(1, kv_dma('K')), (1, kv_dma('V'))]; dstep = 4
    elif cur == 'A' and nxt == 'B': dmaq = [(1, kv_dma('K'))] + [(gY + 2, x) for x in kv_dma2('K')]
    elif cur == 'B' and nxt == 'B':
        dmaq = [(0, x) for x in kv_dma2('V')]
        if not mask: dmaq += [(gY + 3, x) for x in kv_dma2('K')]
    if extra_dma: dmaq += extra_dma
    if dmaq:
        endg = place_dma(dmaq, addpost, step=dstep)
        assert endg - dstep < gX, (name, endg, gX)
        if hasY and cur == 'B': assert max(g for g, l in post.items() if any(x.kind == 'dma' and sr(sVS) in x.txt for x in l)) < gY
    valu = []
    def add(mg, items):
        for it in items: valu.append((mg, it))
    for blk in (2, 3): add(0, expblk(Sc + 16*blk, Lr[blk_q(cur, blk)]))
    if nxt is not None:
        done = {}
        for g, (d, f, q, cin) in enumerate(qk): done[d] = g
        mdict = {m[0]: m for m in (mask or [])}
        for blk in range(4):
            mg = done[vr(Sn + 16*blk, 16)] + 3
            if blk in mdict: add(mg, maskblk(Sn + 16*blk, mdict[blk][1], mdict[blk][2]))
            add(mg, maxblk(Sn + 16*blk, vMx[blk % 2], blk < 2))
        add(0, [I(f"v_max_f32 v{vMx[0]}, v{vMx[0]}, v{vMx[1]}"), I(f"v_cmp_lt_f32 vcc, s{sThr}, v{vMx[0]}"),
                [I(f"s_cbranch_vccz F_c{u}"), I(f"s_call_b64 s[{sRet}:{sRet+1}], F_R{nxt}{1-p}"), I(f"F_c{u}:")]])
        for blk in (0, 1): add(0, expblk(Sn + 16*blk, Lr[blk_q(nxt, blk)]))
    def budget(g, pp):
        nd = sum(1 for x in pp if x.kind == 'dsr'); nm = sum(1 for x in pp if x.kind == 'dma')
        return max(6 - max(0, len(pp) - 1) - (1 if nd else 0) - (1 if nm else 0), 0)
    body, left = weave(mf, post, valu, budget, flush_dep=True)
    tail = []
    if nxt is not None:
        tail = [I(f"s_cmp_eq_u32 s{sFlag}, 0"), I(f"s_cbranch_scc1 F_d{u}"), I(f"s_call_b64 s[{sRet}:{sRet+1}], F_O{nxt}"), I(f"F_d{u}:")]
    if OPT.verbose: print(f"[step {name}] leftover valu {left}", file=sys.stderr)
    return pre + body + tail

def finalize(qb, sbase, inter=None):
    l0, l1 = Lr[qb]; inter = list(inter or [])
    L = [I(f"v_add_f32 v{l0}, v{l0}, v{l1}"), I(f"v_mov_b32 v{l1}, v{l0}"), I(f"v_permlane32_swap_b32 v{l0}, v{l1}"),
         I(f"v_add_f32 v{l0}, v{l0}, v{l1}"), I(f"v_rcp_f32 v{l0}, v{l0}"), I(f"s_add_u32 s{sT3}, s{sbase}, 0x20000")]
    for db in range(4):
        t = T0 + (db % 2)*16; A = PKT + (db % 2)*8; B = A + 4
        for r0 in range(0, 16, 4):
            L += [I(f"v_accvgpr_read_b32 v{t+r}, a{OA(qb, db)+r}") for r in range(r0, r0 + 4)]
            if inter: L += inter.pop(0)
        for r0 in range(0, 16, 4):
            L += [I(f"v_mul_f32 v{t+r}, v{t+r}, v{l0}") for r in range(r0, r0 + 4)]
            if inter: L += inter.pop(0)
        for pc, T in ((0, A), (1, B)):
            L += [I(f"v_cvt_pk_bf16_f32 v{T}, v{t+4*pc}, v{t+4*pc+1}"), I(f"v_cvt_pk_bf16_f32 v{T+1}, v{t+4*pc+2}, v{t+4*pc+3}"),
                  I(f"v_cvt_pk_bf16_f32 v{T+2}, v{t+8+4*pc}, v{t+8+4*pc+1}"), I(f"v_cvt_pk_bf16_f32 v{T+3}, v{t+8+4*pc+2}, v{t+8+4*pc+3}")]
        L += [I(f"v_permlane32_swap_b32 v{A+j}, v{B+j}") for j in range(4)]
        L += [I(f"v_permlane16_swap_b32 v{A+j}, v{B+j}") for j in range(4)]
        L += [I(f"buffer_store_dwordx4 {vr(A)}, v{vL16}, {sr(sWS)}, s{sbase} offen offset:{db*1024} {ST}", tag=('vm', 'cst')),
              I(f"buffer_store_dwordx4 {vr(B)}, v{vL16}, {sr(sWS)}, s{sT3} offen offset:{db*1024} {ST}", tag=('vm', 'cst'))]
        L += [I(f"v_accvgpr_write_b32 a{16*db + 8*qb + j}, v{A+j}") for j in range(8)]
    for g in inter: L += g
    return L

def rare_S(typ, p):
    S = 64*p
    L = [I(f"F_R{typ}{p}:"), I("s_nop 7")]
    for qb in ((0, 1) if typ == 'A' else (1,)):
        blks = [b for b in range(4) if blk_q(typ, b) == qb]; m = vMx[0]
        for k, b in enumerate(blks): L += maxblk(S + 16*b, m, k == 0)
        L += xmax(m, vTm) + [I(f"v_max_f32 v{m}, 0, v{m}"), I(f"v_exp_f32 v{vF[qb]}, -v{m}")]
        for b in blks: L += [I(f"v_sub_f32 v{S+16*b+r}, v{S+16*b+r}, v{m}") for r in range(16)]
        L += [I(f"v_sub_f32 v{NEG[qb]+r}, v{NEG[qb]+r}, v{m}") for r in range(16)]
        L += [I(f"v_mul_f32 v{l}, v{l}, v{vF[qb]}") for l in Lr[qb]]
    L += [I(f"s_mov_b32 s{sFlag}, 1"), I("s_nop 1"), I(f"s_setpc_b64 s[{sRet}:{sRet+1}]")]
    return pad_hazards(L)[0]
def rare_O(typ):
    L = [I(f"F_O{typ}:"), I("s_nop 15")]
    for qb in ((0, 1) if typ == 'A' else (1,)):
        for r0 in range(0, 64, 8):
            a = qb*64 + r0
            L += [I(f"v_accvgpr_read_b32 v{T0+k}, a{a+k}") for k in range(8)]
            L += [I(f"v_mul_f32 v{T0+k}, v{T0+k}, v{vF[qb]}") for k in range(8)]
            L += [I(f"v_accvgpr_write_b32 a{a+k}, v{T0+k}") for k in range(8)]
    L += [I(f"s_mov_b32 s{sFlag}, 0"), I("s_nop 1"), I(f"s_setpc_b64 s[{sRet}:{sRet+1}]")]
    return pad_hazards(L)[0]

def first_tile():
    P = stamp(9) + [I("s_waitcnt lgkmcnt(0)"), needvm('kv0', 'kv1', 'kv2'), I("s_barrier"),
         I(f"v_mov_b32 v{vK}, v{vL16}")]
    P += [kread(f, f) for f in (0, 8, 1, 9, 2, 10, 3, 11)]
    mf = []; post = {}
    order = [(ks, kb) for ks in range(8) for kb in range(2)]
    for k, (ks, kb) in enumerate(order):
        f = kb*8 + ks
        for qb in range(2):
            d = vr((2*kb + qb)*16, 16)
            mf.append(I(f"{M32} {d}, {ar(RING + f*4)}, {ar(QF(qb, ks))}, {d if ks else 0}"))
        if k + 8 < 16:
            ks2, kb2 = order[k + 8]; post.setdefault(2*k, []).append(kread(kb2*8 + ks2, kb2*8 + ks2))
    dq = [(1, kv_dma('V')), (1, kv_dma('K')), (1, kv_dma('V'))]
    place_dma(dq, lambda g, it: post.setdefault(g, []).extend(it), step=2)
    valu = []
    for c in range(4):
        for qb in range(2): valu += [(0, x) for x in qconv(6, qb, c)]
    valu += [(0, I(f"v_accvgpr_write_b32 a{r}, 0")) for r in range(128)]
    body, _ = weave(mf, post, valu, lambda g, p: 5 if len(p) < 2 else 3, flush_dep=True)
    P += body
    ln = T0
    P += [I(f"v_add_u32 v{vK}, 0x4000, v{vL16}"), I(f"s_mov_b32 s{sKr}, 0x8000"), I(f"s_mov_b32 s{sVr}, 0")]
    P += [kread(f, f) for f in range(NPRE)]
    P += [I(f"v_add_u32 v{vL16V}, 0x10000, v{vL16}"), I(f"v_lshrrev_b32 v{ln}, 4, v{vL16}"),
          I(f"s_mov_b32 s{sFlag}, 0"), I(f"s_mov_b32 s{sThr}, {f32(THRESH)}"),
          I(f"s_lshl_b32 s{sOffB}, s{sI}, 8"), I(f"s_sub_u32 s{sOffB}, {128*14}, s{sOffB}"),
          I(f"v_and_b32 v{ln+1}, 31, v{ln}"), I(f"v_lshrrev_b32 v{ln+2}, 5, v{ln}"),
          I(f"v_lshl_add_u32 v{vThr}, s{sWave}, 5, v{ln+1}"), I(f"v_lshlrev_b32 v{ln+2}, 2, v{ln+2}"), I(f"v_sub_u32 v{vThr}, v{vThr}, v{ln+2}"),
          I(f"v_mov_b32 v{vNinf}, 0xff800000")]
    P += [I(f"v_mov_b32 v{r}, 0") for r in (196, 197, 198, 199)]
    P += [I(f"s_cmp_lg_u32 s{sI}, 0"), I("s_cbranch_scc1 F_nomask"), I("s_nop 7")]
    for kb in range(2): P += maskblk(16*(2*kb), kb)
    P += [I("F_nomask:")]
    for qb in range(2):
        P += maxblk(16*qb, vMx[qb], True) + maxblk(16*(2 + qb), vMx[qb], False)
    P += [I(f"v_mov_b32 v{vTm}, v{vMx[0]}"), I(f"v_mov_b32 v{vF[0]}, v{vMx[1]}"), I("s_nop 0"),
          I(f"v_permlane32_swap_b32 v{vMx[0]}, v{vTm}"), I(f"v_permlane32_swap_b32 v{vMx[1]}, v{vF[0]}"),
          I(f"v_max_f32 v{vMx[0]}, v{vMx[0]}, v{vTm}"), I(f"v_max_f32 v{vMx[1]}, v{vMx[1]}, v{vF[0]}")]
    for qb in range(2):
        P += [I(f"v_sub_f32 v{NEG[qb] + r}, 0, v{vMx[qb]}") for r in range(16)]
        for blk in (qb, 2 + qb): P += [I(f"v_sub_f32 v{16*blk + r}, v{16*blk + r}, v{vMx[qb]}") for r in range(16)]
    for blk in (0, 1): P += expblk(16*blk, Lr[blk])
    P += stamp(10) + [I(f"s_sub_u32 s{sCnt}, s{sI}, 1"), I("s_cbranch_scc1 F_AAme")]
    return P

NS = 23
def w3_addr(s): return 131072 + 8192*s if s < 4 else (8192*(s - 4) if s < 12 else (131072 + 8192*(s - 12) if s < 15 else 65536 + 8192*(s - 15)))
def w3_win(s): return 131072 if (s < 4 or 12 <= s < 15) else (0 if s < 12 else 65536)
BSLOT = [0, 16, 32, 48] + [128 + 16*k for k in range(8)] + [64, 80, 96, 112] + [0, 16, 32, 48] + [128, 144, 160]
def w3_dma(s):
    gs = []
    if s < 4: srd_, so, off = sWO, sWoO, s*32768
    elif s < 11: srd_, so, off = sW2, sW2o, (s - 4)*32768
    else: srd_, so, off = sWO, sWoS[(s - 11)//4], ((s - 11) % 4)*32768
    for h in range(2):
        gs.append([I(f"s_add_u32 m0, s{sW1024}, {w3_addr(s) + h*4096}"), I(f"s_add_u32 s{sT}, s{so}, {off + h*128}"),
                   I(f"buffer_load_dwordx4 v{vWd3}, {sr(srd_)}, s{sT} offen lds", tag=('vm', f'x{s}'))])
    return gs
def b3_loads(s):
    L = []
    if s < 11:
        t = s - 4
        if t % 4 == 0: L += [I(f"s_add_u32 s{sCc}, s{sHLo}, {(t//4)*4096}"), I(f"s_add_u32 s{sCc2}, s{sHHo}, {(t//4)*4096}")]
        v2 = vH2
    else:
        t = (s - 11) % 4
        if t == 0: L += [I(f"s_add_u32 s{sCc}, s{sCL}, s{sSib[(s-11)//4]}"), I(f"s_add_u32 s{sCc2}, s{sCH}, s{sSib[(s-11)//4]}")]
        v2 = vC2
    L += [I(f"buffer_load_dwordx4 {ar(BSLOT[s] + 4*b)}, v{v2 if b % 2 else vL16}, {sr(sWS)}, s{sCc2 if b >= 2 else sCc} offen offset:{(t % 4)*1024} {LD}") for b in range(4)]
    return L

def p3_consts():
    t = T0; ln = T0 + 4
    L = [I(f"v_lshrrev_b32 v{ln}, 4, v{vL16}")]
    L += lane_wtr(vWtr3, 131072, t, ln, natural=False) + lane_wdma(vWd3, 1024, t, ln, natural=False, nblk=1)
    L += [I(f"v_add_u32 v{vC2}, 0x20000, v{vL16}"), I(f"v_add_u32 v{vH2}, {56*1024}, v{vL16}"), I(f"v_mov_b32 v{vZ}, 0"),
          I(f"s_and_b32 s{sT}, s2, 0xe7"), I(f"s_lshl_b32 s{sT}, s{sT}, 2"), I(f"s_add_u32 s{sT}, s{sT}, s{sWave}"),
          I(f"s_lshl_b32 s{sT}, s{sT}, 2"), I(f"s_add_u32 s{sT}, s{sT}, {WS_F + 4096:#x}"),
          I(f"v_and_b32 v{t}, 3, v{ln}"), I(f"v_lshlrev_b32 v{t}, 7, v{t}"), I(f"v_add_u32 v{vF2}, s{sT}, v{t}"),
          I(f"s_and_b32 s{sT}, s2, 0xf8"), I(f"s_lshl_b32 s{sT}, s{sT}, 2"), I(f"s_lshr_b32 s{sT2}, s{sXcd}, 1"), I(f"s_add_u32 s{sT}, s{sT}, s{sT2}"),
          I(f"s_lshl_b32 s{sT}, s{sT}, 2"), I(f"s_add_u32 s{sT}, s{sT}, {WS_F + 8192:#x}"),
          I(f"v_and_b32 v{t}, 7, v{ln}"), I(f"v_lshlrev_b32 v{t}, 4, v{t}"), I(f"v_add_u32 v{vF3}, s{sT}, v{t}"),
          I(f"s_add_u32 s{sFlagMe}, s{sFlagMe}, 4096"),
          I(f"v_mov_b32 v{vPo}, 1"),
          I(f"buffer_store_dword v{vPo}, v{vZ}, {sr(sWS)}, s{sFlagMe} offen {ST}")]
    return L
def p3_scalars_early():
    return [I(f"s_lshl_b32 s{sT}, s{sWave}, 13"), I(f"s_lshl_b32 s{sT2}, s{sHl}, 8"), I(f"s_add_u32 s{sT3}, s{sT}, s{sT2}"),
            I(f"s_lshl_b32 s{sT}, s{sXcd}, 19"), I(f"s_add_u32 s{sT}, s{sT}, s{sT3}"),
            I(f"s_lshl_b32 s{sT2}, s{sHl}, 17"), I(f"s_add_u32 s{sWoO}, s{sT}, s{sT2}")] + \
           sum([[I(f"s_add_u32 s{sT2}, s{sHl}, {k+1}"), I(f"s_and_b32 s{sT2}, s{sT2}, 3"),
                 I(f"s_lshl_b32 s{sWoS[k]}, s{sT2}, 17"), I(f"s_add_u32 s{sWoS[k]}, s{sWoS[k]}, s{sT}"),
                 I(f"s_sub_u32 s{sT2}, s{sT2}, s{sHl}"), I(f"s_lshl_b32 s{sSib[k]}, s{sT2}, 12")] for k in range(3)], []) + \
           [I(f"s_mul_i32 s{sOffA}, s{sXcd}, {224*1024}"), I(f"s_add_u32 s{sOffA}, s{sOffA}, s{sT3}")]

def p3p4():
    pre = [I(f"s_mov_b32 s{sW2o}, s{sOffA}"),
           I(f"s_mul_i32 s{sT}, s{sXcd}, 7")]
    for d, c in ((sHLo, sCL), (sHHo, sCH)):
        pre += [I(f"s_sub_u32 s{d}, s{c}, {WS_CTX:#x}"), I(f"s_lshr_b32 s{d}, s{d}, 17"), I(f"s_mul_i32 s{d}, s{d}, 56"),
                I(f"s_add_u32 s{d}, s{d}, s{sT}"), I(f"s_lshl_b32 s{d}, s{d}, 10"), I(f"s_add_u32 s{d}, s{d}, {WS_H:#x}")]
    pre += [I(f"s_lshl_b32 s{sPo}, s{sXcd}, 5"), I(f"s_lshr_b32 s{sT}, s2, 3"), I(f"s_add_u32 s{sPo}, s{sPo}, s{sT}"),
            I(f"s_lshl_b32 s{sPo}, s{sPo}, 16"), I(f"s_lshl_b32 s{sT}, s{sWave}, 14"), I(f"s_add_u32 s{sPo}, s{sPo}, s{sT}"),
            I(f"s_add_u32 s{sPo}, s{sPo}, {WS_P:#x}")]
    pre += poll_check(vPo, vF2, sWS, "0", "1", sT2)
    pre += [I("s_waitcnt lgkmcnt(0)"), I("s_barrier")]
    inter = []
    for s in range(4, 11):
        inter += [g for g in w3_dma(s)]
        bl = b3_loads(s); inter += [bl[:-2], bl[-2:]]
    L = stamp(13) + pre + finalize(1, sCH, inter) + stamp(14)
    RG = 128; NR = 8; PF = 4
    seq = [(s, c8) for s in range(15) for c8 in range(8)] + [(s, c8) for c8 in range(8) for s in range(15, 23)]
    NF = len(seq)
    def w_reads(n):
        s, c8 = seq[n]; h, c = divmod(c8, 4); off = w3_addr(s) - w3_win(s) + h*4096; r = RG + (n % NR)*4
        return [I(f"ds_read_b64_tr_b16 {vr(r,2)}, v{vWtr3+c} offset:{off}"), I(f"ds_read_b64_tr_b16 {vr(r+2,2)}, v{vWtr3+c} offset:{off+2048}")]
    L += [needvm('x0', 'x1', 'x2', 'x3'), I("s_barrier")]
    for n in range(PF): L += w_reads(n)
    mf = []; post = {}; dmaq = []; valu = []
    def addpost(g, items): post.setdefault(g, []).extend(items)
    bars = {4: range(4, 8), 8: range(8, 12), 12: range(12, 15), 15: range(15, 23)}
    for n, (s, c8) in enumerate(seq):
        for b in range(4):
            d = vr((c8*4 + b)*4)
            mf.append(I(f"{M16} {d}, {vr(RG + (n % NR)*4)}, {ar(BSLOT[s] + 4*b)}, {d if s else 0}"))
        g0 = 4*n; m = n + PF
        if n + 1 < NF: addpost(g0 + 3, [needlg(regs_in(vr(RG + ((n + 1) % NR)*4)))])
        if m < NF:
            sm, cm = seq[m]
            if m % 8 == 0 and m <= 120 and sm in bars:
                delta = w3_win(sm) - w3_win(sm - 1)
                if delta:
                    addpost(g0 - 2, [I(f"v_add_u32 v{vWtr3+k}, {delta & 0xffffffff:#x}, v{vWtr3+k}") for k in range(2)])
                    addpost(g0 - 1, [I(f"v_add_u32 v{vWtr3+k}, {delta & 0xffffffff:#x}, v{vWtr3+k}") for k in range(2, 4)])
                addpost(g0 - 1, [needvm(*[f'x{k}' for k in bars[sm]]), I("s_barrier")] + stamp({4: 54, 8: 57, 12: 58, 15: 59}[sm]))
            addpost(g0, w_reads(m))
    addpost(4*4 + 1, stamp(52) + [needvm('cst')] + stamp(53) + [I(f"v_mov_b32 v{vPo}, 2"),
                       I(f"buffer_store_dword v{vPo}, v{vZ}, {sr(sWS)}, s{sFlagMe} offen {ST}")])
    for s in [11] + list(range(15, 23)):
        for g in w3_dma(s): dmaq.append((1, g))
    for s in range(12, 15):
        for g in w3_dma(s): dmaq.append((4*(8*8 - PF) + 1, g))
    dmaq.append((4*22, [poll_issue(vPo, vF2, sWS, "0")]))
    addpost(4*36 + 1, stamp(55) + poll_check(vPo, vF2, sWS, "0", "2", sT2) + stamp(56))
    for s in range(11, 23):
        free = {16: 0, 17: 1, 18: 2, 19: 3, 20: 4, 21: 5, 22: 6}.get(s, -1)
        dmaq.append((max(4*36 + 2, 4*8*(free + 1) + 1), b3_loads(s)))
    PKP = 160
    for c8 in range(8):
        gdone = 4*(120 + 8*c8 + 8) + 2
        for pr in range(2):
            X = (c8*4 + 2*pr)*4; T = PKP + ((c8*2 + pr) % 8)*4
            a, b = P1.pack_swap(T, X, X + 4)
            for it in a + [I(f"s_add_u32 s{sT3}, s{sPo}, {pr*8192 + (c8//4)*4096}")] + b + \
                    [I(f"buffer_store_dwordx4 {vr(T)}, v{vL16}, {sr(sWS)}, s{sT3} offen offset:{(c8 % 4)*1024} {ST}", tag=('vm', 'pst'))]:
                valu.append((gdone, it))
    XO = 226; vXa, vBa = 220, 221
    p4pre = [I(f"s_lshr_b32 s{sT}, s{sXcd}, 1"), I(f"s_lshl_b32 s{sT}, s{sT}, 5"),
             I(f"s_sub_u32 s{sT2}, 15, s{sI}"), I(f"s_bitcmp1_b32 s{sXcd}, 0"), I(f"s_cselect_b32 s{sT2}, s{sT2}, s{sI}"),
             I(f"s_lshl_b32 s{sT2}, s{sT2}, 7"), I(f"s_add_u32 s{sT}, s{sT}, s{sT2}"), I(f"s_lshl_b32 s74, s{sT}, 10"),
             I(f"s_lshl_b32 s75, s{sHl}, 8"), I(f"s_lshl_b32 s{sT}, s{sWave}, 6"), I(f"s_add_u32 s75, s75, s{sT}"), I(f"s_add_u32 s74, s74, s75"),
             I(f"v_bfe_u32 v{vXa}, v{vL16}, 4, 5"), I(f"v_lshlrev_b32 v{vXa}, 10, v{vXa}"),
             I(f"v_lshrrev_b32 v{vBa}, 9, v{vL16}"), I(f"v_lshlrev_b32 v{vBa}, 4, v{vBa}"), I(f"v_add_u32 v{vXa}, v{vXa}, v{vBa}")]
    addpost(4*100 + 1, p4pre[:6]); addpost(4*101 + 1, p4pre[6:12]); addpost(4*102 + 1, p4pre[12:])
    dmaq.append((4*104, [I(f"buffer_load_dwordx4 {vr(XO + 8*pc)}, v{vXa}, {sr(sX)}, s74 offen offset:{pc*32}") for pc in range(2)] +
                        [I(f"buffer_load_dwordx4 {vr(XO + 4 + 8*pc)}, v{vBa}, {sr(sB2)}, s75 offen offset:{pc*32}") for pc in range(2)]))
    place_dma(dmaq, addpost, step=1, ok=lambda g: g % 4 in (1, 2))
    def budget(g, p):
        if any(x.kind == 'dsr' for x in p): return 0
        n = sum(1 for x in p if x.txt or (x.tag and x.tag[0] != 'needvm'))
        nd = sum(1 for x in p if x.kind in ('dma', 'vld', 'vst'))
        return max(0, 2 - max(0, n - 1) - nd)
    body, left = weave(mf, post, valu, budget)
    L += body + stamp(15)
    L += [I(f"s_add_u32 s{sFlagMe}, s{sFlagMe}, 4096"), I(f"v_mov_b32 v{vPo}, 1"), needvm('pst'),
          I(f"buffer_store_dword v{vPo}, v{vZ}, {sr(sWS)}, s{sFlagMe} offen {ST}"),
          I(f"s_lshr_b32 s{sT}, s2, 3"), I(f"s_lshl_b32 s{sT}, s{sT}, 16"), I(f"s_lshl_b32 s{sT2}, s{sXcd}, 13"), I(f"s_add_u32 s{sT}, s{sT}, s{sT2}"),
          I(f"s_lshl_b32 s{sT2}, s{sWave}, 11"), I(f"s_add_u32 s{sT}, s{sT}, s{sT2}"), I(f"s_add_u32 s{sT}, s{sT}, {WS_P:#x}"),
          poll_issue(vPo, vF3, sWS, "0")]
    for pc in range(2):
        A = 64 + 8*pc
        for j in range(4):
            L += [I(f"v_lshlrev_b32 v{A+2*j}, 16, v{XO+8*pc+j}"), I(f"v_and_b32 v{A+2*j+1}, 0xffff0000, v{XO+8*pc+j}"),
                  I(f"v_lshlrev_b32 v80, 16, v{XO+4+8*pc+j}"), I(f"v_and_b32 v81, 0xffff0000, v{XO+4+8*pc+j}"),
                  I(f"v_add_f32 v{A+2*j}, v{A+2*j}, v80"), I(f"v_add_f32 v{A+2*j+1}, v{A+2*j+1}, v81")]
    L += poll_check(vPo, vF3, sWS, "0", "1", sT2) + stamp(16)
    for x in range(8):
        L += [I(f"buffer_load_dwordx4 {vr((pc*8 + x)*4)}, v{vL16}, {sr(sWS)}, s{sT} offen offset:{pc*1024} {LD}") for pc in range(2)]
        if x < 7: L += [I(f"s_add_u32 s{sT}, s{sT}, {2*MB:#x}")]
    for x in range(8):
        for pc in range(2):
            A = 64 + 8*pc; r = (pc*8 + x)*4
            for j in range(4):
                L += [I(f"v_lshlrev_b32 v80, 16, v{r+j}"), I(f"v_and_b32 v81, 0xffff0000, v{r+j}"),
                      I(f"v_add_f32 v{A+2*j}, v{A+2*j}, v80"), I(f"v_add_f32 v{A+2*j+1}, v{A+2*j+1}, v81")]
    for pc in range(2):
        A = 64 + 8*pc
        L += [I(f"v_cvt_pk_bf16_f32 v{84+4*pc+j}, v{A+2*j}, v{A+2*j+1}") for j in range(4)]
        L += [I(f"buffer_store_dwordx4 {vr(84+4*pc)}, v{vXa}, {sr(sOUT)}, s74 offen offset:{pc*32}")]
    L += stamp_out(17) + [I("s_endpgm")]
    return L

def build():
    P = P1.prologue()
    P, lgq, vmq = finish(P, name="pro")
    aK, bK = P1.engine(False); aV, bV = P1.engine(True)
    assert text(bK).replace("PL_", "").count("\n") == text(bV).count("\n")
    aK, lq1, vq1 = finish(aK, lgq, vmq, P, name="engK")
    aV, lq2, vq2 = finish(aV, lgq, vmq, P, name="engV")
    assert lq1 == lq2 and [x[1] for x in vq1] == [x[1] for x in vq2] and [x[0] for x in vq1] == [x[0] for x in vq2]
    B, lq, vq = finish(bK + first_tile(), lq1, vq1, aK, name="engB")
    B2, _, _ = finish(bK + first_tile(), lq1, vq1, aV, name="engB'")
    assert len(B) == len(B2)
    Q0 = [set(regs_in(ar(RING + f*4))) for f in range(NPRE)]
    if not OPT.prof: assert lq == Q0, lq
    bend_dma = [(1, g) for s in range(4) for g in w3_dma(s)] + [(20, [poll_issue(vPo, vF2, sWS, "0")])]
    raw = {
        'AAe': step('A', 'A', 0, 1, name='AAe'), 'AAo': step('A', 'A', 1, 1, name='AAo'),
        'AAmo': step('A', 'A', 1, 1, mask=[(0, 0, None), (2, 1, None)], name='AAmo'),
        'AAme': step('A', 'A', 0, 2, mask=[(0, 2, None), (2, 3, None)], xwait=8, name='AAme'),
        'ABm': step('A', 'B', 1, 2, mask=[(k, k, sOffB) for k in range(4)], xwait=8, name='ABm'),
        'BBe': step('B', 'B', 0, 2, name='BBe'), 'BBo': step('B', 'B', 1, 2, name='BBo'),
        'BBm': step('B', 'B', 1, 0, mask=[(k, k, None) for k in range(4)], xwait=0, name='BBm'),
        'FINL': stamp(11) + finalize(0, sCL) + p3_consts() + stamp(12) + [I(f"s_sub_u32 s{sCnt}, 6, s{sI}"), I("s_cbranch_scc1 F_Bend")],
    }
    preds = {'AAe': ['PRO', 'AAo'], 'AAo': ['AAe'], 'AAmo': ['AAe'], 'AAme': ['PRO', 'AAmo'], 'ABm': ['AAme'], 'FINL': ['ABm'],
             'BBe': ['FINL', 'BBo'], 'BBo': ['BBe'], 'BBm': ['BBe']}
    done = {'PRO': B}
    for nm in ['AAe', 'AAo', 'AAmo', 'AAme', 'ABm', 'FINL', 'BBe', 'BBo', 'BBm']:
        outs = [finish(raw[nm], Q0, None, done.get(pr) or raw[pr], name=nm + "<-" + pr, vm=False) for pr in preds[nm]]
        best = max(outs, key=lambda o: len(o[0]))
        done[nm] = best[0]
        if not OPT.prof or nm != 'FINL': assert best[1] == Q0, (nm, best[1])
    tailraw = p3_scalars_early() + step('B', None, 0, 0, name='Bend', extra_dma=bend_dma) + p3p4()
    outs = [finish(tailraw, Q0, [], done[pr], name="tail<-" + pr) for pr in ('FINL', 'BBm')]
    tail = max(outs, key=lambda o: len(o[0]))[0]
    loopx = lambda lab: f" s_sub_u32 s{sCnt}, s{sCnt}, 1\n s_cbranch_scc1 {lab}\n"
    body = text(P) + "\n" + text(aK) + "\n s_branch F_J\nF_V:\n" + text(aV) + "\nF_J:\n" + text(B) + "\n"
    body += ".p2align 3\nF_AAe:\n" + text(done['AAe']) + "\n" + loopx("F_AAmo") + text(done['AAo']) + "\n s_branch F_AAe\n"
    body += "F_AAmo:\n" + text(done['AAmo']) + "\nF_AAme:\n" + text(done['AAme']) + "\n" + text(done['ABm']) + "\n" + text(done['FINL']) + "\n"
    body += ".p2align 3\nF_BBe:\n" + text(done['BBe']) + "\n" + loopx("F_BBm") + text(done['BBo']) + "\n s_branch F_BBe\n"
    body += "F_BBm:\n" + text(done['BBm']) + "\nF_Bend:\n" + text(tail) + "\n"
    for typ in 'AB':
        for p in range(2): body += text(rare_S(typ, p)) + "\n"
        body += text(rare_O(typ)) + "\n"
    body += "F_end:\n s_endpgm\n"
    hdr = open(f"cdna_kernels/{NAME}.s.ref").read().split("; Override")[0]
    kname = NAME + "_kernel"
    if "--list" in sys.argv: hdr += f"; @launch kernel={kname} grid=(256,1,1) block=(256,1,1) lds=163840\n"
    else: hdr += "; @launch grid=(256,1,1) block=(256,1,1) lds=163840\n"
    return hdr + '.amdgcn_target "amdgcn-amd-amdhsa--gfx950"\n' + kernel_text(kname, body, 512, 256)

if __name__ == "__main__":
    OPT.prof = "--prof" in sys.argv
    if "-q" in sys.argv: OPT.verbose = 0
    open(sys.argv[1], "w").write(build())
```

```python
import re

_REG = re.compile(r'\b([vas])\[(\d+):(\d+)\]|\b([vas])(\d+)\b|\b(vcc|exec|m0|scc)\b')

def regs_in(s):
    out = []
    for m in _REG.finditer(s):
        if m.group(1):
            out += [f"{m.group(1)}{i}" for i in range(int(m.group(2)), int(m.group(3)) + 1)]
        elif m.group(4):
            out.append(f"{m.group(4)}{m.group(5)}")
        else:
            out.append(m.group(6))
    return out

TRANS = ('v_exp_f32', 'v_log_f32', 'v_rcp_f32', 'v_rsq_f32', 'v_sqrt_f32', 'v_sin_f32', 'v_cos_f32')

class Ins:
    __slots__ = ('txt', 'op', 'kind', 'wr', 'rd', 'passes', 'A', 'B', 'C', 'D', 'tag', 'states', 'wide')
    def __init__(self, txt, tag=None):
        self.txt = txt.strip()
        self.tag = tag
        self.passes = 0
        self.A = self.B = self.C = self.D = ()
        self.states = 1
        self.wide = False
        t = self.txt.split(';')[0].strip()
        if t.endswith(':') or t.startswith('.') or not t:
            self.op = 'label'; self.kind = 'label'; self.wr = set(); self.rd = set(); self.states = 0
            return
        parts = t.split(None, 1)
        op = parts[0]; self.op = op
        rest = parts[1] if len(parts) > 1 else ''
        ops = [o.strip() for o in re.split(r',(?![^\[]*\])', rest)] if rest else []
        R = lambda i: regs_in(ops[i]) if i < len(ops) else []
        allr = lambda a: [r for o in ops[a:] for r in regs_in(o)]
        wr, rd = [], []
        if op.startswith('v_mfma'):
            self.kind = 'mfma'
            self.passes = 8 if '32x32x16' in op else 4
            self.D, self.A, self.B, self.C = tuple(R(0)), tuple(R(1)), tuple(R(2)), tuple(R(3))
            wr = list(self.D); rd = list(self.A + self.B + self.C)
        elif op.startswith('v_cmp'):
            self.kind = 'valu'; wr = R(0); rd = allr(1)
        elif op.startswith('v_permlane') and 'swap' in op:
            self.kind = 'valu'; wr = R(0) + R(1); rd = R(0) + R(1)
        elif op.startswith('v_'):
            self.kind = 'trans' if any(op.startswith(x) for x in TRANS) else 'valu'
            wr = R(0); rd = allr(1)
            if op.startswith(('v_fmac', 'v_dot2c', 'v_writelane')): rd += R(0)
            if op.startswith(('v_add_co', 'v_sub_co', 'v_addc_co')): wr += R(1); rd = allr(2)
            if op.startswith('v_cndmask') and len(ops) == 3: rd.append('vcc')
            if 'dpp' in t or 'row_' in t or 'quad_perm' in t: rd += R(0)
        elif op.startswith('ds_read') or op.startswith('ds_bpermute') or op.startswith('ds_swizzle'):
            self.kind = 'dsr'; wr = R(0); rd = allr(1)
        elif op.startswith('ds_write'):
            self.kind = 'dsw'; rd = allr(0)
        elif op.startswith(('buffer_load', 'global_load')):
            if re.search(r'\blds\b', t):
                self.kind = 'dma'; rd = allr(0) + ['m0']
            else:
                self.kind = 'vld'; wr = R(0); rd = allr(1)
        elif op.startswith(('buffer_store', 'global_store')):
            self.kind = 'vst'; rd = allr(0)
            self.wide = op.endswith(('x4', 'x3'))
            self.D = tuple(R(0))
        elif op.startswith('buffer_') or op.startswith('global_'):
            self.kind = 'vmisc'; rd = allr(0)
        elif op in ('s_sleep', 's_setprio'):
            self.kind = 'salu'
        elif op == 's_waitcnt':
            self.kind = 'wait'
        elif op == 's_barrier':
            self.kind = 'barrier'
        elif op == 's_nop':
            self.kind = 'nop'; self.states = int(ops[0], 0) + 1
        elif op.startswith(('s_cbranch', 's_branch', 's_setpc', 's_call', 's_swappc', 's_endpgm')):
            self.kind = 'branch'; rd = allr(0)
            if op.startswith('s_call'): wr = R(0); rd = []
        elif op.startswith(('s_load', 's_memtime', 's_memrealtime')):
            self.kind = 'smem'; wr = R(0); rd = allr(1)
        elif op.startswith('s_cmp') or op.startswith('s_bitcmp'):
            self.kind = 'salu'; rd = allr(0); wr = ['scc']
        elif op.startswith('s_'):
            self.kind = 'salu'; wr = R(0); rd = allr(1)
            if op.startswith(('s_addk', 's_mulk')): rd += R(0)
        else:
            raise ValueError("unknown instruction: " + txt)
        self.wr = set(wr); self.rd = set(rd)
    def __repr__(self): return self.txt

def I(txt, tag=None): return Ins(txt, tag)

def _need(p, c):
    n = 0
    pv = p.kind in ('valu', 'trans')
    cv = c.kind in ('valu', 'trans')
    if pv:
        vw = {r for r in p.wr if r[0] in 'va' and r != 'vcc'}
        sw = p.wr - vw
        if c.kind == 'mfma' and vw & c.rd: n = max(n, 2)
        if p.kind == 'trans' and c.kind == 'valu' and vw & c.rd: n = max(n, 1)
        if p.kind == 'trans' and c.kind in ('vst', 'dsw') and vw & c.rd: n = max(n, 1)
        if c.op.startswith('v_permlane') and vw & c.rd: n = max(n, 2)
        if c.op.startswith(('v_readlane', 'v_readfirstlane')) and vw & c.rd: n = max(n, 1)
        if cv and ('dpp' in c.txt or 'row_' in c.txt or 'quad_perm' in c.txt) and vw & c.rd: n = max(n, 2)
        if sw & c.rd:
            if cv: n = max(n, 2)
            if c.kind in ('vld', 'vst', 'dma', 'vmisc'): n = max(n, 5)
            if c.kind in ('salu', 'branch'): n = max(n, 1)
        if 'exec' in p.wr and c.kind == 'mfma': n = max(n, 4)
    if p.kind == 'mfma':
        big = 12 if p.passes == 8 else 8
        D = set(p.D)
        if c.kind == 'mfma':
            if D & set(c.A + c.B): n = max(n, big)
            if D & set(c.C):
                if not (tuple(c.C) == tuple(p.D) and c.passes == p.passes): n = max(n, big - 2)
            elif D & set(c.D): n = max(n, big - 2)
        elif c.kind in ('valu', 'trans'):
            if D & (c.rd | c.wr): n = max(n, big)
            if set(p.C) & c.wr: n = max(n, 7 if p.passes == 8 else 3)
        elif c.kind in ('vst', 'dsw', 'dma', 'vmisc'):
            if D & c.rd: n = max(n, big)
        elif c.kind in ('vld', 'dsr'):
            if D & (c.rd | c.wr): n = max(n, big)
            if set(p.C) & c.wr: n = max(n, 7 if p.passes == 8 else 3)
    if p.kind == 'vst' and p.wide and set(p.D) & c.wr:
        n = max(n, 2)
    if p.kind == 'salu' and 'm0' in p.wr and c.kind == 'dma': n = max(n, 1)
    return n

def pad_hazards(ins, prev=None, verbose=None):
    out = []
    hist = list(prev[-24:]) if prev else []
    npad = 0
    for c in ins:
        if c.kind == 'label':
            out.append(c); continue
        need = 0; dist = 0; why = None
        for p in reversed(hist):
            if dist >= 20: break
            n = _need(p, c)
            if n - dist > need: need = n - dist; why = p
            dist += p.states
        while need > 0:
            k = min(need, 16)
            nop = Ins(f"s_nop {k-1}")
            out.append(nop); hist.append(nop); need -= k; npad += k
            if verbose is not None: verbose.append((k, why.txt, c.txt))
        out.append(c); hist.append(c)
        if len(hist) > 64: hist = hist[-32:]
    return out, npad

def insert_lgkm(ins, init=None):
    q = [set(x) for x in (init or [])]
    out = []
    for c in ins:
        if c.kind == 'wait':
            m = re.search(r'lgkmcnt\((\d+)\)', c.txt)
            if m:
                k = int(m.group(1))
                while len(q) > k: q.pop(0)
            out.append(c); continue
        touched = c.rd | c.wr
        if c.kind == 'label' and c.tag and c.tag[0] == 'needlg': touched = c.tag[1]
        pos = -1
        for i, s in enumerate(q):
            if s & touched: pos = i
        if pos >= 0:
            n = len(q) - pos - 1
            n = min(n, 15)
            out.append(Ins(f"s_waitcnt lgkmcnt({n})"))
            while len(q) > n: q.pop(0)
        if c.kind == 'dsr': q.append(set(c.wr))
        elif c.kind == 'dsw': q.append(set())
        elif c.kind == 'smem':
            assert not q, "smem with ds ops outstanding"

        out.append(c)
    return out, q

def insert_vm(ins, init=None):
    q = list(init or [])
    out = []; closed = set()
    for c in ins:
        if c.tag and c.tag[0] == 'novm':
            out.append(c); continue
        if c.kind == 'wait':
            m = re.search(r'vmcnt\((\d+)\)', c.txt)
            if m:
                k = int(m.group(1))
                while len(q) > k: q.pop(0)
            out.append(c); continue
        pos = -1
        if c.kind == 'label' and c.tag and c.tag[0] == 'needvm':
            names = c.tag[1:]
            closed.update(names)
            for i, (s, nm) in enumerate(q):
                if nm in names: pos = i
            if pos >= 0:
                n = min(len(q) - pos - 1, 63)
                out.append(Ins(f"s_waitcnt vmcnt({n})"))
                while len(q) > n: q.pop(0)
            continue
        touched = c.rd | c.wr
        for i, (s, nm) in enumerate(q):
            if s & touched: pos = i
        if pos >= 0:
            n = min(len(q) - pos - 1, 63)
            out.append(Ins(f"s_waitcnt vmcnt({n})"))
            while len(q) > n: q.pop(0)
        if c.kind in ('vld', 'dma', 'vst', 'vmisc'):
            nm = c.tag[1] if (c.tag and c.tag[0] == 'vm') else None
            assert nm is None or nm not in closed, f"vmem op tagged {nm} issued after its needvm"
            if len(q) >= 60:
                out.append(Ins("s_waitcnt vmcnt(52)"))
                while len(q) > 52: q.pop(0)
            q.append((set(c.wr) if c.kind == 'vld' else set(), nm))
        out.append(c)
    return out, q

def needlg(regs): return Ins("", tag=('needlg', set(regs)))
def needvm(*names): return Ins("", tag=('needvm',) + names)

def cost(c):
    if isinstance(c, list): return sum(cost(x) for x in c)
    if c.kind == 'trans' or c.op.startswith('v_permlane'): return 2
    if c.kind == 'label': return 1 if (c.tag and c.tag[0] == 'pad') else 0
    return 1

def weave(mfmas, post, valu, budget, flush_dep=False):
    out = []
    vi = 0
    for g, m in enumerate(mfmas):
        if flush_dep is True or (flush_dep and flush_dep(g)):
            need = set(m.A) | set(m.B); k = -1
            for j in range(vi, len(valu)):
                it = valu[j][1]
                if not isinstance(it, list) and it.wr & need: k = j
            while vi <= k:
                it = valu[vi][1]
                assert valu[vi][0] <= g, "forced flush violates min gap"
                out += it if isinstance(it, list) else [it]
                vi += 1
        out.append(m)
        p = post.get(g, [])
        out += p
        b = budget(g, p)
        while vi < len(valu) and valu[vi][0] <= g and b >= cost(valu[vi][1]):
            b -= cost(valu[vi][1])
            it = valu[vi][1]
            if isinstance(it, list): out += it
            else: out.append(it)
            vi += 1
    left = []
    for x in valu[vi:]:
        left += x[1] if isinstance(x[1], list) else [x[1]]
    out += left
    return out, len(left)

def text(ins):
    return "\n".join((c.txt if c.kind == 'label' else " " + c.txt) for c in ins if c.txt)
```

```python
import sys, math, struct
from asmlib import *

NAME = "parallel_sum__compressed_kv_cla__dense_activation_gelu__prompt"
MB = 1 << 20
WS_K, WS_V, WS_XN, WS_H, WS_CTX, WS_P, WS_F = 0, 18*MB, 36*MB, 39*MB, 48*MB, 64*MB, 84*MB
WS_SIZE = 85*MB
_pad = 0 if '--nopad' in sys.argv else 1024
TS = XS = 16384 + _pad
PD = 8192 + _pad
F0, F1, F2, F3, FE = WS_F, WS_F + 32768, WS_F + 65536, WS_F + 196608, WS_F + 327680
sE = 62
A_X, A_CKV, A_WQ, A_WUK, A_WUV, A_WO, A_BX, A_W1, A_B1, A_W2, A_B2, A_OUT, A_DBG, A_WS = [8*i for i in range(14)]
def f32(x): return "0x%08x" % struct.unpack("<I", struct.pack("<f", x))[0]
QSCALE = (128 ** -0.5) * math.log2(math.e)
M16 = "v_mfma_f32_16x16x32_bf16"
M32 = "v_mfma_f32_32x32x16_bf16"
def vr(b, n=4): return f"v[{b}:{b+n-1}]"
def ar(b, n=4): return f"a[{b}:{b+n-1}]"
def sr(b, n=4): return f"s[{b}:{b+n-1}]"
ST = "sc0 sc1"
LD = "sc1"

class Opt:
    prof = False
    verbose = 4
OPT = Opt()
def flag(n): return ('--' + n) in sys.argv
def val(n, d):
    for a in sys.argv:
        if a.startswith('--' + n + '='): return type(d)(a.split('=')[1])
    return d

sWS, sX, sC, sWkv, sWQ, sW1, sB1, sKS, sVS, sWO, sW2, sB2, sOUT, sDBG = [8 + 4*i for i in range(14)]
sWave, sXcd, sI, sHl, sT, sT2, sT3, sW4096, sW1024, sFlagMe = range(64, 74)
PROF_BASE = 128*MB
vPR, vPC = 254, 255

def stamp(k):
    if not OPT.prof: return []
    return [I("s_waitcnt lgkmcnt(0)"), I("s_memrealtime s[100:101]"), I("s_waitcnt lgkmcnt(0)"), I(f"v_writelane_b32 v{vPR}, s100, {k}"), I("s_memtime s[100:101]"), I("s_waitcnt lgkmcnt(0)"),
            I("s_nop 0"), I(f"v_writelane_b32 v{vPC}, s100, {k}")]
def stamp_out(k):
    if not OPT.prof: return []
    return [I("s_waitcnt vmcnt(0)")] + stamp(k) + [
        I(f"s_mov_b32 s{sWS+2}, {PROF_BASE + MB:#x}"),
        I("v_mbcnt_lo_u32_b32 v0, -1, 0"), I("v_mbcnt_hi_u32_b32 v0, -1, v0"), I("v_lshlrev_b32 v0, 3, v0"),
        I(f"s_lshl_b32 s4, s2, 2"), I(f"s_add_u32 s4, s4, s{sWave}"), I("s_lshl_b32 s4, s4, 9"), I(f"s_add_u32 s4, s4, {PROF_BASE:#x}"),
        I(f"buffer_store_dwordx2 v[{vPR}:{vPC}], v0, {sr(sWS)}, s4 offen")]

def finish(ins, lg_init=None, vm_init=None, prev=None, name="", vm=True):
    q1 = None
    if vm: ins, q1 = insert_vm(ins, vm_init)
    ins, q2 = insert_lgkm(ins, lg_init)
    vb = []
    ins, npad = pad_hazards(ins, prev, vb)
    if npad and OPT.verbose:
        print(f"[{name}] padded {npad} wait states", file=sys.stderr)
        for k, a, b in vb[:OPT.verbose]: print(f"    {k}: {a}  ->  {b}", file=sys.stderr)
    return ins, q2, q1

def place_dma(dmaq, addpost, step=2, ok=lambda g: True):
    nxt = 0
    step0 = step
    for ent in sorted(dmaq, key=lambda x: x[0]):
        g, items = ent[0], ent[1]; step = ent[2] if len(ent) > 2 else step0
        g = max(g, nxt)
        while not ok(g): g += 1
        k = 0
        while items[k].kind == 'salu': k += 1
        if k == 1 and 'm0' in items[0].wr:
            addpost(g, items[:1]); g += 1
            while not ok(g): g += 1
            addpost(g, items[1:2])
        else:
            addpost(g, items[:k+1])
        for it in items[k+1:]:
            g += step
            while not ok(g): g += 1
            addpost(g, [it])
        nxt = g + step
    return nxt

def lane_wtr(vdst, base, tmp, ln, natural=True):
    L = [I(f"v_lshrrev_b32 v{tmp}, 4, v{ln}"), I(f"v_bfe_u32 v{tmp+1}, v{ln}, 2, 2"), I(f"v_and_b32 v{tmp+2}, 1, v{tmp}"),
         I(f"v_lshl_add_u32 v{tmp+1}, v{tmp+2}, 2, v{tmp+1}"), I(f"v_lshrrev_b32 v{tmp}, 1, v{tmp}"),
         I(f"v_lshlrev_b32 v{tmp}, {11 if natural else 10}, v{tmp}"), I(f"v_lshl_add_u32 v{tmp}, v{tmp+1}, 7, v{tmp}"),
         I(f"v_and_b32 v{tmp+2}, 1, v{ln}"), I(f"v_lshl_add_u32 v{tmp}, v{tmp+2}, 3, v{tmp}"),
         I(f"v_bfe_u32 v{tmp+2}, v{ln}, 1, 1"), I(f"v_lshl_add_u32 v{tmp}, v{tmp+2}, 4, v{tmp}")]
    if base: L.append(I(f"v_add_u32 v{tmp}, {base}, v{tmp}"))
    L.append(I(f"v_and_b32 v{tmp+1}, 6, v{tmp+1}"))
    for c in range(4):
        L += [I(f"v_xor_b32 v{tmp+2}, {2*c}, v{tmp+1}"), I(f"v_lshl_add_u32 v{vdst+c}, v{tmp+2}, 4, v{tmp}")]
    return L

def lane_wdma(vdst, rowstride, tmp, ln, natural=True, nblk=4):
    L = [I(f"v_lshrrev_b32 v{tmp}, 3, v{ln}"), I(f"v_and_b32 v{tmp+1}, 7, v{ln}"), I(f"v_and_b32 v{tmp+2}, 6, v{tmp}"),
         I(f"v_xor_b32 v{tmp+1}, v{tmp+1}, v{tmp+2}"), I(f"v_lshlrev_b32 v{tmp+1}, 4, v{tmp+1}")]
    if natural:
        L += [I(f"v_and_b32 v{tmp+2}, 4, v{tmp}"), I(f"v_add_u32 v{tmp}, v{tmp}, v{tmp+2}")]
    L += [I(f"v_mul_u32_u24 v{tmp}, {rowstride}, v{tmp}"), I(f"v_add_u32 v{tmp}, v{tmp}, v{tmp+1}")]
    for b in range(nblk):
        rows = (4*(b % 2) + 16*(b // 2)) if natural else 8*b
        off = rows * rowstride - 1024 * b
        L.append(I(f"v_add_u32 v{vdst+b}, {off}, v{tmp}") if off else I(f"v_mov_b32 v{vdst+b}, v{tmp}"))
    return L

def pf_load(vj, voff, srd_, soff, extra=""):
    if flag('pfnt') and srd_ in (sWkv, sWQ, sC): extra += " nt"
    i = I(f"buffer_load_dword v{vj}, v{voff}, {sr(srd_)}, {soff} offen {extra}")
    i.wr = set()
    return i

_poll = [0]
def poll_issue(vp, vaddr, srd_, soff):
    return I(f"buffer_load_dword v{vp}, v{vaddr}, {sr(srd_)}, {soff} offen sc1")
def poll_check(vp, vaddr, srd_, soff, level, sc, st):
    _poll[0] += 1; u = _poll[0]
    t = lambda: [I(f"v_subrev_u32 v{vp}, s{st}, v{vp}"), I(f"v_cmp_le_u32 vcc, 8, v{vp}"), I(f"s_cbranch_vccz PL_ok{u}")]
    return [I(f"s_add_u32 s{st}, s{sE}, {level}")] + t() + [
            I(f"s_mov_b32 s{sc}, 0x40000"), I(f"PL_sp{u}:"), I("s_sleep 2"),
            I(f"buffer_load_dword v{vp}, v{vaddr}, {sr(srd_)}, {soff} offen sc1", tag=('novm',)),
            I("s_waitcnt vmcnt(0)", tag=('novm',))] + t() + [
            I(f"s_sub_u32 s{sc}, s{sc}, 1"), I(f"s_cbranch_scc0 PL_sp{u}"), I(f"PL_ok{u}:")]
def epoch_check(vp, vaddr, sc):
    _poll[0] += 1; u = _poll[0]
    t = lambda: [I(f"v_cmp_eq_u32 vcc, 0, v{vp}"), I(f"s_cbranch_vccz PL_ok{u}")]
    return t() + [I(f"s_mov_b32 s{sc}, 0x40000"), I(f"PL_sp{u}:"), I("s_sleep 2"),
            I(f"buffer_load_dword v{vp}, v{vaddr}, {sr(sDBG)}, 0 offen sc1", tag=('novm',)),
            I("s_waitcnt vmcnt(0)", tag=('novm',))] + t() + [
            I(f"s_sub_u32 s{sc}, s{sc}, 1"), I(f"s_cbranch_scc0 PL_sp{u}"), I(f"PL_ok{u}:"),
            I(f"v_readfirstlane_b32 s{sE}, v{vp}")]
def flag_put(vt, vz, soff, level, ioff=0):
    return [I(f"v_mov_b32 v{vt}, s{sE}"), I(f"v_add_u32 v{vt}, {level}, v{vt}"),
            I(f"buffer_store_dword v{vt}, v{vz}, {sr(sWS)}, s{soff} offen {ST}")]

def code_pf(lo, hi, vt, vj, vl16, n=1):
    V = [I(f"v_lshlrev_b32 v{vt}, 3, v{vl16}"), I(f"v_lshl_add_u32 v{vt}, s{sWave}, 13, v{vt}")]
    M = []
    for k in range(n):
        V += [I(f"v_add_u32 v{vt+1+k}, {lo}-F_pc+{k*32768}, v{vt}"), I(f"v_min_u32 v{vt+1+k}, {hi}-F_pc, v{vt+1+k}")]
        i = I(f"global_load_dword v{vj}, v{vt+1+k}, s[6:7]"); i.wr = set(); M.append(i)
    return V, M

def kernel_text(name, body, vgpr, accum, sgpr=102):
    return f""".text
.globl {name}
.p2align 8
.type {name},@function
{name}:
{body}
.section .rodata,"a"
.p2align 6
.amdhsa_kernel {name}
  .amdhsa_next_free_vgpr {vgpr}
  .amdhsa_next_free_sgpr {sgpr}
  .amdhsa_accum_offset {accum}
  .amdhsa_group_segment_fixed_size 0
  .amdhsa_kernarg_size 112
  .amdhsa_user_sgpr_count 2
  .amdhsa_user_sgpr_kernarg_segment_ptr 1
  .amdhsa_system_sgpr_workgroup_id_x 1
.end_amdhsa_kernel
"""
```

```python
from f_common import *

GC0 = -2.0 * math.sqrt(2.0 / math.pi) * math.log2(math.e)
GC1 = GC0 * 0.044715
sWoff, sCoff, sOb, sM0c, sScale, sType, s1o, sQo, sXL, sXH, sXLc, sXHc, sHL, sHH, sGC0, sB1o, sSt = range(74, 91)
sXrow, sWpf, sRb, sF0me = 98, 99, 96, 5
sKt, sKm, sVt, sVm = 91, 92, 93, 94
sCL, sCH = 95, 96
ACCB = [0, 64, 128, 0, 64, 0, 128]
WF = 192; NWF = 6
vZero, vPoll, vFt, vP0, vF1, vJ, vBo, vTm2 = range(216, 224)
vL16 = 224; vWtrS = [225, 229]; vWd, vW1d = 233, 237
vXo2, vGC1, vKVd = 241, 242, 243
PK = 244; GT = 237; GP = [244, 248]
vCd, vCr = 180, 178
QF = lambda qb, ks: 128 + (qb*8 + ks)*4
XF = lambda b, ks: (b*16 + ks)*4

def bf16_round(dst, src):
    return [I(f"v_cvt_pk_bf16_f32 v{dst}, v{src}, v{src}"), I(f"v_and_b32 v{dst}, 0xffff0000, v{dst}")]
def sum32(v, t):
    return [I(f"v_add_f32_dpp v{v}, v{v}, v{v} quad_perm:[1,0,3,2] row_mask:0xf bank_mask:0xf"),
            I(f"v_add_f32_dpp v{v}, v{v}, v{v} quad_perm:[2,3,0,1] row_mask:0xf bank_mask:0xf"),
            I(f"v_add_f32_dpp v{v}, v{v}, v{v} row_half_mirror row_mask:0xf bank_mask:0xf"),
            I(f"v_add_f32_dpp v{v}, v{v}, v{v} row_mirror row_mask:0xf bank_mask:0xf"),
            I(f"v_mov_b32 v{t}, v{v}"), I(f"v_permlane16_swap_b32 v{v}, v{t}"), I(f"v_add_f32 v{v}, v{v}, v{t}")]

def c_dma(ch):
    gs = []
    for grp in range(2):
        L = [I(f"s_add_u32 m0, s{sM0c}, {(ch % 3)*8192 + grp*4096}"), I(f"s_add_u32 s{sT}, s{sCoff}, {ch*128 + grp*32768}")]
        L += [I(f"buffer_load_dwordx4 v{vCd+b}, {sr(sC)}, s{sT} offen offset:{1024*b} {'nt' if flag('cnt') else ''} lds", tag=('vm', f'c{ch}')) for b in range(4)]
        gs.append(L)
    return gs
ORDER = [(0, k) for k in range(8)]
for cp in range(4):
    for k in range(8): ORDER += [(cp, 8 + k), (cp + 1, k)]
ORDER += [(4, k) for k in range(8, 16)] + [(5, k) for k in range(16)] + [(6, k) for k in range(16)]
POS = {e: 4*k for k, e in enumerate(ORDER)}
PF = 4
FU = {u: POS[(u//4, 4*(u % 4))] for u in range(28)}
LU = {u: POS[(u//4, 4*(u % 4) + 3)] + 3 for u in range(28)}
def make_plan(dist):
    need = {}; bars = []
    for u in sorted(FU, key=lambda u: FU[u]):
        p = FU[u] - PF
        if bars and p - bars[-1] <= 4: need[u] = bars[-1]
        else: bars.append(p); need[u] = p
    extra = [40, 72]
    bars = sorted(set(bars + extra))
    plan = {0: (-9, 6), 1: (-9, 7), 2: (-9, 8), 4: (-9, 9)}
    free = {sl: 72 for sl in range(6)}
    def rel(u): return min([p for p in bars if p > LU[u]] + [10**6])
    for u, (p, sl) in plan.items(): free[sl] = rel(u)
    rest = [u for u in sorted(FU, key=lambda u: FU[u]) if u not in plan]
    for u in rest:
        allowed = range(10) if u < 22 else (3, 5, 6, 7, 8, 9)
        sl = min(allowed, key=lambda x: (free[x], x in (3, 5, 6, 7, 8, 9) and u >= 16))
        cand = [p for p in bars if p >= free[sl] and p >= need[u] - dist]
        plan[u] = (cand[0], sl); assert cand[0] < need[u], u
        free[sl] = rel(u)
    return plan, need, bars, free
PLAN, NEED, BARS, SLOTFREE = make_plan(val('wdist', 100))
def w_dma(u):
    cp, kq = divmod(u, 4); slot = PLAN[u][1]
    if cp < 4: srd_, vo, so, off = sWkv, vWd, sWoff, kq*4*262144 + cp*128
    elif cp == 4: srd_, vo, so, off = sW1, vW1d, s1o, kq*4*32*3584
    else: srd_, vo, so, off = sWQ, vWd, sQo, kq*4*262144 + (cp - 5)*128
    L = [I(f"s_add_u32 m0, s{sW4096}, {slot*16384}"), I(f"s_add_u32 s{sT}, s{so}, {off}")]
    L += [I(f"buffer_load_dwordx4 v{vo+b}, {sr(srd_)}, s{sT} offen offset:{1024*b} {'nt' if (flag('wnt') or (flag('qnt') and cp >= 4)) else ''} lds", tag=('vm', f'w{u}')) for b in range(4)]
    return L
def kv_dma(which, tag=None):
    srd_, t, m = (sKS, sKt, sKm) if which == 'K' else (sVS, sVt, sVm)
    L = [I(f"s_mov_b32 m0, s{m}") if which == 'K' else I(f"s_add_u32 m0, s{m}, 0x10000"),
         I(f"s_mov_b32 s{sT2}, s{t}"),
         I(f"s_add_u32 s{t}, s{t}, {TS}"), I(f"s_add_u32 s{m}, s{m}, 0x4000"), I(f"s_and_b32 s{m}, s{m}, 0xffff")]
    L += [I(f"buffer_load_dwordx4 v{vKVd}, {sr(srd_)}, s{sT2} offen offset:{1024*b} {LD} lds", tag=('vm', tag)) for b in range(4)]
    return L

def prologue():
    TMP = 184; ln = 188
    P = [I("s_cmp_ge_u32 s2, 256"), I("s_cbranch_scc1 F_end")]
    for s_, off in ((sC, A_CKV), (sWkv, A_WUK), (4, A_WUV), (sX, A_X), (sWS, A_WS), (sDBG, A_DBG), (sWQ, A_WQ), (sW1, A_W1), (sB1, A_B1),
                    (sWO, A_WO), (sW2, A_W2), (sB2, A_B2), (sOUT, A_OUT)):
        P.append(I(f"s_load_dwordx2 s[{s_}:{s_+1}], s[0:1], {off}"))
    P += [I(f"v_and_b32 v{ln}, 63, v0"), I(f"v_lshrrev_b32 v{TMP}, 6, v0"), I(f"v_lshrrev_b32 v{TMP+1}, 3, v{ln}"),
          I(f"v_readfirstlane_b32 s{sWave}, v{TMP}"),
          I(f"s_and_b32 s{sXcd}, s2, 7"), I(f"s_lshr_b32 s{sI}, s2, 5"), I(f"s_bfe_u32 s{sHl}, s2, 0x20003"),
          I(f"s_and_b32 s{sType}, s{sI}, 1"),
          I(f"s_and_b32 s{sRb}, s2, 1"), I(f"s_lshl_b32 s{sRb}, s{sRb}, 2"), I(f"s_add_u32 s{sRb}, s{sRb}, s{sHl}"),
          I(f"s_mul_i32 s{sM0c}, s{sWave}, 24576"),
          I(f"s_lshl_b32 s{sCoff}, s{sRb}, 18"), I(f"s_lshl_b32 s{sT}, s{sWave}, 16"), I(f"s_add_u32 s{sCoff}, s{sCoff}, s{sT}"),
          I(f"s_mov_b32 s{sC+2}, {2*MB:#x}"), I(f"s_mov_b32 s{sC+3}, 0x20000"),
          I(f"v_and_b32 v{TMP+2}, 7, v{ln}"), I(f"v_lshrrev_b32 v{TMP}, 4, v{ln}"), I(f"v_xor_b32 v{TMP+2}, v{TMP+2}, v{TMP}"),
          I(f"v_lshlrev_b32 v{TMP}, 10, v{TMP+1}")]
    for b in range(4):
        P += [I(f"v_xor_b32 v{TMP+1}, {4*(b%2)}, v{TMP+2}"), I(f"v_lshl_add_u32 v{vCd+b}, v{TMP+1}, 4, v{TMP}")]
        if b: P.append(I(f"v_add_u32 v{vCd+b}, {7*b*1024}, v{vCd+b}"))
    P += [I(f"s_lshr_b32 s3, s{sXcd}, 1"), I("s_lshl_b32 s3, s3, 2"), I(f"s_lshr_b32 s{sT}, s{sI}, 1"), I(f"s_add_u32 s3, s3, s{sT}"),
          I(f"s_lshl_b32 s{sWoff}, s{sWave}, 18"), I(f"s_lshl_b32 s{sT}, s3, 9"), I(f"s_add_u32 s{sWoff}, s{sWoff}, s{sT}"),
          I(f"s_lshl_b32 s{sW4096}, s{sWave}, 12"),
          I(f"s_mov_b32 s{sWkv+2}, {4*MB:#x}"), I(f"s_mov_b32 s{sWkv+3}, 0x20000"),
          I("s_waitcnt lgkmcnt(0)")] + stamp(0)
    P += [I(f"v_mov_b32 v{vZero}, 0"), I(f"s_or_b32 s{sT3}, s2, s{sWave}"), I(f"s_cmp_eq_u32 s{sT3}, 0"), I("s_cbranch_scc0 F_noep0"),
          I(f"s_mov_b32 s{sWS+2}, {WS_SIZE:#x}"), I(f"s_mov_b32 s{sWS+3}, 0x20000"), I(f"s_mov_b32 s{sT}, {FE:#x}"),
          I(f"buffer_load_dword v{vFt}, v{vZero}, {sr(sWS)}, s{sT} offen sc1", tag=('novm',)), I("F_noep0:")]
    nv0 = len(P)
    c0 = c_dma(0)
    P += c0[0] + c0[1]
    P += lane_wdma(vWd, 8192, TMP, ln)
    P += [I(f"s_cmp_eq_u32 s{sType}, 0"), I(f"s_cselect_b64 s[{sWkv}:{sWkv+1}], s[{sWkv}:{sWkv+1}], s[4:5]")]
    P += w_dma(0)
    P += [I(f"s_mov_b32 s{sX+2}, {2*MB:#x}"), I(f"s_mov_b32 s{sX+3}, 0x20000"),
          I(f"s_lshl_b32 s{sT2}, s2, 13"), I(f"s_lshl_b32 s{sT}, s{sWave}, 11"), I(f"s_add_u32 s{sT2}, s{sT2}, s{sT}"),
          I(f"v_lshlrev_b32 v{vL16}, 4, v{ln}"), I(f"v_and_b32 v{TMP}, 32, v{ln}"), I(f"v_lshl_add_u32 v{TMP}, v{TMP}, 4, v{vL16}"),
          I(f"buffer_load_dwordx4 {vr(144)}, v{TMP}, {sr(sX)}, s{sT2} offen"),
          I(f"buffer_load_dwordx4 {vr(148)}, v{TMP}, {sr(sX)}, s{sT2} offen offset:512")]
    g = c_dma(1); P += g[0] + g[1]
    if flag('early'):
        g = c_dma(2); P += w_dma(1) + g[0] + g[1] + w_dma(2) + w_dma(4)
    for s_, size in ((sWS, WS_SIZE), (sDBG, 256), (sWQ, 4*MB), (sW1, 512*3584), (sB1, 3584), (sWO, 4*MB), (sW2, 1792*1024), (sB2, 1024), (sOUT, 2*MB)):
        P += [I(f"s_mov_b32 s{s_+2}, {size:#x}"), I(f"s_mov_b32 s{s_+3}, 0x20000")]
    P += [I(f"s_lshr_b32 s{sT}, s2, 3"), I(f"s_lshl_b32 s{sT}, s{sT}, 2"), I(f"s_add_u32 s97, s{sT}, s{sWave}"),
          I(f"v_lshlrev_b32 v169, 7, v{ln}"), I(f"s_lshl_b32 s{sT}, s97, 13"), I(f"s_and_b32 s{sT2}, s2, 1"), I(f"s_lshl_b32 s{sT2}, s{sT2}, 20"),
          I(f"s_add_u32 s{sT}, s{sT}, s{sT2}"),
          *([I(f"s_mov_b32 s{sSt}, s{sT}")] if not flag('early') else [pf_load(vJ, 169, sC, f"s{sT}")]),
          I("s_getpc_b64 s[6:7]"), I("F_pc:"),
          I(f"s_lshl_b32 s{sT}, s97, 12"), I(f"v_lshlrev_b32 v{TMP+2}, 6, v{ln}"), I(f"v_add_u32 v{TMP+2}, s{sT}, v{TMP+2}"),
          I(f"v_min_u32 v{TMP+2}, F_end-F_pc, v{TMP+2}")]
    P.append(I(f"v_mov_b32 v168, v{TMP+2}"))
    cl = I(f"global_load_dword v{vJ}, v168, s[6:7]"); cl.wr = set()
    LATE = []
    if not flag('early'):
        g = c_dma(2); LATE = w_dma(1) + g[0] + g[1] + [pf_load(vJ, 169, sC, f"s{sSt}")] + w_dma(2) + w_dma(4) + [cl]
    else: P.append(cl)
    if flag('tlb'):
        P += [I(f"v_lshl_add_u32 v{TMP+2}, s97, 6, v{ln}"), I(f"v_mul_u32_u24 v{TMP+2}, {TS}, v{TMP+2}"), I(f"s_mov_b32 s{sT}, 16384"),
              pf_load(vJ, TMP+2, sWS, f"s{sT}")]
    P += [I(f"s_lshr_b32 s{sT}, s{sI}, 1"), I(f"s_lshl_b32 s{sT}, s{sT}, 2"), I(f"s_add_u32 s{sT}, s{sT}, s{sHl}"),
          I(f"s_lshl_b32 s{sT}, s{sT}, 2"), I(f"s_add_u32 s{sT}, s{sT}, s{sWave}"), I(f"s_lshl_b32 s{sT}, s{sT}, 16"),
          I(f"s_lshr_b32 s{sT2}, s{sXcd}, 1"), I(f"s_lshl_b32 s{sT2}, s{sT2}, 11"), I(f"s_add_u32 s{sWpf}, s{sT}, s{sT2}"),
          I(f"v_lshrrev_b32 v{vBo}, 4, v{ln}"), I(f"v_and_b32 v{TMP}, 15, v{ln}"),
          I(f"v_lshlrev_b32 v170, 13, v{vBo}"), I(f"v_lshl_add_u32 v170, v{TMP}, 7, v170"),
          I(f"v_lshlrev_b32 v{vBo}, 3, v{vBo}")]
    nyoung = sum(1 for x in P[nv0:] if x.kind in ('dma', 'vld', 'vst', 'vmisc'))
    P += [I(f"s_cmp_eq_u32 s{sT3}, 0"), I("s_cbranch_scc0 F_noep"),
          I(f"s_mov_b32 s{sT}, {FE:#x}"), I(f"s_waitcnt vmcnt({nyoung})", tag=('novm',)),
          I(f"v_add_u32 v{vFt}, 16, v{vFt}"), I(f"v_max_u32 v{vFt}, 1, v{vFt}"),
          I(f"buffer_store_dword v{vFt}, v{vZero}, {sr(sDBG)}, 0 offen {ST}", tag=('novm',)),
          I(f"buffer_store_dword v{vFt}, v{vZero}, {sr(sWS)}, s{sT} offen {ST}", tag=('novm',)),
          I("F_noep:")]
    P += [I(f"s_lshl_b32 s{sF0me}, s2, 7"), I(f"s_add_u32 s{sF0me}, s{sF0me}, {F0:#x}"),
          I(f"s_lshl_b32 s{sFlagMe}, s2, 2"), I(f"s_add_u32 s{sFlagMe}, s{sFlagMe}, s{sWave}"), I(f"s_lshl_b32 s{sFlagMe}, s{sFlagMe}, 7"),
          I(f"s_add_u32 s{sFlagMe}, s{sFlagMe}, {F2:#x}"),
          I(f"v_bfe_u32 v171, v{ln}, 4, 1"), I(f"s_lshl_b32 s{sT}, s{sI}, 12"), I(f"s_sub_u32 s{sT}, {15*2048}, s{sT}"),
          I(f"v_mul_lo_u32 v{vP0}, v171, s{sT}"), I(f"v_lshl_add_u32 v{vP0}, v{TMP}, 7, v{vP0}"),
          I(f"s_lshl_b32 s{sT}, s{sI}, 11"), I(f"s_add_u32 s{sT}, s{sT}, {F0:#x}"), I(f"v_add_u32 v{vP0}, s{sT}, v{vP0}"),
          I(f"s_lshl_b32 s{sT}, s{sXcd}, 1"), I(f"s_lshr_b32 s{sT2}, s{sHl}, 1"), I(f"s_add_u32 s{sT}, s{sT}, s{sT2}"),
          I(f"s_and_b32 s{sT2}, s{sT}, 3"), I(f"s_lshl_b32 s{sT2}, s{sT2}, 6"), I(f"s_lshr_b32 s{sT}, s{sT}, 2"), I(f"s_lshl_b32 s{sT}, s{sT}, 1"),
          I(f"s_add_u32 s{sT}, s{sT}, s{sT2}"), I(f"s_lshl_b32 s{sT}, s{sT}, 7"), I(f"s_add_u32 s{sT}, s{sT}, {F1:#x}"),
          I(f"v_and_b32 v171, 1, v{ln}"), I(f"v_bfe_u32 v172, v{ln}, 1, 3"), I(f"v_lshl_add_u32 v171, v172, 3, v171"),
          I(f"v_lshlrev_b32 v171, 7, v171"), I(f"v_add_u32 v{vF1}, s{sT}, v171")]
    P += [I(f"s_lshl_b32 s{sW1024}, s{sWave}, 10"),
          I(f"s_mov_b32 s{sScale}, {f32(QSCALE)}"), I(f"s_mov_b32 s{sGC0}, {f32(GC0)}"),
          I(f"s_lshl_b32 s{sOb}, s3, 6"), I(f"s_lshl_b32 s{sT}, s{sRb}, 2"), I(f"s_add_u32 s{sOb}, s{sOb}, s{sT}"),
          I(f"s_add_u32 s{sOb}, s{sOb}, s{sWave}"), I(f"s_mul_i32 s{sOb}, s{sOb}, {TS}"),
          I(f"s_mul_i32 s{sT}, s{sType}, {WS_V:#x}"), I(f"s_add_u32 s{sOb}, s{sOb}, s{sT}"),
          I(f"s_lshl_b32 s3, s{sXcd}, 2"), I(f"s_add_u32 s3, s3, s{sHl}"),
          I(f"s_lshl_b32 s4, s{sHl}, 1"), I("s_min_u32 s4, s4, 5"), I(f"s_mul_i32 s{sT}, s{sXcd}, 7"), I(f"s_add_u32 s4, s4, s{sT}"),
          I(f"s_lshl_b32 s{sXL}, s{sI}, 3"), I(f"s_lshl_b32 s{sT}, s{sWave}, 1"), I(f"s_add_u32 s{sXL}, s{sXL}, s{sT}"),
          I(f"s_sub_u32 s{sXH}, 15, s{sI}"), I(f"s_lshl_b32 s{sXH}, s{sXH}, 3"), I(f"s_add_u32 s{sXH}, s{sXH}, s{sT}")]
    for d, q in ((sHL, sXL), (sHH, sXH)):
        P += [I(f"s_mul_i32 s{d}, s{q}, 56"), I(f"s_add_u32 s{d}, s{d}, s4"), I(f"s_lshl_b32 s{d}, s{d}, 10"), I(f"s_add_u32 s{d}, s{d}, {WS_H:#x}")]
    P += [I(f"s_lshl_b32 s{sT}, s3, 12"), I(f"s_add_u32 s{sT}, s{sT}, {WS_CTX:#x}")]
    for d, q in ((sCL, sXL), (sCH, sXH)):
        P += [I(f"s_lshl_b32 s{d}, s{q}, 17"), I(f"s_add_u32 s{d}, s{d}, s{sT}"),
              I(f"s_mul_i32 s{q}, s{q}, {XS}"), I(f"s_add_u32 s{q}, s{q}, {WS_XN:#x}")]
    P += [I(f"s_lshl_b32 s{sQo}, s{sWave}, 18"), I(f"s_lshl_b32 s{sT}, s3, 8"), I(f"s_add_u32 s{sQo}, s{sQo}, s{sT}"),
          I(f"s_lshl_b32 s{sB1o}, s4, 6"), I(f"s_mul_i32 s{s1o}, s{sWave}, {32*3584}"), I(f"s_add_u32 s{s1o}, s{s1o}, s{sB1o}"),
          I(f"s_mul_i32 s{sT}, s3, {32*TS}"),
          I(f"s_add_u32 s{sKS}, s{sWS}, s{sT}"), I(f"s_addc_u32 s{sKS+1}, s{sWS+1}, 0"),
          I(f"s_add_u32 s{sVS}, s{sKS}, {WS_V:#x}"), I(f"s_addc_u32 s{sVS+1}, s{sKS+1}, 0"),
          I(f"s_sub_u32 s{sT}, 16, s{sI}"), I(f"s_mul_i32 s{sKS+2}, s{sT}, {2*TS}"), I(f"s_mov_b32 s{sVS+2}, s{sKS+2}"),
          I(f"s_mov_b32 s{sKS+3}, 0x20000"), I(f"s_mov_b32 s{sVS+3}, 0x20000"),
          I(f"s_mov_b32 s{sKt}, 0"), I(f"s_mov_b32 s{sVt}, 0"), I(f"s_mov_b32 s{sKm}, s{sW4096}"), I(f"s_mov_b32 s{sVm}, s{sW4096}"),
          I(f"s_lshr_b32 s{sXrow}, s2, 1"), I(f"s_mul_i32 s{sXrow}, s{sXrow}, {XS}"), I(f"s_and_b32 s{sT}, s2, 1"), I(f"s_lshl_b32 s{sT}, s{sT}, 7"),
          I(f"s_add_u32 s{sXrow}, s{sXrow}, s{sT}"), I(f"s_add_u32 s{sXrow}, s{sXrow}, s{sW4096}"), I(f"s_add_u32 s{sXrow}, s{sXrow}, {WS_XN:#x}")]
    P += [I(f"v_and_b32 v{TMP}, 31, v{ln}"), I(f"v_lshrrev_b32 v{TMP+1}, 5, v{ln}"),
          I(f"v_lshlrev_b32 v152, 7, v{TMP}"), I(f"v_lshl_add_u32 v152, v{TMP+1}, 4, v152"),
          I(f"v_lshl_add_u32 v152, s{sWave}, 5, v152"), I(f"v_add_u32 v152, 90112, v152"),
          I(f"v_lshl_add_u32 v157, s{sWave}, 11, v{vL16}"), I(f"v_add_u32 v157, 90112, v157"),
          I(f"v_lshlrev_b32 v158, 10, v{TMP+1}"), I(f"v_bfe_u32 v{TMP}, v{ln}, 3, 2"), I(f"v_lshl_add_u32 v158, v{TMP}, 8, v158"),
          I(f"v_and_b32 v{TMP}, 7, v{ln}"), I(f"v_lshl_add_u32 v158, v{TMP}, 4, v158")]
    P += lane_wtr(vWtrS[0], PLAN[0][1]*16384, TMP, ln)
    P += [I(f"v_add_u32 v{vWtrS[1]+c}, {(PLAN[4][1] - PLAN[0][1])*16384}, v{vWtrS[0]+c}") for c in range(4)]
    P += lane_wdma(vW1d, 3584, TMP, ln)
    P += [I(f"v_and_b32 v{TMP}, 15, v{ln}"), I(f"v_bfe_u32 v{TMP+1}, v{ln}, 2, 1"), I(f"v_bfe_u32 v{TMP+2}, v{ln}, 3, 1"),
          I(f"v_xor_b32 v{TMP+1}, v{TMP+1}, v{TMP+2}"), I(f"v_mul_u32_u24 v{TMP+1}, 12, v{TMP+1}"),
          I(f"v_mul_lo_u32 v{TMP+1}, v{TMP+1}, s{sType}"), I(f"v_xor_b32 v{TMP}, v{TMP}, v{TMP+1}"),
          I(f"v_lshrrev_b32 v{TMP+1}, 1, v{TMP}"), I(f"v_lshrrev_b32 v{TMP+2}, 4, v{ln}"), I(f"v_xor_b32 v{TMP+1}, v{TMP+1}, v{TMP+2}"),
          I(f"v_lshlrev_b32 v{TMP}, 7, v{TMP}"), I(f"v_add_u32 v{TMP}, s{sM0c}, v{TMP}"),
          I(f"v_lshl_add_u32 v{vCr}, v{TMP+1}, 4, v{TMP}"), I(f"v_xor_b32 v{TMP+1}, 4, v{TMP+1}"),
          I(f"v_lshl_add_u32 v{vCr+1}, v{TMP+1}, 4, v{TMP}"),
          I(f"v_add_u32 v{vXo2}, {XS}, v{vL16}"), I(f"v_mov_b32 v{vGC1}, {f32(GC1)}"), *LATE,
          I(f"s_cmp_eq_u32 s{sType}, 0"), I("s_cbranch_scc0 F_V")]
    return P

def ln_stream():
    XR = 144; U = 128; S = 153; T2 = 154; MB_ = 155; RS = 156
    P = []
    for k in range(8): P += [I(f"v_lshlrev_b32 v{U+2*k}, 16, v{XR+k}"), I(f"v_and_b32 v{U+2*k+1}, 0xffff0000, v{XR+k}")]
    P += [I(f"v_add_f32 v{S}, v{U}, v{U+1}")] + [I(f"v_add_f32 v{S}, v{S}, v{U+k}") for k in range(2, 16)]
    P += sum32(S, T2) + [I(f"v_mul_f32 v{S}, {f32(1/512)}, v{S}")] + bf16_round(MB_, S)
    P += [I(f"v_sub_f32 v{T2}, v{U}, v{S}"), I(f"v_mul_f32 v{RS}, v{T2}, v{T2}")]
    for k in range(1, 16): P += [I(f"v_sub_f32 v{T2}, v{U+k}, v{S}"), I(f"v_fmac_f32 v{RS}, v{T2}, v{T2}")]
    P += sum32(RS, T2) + [I(f"v_mul_f32 v{RS}, {f32(1/512)}, v{RS}")] + bf16_round(RS, RS)
    P += [I(f"v_add_f32 v{RS}, {f32(1e-5)}, v{RS}")] + bf16_round(RS, RS) + [I(f"v_sqrt_f32 v{RS}, v{RS}")] + bf16_round(RS, RS)
    P += [I(f"v_rcp_f32 v{RS}, v{RS}")]
    for k in range(8):
        a, b = U+2*k, U+2*k+1
        P += [I(f"v_sub_f32 v{a}, v{a}, v{MB_}"), I(f"v_sub_f32 v{b}, v{b}, v{MB_}"), I(f"v_cvt_pk_bf16_f32 v{T2}, v{a}, v{b}"),
              I(f"v_lshlrev_b32 v{a}, 16, v{T2}"), I(f"v_and_b32 v{b}, 0xffff0000, v{T2}"),
              I(f"v_mul_f32 v{a}, v{a}, v{RS}"), I(f"v_mul_f32 v{b}, v{b}, v{RS}"), I(f"v_cvt_pk_bf16_f32 v{XR+k}, v{a}, v{b}")]
    return P
def xn_out():
    XR = 144
    return ([I(f"ds_write_b128 v152, {vr(XR)}"), I(f"ds_write_b128 v152, {vr(XR+4)} offset:4096")],
            [I(f"ds_read_b128 {vr(160)}, v157"), I(f"ds_read_b128 {vr(164)}, v157 offset:1024")],
            [I(f"buffer_store_dwordx4 {vr(160)}, v158, {sr(sWS)}, s{sXrow} offen {ST}", tag=('vm', 'xnst')),
             I(f"buffer_store_dwordx4 {vr(164)}, v158, {sr(sWS)}, s{sXrow} offen offset:2048 {ST}", tag=('vm', 'xnst'))])

def pack_swap(T, X, Y):
    return [I(f"v_cvt_pk_bf16_f32 v{T}, v{X}, v{X+1}"), I(f"v_cvt_pk_bf16_f32 v{T+2}, v{Y}, v{Y+1}"),
            I(f"v_cvt_pk_bf16_f32 v{T+1}, v{X+2}, v{X+3}"), I(f"v_cvt_pk_bf16_f32 v{T+3}, v{Y+2}, v{Y+3}")], \
           [I(f"v_permlane16_swap_b32 v{T}, v{T+2}"), I(f"v_permlane16_swap_b32 v{T+1}, v{T+3}")]

def kv_epilogue(cp, isV):
    acc = ACCB[cp]; out = []
    for k, f in enumerate([7, 5, 0, 1, 2, 3, 4, 6]):
        V = []
        if isV:
            kb, dbl = divmod(f, 2)
            X = acc + ((2*dbl)*4 + kb)*4; Y = X + 16
            soff = (cp//2)*32*TS + kb*4096; ioff = (2*(cp % 2) + dbl)*1024
        else:
            kb32, c = divmod(f, 4)
            X = acc + (c*4 + 2*kb32)*4; Y = X + 4
            soff = (cp//2)*32*TS + kb32*8192 + (cp % 2)*4096; ioff = c*1024
        T = PK + (k % 2)*4
        if not isV: V += [I(f"v_mul_f32 v{r}, s{sScale}, v{r}") for r in list(range(X, X+4)) + list(range(Y, Y+4))]
        else: V += [I("", tag=('pad',)) for r in range(8)]
        a, b = pack_swap(T, X, Y)
        V += a + [I(f"s_add_u32 s{sSt}, s{sOb}, {soff}")] + b
        V += [I(f"buffer_store_dwordx4 {vr(T)}, v{vL16}, {sr(sWS)}, s{sSt} offen offset:{ioff} {'' if flag('kvplain') else ST}", tag=('vm', 'kvst'))]
        if flag('nokvst'): V.pop()
        out.append(V)
    return out

def gelu_stream():
    P = []
    for b in range(4):
        for fs in range(2):
            T = GP[(b*2 + fs) % 2]
            for half in range(2):
                X = ACCB[4] + ((2*fs + half)*4 + b)*4
                regs = list(range(X, X+4)); tt = list(range(GT, GT + 4))
                P += [I(f"v_mul_f32 v{t}, v{r}, v{r}") for t, r in zip(tt, regs)]
                P += [I(f"v_fma_f32 v{t}, v{t}, v{vGC1}, s{sGC0}") for t in tt]
                P += [I(f"v_mul_f32 v{t}, v{t}, v{r}") for t, r in zip(tt, regs)]
                P += [I(f"v_exp_f32 v{t}, v{t}") for t in tt]
                P += [I(f"v_add_f32 v{t}, 1.0, v{t}") for t in tt]
                P += [I(f"v_rcp_f32 v{t}, v{t}") for t in tt]
                P += [I(f"v_mul_f32 v{t}, v{t}, v{r}") for t, r in zip(tt, regs)]
                P += [I(f"v_cvt_pk_bf16_f32 v{T+2*half+j}, v{tt[2*j]}, v{tt[2*j+1]}") for j in range(2)]
            P += [I(f"s_add_u32 s{sSt}, s{sHL if b < 2 else sHH}, {(b % 2)*56*1024}"),
                  I(f"buffer_store_dwordx4 {vr(T)}, v{vL16}, {sr(sWS)}, s{sSt} offen offset:{fs*1024} {ST}")]
    return P
def bias_stream():
    A = ACCB[4]; R = A + 56
    ld = [I(f"buffer_load_dwordx2 v[{R+2*c}:{R+2*c+1}], v{vBo}, {sr(sB1)}, s{sB1o} offen offset:{32*c}") for c in range(4)]
    un = []
    for c in range(4):
        for kb in ([0, 1, 2, 3] if c < 3 else [0]):
            d = A + (c*4 + kb)*4
            for k in range(2): un += [I(f"v_lshlrev_b32 v{d+2*k}, 16, v{R+2*c+k}"), I(f"v_and_b32 v{d+2*k+1}, 0xffff0000, v{R+2*c+k}")]
    un += [I(f"v_mov_b32 v{A+48+4*kb+j}, v{A+48+j}") for kb in (1, 2, 3) for j in range(4)]
    return ld, un

def qconv(cp, qb, c):
    X = ACCB[cp] + (c*4 + 2*qb)*4; T = GP[c % 2]
    a, b = pack_swap(T, X, X + 4)
    return a + b + [I(f"v_accvgpr_write_b32 a{QF(qb, 4*(cp-5) + c)+j}, v{T+j}") for j in range(4)]

def engine(isV):
    NF = 448
    grp = [(cp, ks, c) for cp, ks in ORDER for c in range(4)]
    def c_reads(ch):
        return [I(f"ds_read_b128 {ar(XF(kb, 2*ch + ks2))}, v{vCr+ks2} offset:{(ch % 3)*8192 + kb*2048}") for ks2 in range(2) for kb in range(4)]
    def w_reads(n):
        cp, ks, c = grp[n]; r = WF + (n % NWF)*4; va = vWtrS[cp % 2] + c; off = (ks % 4)*4096
        return [I(f"ds_read_b64_tr_b16 {vr(r,2)}, v{va} offset:{off}"), I(f"ds_read_b64_tr_b16 {vr(r+2,2)}, v{va} offset:{off+1024}")]
    head = stamp(1) + [needvm('c0')] + c_reads(0) + [needvm('w0'), I("s_barrier")] + stamp(2)
    for n in range(PF): head += w_reads(n)
    mf = []; post = {}; valu = []; dmaq = []
    def addpost(g, items): post.setdefault(g, []).extend(items)
    def add(mg, items):
        for it in items: valu.append((mg, it))
    G = lambda n: 4*n
    for n, (cp, ks, c) in enumerate(grp):
        wf = vr(WF + (n % NWF)*4)
        for kb in range(4):
            d = vr(ACCB[cp] + (c*4 + kb)*4); cf = ar(XF(kb, ks))
            cin = d if (ks or cp == 4) else "0"
            mf.append(I(f"{M16} {d}, {cf}, {wf}, {cin}" if (isV and cp < 4) else f"{M16} {d}, {wf}, {cf}, {cin}"))
        if n + 1 < NF: addpost(G(n) + 3, [needlg(regs_in(vr(WF + ((n + 1) % NWF)*4)))])
    cur = {0: PLAN[0][1], 1: PLAN[4][1]}
    for u in sorted(FU, key=lambda u: FU[u]):
        st = (u // 4) % 2; delta = (PLAN[u][1] - cur[st])*16384; cur[st] = PLAN[u][1]
        if delta:
            g = G(FU[u] - PF)
            addpost(g - 3, [I(f"v_add_u32 v{vWtrS[st]+k}, {delta & 0xffffffff:#x}, v{vWtrS[st]+k}") for k in range(2)])
            addpost(g - 2, [I(f"v_add_u32 v{vWtrS[st]+k}, {delta & 0xffffffff:#x}, v{vWtrS[st]+k}") for k in range(2, 4)])
    bs0, bs1 = val('bs0', 124), val('bs1', 348)
    for k, p in enumerate(BARS):
        if p < 0: continue
        names = [f'w{u}' for u in NEED if NEED[u] == p] + (['xnst'] if p == bs0 else []) + (['kvst'] if p == bs1 else [])
        addpost(G(p) - 1, ([I("s_waitcnt lgkmcnt(0)")] if p == 72 else []) + ([needvm(*names)] if names else []) + [I("s_barrier")] + (stamp(20 + k) if flag('fine') else []))
        for u in sorted(PLAN, key=lambda u: FU[u]):
            if PLAN[u][0] == p: dmaq.append((G(p) + 1, w_dma(u)))
    addpost(G(bs0) + 1, flag_put(vFt, vZero, sF0me, 1))
    addpost(G(bs1) + 1, [I(f"s_add_u32 s{sF0me}, s{sF0me}, {F1 - F0}")] + flag_put(vFt, vZero, sF0me, 1))
    for n in range(NF - PF): addpost(G(n), w_reads(n + PF))
    R = [None, 2, 10, 18, 26, 38, 50, 62]
    D = {3: 3, 4: 9, 5: val('d5', 18), 6: val('d6', 28), 7: val('d7', 41)}
    for ch in range(1, 8):
        addpost(G(R[ch]) + 1, [needvm(f'c{ch}')])
        rd = c_reads(ch)
        for k in range(4): addpost(G(R[ch]) + 2 + 4*k, rd[2*k:2*k+2])
    for ch, g in D.items():
        old = ch - 3
        assert old == 0 or g >= R[old] + 5
        regs = [r for x in c_reads(old) for r in x.wr]
        addpost(G(g) + 1, [needlg(regs)])
        for q in c_dma(ch): dmaq.append((G(g) + 1, q, 1 if ch < 5 else val('cstep', 3)))
    for ks in range(16):
        L = []
        if ks % 4 == 0: L += [I(f"s_add_u32 s{sXLc}, s{sXL}, {(ks//4)*4096}"), I(f"s_add_u32 s{sXHc}, s{sXH}, {(ks//4)*4096}")]
        L += [I(f"buffer_load_dwordx4 {ar(XF(b, ks))}, v{vXo2 if b % 2 else vL16}, {sr(sWS)}, s{sXHc if b >= 2 else sXLc} offen offset:{(ks % 4)*1024} {'' if flag('xnnosc') else LD}") for b in range(4)]
        if not flag('noxn'): dmaq.append((G(POS[(3, ks)] + 4) + 1, L))
    if not flag('nopfw'):
        dmaq.append((G(val('pfw', 14)), [pf_load(vJ, 170, sWkv, f"s{sWpf}")]))
        dmaq.append((G(val('pfw2', 52)), [I(f"s_add_u32 s{sWpf}, s{sWpf}, 32768"), pf_load(vJ, 170, sWkv, f"s{sWpf}")]))
    dmaq.append((G(56), [poll_issue(vPoll, vZero, sDBG, "0")]))
    addpost(G(110) + 2, epoch_check(vPoll, vZero, sT2))
    gs0 = val('gs0', 150)
    dmaq.append((G(gs0), [poll_issue(vPoll, vP0, sWS, "0")]))
    addpost(G(167) + 2, stamp(50) + poll_check(vPoll, vP0, sWS, "0", 1, sT2, sT3) + stamp(51))
    xw, xr, xs = xn_out()
    add(2, ln_stream()); add(G(60), xw)
    addpost(G(72) + 2, xr)
    dmaq.append((G(val('gxs', 90)), xs))
    dmaq.append((G(120), [pf_load(vJ, vBo, sB1, f"s{sB1o}")]))
    bl, bu = bias_stream()
    sp = val('esp', 7)
    for cp, g, w in ((0, 98, sp), (1, 162, val('esp1', 5)), (2, 226, sp), (3, 286, 0)):
        for k, fr in enumerate(kv_epilogue(cp, isV)):
            add(G(g + k*w), fr)
            if cp == 1 and k == 1: add(0, bl)
        if cp == 1:
            add(G(206), bu)
            if flag('fine'): addpost(G(200) + 1, stamp(44)); addpost(G(206) - 2, stamp(45)); addpost(G(210) + 1, stamp(46)); addpost(G(229) + 1, stamp(47))
    if not flag('nogelu'): add(G(322), gelu_stream())
    for qb in range(2):
        for c in range(4): add(G(384) + 16*(8*qb + c) + 18, qconv(5, qb, c))
    gs1 = val('gs1', 384)
    dmaq.append((G(gs1), [poll_issue(vPoll, vF1, sWS, "0")]))
    addpost(G(gs1 + 14) + 1, stamp(48) + poll_check(vPoll, vF1, sWS, "0", 1, sT2, sT3) + stamp(49) + [I(f"v_add_u32 v{vKVd}, s{sW4096}, v{vL16}")])
    for k, wh in enumerate("KVKKV"): dmaq.append((G(gs1 + 15 + 6*k), kv_dma(wh, f'kv{k}')))
    def warm(g, V, M):
        addpost(G(g) + 1, V[:2])
        if V[2:]: addpost(G(g) + 2, V[2:])
        dmaq.append((G(g + 1), M))
    if not flag('nopfq'):
        warm(val('pfq', 130), [I(f"v_bfe_u32 v252, v{vL16}, 4, 4"), I(f"v_lshlrev_b32 v253, 10, v{vBo}"), I(f"v_lshl_add_u32 v252, v252, 6, v253")],
             [I(f"s_lshl_b32 s{sT}, s97, 15"), I(f"s_lshl_b32 s{sT2}, s{sXcd}, 10"), I(f"s_add_u32 s{sT}, s{sT}, s{sT2}"), pf_load(vJ, 252, sWQ, f"s{sT}")])
    if not flag('nopfo'):
        warm(330, [I(f"v_lshlrev_b32 v252, 2, v{vL16}"), I(f"v_lshlrev_b32 v253, 1, v{vL16}")],
             [I(f"s_lshl_b32 s{sT}, s{sXcd}, 19"), I(f"s_lshl_b32 s{sT2}, s97, 12"), I(f"s_add_u32 s{sT}, s{sT}, s{sT2}"), pf_load(vJ, 252, sWO, f"s{sT}")])
        dmaq.append((G(334), [I(f"s_mul_i32 s{sT}, s{sXcd}, {224*1024}"), I(f"s_mul_i32 s{sT2}, s97, 1792"), I(f"s_add_u32 s{sT}, s{sT}, s{sT2}"), pf_load(vJ, 253, sW2, f"s{sT}")]))
    if not flag('nopf2'):
        V, M = code_pf("F_AAe", "F_Bend", 252, vJ, vL16, 1); warm(352, V, M)
    place_dma(dmaq, addpost, step=val('estep', 4), ok=lambda g: g % 4 in (1, 2))
    for k, p in enumerate((32, 96, 160, 224, 288, 320)): addpost(G(p) - 1, stamp(3 + k))
    def budget(g, p):
        n = sum(1 for x in p if x.txt or (x.tag and x.tag[0] != 'needvm'))
        if any(x.kind == 'dsr' for x in p): return 1 if n == 1 else 0
        nd = sum(1 for x in p if x.kind in ('dma', 'vld', 'vst'))
        return max(0, 2 - max(0, n - 1) - nd)
    body, left = weave(mf, post, valu, budget)
    if OPT.verbose: print(f"[engine] leftover valu {left}", file=sys.stderr)
    mi = 0; start = {cp: G(POS[(cp, 0)]) for cp in range(7)}; end = {cp: G(POS[(cp, 15)] + 4) for cp in range(7)}
    for x in body:
        if x.kind == 'mfma': mi += 1; continue
        if x.kind == 'dsw': assert G(60) <= mi < G(72) - 1, mi
        for r in (x.rd | x.wr):
            if r[0] == 'v' and r != 'vcc' and int(r[1:]) < 192:
                q = int(r[1:])
                for cp in range(7):
                    if ACCB[cp] <= q < ACCB[cp] + 64:
                        blk = (q - ACCB[cp]) // 4
                        assert not (start[cp] + blk < mi <= end[cp] - 16 + blk), ("accumulator busy", cp, mi, x.txt)
    idx = [k for k, x in enumerate(body) if x.kind == 'mfma'][G(336)]
    return head + body[:idx], body[idx:]
```

```python
from f_common import *
import f_p1 as P1
from f_p1 import QF, kv_dma, sKt, sKm, sVt, sVm, sCL, sCH, vL16, vKVd, qconv

THRESH = 30.0
sCnt, sFlag, sKr, sVr, sThr, sOffA, sOffB = range(74, 81)
sRet = 82; MK = [84, 86, 88, 98]
sWoO, sW2o, sHLo, sHHo, sPo, sCc, sCc2 = 76, 3, 4, 5, 80, 81, 90
sFb = 97
sSib = [84, 85, 86]
sWoS = [87, 88, 89]
NEG = [128, 144]; T0 = 160
vK, vV, vL16V = 192, 193, 194
Lr = [[196, 197], [198, 199]]; vMx = [200, 201]; vF = [202, 203]; vThr, vNinf, vTm = 204, 205, 206
vPo, vF2, vF3, vZ, vFl = 207, 208, 209, 210, 211
vWtrA, vWtrB, vWd3, vC2, vH2 = 212, 216, 220, 221, 195
PKT = 226
OA = lambda qb, db: (qb*4 + db)*16
RING = 192
NPRE = 8

def blk_q(typ, blk): return (blk % 2) if typ == 'A' else 1
def qk_mfmas(typ, S):
    L = []
    if typ == 'A':
        for kb in range(2):
            for ks in range(8):
                for qb in range(2):
                    d = vr(S + (2*kb + qb)*16, 16)
                    L.append((d, kb*8 + ks, ar(QF(qb, ks)), d if ks else vr(NEG[qb], 16)))
    else:
        for kb in range(4):
            for ks in range(8):
                d = vr(S + kb*16, 16)
                L.append((d, kb*8 + ks, ar(QF(1, ks)), d if ks else vr(NEG[1], 16)))
    return L
def pv_mfmas(typ, S):
    L = []
    if typ == 'A':
        for ks4 in range(4):
            for db in range(4):
                for qb in range(2):
                    d = ar(OA(qb, db), 16)
                    L.append((d, ks4*4 + db, vr(S + (2*(ks4//2) + qb)*16 + 8*(ks4 % 2)), d))
    else:
        for ks8 in range(8):
            for db in range(4):
                d = ar(OA(1, db), 16)
                L.append((d, ks8*4 + db, vr(S + (ks8//2)*16 + 8*(ks8 % 2)), d))
    return L
def expblk(S, l):
    L = []
    for j in range(8):
        a, b = S + 2*j, S + 2*j + 1
        L += [I(f"v_exp_f32 v{a}, v{a}"), I(f"v_exp_f32 v{b}, v{b}"),
              I(f"v_add_f32 v{l[0]}, v{l[0]}, v{a}"), I(f"v_add_f32 v{l[1]}, v{l[1]}, v{b}"),
              I(f"v_cvt_pk_bf16_f32 v{S + 8*(j//4) + j % 4}, v{a}, v{b}")]
    return L
def maxblk(S, mx, first):
    L = []; r = list(range(S, S + 16))
    if first: L.append(I(f"v_max3_f32 v{mx}, v{r[0]}, v{r[1]}, v{r[2]}")); r = r[3:]
    while len(r) >= 2: L.append(I(f"v_max3_f32 v{mx}, v{mx}, v{r[0]}, v{r[1]}")); r = r[2:]
    if r: L.append(I(f"v_max_f32 v{mx}, v{mx}, v{r[0]}"))
    return L
def maskblk(S, kbg, soff=None):
    L = []
    if soff is not None:
        L.append(I(f"v_add_u32 v{vTm}, s{soff}, v{vThr}"))
        if kbg: L.append(I(f"v_subrev_u32 v{vTm}, {32*kbg}, v{vTm}"))
        t = vTm
    elif kbg: L.append(I(f"v_subrev_u32 v{vTm}, {32*kbg}, v{vThr}")); t = vTm
    else: t = vThr
    for r0 in range(0, 16, 4):
        L += [I(f"v_cmp_le_i32 s[{MK[k]}:{MK[k]+1}], {8*((r0+k)//4) + (r0+k) % 4}, v{t}") for k in range(4)]
        L += [I(f"v_cndmask_b32 v{S+r0+k}, v{vNinf}, v{S+r0+k}, s[{MK[k]}:{MK[k]+1}]") for k in range(4)]
    return L
def xmax(v, t): return [I(f"v_mov_b32 v{t}, v{v}"), I(f"v_permlane32_swap_b32 v{v}, v{t}"), I(f"v_max_f32 v{v}, v{v}, v{t}")]
def kread(f, slot): return I(f"ds_read_b128 {ar(RING + (slot % 16)*4)}, v{vK} offset:{f*1024}")
def vread(f, slot): return I(f"ds_read_b128 {ar(RING + (slot % 16)*4)}, v{vV} offset:{f*1024}")
def kv_dma2(which):
    srd_, t, m = (sKS, sKt, sKm) if which == 'K' else (sVS, sVt, sVm)
    base = 0 if which == 'K' else 0x10000
    d = lambda so: [I(f"buffer_load_dwordx4 v{vKVd}, {sr(srd_)}, s{so} offen offset:{1024*b} {LD} lds") for b in range(4)]
    return [[I(f"s_add_u32 m0, s{m}, {base:#x}")] + d(t),
            [I(f"s_add_u32 m0, s{m}, {base + 0x4000:#x}"), I(f"s_add_u32 s{sT2}, s{t}, {TS}"),
             I(f"s_add_u32 s{t}, s{t}, {2*TS}"), I(f"s_xor_b32 s{m}, s{m}, 0x8000")] + d(sT2)]

uid = [0]
def step(cur, nxt, p, kadv, mask=None, xwait=16, name="", extra_dma=None, extra_valu=None, extra_post=None):
    uid[0] += 1; u = uid[0]
    Sc, Sn = 64*p, 64*(1 - p)
    mf = []; use = []
    qk = qk_mfmas(nxt, Sn) if nxt else []
    nK = (16 if nxt == 'A' else 32) if nxt else 0
    for d, f, q, cin in qk:
        mf.append(I(f"{M32} {d}, {ar(RING + (f % 16)*4)}, {q}, {cin}")); use.append(f)
    for d, f, pf, cin in pv_mfmas(cur, Sc):
        mf.append(I(f"{M32} {d}, {ar(RING + ((nK + f) % 16)*4)}, {pf}, {cin}")); use.append(nK + f)
    nV = 16 if cur == 'A' else 32
    NG = len(mf); fu = {}
    for g, f in enumerate(use): fu.setdefault(f, g)
    post = {}; dmaq = []
    def addpost(g, items): post.setdefault(g, []).extend(items)
    D = 8
    hasY = nxt is not None and (cur == 'B' or nxt == 'B')
    pre = []
    ring = lambda f: regs_in(ar(RING + (f % 16)*4))
    for f in range(0, nK + nV, 2):
        if fu[f] > 0: addpost(fu[f] - 1, [needlg(ring(f) + ring(f + 1))])
    last = -2
    for f in range(NPRE if nxt else 0, nK, 2):
        last = max(fu[f] - D, last + 1, 0)
        addpost(last, [kread(f, f), kread(f + 1, f + 1)])
    vadv = [I(f"v_add_u32 v{vV}, s{sVr}, v{vL16V}"),
            I(f"s_add_u32 s{sVr}, s{sVr}, {0x4000 if cur == 'A' else 0x8000}"), I(f"s_and_b32 s{sVr}, s{sVr}, 0xffff")]
    vf0 = 0
    if nxt is None:
        pre += vadv[:1] + [vread(f, nK + f) for f in range(8)]; vf0 = 8
    else:
        addpost(last + 1, vadv)
        if hasY:
            gY = last + 3
            addpost(gY, [I("s_waitcnt vmcnt(16) lgkmcnt(0)" if cur == 'B' else "s_waitcnt lgkmcnt(0)"), I("s_barrier")])
            last = gY
        else: last = last + 1
    for f in range(vf0, nV, 2):
        last = max(fu[nK + f] - D, last + 1, 0)
        addpost(last, [vread(f, nK + f), vread(f + 1, nK + f + 1)])
    gX = NG
    if nxt is not None:
        gX = last + 3
        addpost(gX - 1, [I(f"v_add_u32 v{vK}, s{sKr}, v{vL16}")] +
                ([I(f"s_add_u32 s{sKr}, s{sKr}, {kadv*0x4000}"), I(f"s_and_b32 s{sKr}, s{sKr}, 0xffff")] if kadv else []))
        addpost(gX, [I(f"s_waitcnt vmcnt({xwait}) lgkmcnt(0)"), I("s_barrier")])
        gs = [gX + 1, gX + 2, gX + 4, gX + 6] if gX + 6 < NG else [gX + 1, gX + 2, gX + 3, gX + 4]
        assert gs[-1] < NG, (name, gX, NG)
        for j in range(NPRE // 2): addpost(gs[j], [kread(2*j, 2*j), kread(2*j + 1, 2*j + 1)])
    dstep = 2
    if cur == 'A' and nxt == 'A': dmaq = [(1, kv_dma('K')), (1, kv_dma('V'))]; dstep = 3 if extra_dma else 4
    elif cur == 'A' and nxt == 'B': dmaq = [(1, kv_dma('K'))] + [(gY + 2, x) for x in kv_dma2('K')]
    elif cur == 'B' and nxt == 'B':
        dmaq = [(0, x) for x in kv_dma2('V')]
        if not mask: dmaq += [(gY + 3, x) for x in kv_dma2('K')]
    if extra_dma: dmaq += extra_dma
    for g, it in (extra_post or {}).items(): addpost(g, it)
    if dmaq:
        endg = place_dma(dmaq, addpost, step=dstep)
        assert endg - dstep < gX, (name, endg, gX)
        if hasY and cur == 'B': assert max(g for g, l in post.items() if any(x.kind == 'dma' and sr(sVS) in x.txt for x in l)) < gY
    valu = []
    def add(mg, items):
        for it in items: valu.append((mg, it))
    for blk in (2, 3): add(0, expblk(Sc + 16*blk, Lr[blk_q(cur, blk)]))
    if nxt is not None:
        done = {}
        for g, (d, f, q, cin) in enumerate(qk): done[d] = g
        mdict = {m[0]: m for m in (mask or [])}
        for blk in range(4):
            mg = done[vr(Sn + 16*blk, 16)] + 3
            if blk in mdict: add(mg, maskblk(Sn + 16*blk, mdict[blk][1], mdict[blk][2]))
            add(mg, maxblk(Sn + 16*blk, vMx[blk % 2], blk < 2))
        add(0, [I(f"v_max_f32 v{vMx[0]}, v{vMx[0]}, v{vMx[1]}"), I(f"v_cmp_lt_f32 vcc, s{sThr}, v{vMx[0]}"),
                [I(f"s_cbranch_vccz F_c{u}"), I(f"s_call_b64 s[{sRet}:{sRet+1}], F_R{nxt}{1-p}"), I(f"F_c{u}:")]])
        for blk in (0, 1): add(0, expblk(Sn + 16*blk, Lr[blk_q(nxt, blk)]))
    add(0, extra_valu or [])
    def budget(g, pp):
        nd = sum(1 for x in pp if x.kind == 'dsr'); nm = sum(1 for x in pp if x.kind in ('dma', 'vld', 'vst'))
        return max(6 - max(0, len(pp) - 1) - (1 if nd else 0) - (1 if nm else 0), 0)
    body, left = weave(mf, post, valu, budget, flush_dep=True)
    tail = []
    if nxt is not None:
        tail = [I(f"s_cmp_eq_u32 s{sFlag}, 0"), I(f"s_cbranch_scc1 F_d{u}"), I(f"s_call_b64 s[{sRet}:{sRet+1}], F_O{nxt}"), I(f"F_d{u}:")]
    if OPT.verbose: print(f"[step {name}] leftover valu {left}", file=sys.stderr)
    return pre + body + tail

def finalize(qb, sbase, inter=None, tag='cst'):
    l0, l1 = Lr[qb]; inter = list(inter or [])
    L = [I(f"v_add_f32 v{l0}, v{l0}, v{l1}"), I(f"v_mov_b32 v{l1}, v{l0}"), I(f"v_permlane32_swap_b32 v{l0}, v{l1}"),
         I(f"v_add_f32 v{l0}, v{l0}, v{l1}"), I(f"v_rcp_f32 v{l0}, v{l0}"), I(f"s_add_u32 s{sFb}, s{sbase}, 0x20000")]
    for db in range(4):
        t = T0 + (db % 2)*16; A = PKT + (db % 2)*8; B = A + 4
        for r0 in range(0, 16, 4):
            L += [I(f"v_accvgpr_read_b32 v{t+r}, a{OA(qb, db)+r}") for r in range(r0, r0 + 4)]
            if inter: L += inter.pop(0)
        for r0 in range(0, 16, 4):
            L += [I(f"v_mul_f32 v{t+r}, v{t+r}, v{l0}") for r in range(r0, r0 + 4)]
            if inter: L += inter.pop(0)
        for pc, T in ((0, A), (1, B)):
            L += [I(f"v_cvt_pk_bf16_f32 v{T}, v{t+4*pc}, v{t+4*pc+1}"), I(f"v_cvt_pk_bf16_f32 v{T+1}, v{t+4*pc+2}, v{t+4*pc+3}"),
                  I(f"v_cvt_pk_bf16_f32 v{T+2}, v{t+8+4*pc}, v{t+8+4*pc+1}"), I(f"v_cvt_pk_bf16_f32 v{T+3}, v{t+8+4*pc+2}, v{t+8+4*pc+3}")]
        L += [I(f"v_permlane32_swap_b32 v{A+j}, v{B+j}") for j in range(4)]
        L += [I(f"v_permlane16_swap_b32 v{A+j}, v{B+j}") for j in range(4)]
        L += [I(f"buffer_store_dwordx4 {vr(A)}, v{vL16}, {sr(sWS)}, s{sbase} offen offset:{db*1024} {ST}", tag=('vm', tag)),
              I(f"buffer_store_dwordx4 {vr(B)}, v{vL16}, {sr(sWS)}, s{sFb} offen offset:{db*1024} {ST}", tag=('vm', tag))]
        L += [I(f"v_accvgpr_write_b32 a{16*db + 8*qb + j}, v{A+j}") for j in range(8)]
    for g in inter: L += g
    return L

def rare_S(typ, p):
    S = 64*p
    L = [I(f"F_R{typ}{p}:"), I("s_nop 7")]
    for qb in ((0, 1) if typ == 'A' else (1,)):
        blks = [b for b in range(4) if blk_q(typ, b) == qb]; m = vMx[0]
        for k, b in enumerate(blks): L += maxblk(S + 16*b, m, k == 0)
        L += xmax(m, vTm) + [I(f"v_max_f32 v{m}, 0, v{m}"), I(f"v_exp_f32 v{vF[qb]}, -v{m}")]
        for b in blks: L += [I(f"v_sub_f32 v{S+16*b+r}, v{S+16*b+r}, v{m}") for r in range(16)]
        L += [I(f"v_sub_f32 v{NEG[qb]+r}, v{NEG[qb]+r}, v{m}") for r in range(16)]
        L += [I(f"v_mul_f32 v{l}, v{l}, v{vF[qb]}") for l in Lr[qb]]
    L += [I(f"s_mov_b32 s{sFlag}, 1"), I("s_nop 1"), I(f"s_setpc_b64 s[{sRet}:{sRet+1}]")]
    return pad_hazards(L)[0]
def rare_O(typ):
    L = [I(f"F_O{typ}:"), I("s_nop 15")]
    for qb in ((0, 1) if typ == 'A' else (1,)):
        for r0 in range(0, 64, 8):
            a = qb*64 + r0
            L += [I(f"v_accvgpr_read_b32 v{T0+k}, a{a+k}") for k in range(8)]
            L += [I(f"v_mul_f32 v{T0+k}, v{T0+k}, v{vF[qb]}") for k in range(8)]
            L += [I(f"v_accvgpr_write_b32 a{a+k}, v{T0+k}") for k in range(8)]
    L += [I(f"s_mov_b32 s{sFlag}, 0"), I("s_nop 1"), I(f"s_setpc_b64 s[{sRet}:{sRet+1}]")]
    return pad_hazards(L)[0]

def first_tile():
    P = stamp(9) + [I("s_waitcnt lgkmcnt(0)"), needvm('kv0', 'kv1', 'kv2'), I("s_barrier"),
         I(f"v_mov_b32 v{vK}, v{vL16}")]
    P += [kread(f, f) for f in (0, 8, 1, 9, 2, 10, 3, 11)]
    mf = []; post = {}
    order = [(ks, kb) for ks in range(8) for kb in range(2)]
    for k, (ks, kb) in enumerate(order):
        f = kb*8 + ks
        for qb in range(2):
            d = vr((2*kb + qb)*16, 16)
            mf.append(I(f"{M32} {d}, {ar(RING + f*4)}, {ar(QF(qb, ks))}, {d if ks else 0}"))
        if k + 8 < 16:
            ks2, kb2 = order[k + 8]; post.setdefault(2*k, []).append(kread(kb2*8 + ks2, kb2*8 + ks2))
    dq = [(1, kv_dma('K')), (1, kv_dma('V'))]
    place_dma(dq, lambda g, it: post.setdefault(g, []).extend(it), step=2)
    valu = []
    for c in range(4):
        for qb in range(2): valu += [(0, x) for x in qconv(6, qb, c)]
    valu += [(0, I(f"v_accvgpr_write_b32 a{r}, 0")) for r in range(128)]
    body, _ = weave(mf, post, valu, lambda g, p: 5 if len(p) < 2 else 3, flush_dep=True)
    P += body
    ln = T0
    P += [I(f"v_add_u32 v{vK}, 0x4000, v{vL16}"), I(f"s_mov_b32 s{sKr}, 0x8000"), I(f"s_mov_b32 s{sVr}, 0")]
    P += [kread(f, f) for f in range(NPRE)]
    P += [I(f"v_add_u32 v{vL16V}, 0x10000, v{vL16}"), I(f"v_lshrrev_b32 v{ln}, 4, v{vL16}"),
          I(f"s_mov_b32 s{sFlag}, 0"), I(f"s_mov_b32 s{sThr}, {f32(THRESH)}"),
          I(f"s_lshl_b32 s{sOffB}, s{sI}, 8"), I(f"s_sub_u32 s{sOffB}, {128*14}, s{sOffB}"),
          I(f"v_and_b32 v{ln+1}, 31, v{ln}"), I(f"v_lshrrev_b32 v{ln+2}, 5, v{ln}"),
          I(f"v_lshl_add_u32 v{vThr}, s{sWave}, 5, v{ln+1}"), I(f"v_lshlrev_b32 v{ln+2}, 2, v{ln+2}"), I(f"v_sub_u32 v{vThr}, v{vThr}, v{ln+2}"),
          I(f"v_mov_b32 v{vNinf}, 0xff800000")]
    P += [I(f"v_mov_b32 v{r}, 0") for r in (196, 197, 198, 199)] + consts_early()
    P += [I(f"s_cmp_lg_u32 s{sI}, 0"), I("s_cbranch_scc1 F_nomask"), I("s_nop 7")]
    for kb in range(2): P += maskblk(16*(2*kb), kb)
    P += [I("F_nomask:")]
    for qb in range(2):
        P += maxblk(16*qb, vMx[qb], True) + maxblk(16*(2 + qb), vMx[qb], False)
    P += [I(f"v_mov_b32 v{vTm}, v{vMx[0]}"), I(f"v_mov_b32 v{vF[0]}, v{vMx[1]}"), I("s_nop 0"),
          I(f"v_permlane32_swap_b32 v{vMx[0]}, v{vTm}"), I(f"v_permlane32_swap_b32 v{vMx[1]}, v{vF[0]}"),
          I(f"v_max_f32 v{vMx[0]}, v{vMx[0]}, v{vTm}"), I(f"v_max_f32 v{vMx[1]}, v{vMx[1]}, v{vF[0]}")]
    for qb in range(2):
        P += [I(f"v_sub_f32 v{NEG[qb] + r}, 0, v{vMx[qb]}") for r in range(16)]
        for blk in (qb, 2 + qb): P += [I(f"v_sub_f32 v{16*blk + r}, v{16*blk + r}, v{vMx[qb]}") for r in range(16)]
    for blk in (0, 1): P += expblk(16*blk, Lr[blk])
    P += stamp(10) + [I(f"s_sub_u32 s{sCnt}, s{sI}, 1"), I("s_cbranch_scc1 F_AAme")]
    return P

def w3_addr(s):
    if s < 4: return 131072 + 8192*s
    if s < 11: return 8192*(s - 4)
    return 57344 + 8192*(s - 11)
def bslot(s, b):
    if s < 2: return 32*s + 16*(b // 2) + 8 + 4*(b % 2)
    if s < 4: return 128 + 16*(s - 2) + 4*b
    if s < 7: return 160 + 16*(s - 4) + 4*b
    if s < 11: return 16*(s - 7) + 4*b
    k = 2*(s - 11) + (b % 2)
    if b < 2: return 208 + 4*k if k < 12 else 128 + 4*(k - 12)
    return 64 + 4*k if k < 16 else 176 + 4*(k - 16)
def w3_dma(s):
    gs = []
    if s < 7: srd_, so, off = sW2, sW2o, s*32768
    elif s < 11: srd_, so, off = sWO, sWoO, (s - 7)*32768
    else: srd_, so, off = sWO, sWoS[(s - 11)//4], ((s - 11) % 4)*32768
    for h in range(2):
        gs.append([I(f"s_add_u32 m0, s{sW1024}, {w3_addr(s) + h*4096}"), I(f"s_add_u32 s{sT}, s{so}, {off + h*128}"),
                   I(f"buffer_load_dwordx4 v{vWd3}, {sr(srd_)}, s{sT} offen lds", tag=('vm', f'x{s}'))])
    return gs
def h_loads(s):
    L = []
    if s % 4 == 0: L += [I(f"s_add_u32 s{sCc}, s{sHLo}, {(s//4)*4096}"), I(f"s_add_u32 s{sCc2}, s{sHHo}, {(s//4)*4096}")]
    return L + [I(f"buffer_load_dwordx4 {ar(bslot(s, b))}, v{vH2 if b % 2 else vL16}, {sr(sWS)}, s{sCc2 if b >= 2 else sCc} offen offset:{(s % 4)*1024} {LD}") for b in range(4)]
def sib_loads(s, hi):
    t = (s - 11) % 4; L = []
    if t == 0: L += [I(f"s_add_u32 s{sCc}, s{sCH if hi else sCL}, s{sSib[(s-11)//4]}")]
    return L + [I(f"buffer_load_dwordx4 {ar(bslot(s, 2*hi + b))}, v{vC2 if b else vL16}, {sr(sWS)}, s{sCc} offen offset:{t*1024} {LD}") for b in range(2)]
def flag_store(level): return [I(f"v_add_u32 v{vFl}, 1, v{vFl}"), I(f"buffer_store_dword v{vFl}, v{vZ}, {sr(sWS)}, s{sFlagMe} offen {ST}")]

def consts_early():
    t = T0 + 8
    return [I(f"v_mov_b32 v{vZ}, 0"), I(f"v_mov_b32 v{vFl}, s{sE}"),
            I(f"s_and_b32 s{sT}, s2, 0xe7"), I(f"s_lshl_b32 s{sT}, s{sT}, 2"), I(f"s_add_u32 s{sT}, s{sT}, s{sWave}"),
            I(f"s_lshl_b32 s{sT}, s{sT}, 7"), I(f"s_add_u32 s{sT}, s{sT}, {F2:#x}"),
            I(f"v_bfe_u32 v{t}, v{vL16}, 4, 2"), I(f"v_lshlrev_b32 v{t}, 12, v{t}"), I(f"v_add_u32 v{vF2}, s{sT}, v{t}"),
            I(f"s_lshl_b32 s{sT}, s{sWave}, 13"), I(f"s_lshl_b32 s{sT2}, s{sHl}, 8"), I(f"s_add_u32 s{sT3}, s{sT}, s{sT2}"),
            I(f"s_mul_i32 s{sW2o}, s{sXcd}, {224*1024}"), I(f"s_add_u32 s{sW2o}, s{sW2o}, s{sT3}")] + \
           lane_wdma(vWd3, 1024, T0 + 4, T0, natural=False, nblk=1)
def finl_block():
    L = [I(f"v_add_u32 v{vH2}, {56*1024}, v{vL16}"), I(f"s_mul_i32 s{sT}, s{sXcd}, 7")]
    for d, c in ((sHLo, sCL), (sHHo, sCH)):
        L += [I(f"s_sub_u32 s{d}, s{c}, {WS_CTX:#x}"), I(f"s_lshr_b32 s{d}, s{d}, 17"), I(f"s_mul_i32 s{d}, s{d}, 56"),
              I(f"s_add_u32 s{d}, s{d}, s{sT}"), I(f"s_lshl_b32 s{d}, s{d}, 10"), I(f"s_add_u32 s{d}, s{d}, {WS_H:#x}")]
    L += [I("s_waitcnt vmcnt(0)")] + poll_check(vPo, vF2, sWS, "0", 1, sT2, 63)
    inter = []
    pre2 = [I(f"s_mov_b32 s{sCc}, s{sHLo}"), I(f"s_mov_b32 s{sCc2}, s{sHHo}")]
    lds = [x for s in (2, 3, 0, 1) for x in h_loads(s) if x.kind != 'salu']
    for k, x in enumerate(lds): inter += [[x], []] if k < 8 else [[x], []]
    inter = inter[:16] + [[lds[8]], [], [lds[9]], [], [lds[10]], [], [lds[11]], []] + [[], [lds[12]], [], [lds[13]], [], [], [], []] + [[lds[14]], [lds[15]]]
    V, M = code_pf("F_Bend", "F_RA0", 212, 214, vL16)
    if flag('nopf3'): V, M = [], []
    V += [I(f"s_mov_b32 s{sT3}, {56*1024}")] + warm_consts()
    return L + pre2 + V + M + finalize(0, sCL, inter, tag='cs0')
def bend_pre():
    L = [I(f"s_lshl_b32 s{sT}, s{sWave}, 13"), I(f"s_lshl_b32 s{sT2}, s{sHl}, 8"), I(f"s_add_u32 s{sT3}, s{sT}, s{sT2}"),
         I(f"s_lshl_b32 s{sT}, s{sXcd}, 19"), I(f"s_add_u32 s{sT}, s{sT}, s{sT3}"),
         I(f"s_lshl_b32 s{sT2}, s{sHl}, 17"), I(f"s_add_u32 s{sWoO}, s{sT}, s{sT2}")]
    for k in range(3):
        L += [I(f"s_add_u32 s{sT2}, s{sHl}, {k+1}"), I(f"s_and_b32 s{sT2}, s{sT2}, 3"),
              I(f"s_lshl_b32 s{sWoS[k]}, s{sT2}, 17"), I(f"s_add_u32 s{sWoS[k]}, s{sWoS[k]}, s{sT}"),
              I(f"s_sub_u32 s{sT2}, s{sT2}, s{sHl}"), I(f"s_lshl_b32 s{sSib[k]}, s{sT2}, 12")]
    return L
def bend_valu():
    t = T0; ln = T0 + 4
    L = [I(f"v_lshrrev_b32 v{ln}, 4, v{vL16}")] + lane_wtr(vWtrB, 0, t, ln, natural=False)
    L += [I(f"v_add_u32 v{vWtrA+c}, 131072, v{vWtrB+c}") for c in range(4)]
    L += [I(f"v_add_u32 v{vC2}, 0x20000, v{vL16}"),
          I(f"s_and_b32 s{sT3}, s2, 0xf8"), I(f"s_lshl_b32 s{sT3}, s{sT3}, 2"), I(f"s_lshr_b32 s{sPo}, s{sXcd}, 1"), I(f"s_add_u32 s{sT3}, s{sT3}, s{sPo}"),
          I(f"s_lshl_b32 s{sT3}, s{sT3}, 7"), I(f"s_add_u32 s{sT3}, s{sT3}, {F3:#x}"),
          I(f"v_and_b32 v{t}, 7, v{ln}"), I(f"v_lshlrev_b32 v{t}, 9, v{t}"), I(f"v_add_u32 v{vF3}, s{sT3}, v{t}"),
          I(f"s_lshl_b32 s{sPo}, s{sXcd}, 5"), I(f"s_lshr_b32 s{sT3}, s2, 3"), I(f"s_add_u32 s{sPo}, s{sPo}, s{sT3}"),
          I(f"s_mul_i32 s{sPo}, s{sPo}, {8*PD}"), I(f"s_mul_i32 s{sT3}, s{sWave}, {2*PD}"), I(f"s_add_u32 s{sPo}, s{sPo}, s{sT3}"),
          I(f"s_add_u32 s{sPo}, s{sPo}, {WS_P:#x}")]
    return L

def p3p4():
    RG = 128; NR = 8
    seq = [(s, c8, (0, 1, 2, 3)) for s in range(7) for c8 in range(8)]
    seq += [(s, c8, (0, 1, 2, 3)) for s in range(7, 11) for c8 in range(8)]
    seq += [(s, c8, (0, 1)) for s in range(11, 23) for c8 in range(8)] + [(s, c8, (2, 3)) for c8 in range(8) for s in range(11, 23)]
    NF = len(seq)
    g0s = []; g = 0
    for e in seq: g0s.append(g); g += len(e[2])
    NGP = g
    def w_reads(n):
        s, c8, _ = seq[n]; h, c = divmod(c8, 4); a = w3_addr(s) + h*4096; r = RG + (n % NR)*4
        if s < 4: va, off = vWtrA, a - 131072
        elif s < 11: va, off = vWtrB, a
        elif s < 19: va, off = vWtrB, a - 57344
        else: va, off = vWtrA, a - 122880
        return [I(f"ds_read_b64_tr_b16 {vr(r,2)}, v{va+c} offset:{off}"), I(f"ds_read_b64_tr_b16 {vr(r+2,2)}, v{va+c} offset:{off+2048}")]
    L = stamp(13) + [I("s_waitcnt lgkmcnt(0)"), needvm('x4', 'x5', 'x6'), I("s_barrier")] + stamp(14)
    rd_at = {}
    for m in range(NF):
        n = m
        while n > 0 and m - n < 6 and g0s[m] - g0s[n] < val('p3pf', 14): n -= 1
        rd_at[m] = n if (g0s[m] - g0s[n] >= val('p3pf', 14) or m - n == 6) else -1
    for m in range(NF):
        if rd_at[m] < 0: L += w_reads(m)
    mf = []; post = {}; dmaq = []; valu = []
    def addpost(g, items): post.setdefault(g, []).extend(items)
    first = set()
    firstread = {}
    for m in range(NF): firstread.setdefault(seq[m][0], m)
    bars = {7: range(7, 11), 11: range(11, 17), 17: range(17, 23)}
    for n, (s, c8, bs) in enumerate(seq):
        for b in bs:
            d = vr((c8*4 + b)*4)
            mf.append(I(f"{M16} {d}, {vr(RG + (n % NR)*4)}, {ar(bslot(s, b))}, {d if s else 0}"))
        if n + 1 < NF: addpost(g0s[n + 1] - 1, [needlg(regs_in(vr(RG + ((n + 1) % NR)*4)))])
    bargap = {}
    for sb, rng in bars.items():
        m = firstread[sb]; g = g0s[rd_at[m]] - 1; bargap[sb] = g
        addpost(g, [needvm(*[f'x{k}' for k in rng]), I("s_barrier")] + stamp({7: 54, 11: 57, 17: 58}[sb]))
    lastA = max(m for m in range(NF) if seq[m][0] < 4); lastB = max(m for m in range(NF) if seq[m][0] < 11)
    for k in range(4): addpost(g0s[rd_at[lastA]] + 1 + 4*k, [I(f"v_subrev_u32 v{vWtrA+k}, 8192, v{vWtrA+k}")])
    addpost(g0s[rd_at[lastB]] + 1, [I(f"v_add_u32 v{vWtrB+k}, 57344, v{vWtrB+k}") for k in range(2)])
    addpost(g0s[rd_at[lastB]] + 2, [I(f"v_add_u32 v{vWtrB+k}, 57344, v{vWtrB+k}") for k in range(2, 4)])
    for m in range(NF):
        if rd_at[m] >= 0: addpost(g0s[rd_at[m]], w_reads(m))
    rdg = set(g0s[rd_at[m]] for m in range(NF) if rd_at[m] >= 0)
    G = lambda grp: 4*grp
    for s in range(4, 7): dmaq.append((1, h_loads(s)))
    for s in range(11, 20):
        for g in w3_dma(s): dmaq.append((G(13) + 8*(s - 11), g))
    for s in range(20, 23):
        for g in w3_dma(s): dmaq.append((max(bargap[7] + 1, G(66)), g))
    g2, g3 = val('g2', 30), val('g3', 62)
    valu += [((33 if min(int(r[1:]) for r in x.wr) < 32 else 65) if x.op == 'v_accvgpr_write_b32' else 2, x) for x in finalize(1, sCH, tag='cs1')] + [(G(g3), [needvm('cs1')] + flag_store(3))]
    dmaq.append((G(g2), [poll_issue(vPo, vF2, sWS, "0")]))
    addpost(G(g2 + 12) + 1, stamp(55) + poll_check(vPo, vF2, sWS, "0", 2, sT2, 63) + stamp(56))
    for s in range(11, 23): dmaq.append((G(g2 + 12) + 2, sib_loads(s, 0)))
    g4 = val('g4', 80)
    dmaq.append((G(g4), [poll_issue(vPo, vF2, sWS, "0")]))
    addpost(G(g4 + 12) + 1, stamp(59) + poll_check(vPo, vF2, sWS, "0", 3, sT2, 63) + stamp(60))
    for s in range(11, 23): dmaq.append((G(g4 + 12) + 2, sib_loads(s, 1)))
    PKP = 160
    def piece(c8, pr, k):
        X = (c8*4 + 2*pr)*4; T = PKP + (k % 8)*4
        a, b = P1.pack_swap(T, X, X + 4)
        return a + [I(f"s_add_u32 s{sT3}, s{sPo}, {pr*PD + (c8//4)*4096}")] + b + \
            [I(f"buffer_store_dwordx4 {vr(T)}, v{vL16}, {sr(sWS)}, s{sT3} offen offset:{(c8 % 4)*1024} {ST}", tag=('vm', 'pst'))]
    hi0 = NF - 96
    ev = [(g0s[hi0] + 3, c8, 0) for c8 in range(8)] + [((g0s[hi0 + 12*(c8 + 1)] + 3) if c8 < 7 else NGP, c8, 1) for c8 in range(8)]
    order = sorted(range(16), key=lambda k: (ev[k][0] + (0 if ev[k][2] else 12*ev[k][1])))
    for k, e in enumerate(order): valu += [(ev[e][0], x) for x in piece(ev[e][1], ev[e][2], k)]
    XO = 226; vXa, vBa = 222, 223
    p4pre = [I(f"s_lshr_b32 s{sT}, s{sXcd}, 1"), I(f"s_lshl_b32 s{sT}, s{sT}, 5"),
             I(f"s_sub_u32 s{sT2}, 15, s{sI}"), I(f"s_bitcmp1_b32 s{sXcd}, 0"), I(f"s_cselect_b32 s{sT2}, s{sT2}, s{sI}"),
             I(f"s_lshl_b32 s{sT2}, s{sT2}, 7"), I(f"s_add_u32 s{sT}, s{sT}, s{sT2}"), I(f"s_lshl_b32 s74, s{sT}, 10"),
             I(f"s_lshl_b32 s75, s{sHl}, 8"), I(f"s_lshl_b32 s{sT}, s{sWave}, 6"), I(f"s_add_u32 s75, s75, s{sT}"), I(f"s_add_u32 s74, s74, s75"),
             I(f"v_bfe_u32 v{vXa}, v{vL16}, 4, 5"), I(f"v_lshlrev_b32 v{vXa}, 10, v{vXa}"),
             I(f"v_lshrrev_b32 v{vBa}, 9, v{vL16}"), I(f"v_lshlrev_b32 v{vBa}, 4, v{vBa}"), I(f"v_add_u32 v{vXa}, v{vXa}, v{vBa}")]
    gp = G(126)
    dmaq.append((gp, p4pre[:12] + [I(f"buffer_load_dwordx4 {vr(XO + 8*pc)}, v{vXa}, {sr(sX)}, s74 offen offset:{pc*32}") for pc in range(2)] +
                        [I(f"buffer_load_dwordx4 {vr(XO + 4 + 8*pc)}, v{vBa}, {sr(sB2)}, s75 offen offset:{pc*32}") for pc in range(2)]))
    for k, x in enumerate(p4pre[12:]): addpost(gp - 11 + 2*k, [x])
    place_dma(dmaq, addpost, step=val('p3step', 4), ok=lambda g: g not in rdg and (g >= 352 or g % 4 in (1, 2)))
    def budget(g, p):
        if any(x.kind == 'dsr' for x in p): return 0
        n = sum(1 for x in p if x.txt or (x.tag and x.tag[0] != 'needvm'))
        nd = sum(1 for x in p if x.kind in ('dma', 'vld', 'vst'))
        return max(0, 2 - max(0, n - 1) - nd)
    body, left = weave(mf, post, valu, budget, flush_dep=lambda g: 224 <= g < 352)
    if OPT.verbose:
        mi = 0
        for x in body:
            if x.kind == 'mfma': mi += 1
            if x.tag and x.tag[0] == 'vm' and x.tag[1] in ('cs0', 'cs1', 'pst'): print(f"[p3] {x.tag[1]} store at gap {mi} (group {mi/4:.1f})", file=sys.stderr)
    L += body + stamp(15)
    L += [I(f"s_add_u32 s{sFlagMe}, s{sFlagMe}, {F3 - F2}"), needvm('pst')] + flag_store(1)
    L += [I(f"s_lshr_b32 s{sT}, s2, 3"), I(f"s_mul_i32 s{sT}, s{sT}, {8*PD}"), I(f"s_mul_i32 s{sT2}, s{sXcd}, {PD}"), I(f"s_add_u32 s{sT}, s{sT}, s{sT2}"),
          I(f"s_lshl_b32 s{sT2}, s{sWave}, 11"), I(f"s_add_u32 s{sT}, s{sT}, s{sT2}"), I(f"s_add_u32 s{sT}, s{sT}, {WS_P:#x}"),
          poll_issue(vPo, vF3, sWS, "0")]
    for pc in range(2):
        A = 64 + 8*pc
        for j in range(4):
            L += [I(f"v_lshlrev_b32 v{A+2*j}, 16, v{XO+8*pc+j}"), I(f"v_and_b32 v{A+2*j+1}, 0xffff0000, v{XO+8*pc+j}"),
                  I(f"v_lshlrev_b32 v80, 16, v{XO+4+8*pc+j}"), I(f"v_and_b32 v81, 0xffff0000, v{XO+4+8*pc+j}"),
                  I(f"v_add_f32 v{A+2*j}, v{A+2*j}, v80"), I(f"v_add_f32 v{A+2*j+1}, v{A+2*j+1}, v81")]
    L += poll_check(vPo, vF3, sWS, "0", 1, sT2, 63) + stamp(16)
    for x in range(8):
        L += [I(f"buffer_load_dwordx4 {vr((pc*8 + x)*4)}, v{vL16}, {sr(sWS)}, s{sT} offen offset:{pc*1024} {LD}") for pc in range(2)]
        if x < 7: L += [I(f"s_add_u32 s{sT}, s{sT}, {256*PD:#x}")]
    for x in range(8):
        for pc in range(2):
            A = 64 + 8*pc; r = (pc*8 + x)*4
            for j in range(4):
                L += [I(f"v_lshlrev_b32 v80, 16, v{r+j}"), I(f"v_and_b32 v81, 0xffff0000, v{r+j}"),
                      I(f"v_add_f32 v{A+2*j}, v{A+2*j}, v80"), I(f"v_add_f32 v{A+2*j+1}, v{A+2*j+1}, v81")]
    for pc in range(2):
        A = 64 + 8*pc
        L += [I(f"v_cvt_pk_bf16_f32 v{84+4*pc+j}, v{A+2*j}, v{A+2*j+1}") for j in range(4)]
        L += [I(f"buffer_store_dwordx4 {vr(84+4*pc)}, v{vXa}, {sr(sOUT)}, s74 offen offset:{pc*32}")]
    L += stamp_out(17) + [I("s_endpgm")]
    return L

def l2_warm(with_ctx):
    G = []
    if with_ctx: G.append([pf_load(214, 215, sWS, f"s{sCL}", LD)])
    G.append([I(f"s_add_u32 s{sT}, s{sHLo}, 3072"), pf_load(214, 216, sWS, f"s{sT}", LD)])
    G.append([I(f"s_add_u32 s{sT}, s{sHHo}, 3072"), pf_load(214, 216, sWS, f"s{sT}", LD)])
    G.append([I(f"s_lshr_b32 s{sT}, s2, 3"), I(f"s_lshl_b32 s{sT}, s{sT}, 14"), I(f"s_add_u32 s{sT}, s{sT}, s{sW4096}"),
              I(f"s_lshl_b32 s{sT3}, s{sXcd}, 19"), I(f"s_add_u32 s{sT}, s{sT}, s{sT3}"), pf_load(214, 217, sWO, f"s{sT}")])
    return G
def warm_consts():
    return [I(f"v_bfe_u32 v215, v{vL16}, 4, 5"), I(f"v_lshlrev_b32 v215, 7, v215"), I(f"v_lshrrev_b32 v216, 9, v{vL16}"),
            I(f"v_lshlrev_b32 v217, 2, v{vL16}"),
            I(f"v_mad_u32_u24 v218, v216, s{sT3}, v215"), I(f"v_lshl_add_u32 v215, v216, 17, v215"), I(f"v_mov_b32 v216, v218")]
def bbm_pf():
    d = {}
    if not flag('nopf3'): d[2] = code_pf('F_Bend', 'F_RA0', 212, 214, vL16)[1]
    if flag('pfl2'):
        for k, g in enumerate(l2_warm(True)): d[30 + 4*k] = g
    return d

def build():
    P = P1.prologue()
    P, lgq, vmq = finish(P, name="pro")
    aK, bK = P1.engine(False); aV, bV = P1.engine(True)
    assert text(bK).replace("PL_", "").count("\n") == text(bV).count("\n")
    aK, lq1, vq1 = finish(aK, lgq, vmq, P, name="engK")
    aV, lq2, vq2 = finish(aV, lgq, vmq, P, name="engV")
    assert lq1 == lq2 and [x[1] for x in vq1] == [x[1] for x in vq2] and [x[0] for x in vq1] == [x[0] for x in vq2]
    B, lq, vq = finish(bK + first_tile(), lq1, vq1, aK, name="engB")
    B2, _, _ = finish(bK + first_tile(), lq1, vq1, aV, name="engB'")
    assert len(B) == len(B2)
    Q0 = [set(regs_in(ar(RING + f*4))) for f in range(NPRE)]
    if not OPT.prof: assert lq == Q0, lq
    bend_dma = [(1, g) for s in range(4, 11) for g in w3_dma(s)]
    aame_dma = [(2, g) for s in range(4) for g in w3_dma(s)]
    raw = {
        'AAe': step('A', 'A', 0, 1, name='AAe'), 'AAo': step('A', 'A', 1, 1, name='AAo'),
        'AAmo': step('A', 'A', 1, 1, mask=[(0, 0, None), (2, 1, None)], name='AAmo'),
        'AAme': step('A', 'A', 0, 2, mask=[(0, 2, None), (2, 3, None)], xwait=16, name='AAme', extra_dma=aame_dma),
        'ABm': step('A', 'B', 1, 2, mask=[(k, k, sOffB) for k in range(4)], xwait=8, name='ABm', extra_post={3: flag_store(1), 45: [poll_issue(vPo, vF2, sWS, "0")]}),
        'BBe': step('B', 'B', 0, 2, name='BBe'), 'BBo': step('B', 'B', 1, 2, name='BBo'),
        'BBm': step('B', 'B', 1, 0, mask=[(k, k, None) for k in range(4)], xwait=(4 if flag('pfl2') else 0), name='BBm', extra_post=bbm_pf()),
        'FINL': stamp(11) + finl_block() + stamp(12) + [I(f"s_sub_u32 s{sCnt}, 6, s{sI}"), I("s_cbranch_scc1 F_Bend")],
    }
    preds = {'AAe': ['PRO', 'AAo'], 'AAo': ['AAe'], 'AAmo': ['AAe'], 'AAme': ['PRO', 'AAmo'], 'ABm': ['AAme'], 'FINL': ['ABm'],
             'BBe': ['FINL', 'BBo'], 'BBo': ['BBe'], 'BBm': ['BBe']}
    done = {'PRO': B}
    for nm in ['AAe', 'AAo', 'AAmo', 'AAme', 'ABm', 'FINL', 'BBe', 'BBo', 'BBm']:
        outs = [finish(raw[nm], Q0, None, done.get(pr) or raw[pr], name=nm + "<-" + pr, vm=False) for pr in preds[nm]]
        best = max(outs, key=lambda o: len(o[0]))
        done[nm] = best[0]
        if not OPT.prof or nm != 'FINL': assert best[1] == Q0, (nm, best[1])
    bend = step('B', None, 0, 0, name='Bend', extra_dma=bend_dma, extra_valu=bend_valu(), extra_post={26: [needvm('cs0')] + flag_store(2)})
    k = [j for j, x in enumerate(bend) if x.kind == 'mfma'][0]
    tailraw = bend[:k] + bend_pre() + bend[k:] + p3p4()
    outs = [finish(tailraw, Q0, [(set(), 'cs0')] + [(set(regs_in(ar(bslot(1, b)))), None) for b in (2, 3)], done[pr], name="tail<-" + pr) for pr in ('FINL', 'BBm')]
    tail = max(outs, key=lambda o: len(o[0]))[0]
    loopx = lambda lab: f" s_sub_u32 s{sCnt}, s{sCnt}, 1\n s_cbranch_scc1 {lab}\n"
    body = text(P) + "\n" + text(aK) + "\n s_branch F_J\nF_V:\n" + text(aV) + "\nF_J:\n" + text(B) + "\n"
    body += ".p2align 3\nF_AAe:\n" + text(done['AAe']) + "\n" + loopx("F_AAmo") + text(done['AAo']) + "\n s_branch F_AAe\n"
    body += "F_AAmo:\n" + text(done['AAmo']) + "\nF_AAme:\n" + text(done['AAme']) + "\n" + text(done['ABm']) + "\n" + text(done['FINL']) + "\n"
    body += ".p2align 3\nF_BBe:\n" + text(done['BBe']) + "\n" + loopx("F_BBm") + text(done['BBo']) + "\n s_branch F_BBe\n"
    body += "F_BBm:\n" + text(done['BBm']) + "\nF_Bend:\n" + text(tail) + "\n"
    for typ in 'AB':
        for p in range(2): body += text(rare_S(typ, p)) + "\n"
        body += text(rare_O(typ)) + "\n"
    body += "F_end:\n s_endpgm\n"
    hdr = open(f"cdna_kernels/{NAME}.s.ref").read().split("; Override")[0]
    kname = NAME + "_kernel"
    if "--list" in sys.argv: hdr += f"; @launch kernel={kname} grid=(256,1,1) block=(256,1,1) lds=163840\n"
    else: hdr += "; @launch grid=(256,1,1) block=(256,1,1) lds=163840\n"
    return hdr + '.amdgcn_target "amdgcn-amd-amdhsa--gfx950"\n' + kernel_text(kname, body, 512, 256)

if __name__ == "__main__":
    OPT.prof = "--prof" in sys.argv
    if "-q" in sys.argv: OPT.verbose = 0
    open(sys.argv[1], "w").write(build())
```

```python
import re

_REG = re.compile(r'\b([vas])\[(\d+):(\d+)\]|\b([vas])(\d+)\b|\b(vcc|exec|m0|scc)\b')

def regs_in(s):
    out = []
    for m in _REG.finditer(s):
        if m.group(1):
            out += [f"{m.group(1)}{i}" for i in range(int(m.group(2)), int(m.group(3)) + 1)]
        elif m.group(4):
            out.append(f"{m.group(4)}{m.group(5)}")
        else:
            out.append(m.group(6))
    return out

TRANS = ('v_exp_f32', 'v_log_f32', 'v_rcp_f32', 'v_rsq_f32', 'v_sqrt_f32', 'v_sin_f32', 'v_cos_f32')

class Ins:
    __slots__ = ('txt', 'op', 'kind', 'wr', 'rd', 'passes', 'A', 'B', 'C', 'D', 'tag', 'states', 'wide')
    def __init__(self, txt, tag=None):
        self.txt = txt.strip()
        self.tag = tag
        self.passes = 0
        self.A = self.B = self.C = self.D = ()
        self.states = 1
        self.wide = False
        t = self.txt.split(';')[0].strip()
        if t.endswith(':') or t.startswith('.') or not t:
            self.op = 'label'; self.kind = 'label'; self.wr = set(); self.rd = set(); self.states = 0
            return
        parts = t.split(None, 1)
        op = parts[0]; self.op = op
        rest = parts[1] if len(parts) > 1 else ''
        ops = [o.strip() for o in re.split(r',(?![^\[]*\])', rest)] if rest else []
        R = lambda i: regs_in(ops[i]) if i < len(ops) else []
        allr = lambda a: [r for o in ops[a:] for r in regs_in(o)]
        wr, rd = [], []
        if op.startswith('v_mfma'):
            self.kind = 'mfma'
            self.passes = 8 if '32x32x16' in op else 4
            self.D, self.A, self.B, self.C = tuple(R(0)), tuple(R(1)), tuple(R(2)), tuple(R(3))
            wr = list(self.D); rd = list(self.A + self.B + self.C)
        elif op.startswith('v_cmp'):
            self.kind = 'valu'; wr = R(0); rd = allr(1)
        elif op.startswith('v_permlane') and 'swap' in op:
            self.kind = 'valu'; wr = R(0) + R(1); rd = R(0) + R(1)
        elif op.startswith('v_'):
            self.kind = 'trans' if any(op.startswith(x) for x in TRANS) else 'valu'
            wr = R(0); rd = allr(1)
            if op.startswith(('v_fmac', 'v_dot2c', 'v_writelane')): rd += R(0)
            if op.startswith(('v_add_co', 'v_sub_co', 'v_addc_co')): wr += R(1); rd = allr(2)
            if op.startswith('v_cndmask') and len(ops) == 3: rd.append('vcc')
            if 'dpp' in t or 'row_' in t or 'quad_perm' in t: rd += R(0)
        elif op.startswith('ds_read') or op.startswith('ds_bpermute') or op.startswith('ds_swizzle'):
            self.kind = 'dsr'; wr = R(0); rd = allr(1)
        elif op.startswith('ds_write'):
            self.kind = 'dsw'; rd = allr(0)
        elif op.startswith(('buffer_load', 'global_load')):
            if re.search(r'\blds\b', t):
                self.kind = 'dma'; rd = allr(0) + ['m0']
            else:
                self.kind = 'vld'; wr = R(0); rd = allr(1)
        elif op.startswith(('buffer_store', 'global_store')):
            self.kind = 'vst'; rd = allr(0)
            self.wide = op.endswith(('x4', 'x3'))
            self.D = tuple(R(0))
        elif op.startswith('buffer_') or op.startswith('global_'):
            self.kind = 'vmisc'; rd = allr(0)
        elif op in ('s_sleep', 's_setprio'):
            self.kind = 'salu'
        elif op == 's_waitcnt':
            self.kind = 'wait'
        elif op == 's_barrier':
            self.kind = 'barrier'
        elif op == 's_nop':
            self.kind = 'nop'; self.states = int(ops[0], 0) + 1
        elif op.startswith(('s_cbranch', 's_branch', 's_setpc', 's_call', 's_swappc', 's_endpgm')):
            self.kind = 'branch'; rd = allr(0)
            if op.startswith('s_call'): wr = R(0); rd = []
        elif op.startswith(('s_load', 's_memtime', 's_memrealtime')):
            self.kind = 'smem'; wr = R(0); rd = allr(1)
        elif op.startswith('s_cmp') or op.startswith('s_bitcmp'):
            self.kind = 'salu'; rd = allr(0); wr = ['scc']
        elif op.startswith('s_'):
            self.kind = 'salu'; wr = R(0); rd = allr(1)
            if op.startswith(('s_addk', 's_mulk')): rd += R(0)
        else:
            raise ValueError("unknown instruction: " + txt)
        self.wr = set(wr); self.rd = set(rd)
    def __repr__(self): return self.txt

def I(txt, tag=None): return Ins(txt, tag)

def _need(p, c):
    n = 0
    pv = p.kind in ('valu', 'trans')
    cv = c.kind in ('valu', 'trans')
    if pv:
        vw = {r for r in p.wr if r[0] in 'va' and r != 'vcc'}
        sw = p.wr - vw
        if c.kind == 'mfma' and vw & c.rd: n = max(n, 2)
        if p.kind == 'trans' and c.kind == 'valu' and vw & c.rd: n = max(n, 1)
        if p.kind == 'trans' and c.kind in ('vst', 'dsw') and vw & c.rd: n = max(n, 1)
        if c.op.startswith('v_permlane') and vw & c.rd: n = max(n, 2)
        if c.op.startswith(('v_readlane', 'v_readfirstlane')) and vw & c.rd: n = max(n, 1)
        if cv and ('dpp' in c.txt or 'row_' in c.txt or 'quad_perm' in c.txt) and vw & c.rd: n = max(n, 2)
        if sw & c.rd:
            if cv: n = max(n, 2)
            if c.kind in ('vld', 'vst', 'dma', 'vmisc'): n = max(n, 5)
            if c.kind in ('salu', 'branch'): n = max(n, 1)
        if 'exec' in p.wr and c.kind == 'mfma': n = max(n, 4)
    if p.kind == 'mfma':
        big = 12 if p.passes == 8 else 8
        D = set(p.D)
        if c.kind == 'mfma':
            if D & set(c.A + c.B): n = max(n, big)
            if D & set(c.C):
                if not (tuple(c.C) == tuple(p.D) and c.passes == p.passes): n = max(n, big - 2)
            elif D & set(c.D): n = max(n, big - 2)
        elif c.kind in ('valu', 'trans'):
            if D & (c.rd | c.wr): n = max(n, big)
            if set(p.C) & c.wr: n = max(n, 7 if p.passes == 8 else 3)
        elif c.kind in ('vst', 'dsw', 'dma', 'vmisc'):
            if D & c.rd: n = max(n, big)
        elif c.kind in ('vld', 'dsr'):
            if D & (c.rd | c.wr): n = max(n, big)
            if set(p.C) & c.wr: n = max(n, 7 if p.passes == 8 else 3)
    if p.kind == 'vst' and p.wide and set(p.D) & c.wr:
        n = max(n, 2)
    if p.kind == 'salu' and 'm0' in p.wr and c.kind == 'dma': n = max(n, 1)
    return n

def pad_hazards(ins, prev=None, verbose=None):
    out = []
    hist = list(prev[-24:]) if prev else []
    npad = 0
    for c in ins:
        if c.kind == 'label':
            out.append(c); continue
        need = 0; dist = 0; why = None
        for p in reversed(hist):
            if dist >= 20: break
            n = _need(p, c)
            if n - dist > need: need = n - dist; why = p
            dist += p.states
        while need > 0:
            k = min(need, 16)
            nop = Ins(f"s_nop {k-1}")
            out.append(nop); hist.append(nop); need -= k; npad += k
            if verbose is not None: verbose.append((k, why.txt, c.txt))
        out.append(c); hist.append(c)
        if len(hist) > 64: hist = hist[-32:]
    return out, npad

def insert_lgkm(ins, init=None):
    q = [set(x) for x in (init or [])]
    out = []
    for c in ins:
        if c.kind == 'wait':
            m = re.search(r'lgkmcnt\((\d+)\)', c.txt)
            if m:
                k = int(m.group(1))
                while len(q) > k: q.pop(0)
            out.append(c); continue
        touched = c.rd | c.wr
        if c.kind == 'label' and c.tag and c.tag[0] == 'needlg': touched = c.tag[1]
        pos = -1
        for i, s in enumerate(q):
            if s & touched: pos = i
        if pos >= 0:
            n = len(q) - pos - 1
            n = min(n, 15)
            out.append(Ins(f"s_waitcnt lgkmcnt({n})"))
            while len(q) > n: q.pop(0)
        if c.kind == 'dsr': q.append(set(c.wr))
        elif c.kind == 'dsw': q.append(set())
        elif c.kind == 'smem':
            assert not q, "smem with ds ops outstanding"

        out.append(c)
    return out, q

def insert_vm(ins, init=None):
    q = list(init or [])
    out = []; closed = set()
    for c in ins:
        if c.tag and c.tag[0] == 'novm':
            out.append(c); continue
        if c.kind == 'wait':
            m = re.search(r'vmcnt\((\d+)\)', c.txt)
            if m:
                k = int(m.group(1))
                while len(q) > k: q.pop(0)
            out.append(c); continue
        pos = -1
        if c.kind == 'label' and c.tag and c.tag[0] == 'needvm':
            names = c.tag[1:]
            closed.update(names)
            for i, (s, nm) in enumerate(q):
                if nm in names: pos = i
            if pos >= 0:
                n = min(len(q) - pos - 1, 63)
                out.append(Ins(f"s_waitcnt vmcnt({n})"))
                while len(q) > n: q.pop(0)
            continue
        touched = c.rd | c.wr
        for i, (s, nm) in enumerate(q):
            if s & touched: pos = i
        if pos >= 0:
            n = min(len(q) - pos - 1, 63)
            out.append(Ins(f"s_waitcnt vmcnt({n})"))
            while len(q) > n: q.pop(0)
        if c.kind in ('vld', 'dma', 'vst', 'vmisc'):
            nm = c.tag[1] if (c.tag and c.tag[0] == 'vm') else None
            assert nm is None or nm not in closed, f"vmem op tagged {nm} issued after its needvm"
            if len(q) >= 60:
                out.append(Ins("s_waitcnt vmcnt(52)"))
                while len(q) > 52: q.pop(0)
            q.append((set(c.wr) if c.kind == 'vld' else set(), nm))
        out.append(c)
    return out, q

def needlg(regs): return Ins("", tag=('needlg', set(regs)))
def needvm(*names): return Ins("", tag=('needvm',) + names)

def cost(c):
    if isinstance(c, list): return sum(cost(x) for x in c)
    if c.kind == 'trans' or c.op.startswith('v_permlane'): return 2
    if c.kind == 'label': return 1 if (c.tag and c.tag[0] == 'pad') else 0
    return 1

def weave(mfmas, post, valu, budget, flush_dep=False, force=None):
    out = []
    vi = 0
    for g, m in enumerate(mfmas):
        if flush_dep is True or (flush_dep and flush_dep(g)):
            need = set(m.A) | set(m.B); k = -1
            for j in range(vi, len(valu)):
                it = valu[j][1]
                if not isinstance(it, list) and it.wr & need: k = j
            while vi <= k:
                it = valu[vi][1]
                assert valu[vi][0] <= g, "forced flush violates min gap"
                out += it if isinstance(it, list) else [it]
                vi += 1
        while force and g in force and vi <= force[g]:
            it = valu[vi][1]
            out += it if isinstance(it, list) else [it]
            vi += 1
        out.append(m)
        p = post.get(g, [])
        out += p
        b = budget(g, p)
        while vi < len(valu) and valu[vi][0] <= g and b >= cost(valu[vi][1]):
            b -= cost(valu[vi][1])
            it = valu[vi][1]
            if isinstance(it, list): out += it
            else: out.append(it)
            vi += 1
    left = []
    for x in valu[vi:]:
        left += x[1] if isinstance(x[1], list) else [x[1]]
    out += left
    return out, len(left)

def text(ins):
    return "\n".join((c.txt if c.kind == 'label' else " " + c.txt) for c in ins if c.txt)
```

```python
from f_common import *

GC0 = -2.0 * math.sqrt(2.0 / math.pi) * math.log2(math.e)
GC1 = GC0 * 0.044715
sWoff, sCoff, sOb, sM0c, sScale, sType, s1o, sQo, sXL, sXH, sXLc, sXHc, sHL, sHH, sGC0, sB1o, sSt = range(74, 91)
sXrow, sWpf, sRb, sF0me, sF1me = 98, 99, 96, 5, 1
sKt, sKm, sVt, sVm = 91, 92, 93, 94
sCL, sCH = 95, 96
ACCB = [0, 64, 128, 0, 64, 0, 128]
WF = 192; NWF = 6
vZero, vPoll, vFt, vP0, vF1, vJ, vBo, vTm2 = range(216, 224)
vL16 = 224; vWtrS = [225, 229]; vWd, vW1d = 233, 237
vXo2, vGC1, vKVd = 241, 242, 243
PK = 244; GT = 237; GP = [244, 248]
vCd, vCr = 180, 178
QF = lambda qb, ks: 128 + (qb*8 + ks)*4
XF = lambda b, ks: (b*16 + ks)*4

def bf16_round(dst, src):
    return [I(f"v_cvt_pk_bf16_f32 v{dst}, v{src}, v{src}"), I(f"v_and_b32 v{dst}, 0xffff0000, v{dst}")]
def sum32(v, t):
    return [I(f"v_add_f32_dpp v{v}, v{v}, v{v} quad_perm:[1,0,3,2] row_mask:0xf bank_mask:0xf"),
            I(f"v_add_f32_dpp v{v}, v{v}, v{v} quad_perm:[2,3,0,1] row_mask:0xf bank_mask:0xf"),
            I(f"v_add_f32_dpp v{v}, v{v}, v{v} row_half_mirror row_mask:0xf bank_mask:0xf"),
            I(f"v_add_f32_dpp v{v}, v{v}, v{v} row_mirror row_mask:0xf bank_mask:0xf"),
            I(f"v_mov_b32 v{t}, v{v}"), I(f"v_permlane16_swap_b32 v{v}, v{t}"), I(f"v_add_f32 v{v}, v{v}, v{t}")]

def c_dma(ch):
    gs = []
    for grp in range(2):
        L = [I(f"s_add_u32 m0, s{sM0c}, {(ch % 3)*8192 + grp*4096}"), I(f"s_add_u32 s{sT}, s{sCoff}, {ch*128 + grp*32768}")]
        L += [I(f"buffer_load_dwordx4 v{vCd+b}, {sr(sC)}, s{sT} offen offset:{1024*b} {'nt' if flag('cnt') else ''} lds", tag=('vm', f'c{ch}')) for b in range(4)]
        gs.append(L)
    return gs
ORDER = [(0, k) for k in range(8)]
for cp in range(4):
    for k in range(8): ORDER += [(cp, 8 + k), (cp + 1, k)]
ORDER += [(4, k) for k in range(8, 16)] + [(5, k) for k in range(16)] + [(6, k) for k in range(16)]
POS = {e: 4*k for k, e in enumerate(ORDER)}
PF = 4
FU = {u: POS[(u//4, 4*(u % 4))] for u in range(28)}
LU = {u: POS[(u//4, 4*(u % 4) + 3)] + 3 for u in range(28)}
def make_plan(dist):
    need = {}; bars = []
    for u in sorted(FU, key=lambda u: FU[u]):
        p = FU[u] - PF
        if bars and p - bars[-1] <= 4: need[u] = bars[-1]
        else: bars.append(p); need[u] = p
    extra = [40, 72]
    bars = sorted(set(bars + extra))
    plan = {0: (-9, 6), 1: (-9, 7), 2: (-9, 8), 4: (-9, 9)}
    free = {sl: 72 for sl in range(6)}
    def rel(u): return min([p for p in bars if p > LU[u]] + [10**6])
    for u, (p, sl) in plan.items(): free[sl] = rel(u)
    rest = [u for u in sorted(FU, key=lambda u: FU[u]) if u not in plan]
    for u in rest:
        allowed = range(10) if u < 22 else (3, 5, 6, 7, 8, 9)
        sl = min(allowed, key=lambda x: (free[x], x in (3, 5, 6, 7, 8, 9) and u >= 16))
        cand = [p for p in bars if p >= free[sl] and p >= need[u] - dist]
        plan[u] = (cand[0], sl); assert cand[0] < need[u], u
        free[sl] = rel(u)
    return plan, need, bars, free
PLAN, NEED, BARS, SLOTFREE = make_plan(val('wdist', 100))
def w_dma(u):
    cp, kq = divmod(u, 4); slot = PLAN[u][1]
    if cp < 4: srd_, vo, so, off = sWkv, vWd, sWoff, kq*4*262144 + cp*128
    elif cp == 4: srd_, vo, so, off = sW1, vW1d, s1o, kq*4*32*3584
    else: srd_, vo, so, off = sWQ, vWd, sQo, kq*4*262144 + (cp - 5)*128
    L = [I(f"s_add_u32 m0, s{sW4096}, {slot*16384}"), I(f"s_add_u32 s{sT}, s{so}, {off}")]
    L += [I(f"buffer_load_dwordx4 v{vo+b}, {sr(srd_)}, s{sT} offen offset:{1024*b} {'nt' if (flag('wnt') or (flag('qnt') and cp >= 4)) else ''} lds", tag=('vm', f'w{u}')) for b in range(4)]
    return L
def kv_dma(which, tag=None):
    srd_, t, m = (sKS, sKt, sKm) if which == 'K' else (sVS, sVt, sVm)
    L = [I(f"s_mov_b32 m0, s{m}") if which == 'K' else I(f"s_add_u32 m0, s{m}, 0x10000"),
         I(f"s_mov_b32 s{sT2}, s{t}"),
         I(f"s_add_u32 s{t}, s{t}, {TS}"), I(f"s_add_u32 s{m}, s{m}, 0x4000"), I(f"s_and_b32 s{m}, s{m}, 0xffff")]
    L += [I(f"buffer_load_dwordx4 v{vKVd}, {sr(srd_)}, s{sT2} offen offset:{1024*b} {LD} lds", tag=('vm', tag)) for b in range(4)]
    return L

def prologue():
    TMP = 184; ln = 188
    P = [I("s_cmp_ge_u32 s2, 256"), I("s_cbranch_scc1 F_end")]
    for s_, off in ((sC, A_CKV), (sWkv, A_WUK), (4, A_WUV), (sX, A_X), (sWS, A_WS), (sDBG, A_DBG), (sWQ, A_WQ), (sW1, A_W1), (sB1, A_B1),
                    (sWO, A_WO), (sW2, A_W2), (sB2, A_B2), (sOUT, A_OUT)):
        P.append(I(f"s_load_dwordx2 s[{s_}:{s_+1}], s[0:1], {off}"))
    P += [I(f"v_and_b32 v{ln}, 63, v0"), I(f"v_lshrrev_b32 v{TMP}, 6, v0"), I(f"v_lshrrev_b32 v{TMP+1}, 3, v{ln}"),
          I(f"v_readfirstlane_b32 s{sWave}, v{TMP}"),
          I(f"s_and_b32 s{sXcd}, s2, 7"), I(f"s_lshr_b32 s{sI}, s2, 5"), I(f"s_bfe_u32 s{sHl}, s2, 0x20003"),
          I(f"s_and_b32 s{sType}, s{sI}, 1"),
          I(f"s_and_b32 s{sRb}, s2, 1"), I(f"s_lshl_b32 s{sRb}, s{sRb}, 2"), I(f"s_add_u32 s{sRb}, s{sRb}, s{sHl}"),
          I(f"s_mul_i32 s{sM0c}, s{sWave}, 24576"),
          I(f"s_lshl_b32 s{sCoff}, s{sRb}, 18"), I(f"s_lshl_b32 s{sT}, s{sWave}, 16"), I(f"s_add_u32 s{sCoff}, s{sCoff}, s{sT}"),
          I(f"s_mov_b32 s{sC+2}, {2*MB:#x}"), I(f"s_mov_b32 s{sC+3}, 0x20000"),
          I(f"v_and_b32 v{TMP+2}, 7, v{ln}"), I(f"v_lshrrev_b32 v{TMP}, 4, v{ln}"), I(f"v_xor_b32 v{TMP+2}, v{TMP+2}, v{TMP}"),
          I(f"v_lshlrev_b32 v{TMP}, 10, v{TMP+1}")]
    for b in range(4):
        P += [I(f"v_xor_b32 v{TMP+1}, {4*(b%2)}, v{TMP+2}"), I(f"v_lshl_add_u32 v{vCd+b}, v{TMP+1}, 4, v{TMP}")]
        if b: P.append(I(f"v_add_u32 v{vCd+b}, {7*b*1024}, v{vCd+b}"))
    P += [I(f"s_lshr_b32 s3, s{sXcd}, 1"), I("s_lshl_b32 s3, s3, 2"), I(f"s_lshr_b32 s{sT}, s{sI}, 1"), I(f"s_add_u32 s3, s3, s{sT}"),
          I(f"s_lshl_b32 s{sWoff}, s{sWave}, 18"), I(f"s_lshl_b32 s{sT}, s3, 9"), I(f"s_add_u32 s{sWoff}, s{sWoff}, s{sT}"),
          I(f"s_lshl_b32 s{sW4096}, s{sWave}, 12"),
          I(f"s_mov_b32 s{sWkv+2}, {4*MB:#x}"), I(f"s_mov_b32 s{sWkv+3}, 0x20000"),
          I("s_waitcnt lgkmcnt(0)")] + stamp(0)
    P += [I(f"v_mov_b32 v{vZero}, 0"), I(f"s_or_b32 s{sT3}, s2, s{sWave}"), I(f"s_cmp_eq_u32 s{sT3}, 0"), I("s_cbranch_scc0 F_noep0"),
          I(f"s_mov_b32 s{sWS+2}, {WS_SIZE:#x}"), I(f"s_mov_b32 s{sWS+3}, 0x20000"), I(f"s_mov_b32 s{sT}, {FE:#x}"),
          I(f"buffer_load_dword v{vFt}, v{vZero}, {sr(sWS)}, s{sT} offen sc1", tag=('novm',)), I("F_noep0:")]
    nv0 = len(P)
    c0 = c_dma(0)
    P += c0[0] + c0[1]
    P += lane_wdma(vWd, 8192, TMP, ln)
    P += [I(f"s_cmp_eq_u32 s{sType}, 0"), I(f"s_cselect_b64 s[{sWkv}:{sWkv+1}], s[{sWkv}:{sWkv+1}], s[4:5]")]
    P += w_dma(0)
    P += [I(f"s_mov_b32 s{sX+2}, {2*MB:#x}"), I(f"s_mov_b32 s{sX+3}, 0x20000"),
          I(f"s_lshl_b32 s{sT2}, s2, 13"), I(f"s_lshl_b32 s{sT}, s{sWave}, 11"), I(f"s_add_u32 s{sT2}, s{sT2}, s{sT}"),
          I(f"v_lshlrev_b32 v{vL16}, 4, v{ln}"), I(f"v_and_b32 v{TMP}, 32, v{ln}"), I(f"v_lshl_add_u32 v{TMP}, v{TMP}, 4, v{vL16}"),
          I(f"buffer_load_dwordx4 {vr(144)}, v{TMP}, {sr(sX)}, s{sT2} offen"),
          I(f"buffer_load_dwordx4 {vr(148)}, v{TMP}, {sr(sX)}, s{sT2} offen offset:512")]
    g = c_dma(1); P += g[0] + g[1]
    if flag('early'):
        g = c_dma(2); P += w_dma(1) + g[0] + g[1] + w_dma(2) + w_dma(4)
    for s_, size in ((sWS, WS_SIZE), (sDBG, 256), (sWQ, 4*MB), (sW1, 512*3584), (sB1, 3584), (sWO, 4*MB), (sW2, 1792*1024), (sB2, 1024), (sOUT, 2*MB)):
        P += [I(f"s_mov_b32 s{s_+2}, {size:#x}"), I(f"s_mov_b32 s{s_+3}, 0x20000")]
    P += [I(f"s_lshr_b32 s{sT}, s2, 3"), I(f"s_lshl_b32 s{sT}, s{sT}, 2"), I(f"s_add_u32 s97, s{sT}, s{sWave}"),
          I(f"v_lshlrev_b32 v169, 7, v{ln}"), I(f"s_lshl_b32 s{sT}, s97, 13"), I(f"s_and_b32 s{sT2}, s2, 1"), I(f"s_lshl_b32 s{sT2}, s{sT2}, 20"),
          I(f"s_add_u32 s{sT}, s{sT}, s{sT2}"),
          *([I(f"s_mov_b32 s{sSt}, s{sT}")] if not flag('early') else [pf_load(vJ, 169, sC, f"s{sT}")]),
          I("s_getpc_b64 s[6:7]"), I("F_pc:"),
          I(f"s_lshl_b32 s{sT}, s97, 12"), I(f"v_lshlrev_b32 v{TMP+2}, 6, v{ln}"), I(f"v_add_u32 v{TMP+2}, s{sT}, v{TMP+2}"),
          I(f"v_min_u32 v{TMP+2}, F_end-F_pc, v{TMP+2}")]
    P.append(I(f"v_mov_b32 v168, v{TMP+2}"))
    cl = I(f"global_load_dword v{vJ}, v168, s[6:7]"); cl.wr = set()
    LATE = []
    if not flag('early'):
        g = c_dma(2); LATE = w_dma(1) + g[0] + g[1] + [pf_load(vJ, 169, sC, f"s{sSt}")] + w_dma(2) + w_dma(4) + [cl]
    else: P.append(cl)
    if flag('tlb'):
        P += [I(f"v_lshl_add_u32 v{TMP+2}, s97, 6, v{ln}"), I(f"v_mul_u32_u24 v{TMP+2}, {TS}, v{TMP+2}"), I(f"s_mov_b32 s{sT}, 16384"),
              pf_load(vJ, TMP+2, sWS, f"s{sT}")]
    P += [I(f"s_lshr_b32 s{sT}, s{sI}, 1"), I(f"s_lshl_b32 s{sT}, s{sT}, 2"), I(f"s_add_u32 s{sT}, s{sT}, s{sHl}"),
          I(f"s_lshl_b32 s{sT}, s{sT}, 2"), I(f"s_add_u32 s{sT}, s{sT}, s{sWave}"), I(f"s_lshl_b32 s{sT}, s{sT}, 16"),
          I(f"s_lshr_b32 s{sT2}, s{sXcd}, 1"), I(f"s_lshl_b32 s{sT2}, s{sT2}, 11"), I(f"s_add_u32 s{sWpf}, s{sT}, s{sT2}"),
          I(f"v_lshrrev_b32 v{vBo}, 4, v{ln}"), I(f"v_and_b32 v{TMP}, 15, v{ln}"),
          I(f"v_lshlrev_b32 v170, 13, v{vBo}"), I(f"v_lshl_add_u32 v170, v{TMP}, 7, v170"),
          I(f"v_lshlrev_b32 v{vBo}, 3, v{vBo}")]
    nyoung = sum(1 for x in P[nv0:] if x.kind in ('dma', 'vld', 'vst', 'vmisc'))
    P += [I(f"s_cmp_eq_u32 s{sT3}, 0"), I("s_cbranch_scc0 F_noep"),
          I(f"s_mov_b32 s{sT}, {FE:#x}"), I(f"s_waitcnt vmcnt({nyoung})", tag=('novm',)),
          I(f"v_add_u32 v{vFt}, 16, v{vFt}"), I(f"v_max_u32 v{vFt}, 1, v{vFt}"),
          I(f"buffer_store_dword v{vFt}, v{vZero}, {sr(sDBG)}, 0 offen {ST}", tag=('novm',)),
          I(f"buffer_store_dword v{vFt}, v{vZero}, {sr(sWS)}, s{sT} offen {ST}", tag=('novm',)),
          I("F_noep:")]
    P += [I(f"s_lshl_b32 s{sF0me}, s2, 7"), I(f"s_add_u32 s{sF0me}, s{sF0me}, {F0:#x}"),
          I(f"s_lshl_b32 s{sF1me}, s3, 3"), I(f"s_add_u32 s{sF1me}, s{sF1me}, s{sRb}"), I(f"s_lshl_b32 s{sF1me}, s{sF1me}, 1"),
          I(f"s_add_u32 s{sF1me}, s{sF1me}, s{sType}"), I(f"s_lshl_b32 s{sF1me}, s{sF1me}, 7"), I(f"s_add_u32 s{sF1me}, s{sF1me}, {F1:#x}"),
          I(f"s_lshl_b32 s{sFlagMe}, s{sI}, 3"), I(f"s_add_u32 s{sFlagMe}, s{sFlagMe}, s{sXcd}"), I(f"s_lshl_b32 s{sFlagMe}, s{sFlagMe}, 2"),
          I(f"s_add_u32 s{sFlagMe}, s{sFlagMe}, s{sWave}"), I(f"s_lshl_b32 s{sFlagMe}, s{sFlagMe}, 2"), I(f"s_add_u32 s{sFlagMe}, s{sFlagMe}, s{sHl}"),
          I(f"s_lshl_b32 s{sFlagMe}, s{sFlagMe}, 7"), I(f"s_add_u32 s{sFlagMe}, s{sFlagMe}, {F2:#x}"),
          I(f"v_bfe_u32 v171, v{ln}, 2, 1"), I(f"s_lshl_b32 s{sT}, s{sI}, 12"), I(f"s_sub_u32 s{sT}, {15*2048}, s{sT}"),
          I(f"v_mul_lo_u32 v{vP0}, v171, s{sT}"), I(f"v_and_b32 v171, 3, v{ln}"), I(f"v_lshl_add_u32 v{vP0}, v171, 7, v{vP0}"),
          I(f"s_lshl_b32 s{sT}, s{sI}, 11"), I(f"s_lshl_b32 s{sT2}, s{sWave}, 9"), I(f"s_add_u32 s{sT}, s{sT}, s{sT2}"),
          I(f"s_add_u32 s{sT}, s{sT}, {F0:#x}"), I(f"v_add_u32 v{vP0}, s{sT}, v{vP0}"),
          I(f"s_lshl_b32 s{sT}, s{sXcd}, 1"), I(f"s_lshr_b32 s{sT2}, s{sHl}, 1"), I(f"s_add_u32 s{sT}, s{sT}, s{sT2}"),
          I(f"s_lshl_b32 s{sT}, s{sT}, 11"), I(f"s_add_u32 s0, s{sT}, {F1:#x}"),
          I(f"v_and_b32 v171, 1, v{ln}"), I(f"v_lshlrev_b32 v{vF1}, 7, v171")]
    P += [I(f"s_lshl_b32 s{sW1024}, s{sWave}, 10"),
          I(f"s_mov_b32 s{sScale}, {f32(QSCALE)}"), I(f"s_mov_b32 s{sGC0}, {f32(GC0)}"),
          I(f"s_lshl_b32 s{sOb}, s3, 6"), I(f"s_lshl_b32 s{sT}, s{sRb}, 2"), I(f"s_add_u32 s{sOb}, s{sOb}, s{sT}"),
          I(f"s_add_u32 s{sOb}, s{sOb}, s{sWave}"), I(f"s_mul_i32 s{sOb}, s{sOb}, {TS}"),
          I(f"s_mul_i32 s{sT}, s{sType}, {WS_V:#x}"), I(f"s_add_u32 s{sOb}, s{sOb}, s{sT}"),
          I(f"s_lshl_b32 s3, s{sXcd}, 2"), I(f"s_add_u32 s3, s3, s{sHl}"),
          I(f"s_lshl_b32 s4, s{sHl}, 1"), I("s_min_u32 s4, s4, 5"), I(f"s_mul_i32 s{sT}, s{sXcd}, 7"), I(f"s_add_u32 s4, s4, s{sT}"),
          I(f"s_lshl_b32 s{sXL}, s{sI}, 3"), I(f"s_lshl_b32 s{sT}, s{sWave}, 1"), I(f"s_add_u32 s{sXL}, s{sXL}, s{sT}"),
          I(f"s_sub_u32 s{sXH}, 15, s{sI}"), I(f"s_lshl_b32 s{sXH}, s{sXH}, 3"), I(f"s_add_u32 s{sXH}, s{sXH}, s{sT}")]
    for d, q in ((sHL, sXL), (sHH, sXH)):
        P += [I(f"s_mul_i32 s{d}, s{q}, 56"), I(f"s_add_u32 s{d}, s{d}, s4"), I(f"s_lshl_b32 s{d}, s{d}, 10"), I(f"s_add_u32 s{d}, s{d}, {WS_H:#x}")]
    P += [I(f"s_lshl_b32 s{sT}, s3, 12"), I(f"s_add_u32 s{sT}, s{sT}, {WS_CTX:#x}")]
    for d, q in ((sCL, sXL), (sCH, sXH)):
        P += [I(f"s_lshl_b32 s{d}, s{q}, 17"), I(f"s_add_u32 s{d}, s{d}, s{sT}"),
              I(f"s_mul_i32 s{q}, s{q}, {XS}"), I(f"s_add_u32 s{q}, s{q}, {WS_XN:#x}")]
    P += [I(f"s_lshl_b32 s{sQo}, s{sWave}, 18"), I(f"s_lshl_b32 s{sT}, s3, 8"), I(f"s_add_u32 s{sQo}, s{sQo}, s{sT}"),
          I(f"s_lshl_b32 s{sB1o}, s4, 6"), I(f"s_mul_i32 s{s1o}, s{sWave}, {32*3584}"), I(f"s_add_u32 s{s1o}, s{s1o}, s{sB1o}"),
          I(f"s_mul_i32 s{sT}, s3, {32*TS}"),
          I(f"s_add_u32 s{sKS}, s{sWS}, s{sT}"), I(f"s_addc_u32 s{sKS+1}, s{sWS+1}, 0"),
          I(f"s_add_u32 s{sVS}, s{sKS}, {WS_V:#x}"), I(f"s_addc_u32 s{sVS+1}, s{sKS+1}, 0"),
          I(f"s_sub_u32 s{sT}, 16, s{sI}"), I(f"s_mul_i32 s{sKS+2}, s{sT}, {2*TS}"), I(f"s_mov_b32 s{sVS+2}, s{sKS+2}"),
          I(f"s_mov_b32 s{sKS+3}, 0x20000"), I(f"s_mov_b32 s{sVS+3}, 0x20000"),
          I(f"s_mov_b32 s{sKt}, 0"), I(f"s_mov_b32 s{sVt}, 0"), I(f"s_mov_b32 s{sKm}, s{sW4096}"), I(f"s_mov_b32 s{sVm}, s{sW4096}"),
          I(f"s_lshr_b32 s{sXrow}, s2, 1"), I(f"s_mul_i32 s{sXrow}, s{sXrow}, {XS}"), I(f"s_and_b32 s{sT}, s2, 1"), I(f"s_lshl_b32 s{sT}, s{sT}, 7"),
          I(f"s_add_u32 s{sXrow}, s{sXrow}, s{sT}"), I(f"s_add_u32 s{sXrow}, s{sXrow}, s{sW4096}"), I(f"s_add_u32 s{sXrow}, s{sXrow}, {WS_XN:#x}")]
    P += [I(f"v_and_b32 v{TMP}, 31, v{ln}"), I(f"v_lshrrev_b32 v{TMP+1}, 5, v{ln}"),
          I(f"v_lshlrev_b32 v152, 7, v{TMP}"), I(f"v_lshl_add_u32 v152, v{TMP+1}, 4, v152"),
          I(f"v_lshl_add_u32 v152, s{sWave}, 5, v152"), I(f"v_add_u32 v152, 90112, v152"),
          I(f"v_lshl_add_u32 v157, s{sWave}, 11, v{vL16}"), I(f"v_add_u32 v157, 90112, v157"),
          I(f"v_lshlrev_b32 v158, 10, v{TMP+1}"), I(f"v_bfe_u32 v{TMP}, v{ln}, 3, 2"), I(f"v_lshl_add_u32 v158, v{TMP}, 8, v158"),
          I(f"v_and_b32 v{TMP}, 7, v{ln}"), I(f"v_lshl_add_u32 v158, v{TMP}, 4, v158")]
    P += lane_wtr(vWtrS[0], PLAN[0][1]*16384, TMP, ln)
    P += [I(f"v_add_u32 v{vWtrS[1]+c}, {(PLAN[4][1] - PLAN[0][1])*16384}, v{vWtrS[0]+c}") for c in range(4)]
    P += lane_wdma(vW1d, 3584, TMP, ln)
    P += [I(f"v_and_b32 v{TMP}, 15, v{ln}"), I(f"v_bfe_u32 v{TMP+1}, v{ln}, 2, 1"), I(f"v_bfe_u32 v{TMP+2}, v{ln}, 3, 1"),
          I(f"v_xor_b32 v{TMP+1}, v{TMP+1}, v{TMP+2}"), I(f"v_mul_u32_u24 v{TMP+1}, 12, v{TMP+1}"),
          I(f"v_mul_lo_u32 v{TMP+1}, v{TMP+1}, s{sType}"), I(f"v_xor_b32 v{TMP}, v{TMP}, v{TMP+1}"),
          I(f"v_lshrrev_b32 v{TMP+1}, 1, v{TMP}"), I(f"v_lshrrev_b32 v{TMP+2}, 4, v{ln}"), I(f"v_xor_b32 v{TMP+1}, v{TMP+1}, v{TMP+2}"),
          I(f"v_lshlrev_b32 v{TMP}, 7, v{TMP}"), I(f"v_add_u32 v{TMP}, s{sM0c}, v{TMP}"),
          I(f"v_lshl_add_u32 v{vCr}, v{TMP+1}, 4, v{TMP}"), I(f"v_xor_b32 v{TMP+1}, 4, v{TMP+1}"),
          I(f"v_lshl_add_u32 v{vCr+1}, v{TMP+1}, 4, v{TMP}"),
          I(f"v_add_u32 v{vXo2}, {XS}, v{vL16}"), I(f"v_mov_b32 v{vGC1}, {f32(GC1)}"), *LATE,
          I(f"s_cmp_eq_u32 s{sType}, 0"), I("s_cbranch_scc0 F_V")]
    return P

def ln_stream():
    XR = 144; U = 128; S = 153; T2 = 154; MB_ = 155; RS = 156
    P = []
    for k in range(8): P += [I(f"v_lshlrev_b32 v{U+2*k}, 16, v{XR+k}"), I(f"v_and_b32 v{U+2*k+1}, 0xffff0000, v{XR+k}")]
    P += [I(f"v_add_f32 v{S}, v{U}, v{U+1}")] + [I(f"v_add_f32 v{S}, v{S}, v{U+k}") for k in range(2, 16)]
    P += sum32(S, T2) + [I(f"v_mul_f32 v{S}, {f32(1/512)}, v{S}")] + bf16_round(MB_, S)
    P += [I(f"v_sub_f32 v{T2}, v{U}, v{S}"), I(f"v_mul_f32 v{RS}, v{T2}, v{T2}")]
    for k in range(1, 16): P += [I(f"v_sub_f32 v{T2}, v{U+k}, v{S}"), I(f"v_fmac_f32 v{RS}, v{T2}, v{T2}")]
    P += sum32(RS, T2) + [I(f"v_mul_f32 v{RS}, {f32(1/512)}, v{RS}")] + bf16_round(RS, RS)
    P += [I(f"v_add_f32 v{RS}, {f32(1e-5)}, v{RS}")] + bf16_round(RS, RS) + [I(f"v_sqrt_f32 v{RS}, v{RS}")] + bf16_round(RS, RS)
    P += [I(f"v_rcp_f32 v{RS}, v{RS}")]
    for k in range(8):
        a, b = U+2*k, U+2*k+1
        P += [I(f"v_sub_f32 v{a}, v{a}, v{MB_}"), I(f"v_sub_f32 v{b}, v{b}, v{MB_}"), I(f"v_cvt_pk_bf16_f32 v{T2}, v{a}, v{b}"),
              I(f"v_lshlrev_b32 v{a}, 16, v{T2}"), I(f"v_and_b32 v{b}, 0xffff0000, v{T2}"),
              I(f"v_mul_f32 v{a}, v{a}, v{RS}"), I(f"v_mul_f32 v{b}, v{b}, v{RS}"), I(f"v_cvt_pk_bf16_f32 v{XR+k}, v{a}, v{b}")]
    return P
def xn_out():
    XR = 144
    return ([I(f"ds_write_b128 v152, {vr(XR)}"), I(f"ds_write_b128 v152, {vr(XR+4)} offset:4096")],
            [I(f"ds_read_b128 {vr(160)}, v157"), I(f"ds_read_b128 {vr(164)}, v157 offset:1024")],
            [I(f"buffer_store_dwordx4 {vr(160)}, v158, {sr(sWS)}, s{sXrow} offen {ST}", tag=('vm', 'xnst')),
             I(f"buffer_store_dwordx4 {vr(164)}, v158, {sr(sWS)}, s{sXrow} offen offset:2048 {ST}", tag=('vm', 'xnst'))])

def pack_swap(T, X, Y):
    return [I(f"v_cvt_pk_bf16_f32 v{T}, v{X}, v{X+1}"), I(f"v_cvt_pk_bf16_f32 v{T+2}, v{Y}, v{Y+1}"),
            I(f"v_cvt_pk_bf16_f32 v{T+1}, v{X+2}, v{X+3}"), I(f"v_cvt_pk_bf16_f32 v{T+3}, v{Y+2}, v{Y+3}")], \
           [I(f"v_permlane16_swap_b32 v{T}, v{T+2}"), I(f"v_permlane16_swap_b32 v{T+1}, v{T+3}")]

def kv_epilogue(cp, isV):
    acc = ACCB[cp]; out = []
    for k, f in enumerate([7, 5, 0, 1, 2, 3, 4, 6]):
        V = []
        if isV:
            kb, dbl = divmod(f, 2)
            X = acc + ((2*dbl)*4 + kb)*4; Y = X + 16
            soff = (cp//2)*32*TS + kb*4096; ioff = (2*(cp % 2) + dbl)*1024
        else:
            kb32, c = divmod(f, 4)
            X = acc + (c*4 + 2*kb32)*4; Y = X + 4
            soff = (cp//2)*32*TS + kb32*8192 + (cp % 2)*4096; ioff = c*1024
        T = PK + (k % 2)*4
        if not isV: V += [I(f"v_mul_f32 v{r}, s{sScale}, v{r}") for r in list(range(X, X+4)) + list(range(Y, Y+4))]
        else: V += [I("", tag=('pad',)) for r in range(8)]
        a, b = pack_swap(T, X, Y)
        V += a + [I(f"s_add_u32 s{sSt}, s{sOb}, {soff}")] + b
        V += [I(f"buffer_store_dwordx4 {vr(T)}, v{vL16}, {sr(sWS)}, s{sSt} offen offset:{ioff} {'' if flag('kvplain') else ST}", tag=('vm', 'kvst'))]
        if flag('nokvst'): V.pop()
        out.append(V)
    return out

def gelu_stream():
    P = []
    for b in range(4):
        for fs in range(2):
            T = GP[(b*2 + fs) % 2]
            for half in range(2):
                X = ACCB[4] + ((2*fs + half)*4 + b)*4
                regs = list(range(X, X+4)); tt = list(range(GT, GT + 4))
                P += [I(f"v_mul_f32 v{t}, v{r}, v{r}") for t, r in zip(tt, regs)]
                P += [I(f"v_fma_f32 v{t}, v{t}, v{vGC1}, s{sGC0}") for t in tt]
                P += [I(f"v_mul_f32 v{t}, v{t}, v{r}") for t, r in zip(tt, regs)]
                P += [I(f"v_exp_f32 v{t}, v{t}") for t in tt]
                P += [I(f"v_add_f32 v{t}, 1.0, v{t}") for t in tt]
                P += [I(f"v_rcp_f32 v{t}, v{t}") for t in tt]
                P += [I(f"v_mul_f32 v{t}, v{t}, v{r}") for t, r in zip(tt, regs)]
                P += [I(f"v_cvt_pk_bf16_f32 v{T+2*half+j}, v{tt[2*j]}, v{tt[2*j+1]}") for j in range(2)]
            P += [I(f"s_add_u32 s{sSt}, s{sHL if b < 2 else sHH}, {(b % 2)*56*1024}"),
                  I(f"buffer_store_dwordx4 {vr(T)}, v{vL16}, {sr(sWS)}, s{sSt} offen offset:{fs*1024} {ST}")]
    return P
def bias_stream():
    A = ACCB[4]; R = A + 56
    ld = [I(f"buffer_load_dwordx2 v[{R+2*c}:{R+2*c+1}], v{vBo}, {sr(sB1)}, s{sB1o} offen offset:{32*c}") for c in range(4)]
    un = []
    for c in range(4):
        for kb in ([0, 1, 2, 3] if c < 3 else [0]):
            d = A + (c*4 + kb)*4
            for k in range(2): un += [I(f"v_lshlrev_b32 v{d+2*k}, 16, v{R+2*c+k}"), I(f"v_and_b32 v{d+2*k+1}, 0xffff0000, v{R+2*c+k}")]
    un += [I(f"v_mov_b32 v{A+48+4*kb+j}, v{A+48+j}") for kb in (1, 2, 3) for j in range(4)]
    return ld, un

def qconv(cp, qb, c):
    X = ACCB[cp] + (c*4 + 2*qb)*4; T = GP[c % 2]
    a, b = pack_swap(T, X, X + 4)
    return a + b + [I(f"v_accvgpr_write_b32 a{QF(qb, 4*(cp-5) + c)+j}, v{T+j}") for j in range(4)]

def engine(isV):
    NF = 448
    grp = [(cp, ks, c) for cp, ks in ORDER for c in range(4)]
    def c_reads(ch):
        return [I(f"ds_read_b128 {ar(XF(kb, 2*ch + ks2))}, v{vCr+ks2} offset:{(ch % 3)*8192 + kb*2048}") for ks2 in range(2) for kb in range(4)]
    def w_reads(n):
        cp, ks, c = grp[n]; r = WF + (n % NWF)*4; va = vWtrS[cp % 2] + c; off = (ks % 4)*4096
        return [I(f"ds_read_b64_tr_b16 {vr(r,2)}, v{va} offset:{off}"), I(f"ds_read_b64_tr_b16 {vr(r+2,2)}, v{va} offset:{off+1024}")]
    head = stamp(1) + [needvm('c0')] + c_reads(0) + [needvm('w0'), I("s_barrier")] + stamp(2)
    for n in range(PF): head += w_reads(n)
    mf = []; post = {}; valu = []; dmaq = []
    def addpost(g, items): post.setdefault(g, []).extend(items)
    def add(mg, items):
        for it in items: valu.append((mg, it))
    G = lambda n: 4*n
    for n, (cp, ks, c) in enumerate(grp):
        wf = vr(WF + (n % NWF)*4)
        for kb in range(4):
            d = vr(ACCB[cp] + (c*4 + kb)*4); cf = ar(XF(kb, ks))
            cin = d if (ks or cp == 4) else "0"
            mf.append(I(f"{M16} {d}, {cf}, {wf}, {cin}" if (isV and cp < 4) else f"{M16} {d}, {wf}, {cf}, {cin}"))
        if n + 1 < NF: addpost(G(n) + 3, [needlg(regs_in(vr(WF + ((n + 1) % NWF)*4)))])
    cur = {0: PLAN[0][1], 1: PLAN[4][1]}
    for u in sorted(FU, key=lambda u: FU[u]):
        st = (u // 4) % 2; delta = (PLAN[u][1] - cur[st])*16384; cur[st] = PLAN[u][1]
        if delta:
            g = G(FU[u] - PF)
            addpost(g - 3, [I(f"v_add_u32 v{vWtrS[st]+k}, {delta & 0xffffffff:#x}, v{vWtrS[st]+k}") for k in range(2)])
            addpost(g - 2, [I(f"v_add_u32 v{vWtrS[st]+k}, {delta & 0xffffffff:#x}, v{vWtrS[st]+k}") for k in range(2, 4)])
    bs0, bs1 = val('bs0', 124), val('bs1', 348)
    for k, p in enumerate(BARS):
        if p < 0: continue
        names = [f'w{u}' for u in NEED if NEED[u] == p] + (['xnst'] if p == bs0 else []) + (['kvst'] if p == bs1 else [])
        addpost(G(p) - 1, ([I("s_waitcnt lgkmcnt(0)")] if p == 72 else []) + ([needvm(*names)] if names else []) + [I("s_barrier")] + (stamp(20 + k) if flag('fine') else []))
        for u in sorted(PLAN, key=lambda u: FU[u]):
            if PLAN[u][0] == p: dmaq.append((G(p) + 1, w_dma(u)))
    addpost(G(bs0) + 1, flag_put(vFt, vZero, sF0me, 1))
    addpost(G(bs1) + 1, flag_put(vFt, vZero, sF1me, 1))
    for n in range(NF - PF): addpost(G(n), w_reads(n + PF))
    R = [None, 2, 10, 18, 26, 38, 50, 62]
    D = {3: 3, 4: 9, 5: val('d5', 18), 6: val('d6', 28), 7: val('d7', 41)}
    for ch in range(1, 8):
        addpost(G(R[ch]) + 1, [needvm(f'c{ch}')])
        rd = c_reads(ch)
        for k in range(4): addpost(G(R[ch]) + 2 + 4*k, rd[2*k:2*k+2])
    for ch, g in D.items():
        old = ch - 3
        assert old == 0 or g >= R[old] + 5
        regs = [r for x in c_reads(old) for r in x.wr]
        addpost(G(g) + 1, [needlg(regs)])
        for q in c_dma(ch): dmaq.append((G(g) + 1, q, 1 if ch < 5 else val('cstep', 3)))
    for ks in range(16):
        L = []
        if ks % 4 == 0: L += [I(f"s_add_u32 s{sXLc}, s{sXL}, {(ks//4)*4096}"), I(f"s_add_u32 s{sXHc}, s{sXH}, {(ks//4)*4096}")]
        L += [I(f"buffer_load_dwordx4 {ar(XF(b, ks))}, v{vXo2 if b % 2 else vL16}, {sr(sWS)}, s{sXHc if b >= 2 else sXLc} offen offset:{(ks % 4)*1024} {'' if flag('xnnosc') else LD}") for b in range(4)]
        if not flag('noxn'): dmaq.append((G(POS[(3, ks)] + 4) + 1, L))
    if not flag('nopfw'):
        dmaq.append((G(val('pfw', 14)), [pf_load(vJ, 170, sWkv, f"s{sWpf}")]))
        dmaq.append((G(val('pfw2', 52)), [I(f"s_add_u32 s{sWpf}, s{sWpf}, 32768"), pf_load(vJ, 170, sWkv, f"s{sWpf}")]))
    dmaq.append((G(56), [poll_issue(vPoll, vZero, sDBG, "0")]))
    addpost(G(110) + 2, epoch_check(vPoll, vZero, sT2))
    gs0 = val('gs0', 150)
    dmaq.append((G(gs0), [poll_issue(vPoll, vP0, sWS, "0")]))
    addpost(G(167) + 2, stamp(50) + poll_check(vPoll, vP0, sWS, "0", 1, sT2, sT3) + stamp(51))
    xw, xr, xs = xn_out()
    add(2, ln_stream()); add(G(60), xw)
    addpost(G(72) + 2, xr)
    dmaq.append((G(val('gxs', 90)), xs))
    dmaq.append((G(120), [pf_load(vJ, vBo, sB1, f"s{sB1o}")]))
    bl, bu = bias_stream()
    sp = val('esp', 7)
    for cp, g, w in ((0, 98, sp), (1, 162, val('esp1', 5)), (2, 226, sp), (3, 286, 0)):
        for k, fr in enumerate(kv_epilogue(cp, isV)):
            add(G(g + k*w), fr)
            if cp == 1 and k == 1: add(0, bl)
        if cp == 1:
            add(G(206), bu)
            if flag('fine'):
                for k, g in enumerate((val('f0', 157), val('f1', 160), val('f2', 163), val('f3', 165))): addpost(G(g) + 3, stamp(44 + k))
    if not flag('nogelu'): add(G(322), gelu_stream())
    for qb in range(2):
        for c in range(4): add(G(384) + 16*(8*qb + c) + 18, qconv(5, qb, c))
    gs1 = val('gs1', 398)
    dmaq.append((G(gs1), [poll_issue(vPoll, vF1, sWS, "s0")]))
    addpost(G(gs1 + 14) + 1, stamp(48) + poll_check(vPoll, vF1, sWS, "s0", 1, sT2, sT3) + stamp(49) + [I(f"v_add_u32 v{vKVd}, s{sW4096}, v{vL16}")])
    for k, wh in enumerate("KVKKV"): dmaq.append((G(gs1 + 15 + 6*k), kv_dma(wh, f'kv{k}')))
    def warm(g, V, M):
        if V: addpost(G(g) + 1, V[:2])
        if V[2:]: addpost(G(g) + 2, V[2:])
        dmaq.append((G(g + 1), M))
    if flag('pfqs'):
        g0 = val('pfq', 76); dq = val('pfqd', 18)
        for k in range(4):
            warm(g0 + dq*k, [I(f"v_lshlrev_b32 v252, 2, v{vL16}")] if k == 0 else [],
                 [I(f"s_lshl_b32 s{sT}, s2, 14"), I(f"s_add_u32 s{sT}, s{sT}, {4096*k}"), I(f"s_cmp_eq_u32 s{sWave}, {k}"),
                  I(f"s_cselect_b32 s{sT}, s{sT}, 0x1000000"), pf_load(vJ, 252, sWQ, f"s{sT}")])
    elif flag('pfqc'):
        warm(val('pfq', 130), [I(f"v_lshlrev_b32 v252, 2, v{vL16}")],
             [I(f"s_lshl_b32 s{sT}, s2, 14"), I(f"s_add_u32 s{sT}, s{sT}, s{sW4096}"), pf_load(vJ, 252, sWQ, f"s{sT}")])
    elif not flag('nopfq'):
        warm(val('pfq', 130), [I(f"v_bfe_u32 v252, v{vL16}, 4, 4"), I(f"v_lshlrev_b32 v253, 10, v{vBo}"), I(f"v_lshl_add_u32 v252, v252, 6, v253")],
             [I(f"s_lshl_b32 s{sT}, s97, 15"), I(f"s_lshl_b32 s{sT2}, s{sXcd}, 10"), I(f"s_add_u32 s{sT}, s{sT}, s{sT2}"), pf_load(vJ, 252, sWQ, f"s{sT}")])
    if not flag('nopf1'):
        warm(val('pf1', 16), [I(f"v_lshlrev_b32 v253, 1, v{vL16}")],
             [I(f"s_mul_i32 s{sT}, s2, 7168"), I(f"s_mul_i32 s{sT2}, s{sWave}, 1792"), I(f"s_add_u32 s{sT}, s{sT}, s{sT2}"), pf_load(vJ, 253, sW1, f"s{sT}")])
    if flag('pfo_old'):
        warm(330, [I(f"v_lshlrev_b32 v252, 2, v{vL16}"), I(f"v_lshlrev_b32 v253, 1, v{vL16}")],
             [I(f"s_lshl_b32 s{sT}, s{sXcd}, 19"), I(f"s_lshl_b32 s{sT2}, s97, 12"), I(f"s_add_u32 s{sT}, s{sT}, s{sT2}"), pf_load(vJ, 252, sWO, f"s{sT}")])
        dmaq.append((G(334), [I(f"s_mul_i32 s{sT}, s{sXcd}, {224*1024}"), I(f"s_mul_i32 s{sT2}, s97, 1792"), I(f"s_add_u32 s{sT}, s{sT}, s{sT2}"), pf_load(vJ, 253, sW2, f"s{sT}")]))
    if not flag('nopf2'):
        V, M = code_pf("F_AAe", "F_Bend", 252, vJ, vL16, 1); warm(352, V, M)
    if flag('pf4'):
        V, M = code_pf("F_J", "F_AAe", 252, vJ, vL16, 1); warm(val('gpf4', 270), V, M)
        addpost(G(150) + 1, [I(f"F_mid{int(isV)}:")])
        V, M = code_pf(f"F_mid{int(isV)}", "F_J" if isV else "F_V", 252, vJ, vL16, 1); warm(val('gpf5', 112), V, M)
    place_dma(dmaq, addpost, step=val('estep', 4), ok=lambda g: g % 4 in (1, 2))
    for k, p in enumerate((32, 96, 160, 224, 288, 320)): addpost(G(p) - 1, stamp(3 + k))
    def budget(g, p):
        n = sum(1 for x in p if x.txt or (x.tag and x.tag[0] != 'needvm'))
        if any(x.kind == 'dsr' for x in p): return 1 if n == 1 else 0
        nd = sum(1 for x in p if x.kind in ('dma', 'vld', 'vst'))
        return max(0, 2 - max(0, n - 1) - nd)
    body, left = weave(mf, post, valu, budget)
    if OPT.verbose: print(f"[engine] leftover valu {left}", file=sys.stderr)
    mi = 0; start = {cp: G(POS[(cp, 0)]) for cp in range(7)}; end = {cp: G(POS[(cp, 15)] + 4) for cp in range(7)}
    for x in body:
        if x.kind == 'mfma': mi += 1; continue
        if x.kind == 'dsw': assert G(60) <= mi < G(72) - 1, mi
        for r in (x.rd | x.wr):
            if r[0] == 'v' and r != 'vcc' and int(r[1:]) < 192:
                q = int(r[1:])
                for cp in range(7):
                    if ACCB[cp] <= q < ACCB[cp] + 64:
                        blk = (q - ACCB[cp]) // 4
                        assert not (start[cp] + blk < mi <= end[cp] - 16 + blk), ("accumulator busy", cp, mi, x.txt)
    idx = [k for k, x in enumerate(body) if x.kind == 'mfma'][G(336)]
    return head + body[:idx], body[idx:]
```

```python
from f_common import *
import f_p1 as P1
from f_p1 import QF, kv_dma, sKt, sKm, sVt, sVm, sCL, sCH, vL16, vKVd, qconv

THRESH = 2.0**30
sCnt, sKey, sKr, sVr, sThr, sOffA, sOffB = range(74, 81)
sRet2 = 100
sRet = 82; MK = [84, 86, 88, 98]
sWoO, sW2o, sHLo, sHHo, sPo, sCc, sCc2 = 76, 3, 4, 5, 80, 81, 90
sFb = 97
sSib = [84, 85, 86]
sWoS = [87, 88, 89]
NEG = [128, 144]; T0 = 160
vK, vV, vL16V = 192, 193, 194
Lr = [[196, 197], [198, 199]]; vMx = [200, 201]; vF = [202, 203]; vThr, vNinf, vTm = 204, 205, 206
vPo, vF2, vF3, vZ, vFl = 207, 208, 209, 210, 211
vWtrA, vWtrB, vWd3, vC2, vH2 = 212, 216, 220, 221, 195
PKT = 226
OA = lambda qb, db: (qb*4 + db)*16
RING = 192
NPRE = 8

def blk_q(typ, blk): return (blk % 2) if typ == 'A' else 1
def qk_mfmas(typ, S):
    L = []
    if typ == 'A':
        for kb in range(2):
            for ks in range(8):
                for qb in range(2):
                    d = vr(S + (2*kb + qb)*16, 16)
                    L.append((d, kb*8 + ks, ar(QF(qb, ks)), d if ks else vr(NEG[qb], 16)))
    else:
        for kb in range(4):
            for ks in range(8):
                d = vr(S + kb*16, 16)
                L.append((d, kb*8 + ks, ar(QF(1, ks)), d if ks else vr(NEG[1], 16)))
    return L
def pv_mfmas(typ, S):
    L = []
    if typ == 'A':
        for ks4 in range(4):
            for db in range(4):
                for qb in range(2):
                    d = ar(OA(qb, db), 16)
                    L.append((d, ks4*4 + db, vr(S + (2*(ks4//2) + qb)*16 + 8*(ks4 % 2)), d))
    else:
        for ks8 in range(8):
            for db in range(4):
                d = ar(OA(1, db), 16)
                L.append((d, ks8*4 + db, vr(S + (ks8//2)*16 + 8*(ks8 % 2)), d))
    return L
def expblk(S, qb, first):
    lp = Lr[qb][1]
    E = []; C = []
    for j in range(8):
        a, b = S + 2*j, S + 2*j + 1
        E.append([I(f"v_exp_f32 v{a}, v{a}"), I(f"v_exp_f32 v{b}, v{b}")])
        cv = I(f"v_cvt_pk_bf16_f32 v{S + 8*(j//4) + j % 4}, v{a}, v{b}")
        if first and j == 0: C.append([I(f"v_add_f32 v{lp}, v{a}, v{b}"), cv])
        elif flag('tree'): C.append([I(f"v_add_f32 v{vMx[1]}, v{a}, v{b}"), cv, I(f"v_add_f32 v{lp}, v{lp}, v{vMx[1]}")])
        elif (S + 8*(j//4) + j % 4) in (a, b): C.append([I(f"v_add_f32 v{lp}, v{lp}, v{a}"), I(f"v_add_f32 v{lp}, v{lp}, v{b}"), cv])
        else: C.append([I(f"v_add_f32 v{lp}, v{lp}, v{a}"), cv, I(f"v_add_f32 v{lp}, v{lp}, v{b}")])
    L = []
    if flag('nodelay'):
        for j in range(8): L += E[j] + C[j]
    else:
        L += E[0]
        for j in range(8):
            if j + 1 < 8: L += E[j+1][:1] + C[j][:1] + E[j+1][1:] + C[j][1:]
            else: L += C[j]
    return L
def blk_first(typ, blk): return blk < 2 if typ == 'A' else blk == 0
def maxblk(S, mx, first):
    L = []; r = list(range(S, S + 16))
    if first: L.append(I(f"v_max3_f32 v{mx}, v{r[0]}, v{r[1]}, v{r[2]}")); r = r[3:]
    while len(r) >= 2: L.append(I(f"v_max3_f32 v{mx}, v{mx}, v{r[0]}, v{r[1]}")); r = r[2:]
    if r: L.append(I(f"v_max_f32 v{mx}, v{mx}, v{r[0]}"))
    return L
def maskblk(S, kbg, soff=None):
    L = []
    if soff is not None:
        L.append(I(f"v_add_u32 v{vTm}, s{soff}, v{vThr}"))
        if kbg: L.append(I(f"v_subrev_u32 v{vTm}, {32*kbg}, v{vTm}"))
        t = vTm
    elif kbg: L.append(I(f"v_subrev_u32 v{vTm}, {32*kbg}, v{vThr}")); t = vTm
    else: t = vThr
    for r0 in range(0, 16, 4):
        L += [I(f"v_cmp_le_i32 s[{MK[k]}:{MK[k]+1}], {8*((r0+k)//4) + (r0+k) % 4}, v{t}") for k in range(4)]
        L += [I(f"v_cndmask_b32 v{S+r0+k}, v{vNinf}, v{S+r0+k}, s[{MK[k]}:{MK[k]+1}]") for k in range(4)]
    return L
def xmax(v, t): return [I(f"v_mov_b32 v{t}, v{v}"), I(f"v_permlane32_swap_b32 v{v}, v{t}"), I(f"v_max_f32 v{v}, v{v}, v{t}")]
def kread(f, slot): return I(f"ds_read_b128 {ar(RING + (slot % 16)*4)}, v{vK} offset:{f*1024}")
def vread(f, slot): return I(f"ds_read_b128 {ar(RING + (slot % 16)*4)}, v{vV} offset:{f*1024}")
def kv_dma2(which):
    srd_, t, m = (sKS, sKt, sKm) if which == 'K' else (sVS, sVt, sVm)
    base = 0 if which == 'K' else 0x10000
    d = lambda so: [I(f"buffer_load_dwordx4 v{vKVd}, {sr(srd_)}, s{so} offen offset:{1024*b} {LD} lds") for b in range(4)]
    return [[I(f"s_add_u32 m0, s{m}, {base:#x}")] + d(t),
            [I(f"s_add_u32 m0, s{m}, {base + 0x4000:#x}"), I(f"s_add_u32 s{sT2}, s{t}, {TS}"),
             I(f"s_add_u32 s{t}, s{t}, {2*TS}"), I(f"s_xor_b32 s{m}, s{m}, 0x8000")] + d(sT2)]

uid = [0]
def step(cur, nxt, p, kadv, mask=None, xwait=16, name="", extra_dma=None, extra_valu=None, extra_post=None):
    uid[0] += 1; u = uid[0]
    Sc, Sn = 64*p, 64*(1 - p)
    mf = []; use = []
    qk = qk_mfmas(nxt, Sn) if nxt else []
    nK = (16 if nxt == 'A' else 32) if nxt else 0
    for d, f, q, cin in qk:
        mf.append(I(f"{M32} {d}, {ar(RING + (f % 16)*4)}, {q}, {cin}")); use.append(f)
    for d, f, pf, cin in pv_mfmas(cur, Sc):
        mf.append(I(f"{M32} {d}, {ar(RING + ((nK + f) % 16)*4)}, {pf}, {cin}")); use.append(nK + f)
    nV = 16 if cur == 'A' else 32
    NG = len(mf); fu = {}
    for g, f in enumerate(use): fu.setdefault(f, g)
    post = {}; dmaq = []
    def addpost(g, items): post.setdefault(g, []).extend(items)
    D = val('D', 8); BO = val('bo', 3)
    hasY = nxt is not None and (cur == 'B' or nxt == 'B')
    pre = []
    ring = lambda f: regs_in(ar(RING + (f % 16)*4))
    for f in range(0, nK + nV, 2):
        if fu[f] > 0: addpost(fu[f] - 1, [needlg(ring(f) + ring(f + 1))])
    last = -2
    for f in range(NPRE if nxt else 0, nK, 2):
        last = max(fu[f] - D, last + 1, 0)
        addpost(last, [kread(f, f), kread(f + 1, f + 1)])
    vadv = [I(f"v_add_u32 v{vV}, s{sVr}, v{vL16V}"),
            I(f"s_add_u32 s{sVr}, s{sVr}, {0x4000 if cur == 'A' else 0x8000}"), I(f"s_and_b32 s{sVr}, s{sVr}, 0xffff")]
    vf0 = 0
    if nxt is None:
        pre += vadv[:1] + [vread(f, nK + f) for f in range(8)]; vf0 = 8
    else:
        addpost(last + 1, vadv)
        if hasY:
            gY = last + BO
            addpost(gY, [I("s_waitcnt vmcnt(16) lgkmcnt(0)" if cur == 'B' else "s_waitcnt lgkmcnt(0)"), I("s_barrier")])
            last = gY
        else: last = last + 1
    for f in range(vf0, nV, 2):
        last = max(fu[nK + f] - D, last + 1, 0)
        addpost(last, [vread(f, nK + f), vread(f + 1, nK + f + 1)])
    gX = NG
    if nxt is not None:
        gX = last + BO
        addpost(gX - 1, [I(f"v_add_u32 v{vK}, s{sKr}, v{vL16}")] +
                ([I(f"s_add_u32 s{sKr}, s{sKr}, {kadv*0x4000}"), I(f"s_and_b32 s{sKr}, s{sKr}, 0xffff")] if kadv else []))
        addpost(gX, [I(f"s_waitcnt vmcnt({xwait}) lgkmcnt(0)"), I("s_barrier")])
        gs = [gX + 1, gX + 2, gX + 4, gX + 6] if gX + 6 < NG else [gX + 1, gX + 2, gX + 3, gX + 4]
        assert gs[-1] < NG, (name, gX, NG)
        for j in range(NPRE // 2): addpost(gs[j], [kread(2*j, 2*j), kread(2*j + 1, 2*j + 1)])
    dstep = 2
    if cur == 'A' and nxt == 'A': dmaq = [(1, kv_dma('K')), (1, kv_dma('V'))]; dstep = 3 if extra_dma else 4
    elif cur == 'A' and nxt == 'B': dmaq = [(1, kv_dma('K'))] + [(gY + 2, x) for x in kv_dma2('K')]
    elif cur == 'B' and nxt == 'B':
        dmaq = [(0, x) for x in kv_dma2('V')]
        if not mask: dmaq += [(gY + 3, x) for x in kv_dma2('K')]
    if extra_dma: dmaq += extra_dma
    for g, it in (extra_post or {}).items(): addpost(g, it)
    if dmaq:
        endg = place_dma(dmaq, addpost, step=dstep)
        assert endg - dstep < gX, (name, endg, gX)
        if hasY and cur == 'B': assert max(g for g, l in post.items() if any(x.kind == 'dma' and sr(sVS) in x.txt for x in l)) < gY
    valu = []
    def add(mg, items):
        for it in items: valu.append((mg, it))
    H1 = len(qk)
    for blk in (2, 3): add(0, expblk(Sc + 16*blk, blk_q(cur, blk), False))
    done = {}
    for g, (d, f, q, cin) in enumerate(qk): done[d] = g
    mdict = {m[0]: m for m in (mask or [])}
    def domask(blk):
        if blk in mdict: add(done[vr(Sn + 16*blk, 16)] + 3, maskblk(Sn + 16*blk, mdict[blk][1], mdict[blk][2]))
    domask(0); domask(1)
    qbs = (0, 1) if cur == 'A' else (1,)
    if cur == 'A': add(0, [I(f"v_max_f32 v{vMx[0]}, v{Lr[0][1]}, v{Lr[1][1]}")])
    add(max(H1 - 1, 0), [I(f"v_cmp_lt_f32 vcc, s{sThr}, v{vMx[0] if cur == 'A' else Lr[1][1]}"),
            [I(f"s_cbranch_vccz F_c{u}"), I(f"s_call_b64 s[{sRet}:{sRet+1}], F_X{cur}{nxt or 'n'}{p}"), I(f"F_c{u}:")]])
    force = {H1: len(valu) - 1}
    add(0, [I(f"v_add_f32 v{Lr[q][0]}, v{Lr[q][0]}, v{Lr[q][1]}") for q in qbs])
    if nxt is not None:
        add(0, [I(f"s_add_u32 s{sKey}, s{sKey}, {64 if cur == 'A' else 128}")])
        add(0, expblk(Sn, blk_q(nxt, 0), True))
        domask(2); domask(3)
        add(done[vr(Sn + 16, 16)] + 3, expblk(Sn + 16, blk_q(nxt, 1), blk_first(nxt, 1)))
    add(0, extra_valu or [])
    def budget(g, pp):
        nd = sum(1 for x in pp if x.kind == 'dsr'); nm = sum(1 for x in pp if x.kind in ('dma', 'vld', 'vst'))
        return max(val('bud', 6) - max(0, len(pp) - 1) - (1 if nd else 0) - (val('dmac', 1) if nm else 0), 0)
    body, left = weave(mf, post, valu, budget, flush_dep=True, force=force)
    tail = []
    if OPT.verbose: print(f"[step {name}] leftover valu {left}", file=sys.stderr)
    return pre + body + tail

def finalize(qb, sbase, inter=None, tag='cst'):
    l0, l1 = Lr[qb]; inter = list(inter or [])
    l1 = vTm
    L = [I(f"v_mov_b32 v{l1}, v{l0}"), I(f"v_permlane32_swap_b32 v{l0}, v{l1}"),
         I(f"v_add_f32 v{l0}, v{l0}, v{l1}"), I(f"v_rcp_f32 v{l0}, v{l0}"), I(f"s_add_u32 s{sFb}, s{sbase}, 0x20000")]
    for db in range(4):
        t = T0 + (db % 2)*16; A = PKT + (db % 2)*8; B = A + 4
        for r0 in range(0, 16, 4):
            L += [I(f"v_accvgpr_read_b32 v{t+r}, a{OA(qb, db)+r}") for r in range(r0, r0 + 4)]
            if inter: L += inter.pop(0)
        for r0 in range(0, 16, 4):
            L += [I(f"v_mul_f32 v{t+r}, v{t+r}, v{l0}") for r in range(r0, r0 + 4)]
            if inter: L += inter.pop(0)
        for pc, T in ((0, A), (1, B)):
            L += [I(f"v_cvt_pk_bf16_f32 v{T}, v{t+4*pc}, v{t+4*pc+1}"), I(f"v_cvt_pk_bf16_f32 v{T+1}, v{t+4*pc+2}, v{t+4*pc+3}"),
                  I(f"v_cvt_pk_bf16_f32 v{T+2}, v{t+8+4*pc}, v{t+8+4*pc+1}"), I(f"v_cvt_pk_bf16_f32 v{T+3}, v{t+8+4*pc+2}, v{t+8+4*pc+3}")]
        L += [I(f"v_permlane32_swap_b32 v{A+j}, v{B+j}") for j in range(4)]
        L += [I(f"v_permlane16_swap_b32 v{A+j}, v{B+j}") for j in range(4)]
        L += [I(f"buffer_store_dwordx4 {vr(A)}, v{vL16}, {sr(sWS)}, s{sbase} offen offset:{db*1024} {ST}", tag=('vm', tag)),
              I(f"buffer_store_dwordx4 {vr(B)}, v{vL16}, {sr(sWS)}, s{sFb} offen offset:{db*1024} {ST}", tag=('vm', tag))]
        L += [I(f"v_accvgpr_write_b32 a{16*db + 8*qb + j}, v{A+j}") for j in range(8)]
    for g in inter: L += g
    return L

def rare_redo(typ, p):
    S = 64*p; T = T0
    L = [I(f"F_R{typ}{p}:"), I("s_nop 15"), I(f"s_mul_i32 s{sT3}, s{sKey}, {TS // 64}")]
    qk = qk_mfmas(typ, S)
    nf = 16 if typ == 'A' else 32
    for f0 in range(0, nf, 4):
        L += [I(f"s_add_u32 s{sOffA}, s{sT3}, {(f0 % 16)*1024 + (f0 // 16)*TS}")]
        L += [I(f"buffer_load_dwordx4 {vr(T + 4*k)}, v{vL16}, {sr(sKS)}, s{sOffA} offen offset:{1024*k} {LD}") for k in range(4)]
        L += [I("s_waitcnt vmcnt(0)")]
        L += [I(f"{M32} {d}, {vr(T + 4*(f - f0))}, {q}, {cin}") for d, f, q, cin in qk if f0 <= f < f0 + 4]
        L += [I("s_nop 7")]
    for qb in ((0, 1) if typ == 'A' else (1,)):
        blks = [b for b in range(4) if blk_q(typ, b) == qb]; m = vMx[qb]
        L += [I(f"s_lshl_b32 s{sOffA}, s{sI}, 7")] if qb == 0 else [I(f"s_sub_u32 s{sOffA}, 15, s{sI}"), I(f"s_lshl_b32 s{sOffA}, s{sOffA}, 7")]
        L += [I(f"s_sub_u32 s{sOffA}, s{sOffA}, s{sKey}")]
        for k, b in enumerate(blks): L += maskblk(S + 16*b, k, sOffA)
        for k, b in enumerate(blks): L += maxblk(S + 16*b, m, k == 0)
        L += xmax(m, vTm) + [I(f"v_max_f32 v{m}, 0, v{m}"), I(f"v_exp_f32 v{vF[qb]}, -v{m}")]
        for b in blks: L += [I(f"v_sub_f32 v{S+16*b+r}, v{S+16*b+r}, v{m}") for r in range(16)]
        L += [I(f"v_sub_f32 v{NEG[qb]+r}, v{NEG[qb]+r}, v{m}") for r in range(16)]
        L += [I(f"v_mul_f32 v{Lr[qb][0]}, v{Lr[qb][0]}, v{vF[qb]}")]
        for k, b in enumerate(blks): L += expblk(S + 16*b, qb, k == 0)
        for r0 in range(0, 64, 8):
            a = qb*64 + r0
            L += [I(f"v_accvgpr_read_b32 v{T0+k}, a{a+k}") for k in range(8)]
            L += [I(f"v_mul_f32 v{T0+k}, v{T0+k}, v{vF[qb]}") for k in range(8)]
            L += [I(f"v_accvgpr_write_b32 a{a+k}, v{T0+k}") for k in range(8)]
    L += [I("s_nop 1"), I(f"s_setpc_b64 s[{sRet2}:{sRet2+1}]")]
    return pad_hazards(L)[0]
def rare_stub(cur, nxt, p):
    L = [I(f"F_X{cur}{nxt or 'n'}{p}:"), I(f"s_call_b64 s[{sRet2}:{sRet2+1}], F_R{cur}{p}")]
    if nxt:
        S = 64*(1 - p)
        for b in range(4): L += [I(f"v_sub_f32 v{S+16*b+r}, v{S+16*b+r}, v{vMx[blk_q(nxt, b)]}") for r in range(16)]
    L += [I("s_nop 1"), I(f"s_setpc_b64 s[{sRet}:{sRet+1}]")]
    return pad_hazards(L)[0]

def first_tile():
    P = stamp(9) + [I("s_waitcnt lgkmcnt(0)"), needvm('kv0', 'kv1', 'kv2'), I("s_barrier"),
         I(f"v_mov_b32 v{vK}, v{vL16}")]
    P += [kread(f, f) for f in (0, 8, 1, 9, 2, 10, 3, 11)]
    mf = []; post = {}
    order = [(ks, kb) for ks in range(8) for kb in range(2)]
    for k, (ks, kb) in enumerate(order):
        f = kb*8 + ks
        for qb in range(2):
            d = vr((2*kb + qb)*16, 16)
            mf.append(I(f"{M32} {d}, {ar(RING + f*4)}, {ar(QF(qb, ks))}, {d if ks else 0}"))
        if k + 8 < 16:
            ks2, kb2 = order[k + 8]; post.setdefault(2*k, []).append(kread(kb2*8 + ks2, kb2*8 + ks2))
    P += [I(f"v_bfe_u32 v{vF3}, v{vL16}, 4, 4"), I(f"v_lshlrev_b32 v{vF3}, 7, v{vF3}")]
    dq = [(1, kv_dma('K')), (1, kv_dma('V')), (1, [poll_issue(vPo, vF3, sWS, "s0")])]
    place_dma(dq, lambda g, it: post.setdefault(g, []).extend(it), step=2)
    valu = []
    for c in range(4):
        for qb in range(2): valu += [(0, x) for x in qconv(6, qb, c)]
    valu += [(0, I(f"v_accvgpr_write_b32 a{r}, 0")) for r in range(128)]
    body, _ = weave(mf, post, valu, lambda g, p: 5 if len(p) < 2 else 3, flush_dep=True)
    P += body
    ln = T0
    P += [I(f"v_add_u32 v{vK}, 0x4000, v{vL16}"), I(f"s_mov_b32 s{sKr}, 0x8000"), I(f"s_mov_b32 s{sVr}, 0")]
    P += [kread(f, f) for f in range(NPRE)]
    P += [I(f"v_add_u32 v{vL16V}, 0x10000, v{vL16}"), I(f"v_lshrrev_b32 v{ln}, 4, v{vL16}"),
          I(f"s_mov_b32 s{sKey}, 0"), I(f"s_mov_b32 s{sThr}, {f32(THRESH)}"),
          I(f"s_lshl_b32 s{sOffB}, s{sI}, 8"), I(f"s_sub_u32 s{sOffB}, {128*14}, s{sOffB}"),
          I(f"v_and_b32 v{ln+1}, 31, v{ln}"), I(f"v_lshrrev_b32 v{ln+2}, 5, v{ln}"),
          I(f"v_lshl_add_u32 v{vThr}, s{sWave}, 5, v{ln+1}"), I(f"v_lshlrev_b32 v{ln+2}, 2, v{ln+2}"), I(f"v_sub_u32 v{vThr}, v{vThr}, v{ln+2}"),
          I(f"v_mov_b32 v{vNinf}, 0xff800000")]
    P += [I(f"v_mov_b32 v{r}, 0") for r in (196, 198)] + consts_early()
    if not flag('pfo_old'):
        P += [I(f"v_lshlrev_b32 v250, 2, v{vL16}"), I(f"v_lshlrev_b32 v251, 1, v{vL16}"),
              I(f"s_lshl_b32 s{sT}, s2, 14"), I(f"s_add_u32 s{sT}, s{sT}, s{sW4096}"), pf_load(252, 250, sWO, f"s{sT}"),
              I(f"s_mul_i32 s{sT}, s2, 7168"), I(f"s_mul_i32 s{sT2}, s{sWave}, 1792"), I(f"s_add_u32 s{sT}, s{sT}, s{sT2}"), pf_load(252, 251, sW2, f"s{sT}")]
    P += [I(f"s_cmp_lg_u32 s{sI}, 0"), I("s_cbranch_scc1 F_nomask"), I("s_nop 7")]
    for kb in range(2): P += maskblk(16*(2*kb), kb)
    P += [I("F_nomask:")]
    for qb in range(2):
        P += maxblk(16*qb, vMx[qb], True) + maxblk(16*(2 + qb), vMx[qb], False)
    P += [I(f"v_mov_b32 v{vTm}, v{vMx[0]}"), I(f"v_mov_b32 v{vF[0]}, v{vMx[1]}"), I("s_nop 0"),
          I(f"v_permlane32_swap_b32 v{vMx[0]}, v{vTm}"), I(f"v_permlane32_swap_b32 v{vMx[1]}, v{vF[0]}"),
          I(f"v_max_f32 v{vMx[0]}, v{vMx[0]}, v{vTm}"), I(f"v_max_f32 v{vMx[1]}, v{vMx[1]}, v{vF[0]}")]
    for qb in range(2):
        P += [I(f"v_sub_f32 v{NEG[qb] + r}, 0, v{vMx[qb]}") for r in range(16)]
        for blk in (qb, 2 + qb): P += [I(f"v_sub_f32 v{16*blk + r}, v{16*blk + r}, v{vMx[qb]}") for r in range(16)]
    for blk in (0, 1): P += expblk(16*blk, blk, True)
    P += poll_check(vPo, vF3, sWS, "s0", 1, sT2, 63)
    P += stamp(10) + [I(f"s_sub_u32 s{sCnt}, s{sI}, 1"), I("s_cbranch_scc1 F_AAme")]
    return P

def w3_addr(s):
    if s < 4: return 131072 + 8192*s
    if s < 11: return 8192*(s - 4)
    return 57344 + 8192*(s - 11)
def bslot(s, b):
    if s < 2: return 32*s + 16*(b // 2) + 8 + 4*(b % 2)
    if s < 4: return 128 + 16*(s - 2) + 4*b
    if s < 7: return 160 + 16*(s - 4) + 4*b
    if s < 11: return 16*(s - 7) + 4*b
    k = 2*(s - 11) + (b % 2)
    if b < 2: return 208 + 4*k if k < 12 else 128 + 4*(k - 12)
    return 64 + 4*k if k < 16 else 176 + 4*(k - 16)
def w3_dma(s):
    gs = []
    if s < 7: srd_, so, off = sW2, sW2o, s*32768
    elif s < 11: srd_, so, off = sWO, sWoO, (s - 7)*32768
    else: srd_, so, off = sWO, sWoS[(s - 11)//4], ((s - 11) % 4)*32768
    for h in range(2):
        gs.append([I(f"s_add_u32 m0, s{sW1024}, {w3_addr(s) + h*4096}"), I(f"s_add_u32 s{sT}, s{so}, {off + h*128}"),
                   I(f"buffer_load_dwordx4 v{vWd3}, {sr(srd_)}, s{sT} offen lds", tag=('vm', f'x{s}'))])
    return gs
def h_loads(s):
    L = []
    if s % 4 == 0: L += [I(f"s_add_u32 s{sCc}, s{sHLo}, {(s//4)*4096}"), I(f"s_add_u32 s{sCc2}, s{sHHo}, {(s//4)*4096}")]
    return L + [I(f"buffer_load_dwordx4 {ar(bslot(s, b))}, v{vH2 if b % 2 else vL16}, {sr(sWS)}, s{sCc2 if b >= 2 else sCc} offen offset:{(s % 4)*1024} {LD}") for b in range(4)]
def sib_loads(s, hi):
    t = (s - 11) % 4; L = []
    if t == 0: L += [I(f"s_add_u32 s{sCc}, s{sCH if hi else sCL}, s{sSib[(s-11)//4]}")]
    return L + [I(f"buffer_load_dwordx4 {ar(bslot(s, 2*hi + b))}, v{vC2 if b else vL16}, {sr(sWS)}, s{sCc} offen offset:{t*1024} {LD}") for b in range(2)]
def flag_store(level): return [I(f"v_add_u32 v{vFl}, 1, v{vFl}"), I(f"buffer_store_dword v{vFl}, v{vZ}, {sr(sWS)}, s{sFlagMe} offen {ST}")]

def consts_early():
    t = T0 + 8
    return [I(f"v_mov_b32 v{vZ}, 0"), I(f"v_mov_b32 v{vFl}, s{sE}"),
            I(f"s_and_b32 s{sT}, s{sFlagMe}, 0xfffffe00"),
            I(f"v_bfe_u32 v{t}, v{vL16}, 4, 2"), I(f"v_lshlrev_b32 v{t}, 7, v{t}"), I(f"v_add_u32 v{vF2}, s{sT}, v{t}"),
            I(f"s_lshl_b32 s{sT}, s{sWave}, 13"), I(f"s_lshl_b32 s{sT2}, s{sHl}, 8"), I(f"s_add_u32 s{sT3}, s{sT}, s{sT2}"),
            I(f"s_mul_i32 s{sW2o}, s{sXcd}, {224*1024}"), I(f"s_add_u32 s{sW2o}, s{sW2o}, s{sT3}")] + \
           lane_wdma(vWd3, 1024, T0 + 4, T0, natural=False, nblk=1)
def finl_block():
    L = [I(f"v_add_u32 v{vH2}, {56*1024}, v{vL16}"), I(f"s_mul_i32 s{sT}, s{sXcd}, 7")]
    for d, c in ((sHLo, sCL), (sHHo, sCH)):
        L += [I(f"s_sub_u32 s{d}, s{c}, {WS_CTX:#x}"), I(f"s_lshr_b32 s{d}, s{d}, 17"), I(f"s_mul_i32 s{d}, s{d}, 56"),
              I(f"s_add_u32 s{d}, s{d}, s{sT}"), I(f"s_lshl_b32 s{d}, s{d}, 10"), I(f"s_add_u32 s{d}, s{d}, {WS_H:#x}")]
    L += [I("s_waitcnt vmcnt(0)")] + poll_check(vPo, vF2, sWS, "0", 1, sT2, 63)
    inter = []
    pre2 = [I(f"s_mov_b32 s{sCc}, s{sHLo}"), I(f"s_mov_b32 s{sCc2}, s{sHHo}")]
    lds = [x for s in (2, 3, 0, 1) for x in h_loads(s) if x.kind != 'salu']
    for k, x in enumerate(lds): inter += [[x], []] if k < 8 else [[x], []]
    inter = inter[:16] + [[lds[8]], [], [lds[9]], [], [lds[10]], [], [lds[11]], []] + [[], [lds[12]], [], [lds[13]], [], [], [], []] + [[lds[14]], [lds[15]]]
    V, M = code_pf("F_Bend", "F_RA0", 250, 252, vL16)
    if flag('nopf3'): V, M = [], []
    return L + pre2 + V + M + finalize(0, sCL, inter, tag='cs0')
def bend_pre():
    L = [I(f"s_lshl_b32 s{sT}, s{sWave}, 13"), I(f"s_lshl_b32 s{sT2}, s{sHl}, 8"), I(f"s_add_u32 s{sT3}, s{sT}, s{sT2}"),
         I(f"s_lshl_b32 s{sT}, s{sXcd}, 19"), I(f"s_add_u32 s{sT}, s{sT}, s{sT3}"),
         I(f"s_lshl_b32 s{sT2}, s{sHl}, 17"), I(f"s_add_u32 s{sWoO}, s{sT}, s{sT2}")]
    for k in range(3):
        L += [I(f"s_add_u32 s{sT2}, s{sHl}, {k+1}"), I(f"s_and_b32 s{sT2}, s{sT2}, 3"),
              I(f"s_lshl_b32 s{sWoS[k]}, s{sT2}, 17"), I(f"s_add_u32 s{sWoS[k]}, s{sWoS[k]}, s{sT}"),
              I(f"s_sub_u32 s{sT2}, s{sT2}, s{sHl}"), I(f"s_lshl_b32 s{sSib[k]}, s{sT2}, 12")]
    return L
def bend_valu():
    t = T0; ln = T0 + 4
    L = [I(f"v_lshrrev_b32 v{ln}, 4, v{vL16}")] + lane_wtr(vWtrB, 0, t, ln, natural=False)
    L += [I(f"v_add_u32 v{vWtrA+c}, 131072, v{vWtrB+c}") for c in range(4)]
    L += [I(f"v_add_u32 v{vC2}, 0x20000, v{vL16}"),
          I(f"s_lshr_b32 s{sT3}, s2, 3"), I(f"s_lshl_b32 s{sT3}, s{sT3}, 2"), I(f"s_lshr_b32 s{sPo}, s{sXcd}, 1"), I(f"s_add_u32 s{sPo}, s{sT3}, s{sPo}"),
          I(f"s_lshl_b32 s{sPo}, s{sPo}, 10"), I(f"s_add_u32 s{sPo}, s{sPo}, {F3:#x}"),
          I(f"v_and_b32 v{t}, 7, v{ln}"), I(f"v_lshlrev_b32 v{t}, 7, v{t}"), I(f"v_add_u32 v{vF3}, s{sPo}, v{t}"),
          I(f"s_add_u32 s{sT3}, s{sT3}, s{sWave}"), I(f"s_lshl_b32 s{sT3}, s{sT3}, 3"), I(f"s_add_u32 s{sT3}, s{sT3}, s{sXcd}"),
          I(f"s_lshl_b32 s{sT3}, s{sT3}, 7"), I(f"s_add_u32 s1, s{sT3}, {F3:#x}"),
          I(f"s_lshl_b32 s{sPo}, s{sXcd}, 5"), I(f"s_lshr_b32 s{sT3}, s2, 3"), I(f"s_add_u32 s{sPo}, s{sPo}, s{sT3}"),
          I(f"s_mul_i32 s{sPo}, s{sPo}, {8*PD}"), I(f"s_mul_i32 s{sT3}, s{sWave}, {2*PD}"), I(f"s_add_u32 s{sPo}, s{sPo}, s{sT3}"),
          I(f"s_add_u32 s{sPo}, s{sPo}, {WS_P:#x}")]
    return L

def p3p4():
    RG = 128; NR = 8
    seq = [(s, c8, (0, 1, 2, 3)) for s in range(7) for c8 in range(8)]
    seq += [(s, c8, (0, 1, 2, 3)) for s in range(7, 11) for c8 in range(8)]
    seq += [(s, c8, (0, 1)) for s in range(11, 23) for c8 in range(8)] + [(s, c8, (2, 3)) for c8 in range(8) for s in range(11, 23)]
    NF = len(seq)
    g0s = []; g = 0
    for e in seq: g0s.append(g); g += len(e[2])
    NGP = g
    def w_reads(n):
        s, c8, _ = seq[n]; h, c = divmod(c8, 4); a = w3_addr(s) + h*4096; r = RG + (n % NR)*4
        if s < 4: va, off = vWtrA, a - 131072
        elif s < 11: va, off = vWtrB, a
        elif s < 19: va, off = vWtrB, a - 57344
        else: va, off = vWtrA, a - 122880
        return [I(f"ds_read_b64_tr_b16 {vr(r,2)}, v{va+c} offset:{off}"), I(f"ds_read_b64_tr_b16 {vr(r+2,2)}, v{va+c} offset:{off+2048}")]
    L = stamp(13) + [I("s_waitcnt lgkmcnt(0)"), needvm('x4', 'x5', 'x6'), I("s_barrier")] + stamp(14)
    rd_at = {}
    for m in range(NF):
        n = m
        while n > 0 and m - n < 6 and g0s[m] - g0s[n] < val('p3pf', 14): n -= 1
        rd_at[m] = n if (g0s[m] - g0s[n] >= val('p3pf', 14) or m - n == 6) else -1
    for m in range(NF):
        if rd_at[m] < 0: L += w_reads(m)
    mf = []; post = {}; dmaq = []; valu = []
    def addpost(g, items): post.setdefault(g, []).extend(items)
    first = set()
    firstread = {}
    for m in range(NF): firstread.setdefault(seq[m][0], m)
    bars = {7: range(7, 11), 11: range(11, 17), 17: range(17, 23)}
    for n, (s, c8, bs) in enumerate(seq):
        for b in bs:
            d = vr((c8*4 + b)*4)
            mf.append(I(f"{M16} {d}, {vr(RG + (n % NR)*4)}, {ar(bslot(s, b))}, {d if s else 0}"))
        if n + 1 < NF: addpost(g0s[n + 1] - 1, [needlg(regs_in(vr(RG + ((n + 1) % NR)*4)))])
    bargap = {}
    for sb, rng in bars.items():
        m = firstread[sb]; g = g0s[rd_at[m]] - 1; bargap[sb] = g
        addpost(g, [needvm(*[f'x{k}' for k in rng]), I("s_barrier")] + stamp({7: 54, 11: 57, 17: 58}[sb]))
    lastA = max(m for m in range(NF) if seq[m][0] < 4); lastB = max(m for m in range(NF) if seq[m][0] < 11)
    for k in range(4): addpost(g0s[rd_at[lastA]] + 1 + 4*k, [I(f"v_subrev_u32 v{vWtrA+k}, 8192, v{vWtrA+k}")])
    addpost(g0s[rd_at[lastB]] + 1, [I(f"v_add_u32 v{vWtrB+k}, 57344, v{vWtrB+k}") for k in range(2)])
    addpost(g0s[rd_at[lastB]] + 2, [I(f"v_add_u32 v{vWtrB+k}, 57344, v{vWtrB+k}") for k in range(2, 4)])
    for m in range(NF):
        if rd_at[m] >= 0: addpost(g0s[rd_at[m]], w_reads(m))
    rdg = set(g0s[rd_at[m]] for m in range(NF) if rd_at[m] >= 0)
    G = lambda grp: 4*grp
    for s in range(4, 7): dmaq.append((1, h_loads(s)))
    for s in range(11, 20):
        for g in w3_dma(s): dmaq.append((G(13) + 8*(s - 11), g))
    for s in range(20, 23):
        for g in w3_dma(s): dmaq.append((max(bargap[7] + 1, G(66)), g))
    g2, g3 = val('g2', 30), val('g3', 62)
    valu += [((33 if min(int(r[1:]) for r in x.wr) < 32 else 65) if x.op == 'v_accvgpr_write_b32' else 2, x) for x in finalize(1, sCH, tag='cs1')] + [(G(g3), [needvm('cs1')] + flag_store(3))]
    dmaq.append((G(g2), [poll_issue(vPo, vF2, sWS, "0")]))
    addpost(G(g2 + 12) + 1, stamp(55) + poll_check(vPo, vF2, sWS, "0", 2, sT2, 63) + stamp(56))
    for s in range(11, 23): dmaq.append((G(g2 + 12) + 2, sib_loads(s, 0)))
    g4 = val('g4', 80)
    dmaq.append((G(g4), [poll_issue(vPo, vF2, sWS, "0")]))
    addpost(G(g4 + 12) + 1, stamp(59) + poll_check(vPo, vF2, sWS, "0", 3, sT2, 63) + stamp(60))
    for s in range(11, 23): dmaq.append((G(g4 + 12) + 2, sib_loads(s, 1)))
    PKP = 160
    def piece(c8, pr, k):
        X = (c8*4 + 2*pr)*4; T = PKP + (k % 8)*4
        a, b = P1.pack_swap(T, X, X + 4)
        return a + [I(f"s_add_u32 s{sT3}, s{sPo}, {pr*PD + (c8//4)*4096}")] + b + \
            [I(f"buffer_store_dwordx4 {vr(T)}, v{vL16}, {sr(sWS)}, s{sT3} offen offset:{(c8 % 4)*1024} {ST}", tag=('vm', 'pst'))]
    hi0 = NF - 96
    ev = [(g0s[hi0] + 3, c8, 0) for c8 in range(8)] + [((g0s[hi0 + 12*(c8 + 1)] + 3) if c8 < 7 else NGP, c8, 1) for c8 in range(8)]
    order = sorted(range(16), key=lambda k: (ev[k][0] + (0 if ev[k][2] else 12*ev[k][1])))
    for k, e in enumerate(order): valu += [(ev[e][0], x) for x in piece(ev[e][1], ev[e][2], k)]
    XO = 226; vXa, vBa = 222, 223
    p4pre = [I(f"s_lshr_b32 s{sT}, s{sXcd}, 1"), I(f"s_lshl_b32 s{sT}, s{sT}, 5"),
             I(f"s_sub_u32 s{sT2}, 15, s{sI}"), I(f"s_bitcmp1_b32 s{sXcd}, 0"), I(f"s_cselect_b32 s{sT2}, s{sT2}, s{sI}"),
             I(f"s_lshl_b32 s{sT2}, s{sT2}, 7"), I(f"s_add_u32 s{sT}, s{sT}, s{sT2}"), I(f"s_lshl_b32 s74, s{sT}, 10"),
             I(f"s_lshl_b32 s75, s{sHl}, 8"), I(f"s_lshl_b32 s{sT}, s{sWave}, 6"), I(f"s_add_u32 s75, s75, s{sT}"), I(f"s_add_u32 s74, s74, s75"),
             I(f"v_bfe_u32 v{vXa}, v{vL16}, 4, 5"), I(f"v_lshlrev_b32 v{vXa}, 10, v{vXa}"),
             I(f"v_lshrrev_b32 v{vBa}, 9, v{vL16}"), I(f"v_lshlrev_b32 v{vBa}, 4, v{vBa}"), I(f"v_add_u32 v{vXa}, v{vXa}, v{vBa}")]
    gp = G(126)
    dmaq.append((gp, p4pre[:12] + [I(f"buffer_load_dwordx4 {vr(XO + 8*pc)}, v{vXa}, {sr(sX)}, s74 offen offset:{pc*32}") for pc in range(2)] +
                        [I(f"buffer_load_dwordx4 {vr(XO + 4 + 8*pc)}, v{vBa}, {sr(sB2)}, s75 offen offset:{pc*32}") for pc in range(2)]))
    for k, x in enumerate(p4pre[12:]): addpost(gp - 11 + 2*k, [x])
    place_dma(dmaq, addpost, step=val('p3step', 4), ok=lambda g: g not in rdg and (g >= 352 or g % 4 in (1, 2)))
    def budget(g, p):
        if any(x.kind == 'dsr' for x in p): return 0
        n = sum(1 for x in p if x.txt or (x.tag and x.tag[0] != 'needvm'))
        nd = sum(1 for x in p if x.kind in ('dma', 'vld', 'vst'))
        return max(0, 2 - max(0, n - 1) - nd)
    body, left = weave(mf, post, valu, budget, flush_dep=lambda g: 224 <= g < 352)
    if OPT.verbose:
        mi = 0
        for x in body:
            if x.kind == 'mfma': mi += 1
            if x.tag and x.tag[0] == 'vm' and x.tag[1] in ('cs0', 'cs1', 'pst'): print(f"[p3] {x.tag[1]} store at gap {mi} (group {mi/4:.1f})", file=sys.stderr)
    L += body + stamp(15)
    L += [I(f"s_mov_b32 s{sFlagMe}, s1"), needvm('pst')] + flag_store(1)
    L += [I(f"s_lshr_b32 s{sT}, s2, 3"), I(f"s_mul_i32 s{sT}, s{sT}, {8*PD}"), I(f"s_mul_i32 s{sT2}, s{sXcd}, {PD}"), I(f"s_add_u32 s{sT}, s{sT}, s{sT2}"),
          I(f"s_lshl_b32 s{sT2}, s{sWave}, 11"), I(f"s_add_u32 s{sT}, s{sT}, s{sT2}"), I(f"s_add_u32 s{sT}, s{sT}, {WS_P:#x}"),
          poll_issue(vPo, vF3, sWS, "0")]
    for pc in range(2):
        A = 64 + 8*pc
        for j in range(4):
            L += [I(f"v_lshlrev_b32 v{A+2*j}, 16, v{XO+8*pc+j}"), I(f"v_and_b32 v{A+2*j+1}, 0xffff0000, v{XO+8*pc+j}"),
                  I(f"v_lshlrev_b32 v80, 16, v{XO+4+8*pc+j}"), I(f"v_and_b32 v81, 0xffff0000, v{XO+4+8*pc+j}"),
                  I(f"v_add_f32 v{A+2*j}, v{A+2*j}, v80"), I(f"v_add_f32 v{A+2*j+1}, v{A+2*j+1}, v81")]
    L += poll_check(vPo, vF3, sWS, "0", 1, sT2, 63) + stamp(16)
    for x in range(8):
        L += [I(f"buffer_load_dwordx4 {vr((pc*8 + x)*4)}, v{vL16}, {sr(sWS)}, s{sT} offen offset:{pc*1024} {LD}") for pc in range(2)]
        if x < 7: L += [I(f"s_add_u32 s{sT}, s{sT}, {256*PD:#x}")]
    for x in range(8):
        for pc in range(2):
            A = 64 + 8*pc; r = (pc*8 + x)*4
            for j in range(4):
                L += [I(f"v_lshlrev_b32 v80, 16, v{r+j}"), I(f"v_and_b32 v81, 0xffff0000, v{r+j}"),
                      I(f"v_add_f32 v{A+2*j}, v{A+2*j}, v80"), I(f"v_add_f32 v{A+2*j+1}, v{A+2*j+1}, v81")]
    for pc in range(2):
        A = 64 + 8*pc
        L += [I(f"v_cvt_pk_bf16_f32 v{84+4*pc+j}, v{A+2*j}, v{A+2*j+1}") for j in range(4)]
        L += [I(f"buffer_store_dwordx4 {vr(84+4*pc)}, v{vXa}, {sr(sOUT)}, s74 offen offset:{pc*32}")]
    L += stamp_out(17) + [I("s_endpgm")]
    return L

def l2_warm(with_ctx):
    G = []
    if with_ctx: G.append([pf_load(214, 215, sWS, f"s{sCL}", LD)])
    G.append([I(f"s_add_u32 s{sT}, s{sHLo}, 3072"), pf_load(214, 216, sWS, f"s{sT}", LD)])
    G.append([I(f"s_add_u32 s{sT}, s{sHHo}, 3072"), pf_load(214, 216, sWS, f"s{sT}", LD)])
    G.append([I(f"s_lshr_b32 s{sT}, s2, 3"), I(f"s_lshl_b32 s{sT}, s{sT}, 14"), I(f"s_add_u32 s{sT}, s{sT}, s{sW4096}"),
              I(f"s_lshl_b32 s{sT3}, s{sXcd}, 19"), I(f"s_add_u32 s{sT}, s{sT}, s{sT3}"), pf_load(214, 217, sWO, f"s{sT}")])
    return G
def warm_consts():
    return [I(f"v_bfe_u32 v215, v{vL16}, 4, 5"), I(f"v_lshlrev_b32 v215, 7, v215"), I(f"v_lshrrev_b32 v216, 9, v{vL16}"),
            I(f"v_lshlrev_b32 v217, 2, v{vL16}"),
            I(f"v_mad_u32_u24 v218, v216, s{sT3}, v215"), I(f"v_lshl_add_u32 v215, v216, 17, v215"), I(f"v_mov_b32 v216, v218")]
def bbm_pf():
    d = {}
    if not flag('nopf3'): d[2] = code_pf('F_Bend', 'F_RA0', 250, 252, vL16)[1]
    return d

def build():
    P = P1.prologue()
    P, lgq, vmq = finish(P, name="pro")
    aK, bK = P1.engine(False); aV, bV = P1.engine(True)
    assert text(bK).replace("PL_", "").count("\n") == text(bV).count("\n")
    aK, lq1, vq1 = finish(aK, lgq, vmq, P, name="engK")
    aV, lq2, vq2 = finish(aV, lgq, vmq, P, name="engV")
    assert lq1 == lq2 and [x[1] for x in vq1] == [x[1] for x in vq2] and [x[0] for x in vq1] == [x[0] for x in vq2]
    B, lq, vq = finish(bK + first_tile(), lq1, vq1, aK, name="engB")
    B2, _, _ = finish(bK + first_tile(), lq1, vq1, aV, name="engB'")
    assert len(B) == len(B2)
    Q0 = [set(regs_in(ar(RING + f*4))) for f in range(NPRE)]
    if not OPT.prof: assert lq == Q0, lq
    bend_dma = [(1, g) for s in range(4, 11) for g in w3_dma(s)]
    aame_dma = [(2, g) for s in range(4) for g in w3_dma(s)]
    raw = {
        'AAe': step('A', 'A', 0, 1, name='AAe'), 'AAo': step('A', 'A', 1, 1, name='AAo'),
        'AAmo': step('A', 'A', 1, 1, mask=[(0, 0, None), (2, 1, None)], name='AAmo'),
        'AAme': step('A', 'A', 0, 2, mask=[(0, 2, None), (2, 3, None)], xwait=16, name='AAme', extra_dma=aame_dma),
        'ABm': step('A', 'B', 1, 2, mask=[(k, k, sOffB) for k in range(4)], xwait=8, name='ABm', extra_post={3: flag_store(1), 45: [poll_issue(vPo, vF2, sWS, "0")]}),
        'BBe': step('B', 'B', 0, 2, name='BBe'), 'BBo': step('B', 'B', 1, 2, name='BBo'),
        'BBm': step('B', 'B', 1, 0, mask=[(k, k, None) for k in range(4)], xwait=0, name='BBm', extra_post=bbm_pf()),
        'FINL': stamp(11) + finl_block() + stamp(12) + [I(f"s_sub_u32 s{sCnt}, 6, s{sI}"), I("s_cbranch_scc1 F_Bend")],
    }
    preds = {'AAe': ['PRO', 'AAo'], 'AAo': ['AAe'], 'AAmo': ['AAe'], 'AAme': ['PRO', 'AAmo'], 'ABm': ['AAme'], 'FINL': ['ABm'],
             'BBe': ['FINL', 'BBo'], 'BBo': ['BBe'], 'BBm': ['BBe']}
    done = {'PRO': B}
    for nm in ['AAe', 'AAo', 'AAmo', 'AAme', 'ABm', 'FINL', 'BBe', 'BBo', 'BBm']:
        outs = [finish(raw[nm], Q0, None, done.get(pr) or raw[pr], name=nm + "<-" + pr, vm=False) for pr in preds[nm]]
        best = max(outs, key=lambda o: len(o[0]))
        done[nm] = best[0]
        if not OPT.prof or nm != 'FINL': assert best[1] == Q0, (nm, best[1])
    bend = step('B', None, 0, 0, name='Bend', extra_dma=bend_dma, extra_valu=bend_valu(), extra_post={26: [needvm('cs0')] + flag_store(2)})
    k = [j for j, x in enumerate(bend) if x.kind == 'mfma'][0]
    tailraw = bend[:k] + bend_pre() + bend[k:] + p3p4()
    outs = [finish(tailraw, Q0, [(set(), 'cs0')] + [(set(regs_in(ar(bslot(1, b)))), None) for b in (2, 3)], done[pr], name="tail<-" + pr) for pr in ('FINL', 'BBm')]
    tail = max(outs, key=lambda o: len(o[0]))[0]
    loopx = lambda lab: f" s_sub_u32 s{sCnt}, s{sCnt}, 1\n s_cbranch_scc1 {lab}\n"
    body = text(P) + "\n" + text(aK) + "\n s_branch F_J\nF_V:\n" + text(aV) + "\nF_J:\n" + text(B) + "\n"
    body += ".p2align 3\nF_AAe:\n" + text(done['AAe']) + "\n" + loopx("F_AAmo") + text(done['AAo']) + "\n s_branch F_AAe\n"
    body += "F_AAmo:\n" + text(done['AAmo']) + "\nF_AAme:\n" + text(done['AAme']) + "\n" + text(done['ABm']) + "\n" + text(done['FINL']) + "\n"
    body += ".p2align 3\nF_BBe:\n" + text(done['BBe']) + "\n" + loopx("F_BBm") + text(done['BBo']) + "\n s_branch F_BBe\n"
    body += "F_BBm:\n" + text(done['BBm']) + "\nF_Bend:\n" + text(tail) + "\n"
    for typ in 'AB':
        for p in range(2): body += text(rare_redo(typ, p)) + "\n"
    for cur, nxt, p in (('A', 'A', 0), ('A', 'A', 1), ('A', 'B', 1), ('B', 'B', 0), ('B', 'B', 1), ('B', None, 0)):
        body += text(rare_stub(cur, nxt, p)) + "\n"
    body += "F_end:\n s_endpgm\n"
    hdr = open(f"cdna_kernels/{NAME}.s.ref").read().split("; Override")[0]
    kname = NAME + "_kernel"
    if "--list" in sys.argv: hdr += f"; @launch kernel={kname} grid=(256,1,1) block=(256,1,1) lds=163840\n"
    else: hdr += "; @launch grid=(256,1,1) block=(256,1,1) lds=163840\n"
    return hdr + '.amdgcn_target "amdgcn-amd-amdhsa--gfx950"\n' + kernel_text(kname, body, 512, 256)

if __name__ == "__main__":
    OPT.prof = "--prof" in sys.argv
    if "-q" in sys.argv: OPT.verbose = 0
    open(sys.argv[1], "w").write(build())
```

```python
import sys, math, struct
from asmlib import *

NAME = "parallel_sum__compressed_kv_cla__dense_activation_gelu__prompt"
MB = 1 << 20
WS_K, WS_V, WS_XN, WS_H, WS_CTX, WS_P, WS_F = 0, 18*MB, 36*MB, 39*MB, 48*MB, 64*MB, 96*MB
WS_SIZE = 97*MB
_pad = 0 if '--nopad' in sys.argv else 1024
TS = XS = 16384 + _pad
PD = 8192 + _pad
F0, F1, F2, F3, FE = WS_F, WS_F + 32768, WS_F + 65536, WS_F + 196608, WS_F + 327680
sE = 62
A_X, A_CKV, A_WQ, A_WUK, A_WUV, A_WO, A_BX, A_W1, A_B1, A_W2, A_B2, A_OUT, A_DBG, A_WS = [8*i for i in range(14)]
def f32(x): return "0x%08x" % struct.unpack("<I", struct.pack("<f", x))[0]
QSCALE = (128 ** -0.5) * math.log2(math.e)
M16 = "v_mfma_f32_16x16x32_bf16"
M32 = "v_mfma_f32_32x32x16_bf16"
def vr(b, n=4): return f"v[{b}:{b+n-1}]"
def ar(b, n=4): return f"a[{b}:{b+n-1}]"
def sr(b, n=4): return f"s[{b}:{b+n-1}]"
ST = "sc0 sc1"
LD = "sc1"

class Opt:
    prof = False
    verbose = 4
OPT = Opt()
def flag(n): return ('--' + n) in sys.argv
def val(n, d):
    for a in sys.argv:
        if a.startswith('--' + n + '='): return type(d)(a.split('=')[1])
    return d

sWS, sX, sC, sWkv, sWQ, sW1, sB1, sKS, sVS, sWO, sW2, sB2, sOUT, sDBG = [8 + 4*i for i in range(14)]
sWave, sXcd, sI, sHl, sT, sT2, sT3, sW4096, sW1024, sFlagMe = range(64, 74)
PROF_BASE = 128*MB
vPR, vPC = 254, 255

def stamp(k):
    if not OPT.prof: return []
    return [I("s_waitcnt lgkmcnt(0)"), I("s_memrealtime s[100:101]"), I("s_waitcnt lgkmcnt(0)"), I(f"v_writelane_b32 v{vPR}, s100, {k}"), I("s_memtime s[100:101]"), I("s_waitcnt lgkmcnt(0)"),
            I("s_nop 0"), I(f"v_writelane_b32 v{vPC}, s100, {k}")]
def stamp_out(k):
    if not OPT.prof: return []
    return [I("s_waitcnt vmcnt(0)")] + stamp(k) + [
        I(f"s_mov_b32 s{sWS+2}, {PROF_BASE + MB:#x}"),
        I("v_mbcnt_lo_u32_b32 v0, -1, 0"), I("v_mbcnt_hi_u32_b32 v0, -1, v0"), I("v_lshlrev_b32 v0, 3, v0"),
        I(f"s_lshl_b32 s4, s2, 2"), I(f"s_add_u32 s4, s4, s{sWave}"), I("s_lshl_b32 s4, s4, 9"), I(f"s_add_u32 s4, s4, {PROF_BASE:#x}"),
        I(f"buffer_store_dwordx2 v[{vPR}:{vPC}], v0, {sr(sWS)}, s4 offen")]

def finish(ins, lg_init=None, vm_init=None, prev=None, name="", vm=True):
    q1 = None
    if vm: ins, q1 = insert_vm(ins, vm_init)
    ins, q2 = insert_lgkm(ins, lg_init)
    vb = []
    ins, npad = pad_hazards(ins, prev, vb)
    if npad and OPT.verbose:
        print(f"[{name}] padded {npad} wait states", file=sys.stderr)
        for k, a, b in vb[:OPT.verbose]: print(f"    {k}: {a}  ->  {b}", file=sys.stderr)
    return ins, q2, q1

def place_dma(dmaq, addpost, step=2, ok=lambda g: True):
    nxt = 0
    step0 = step
    for ent in sorted(dmaq, key=lambda x: x[0]):
        g, items = ent[0], ent[1]; step = ent[2] if len(ent) > 2 else step0
        g = max(g, nxt)
        while not ok(g): g += 1
        k = 0
        while items[k].kind == 'salu': k += 1
        if k == 1 and 'm0' in items[0].wr:
            addpost(g, items[:1]); g += 1
            while not ok(g): g += 1
            addpost(g, items[1:2])
        else:
            addpost(g, items[:k+1])
        for it in items[k+1:]:
            g += step
            while not ok(g): g += 1
            addpost(g, [it])
        nxt = g + step
    return nxt

def lane_wtr(vdst, base, tmp, ln, natural=True):
    L = [I(f"v_lshrrev_b32 v{tmp}, 4, v{ln}"), I(f"v_bfe_u32 v{tmp+1}, v{ln}, 2, 2"), I(f"v_and_b32 v{tmp+2}, 1, v{tmp}"),
         I(f"v_lshl_add_u32 v{tmp+1}, v{tmp+2}, 2, v{tmp+1}"), I(f"v_lshrrev_b32 v{tmp}, 1, v{tmp}"),
         I(f"v_lshlrev_b32 v{tmp}, {11 if natural else 10}, v{tmp}"), I(f"v_lshl_add_u32 v{tmp}, v{tmp+1}, 7, v{tmp}"),
         I(f"v_and_b32 v{tmp+2}, 1, v{ln}"), I(f"v_lshl_add_u32 v{tmp}, v{tmp+2}, 3, v{tmp}"),
         I(f"v_bfe_u32 v{tmp+2}, v{ln}, 1, 1"), I(f"v_lshl_add_u32 v{tmp}, v{tmp+2}, 4, v{tmp}")]
    if base: L.append(I(f"v_add_u32 v{tmp}, {base}, v{tmp}"))
    L.append(I(f"v_and_b32 v{tmp+1}, 6, v{tmp+1}"))
    for c in range(4):
        L += [I(f"v_xor_b32 v{tmp+2}, {2*c}, v{tmp+1}"), I(f"v_lshl_add_u32 v{vdst+c}, v{tmp+2}, 4, v{tmp}")]
    return L

def lane_wdma(vdst, rowstride, tmp, ln, natural=True, nblk=4):
    L = [I(f"v_lshrrev_b32 v{tmp}, 3, v{ln}"), I(f"v_and_b32 v{tmp+1}, 7, v{ln}"), I(f"v_and_b32 v{tmp+2}, 6, v{tmp}"),
         I(f"v_xor_b32 v{tmp+1}, v{tmp+1}, v{tmp+2}"), I(f"v_lshlrev_b32 v{tmp+1}, 4, v{tmp+1}")]
    if natural:
        L += [I(f"v_and_b32 v{tmp+2}, 4, v{tmp}"), I(f"v_add_u32 v{tmp}, v{tmp}, v{tmp+2}")]
    L += [I(f"v_mul_u32_u24 v{tmp}, {rowstride}, v{tmp}"), I(f"v_add_u32 v{tmp}, v{tmp}, v{tmp+1}")]
    for b in range(nblk):
        rows = (4*(b % 2) + 16*(b // 2)) if natural else 8*b
        off = rows * rowstride - 1024 * b
        L.append(I(f"v_add_u32 v{vdst+b}, {off}, v{tmp}") if off else I(f"v_mov_b32 v{vdst+b}, v{tmp}"))
    return L

def pf_load(vj, voff, srd_, soff, extra=""):
    if flag('pfnt') and srd_ in (sWkv, sWQ, sC): extra += " nt"
    i = I(f"buffer_load_dword v{vj}, v{voff}, {sr(srd_)}, {soff} offen {extra}")
    i.wr = set()
    return i

_poll = [0]
def poll_issue(vp, vaddr, srd_, soff):
    return I(f"buffer_load_dword v{vp}, v{vaddr}, {sr(srd_)}, {soff} offen sc1")
def poll_check(vp, vaddr, srd_, soff, level, sc, st):
    _poll[0] += 1; u = _poll[0]
    t = lambda: [I(f"v_subrev_u32 v{vp}, s{st}, v{vp}"), I(f"v_cmp_le_u32 vcc, 8, v{vp}"), I(f"s_cbranch_vccz PL_ok{u}")]
    return [I(f"s_add_u32 s{st}, s{sE}, {level}")] + t() + [
            I(f"s_mov_b32 s{sc}, 0x40000"), I(f"PL_sp{u}:"), I("s_sleep 2"),
            I(f"buffer_load_dword v{vp}, v{vaddr}, {sr(srd_)}, {soff} offen sc1", tag=('novm',)),
            I("s_waitcnt vmcnt(0)", tag=('novm',))] + t() + [
            I(f"s_sub_u32 s{sc}, s{sc}, 1"), I(f"s_cbranch_scc0 PL_sp{u}"), I(f"PL_ok{u}:")]
def epoch_check(vp, vaddr, sc):
    _poll[0] += 1; u = _poll[0]
    t = lambda: [I(f"v_cmp_eq_u32 vcc, 0, v{vp}"), I(f"s_cbranch_vccz PL_ok{u}")]
    return t() + [I(f"s_mov_b32 s{sc}, 0x40000"), I(f"PL_sp{u}:"), I("s_sleep 2"),
            I(f"buffer_load_dword v{vp}, v{vaddr}, {sr(sDBG)}, 0 offen sc1", tag=('novm',)),
            I("s_waitcnt vmcnt(0)", tag=('novm',))] + t() + [
            I(f"s_sub_u32 s{sc}, s{sc}, 1"), I(f"s_cbranch_scc0 PL_sp{u}"), I(f"PL_ok{u}:"),
            I(f"v_readfirstlane_b32 s{sE}, v{vp}")]
def flag_put(vt, vz, soff, level, ioff=0):
    return [I(f"v_mov_b32 v{vt}, s{sE}"), I(f"v_add_u32 v{vt}, {level}, v{vt}"),
            I(f"buffer_store_dword v{vt}, v{vz}, {sr(sWS)}, s{soff} offen {ST}")]

def code_pf(lo, hi, vt, vj, vl16, k=0):
    V = [I(f"v_lshlrev_b32 v{vt}, 3, v{vl16}"), I(f"v_lshl_add_u32 v{vt}, s{sWave}, 13, v{vt}"),
         I(f"v_add_u32 v{vt}, {lo}-F_pc+{k*32768}, v{vt}"), I(f"v_min_u32 v{vt}, {hi}-F_pc, v{vt}")]
    i = I(f"global_load_dword v{vj}, v{vt}, s[6:7]"); i.wr = set()
    return V, [i]

def kernel_text(name, body, vgpr, accum, sgpr=102):
    return f""".text
.globl {name}
.p2align 8
.type {name},@function
{name}:
{body}
.section .rodata,"a"
.p2align 6
.amdhsa_kernel {name}
  .amdhsa_next_free_vgpr {vgpr}
  .amdhsa_next_free_sgpr {sgpr}
  .amdhsa_accum_offset {accum}
  .amdhsa_group_segment_fixed_size 0
  .amdhsa_kernarg_size 112
  .amdhsa_user_sgpr_count 2
  .amdhsa_user_sgpr_kernarg_segment_ptr 1
  .amdhsa_system_sgpr_workgroup_id_x 1
.end_amdhsa_kernel
"""
```

```python
from f_common import *

GC0 = -2.0 * math.sqrt(2.0 / math.pi) * math.log2(math.e)
GC1 = GC0 * 0.044715
sWoff, sCoff, sOb, sM0c, sScale, sType, s1o, sQo, sXL, sXH, sXLc, sXHc, sHL, sHH, sGC0, sB1o, sSt = range(74, 91)
sXrow, sWpf, sRb, sF0me, sF1me = 98, 99, 96, 5, 1
sKt, sKm, sVt, sVm = 91, 92, 93, 94
sCL, sCH = 95, 96
ACCB = [0, 64, 128, 0, 64, 0, 128]
WF = 192; NWF = 6
vZero, vPoll, vFt, vP0, vF1, vJ, vBo, vTm2 = range(216, 224)
vL16 = 224; vWtrS = [225, 229]; vWd, vW1d = 233, 237
vXo2, vGC1, vKVd = 241, 242, 243
PK = 244; GT = 237; GP = [244, 248]
vCd, vCr = 180, 178
QF = lambda qb, ks: 128 + (qb*8 + ks)*4
XF = lambda b, ks: (b*16 + ks)*4

def bf16_round(dst, src):
    return [I(f"v_cvt_pk_bf16_f32 v{dst}, v{src}, v{src}"), I(f"v_and_b32 v{dst}, 0xffff0000, v{dst}")]
def sum32(v, t):
    return [I(f"v_add_f32_dpp v{v}, v{v}, v{v} quad_perm:[1,0,3,2] row_mask:0xf bank_mask:0xf"),
            I(f"v_add_f32_dpp v{v}, v{v}, v{v} quad_perm:[2,3,0,1] row_mask:0xf bank_mask:0xf"),
            I(f"v_add_f32_dpp v{v}, v{v}, v{v} row_half_mirror row_mask:0xf bank_mask:0xf"),
            I(f"v_add_f32_dpp v{v}, v{v}, v{v} row_mirror row_mask:0xf bank_mask:0xf"),
            I(f"v_mov_b32 v{t}, v{v}"), I(f"v_permlane16_swap_b32 v{v}, v{t}"), I(f"v_add_f32 v{v}, v{v}, v{t}")]

def c_dma(ch):
    gs = []
    for grp in range(2):
        L = [I(f"s_add_u32 m0, s{sM0c}, {(ch % 3)*8192 + grp*4096}"), I(f"s_add_u32 s{sT}, s{sCoff}, {ch*128 + grp*32768}")]
        L += [I(f"buffer_load_dwordx4 v{vCd+b}, {sr(sC)}, s{sT} offen offset:{1024*b} {'nt' if flag('cnt') else ''} lds", tag=('vm', f'c{ch}')) for b in range(4)]
        gs.append(L)
    return gs
ORDER = [(0, k) for k in range(8)]
for cp in range(4):
    for k in range(8): ORDER += [(cp, 8 + k), (cp + 1, k)]
ORDER += [(4, k) for k in range(8, 16)] + [(5, k) for k in range(16)] + [(6, k) for k in range(16)]
POS = {e: 4*k for k, e in enumerate(ORDER)}
PF = 4
FU = {u: POS[(u//4, 4*(u % 4))] for u in range(28)}
LU = {u: POS[(u//4, 4*(u % 4) + 3)] + 3 for u in range(28)}
def make_plan(dist):
    need = {}; bars = []
    for u in sorted(FU, key=lambda u: FU[u]):
        p = FU[u] - PF
        if bars and (p - bars[-1] <= 4 or (u >= 19 and u % 2 == 1 and not flag('morebar'))): need[u] = bars[-1]
        else: bars.append(p); need[u] = p
    extra = [40, 72]
    bars = sorted(set(bars + extra))
    plan = {0: (-9, 6), 1: (-9, 7), 2: (-9, 8), 4: (-9, 9)}
    free = {sl: 72 for sl in range(6)}
    def rel(u): return min([p for p in bars if p > LU[u]] + [10**6])
    for u, (p, sl) in plan.items(): free[sl] = rel(u)
    rest = [u for u in sorted(FU, key=lambda u: FU[u]) if u not in plan]
    for u in rest:
        allowed = range(10) if u < 22 else (3, 5, 6, 7, 8, 9)
        sl = min(allowed, key=lambda x: (free[x], x in (3, 5, 6, 7, 8, 9) and u >= 16))
        cand = [p for p in bars if p >= free[sl] and p >= need[u] - dist]
        plan[u] = (cand[0], sl); assert cand[0] < need[u], u
        free[sl] = rel(u)
    return plan, need, bars, free
PLAN, NEED, BARS, SLOTFREE = make_plan(val('wdist', 100))
def w_dma(u):
    cp, kq = divmod(u, 4); slot = PLAN[u][1]
    if cp < 4: srd_, vo, so, off = sWkv, vWd, sWoff, kq*4*262144 + cp*128
    elif cp == 4: srd_, vo, so, off = sW1, vW1d, s1o, kq*4*32*3584
    else: srd_, vo, so, off = sWQ, vWd, sQo, kq*4*262144 + (cp - 5)*128
    L = [I(f"s_add_u32 m0, s{sW4096}, {slot*16384}"), I(f"s_add_u32 s{sT}, s{so}, {off}")]
    L += [I(f"buffer_load_dwordx4 v{vo+b}, {sr(srd_)}, s{sT} offen offset:{1024*b} {'nt' if (flag('wnt') or (flag('qnt') and cp >= 4)) else ''} lds", tag=('vm', f'w{u}')) for b in range(4)]
    return L
def kv_dma(which, tag=None):
    srd_, t, m = (sKS, sKt, sKm) if which == 'K' else (sVS, sVt, sVm)
    L = [I(f"s_mov_b32 m0, s{m}") if which == 'K' else I(f"s_add_u32 m0, s{m}, 0x10000"),
         I(f"s_mov_b32 s{sT2}, s{t}"),
         I(f"s_add_u32 s{t}, s{t}, {TS}"), I(f"s_add_u32 s{m}, s{m}, 0x4000"), I(f"s_and_b32 s{m}, s{m}, 0xffff")]
    L += [I(f"buffer_load_dwordx4 v{vKVd}, {sr(srd_)}, s{sT2} offen offset:{1024*b} {LD} lds", tag=('vm', tag)) for b in range(4)]
    return L

def prologue():
    TMP = 184; ln = 188
    P = [I("s_cmp_lt_u32 s2, 256"), I("s_cbranch_scc1 F_go"), I("s_endpgm"), I("F_go:")]
    for s_, off in ((sC, A_CKV), (sWkv, A_WUK), (4, A_WUV), (sX, A_X), (sWS, A_WS), (sDBG, A_DBG), (sWQ, A_WQ), (sW1, A_W1), (sB1, A_B1),
                    (sWO, A_WO), (sW2, A_W2), (sB2, A_B2), (sOUT, A_OUT)):
        P.append(I(f"s_load_dwordx2 s[{s_}:{s_+1}], s[0:1], {off}"))
    P += [I(f"v_and_b32 v{ln}, 63, v0"), I(f"v_lshrrev_b32 v{TMP}, 6, v0"), I(f"v_lshrrev_b32 v{TMP+1}, 3, v{ln}"),
          I(f"v_readfirstlane_b32 s{sWave}, v{TMP}"),
          I(f"s_and_b32 s{sXcd}, s2, 7"), I(f"s_lshr_b32 s{sI}, s2, 5"), I(f"s_bfe_u32 s{sHl}, s2, 0x20003"),
          I(f"s_and_b32 s{sType}, s{sI}, 1"),
          I(f"s_and_b32 s{sRb}, s2, 1"), I(f"s_lshl_b32 s{sRb}, s{sRb}, 2"), I(f"s_add_u32 s{sRb}, s{sRb}, s{sHl}"),
          I(f"s_mul_i32 s{sM0c}, s{sWave}, 24576"),
          I(f"s_lshl_b32 s{sCoff}, s{sRb}, 18"), I(f"s_lshl_b32 s{sT}, s{sWave}, 16"), I(f"s_add_u32 s{sCoff}, s{sCoff}, s{sT}"),
          I(f"s_mov_b32 s{sC+2}, {2*MB:#x}"), I(f"s_mov_b32 s{sC+3}, 0x20000"),
          I(f"v_and_b32 v{TMP+2}, 7, v{ln}"), I(f"v_lshrrev_b32 v{TMP}, 4, v{ln}"), I(f"v_xor_b32 v{TMP+2}, v{TMP+2}, v{TMP}"),
          I(f"v_lshlrev_b32 v{TMP}, 10, v{TMP+1}")]
    for b in range(4):
        P += [I(f"v_xor_b32 v{TMP+1}, {4*(b%2)}, v{TMP+2}"), I(f"v_lshl_add_u32 v{vCd+b}, v{TMP+1}, 4, v{TMP}")]
        if b: P.append(I(f"v_add_u32 v{vCd+b}, {7*b*1024}, v{vCd+b}"))
    P += [I(f"s_lshr_b32 s3, s{sXcd}, 1"), I("s_lshl_b32 s3, s3, 2"), I(f"s_lshr_b32 s{sT}, s{sI}, 1"), I(f"s_add_u32 s3, s3, s{sT}"),
          I(f"s_lshl_b32 s{sWoff}, s{sWave}, 18"), I(f"s_lshl_b32 s{sT}, s3, 9"), I(f"s_add_u32 s{sWoff}, s{sWoff}, s{sT}"),
          I(f"s_lshl_b32 s{sW4096}, s{sWave}, 12"),
          I(f"s_mov_b32 s{sWkv+2}, {4*MB:#x}"), I(f"s_mov_b32 s{sWkv+3}, 0x20000"),
          I("s_waitcnt lgkmcnt(0)")] + stamp(0)
    P += [I(f"v_mov_b32 v{vZero}, 0"), I(f"s_or_b32 s{sT3}, s2, s{sWave}"), I(f"s_cmp_eq_u32 s{sT3}, 0"), I("s_cbranch_scc0 F_noep0"),
          I(f"s_mov_b32 s{sWS+2}, {WS_SIZE:#x}"), I(f"s_mov_b32 s{sWS+3}, 0x20000"), I(f"s_mov_b32 s{sT}, {FE:#x}"),
          I(f"buffer_load_dword v{vFt}, v{vZero}, {sr(sWS)}, s{sT} offen sc1", tag=('novm',)), I("F_noep0:")]
    nv0 = len(P)
    if flag('front'):
        P += [I(f"s_cmp_eq_u32 s{sType}, 0"), I(f"s_cselect_b64 s[{sWkv}:{sWkv+1}], s[{sWkv}:{sWkv+1}], s[4:5]"), I(f"s_mov_b64 s[4:5], s[{sWkv}:{sWkv+1}]"),
              I(f"v_lshlrev_b32 v169, 5, v{ln}"), I(f"s_lshl_b32 s{sT}, s2, 13"), I(f"s_lshl_b32 s{sT2}, s{sWave}, 11"), I(f"s_add_u32 s{sT}, s{sT}, s{sT2}"),
              pf_load(vJ, 169, sC, f"s{sT}"),
              I(f"s_and_b32 s{sT}, s2, 31"), I(f"s_lshr_b32 s{sT2}, s2, 6"), I(f"s_lshl_b32 s{sT2}, s{sT2}, 5"), I(f"s_add_u32 s{sT}, s{sT}, s{sT2}"),
              I(f"s_lshl_b32 s{sT}, s{sT}, 2"), I(f"s_add_u32 s{sT}, s{sT}, s{sWave}"), I(f"s_lshl_b32 s{sT}, s{sT}, {12 if flag('half') else 13}"),
              I(f"v_lshlrev_b32 v170, {6 if flag('half') else 7}, v{ln}"), pf_load(vJ, 170, sWkv, f"s{sT}")]
    c0 = c_dma(0)
    P += c0[0] + c0[1]
    P += lane_wdma(vWd, 8192, TMP, ln)
    P += [I(f"s_cmp_eq_u32 s{sType}, 0"), I(f"s_cselect_b64 s[{sWkv}:{sWkv+1}], s[{sWkv}:{sWkv+1}], s[4:5]")]
    P += w_dma(0)
    P += [I(f"s_mov_b32 s{sX+2}, {2*MB:#x}"), I(f"s_mov_b32 s{sX+3}, 0x20000"),
          I(f"s_lshl_b32 s{sT2}, s2, 13"), I(f"s_lshl_b32 s{sT}, s{sWave}, 11"), I(f"s_add_u32 s{sT2}, s{sT2}, s{sT}"),
          I(f"v_lshlrev_b32 v{vL16}, 4, v{ln}"), I(f"v_and_b32 v{TMP}, 32, v{ln}"), I(f"v_lshl_add_u32 v{TMP}, v{TMP}, 4, v{vL16}"),
          I(f"buffer_load_dwordx4 {vr(144)}, v{TMP}, {sr(sX)}, s{sT2} offen"),
          I(f"buffer_load_dwordx4 {vr(148)}, v{TMP}, {sr(sX)}, s{sT2} offen offset:512")]
    g = c_dma(1); P += g[0] + g[1]
    if flag('early'):
        g = c_dma(2); P += w_dma(1) + g[0] + g[1] + w_dma(2) + w_dma(4)
    for s_, size in ((sWS, WS_SIZE), (sDBG, 256), (sWQ, 4*MB), (sW1, 512*3584), (sB1, 3584), (sWO, 4*MB), (sW2, 1792*1024), (sB2, 1024), (sOUT, 2*MB)):
        P += [I(f"s_mov_b32 s{s_+2}, {size:#x}"), I(f"s_mov_b32 s{s_+3}, 0x20000")]
    P += [I(f"s_lshr_b32 s{sT}, s2, 3"), I(f"s_lshl_b32 s{sT}, s{sT}, 2"), I(f"s_add_u32 s97, s{sT}, s{sWave}"),
          I(f"v_lshlrev_b32 v169, 7, v{ln}"), I(f"s_lshl_b32 s{sT}, s97, 13"), I(f"s_and_b32 s{sT2}, s2, 1"), I(f"s_lshl_b32 s{sT2}, s{sT2}, 20"),
          I(f"s_add_u32 s{sT}, s{sT}, s{sT2}"),
          *([I(f"s_mov_b32 s{sSt}, s{sT}")] if not flag('early') else [pf_load(vJ, 169, sC, f"s{sT}")]),
          I("s_getpc_b64 s[6:7]"), I("F_pc:"),
          I(f"s_lshl_b32 s{sT}, s97, 12"), I(f"v_lshlrev_b32 v{TMP+2}, 6, v{ln}"), I(f"v_add_u32 v{TMP+2}, s{sT}, v{TMP+2}"),
          I(f"v_min_u32 v{TMP+2}, F_RA0-F_pc, v{TMP+2}")]
    P.append(I(f"v_mov_b32 v168, v{TMP+2}"))
    cl = I(f"global_load_dword v{vJ}, v168, s[6:7]"); cl.wr = set()
    LATE = []
    if not flag('early'):
        g = c_dma(2); LATE = w_dma(1) + g[0] + g[1] + [pf_load(vJ, 169, sC, f"s{sSt}")] + w_dma(2) + w_dma(4) + [cl]
    else: P.append(cl)
    if flag('tlb'):
        P += [I(f"v_lshl_add_u32 v{TMP+2}, s97, 6, v{ln}"), I(f"v_mul_u32_u24 v{TMP+2}, {TS}, v{TMP+2}"), I(f"s_mov_b32 s{sT}, 16384"),
              pf_load(vJ, TMP+2, sWS, f"s{sT}")]
    P += [I(f"s_lshr_b32 s{sT}, s{sI}, 1"), I(f"s_lshl_b32 s{sT}, s{sT}, 2"), I(f"s_add_u32 s{sT}, s{sT}, s{sHl}"),
          I(f"s_lshl_b32 s{sT}, s{sT}, 2"), I(f"s_add_u32 s{sT}, s{sT}, s{sWave}"), I(f"s_lshl_b32 s{sT}, s{sT}, 16"),
          I(f"s_lshr_b32 s{sT2}, s{sXcd}, 1"), I(f"s_lshl_b32 s{sT2}, s{sT2}, 11"), I(f"s_add_u32 s{sWpf}, s{sT}, s{sT2}"),
          I(f"v_lshrrev_b32 v{vBo}, 4, v{ln}"), I(f"v_and_b32 v{TMP}, 15, v{ln}"),
          I(f"v_lshlrev_b32 v170, 13, v{vBo}"), I(f"v_lshl_add_u32 v170, v{TMP}, 7, v170"),
          I(f"v_lshlrev_b32 v{vBo}, 3, v{vBo}")]
    nyoung = sum(1 for x in P[nv0:] if x.kind in ('dma', 'vld', 'vst', 'vmisc'))
    P += [I(f"s_cmp_eq_u32 s{sT3}, 0"), I("s_cbranch_scc0 F_noep"),
          I(f"s_mov_b32 s{sT}, {FE:#x}"), I(f"s_waitcnt vmcnt({nyoung})", tag=('novm',)),
          I(f"v_add_u32 v{vFt}, 16, v{vFt}"), I(f"v_max_u32 v{vFt}, 1, v{vFt}"),
          I(f"buffer_store_dword v{vFt}, v{vZero}, {sr(sDBG)}, 0 offen {ST}", tag=('novm',)),
          I(f"buffer_store_dword v{vFt}, v{vZero}, {sr(sWS)}, s{sT} offen {ST}", tag=('novm',)),
          I("F_noep:")]
    P += [I(f"s_lshl_b32 s{sF0me}, s2, 7"), I(f"s_add_u32 s{sF0me}, s{sF0me}, {F0:#x}"),
          I(f"s_lshl_b32 s{sF1me}, s3, 3"), I(f"s_add_u32 s{sF1me}, s{sF1me}, s{sRb}"), I(f"s_lshl_b32 s{sF1me}, s{sF1me}, 1"),
          I(f"s_add_u32 s{sF1me}, s{sF1me}, s{sType}"), I(f"s_lshl_b32 s{sF1me}, s{sF1me}, 7"), I(f"s_add_u32 s{sF1me}, s{sF1me}, {F1:#x}"),
          I(f"s_lshl_b32 s{sFlagMe}, s{sI}, 3"), I(f"s_add_u32 s{sFlagMe}, s{sFlagMe}, s{sXcd}"), I(f"s_lshl_b32 s{sFlagMe}, s{sFlagMe}, 2"),
          I(f"s_add_u32 s{sFlagMe}, s{sFlagMe}, s{sWave}"), I(f"s_lshl_b32 s{sFlagMe}, s{sFlagMe}, 2"), I(f"s_add_u32 s{sFlagMe}, s{sFlagMe}, s{sHl}"),
          I(f"s_lshl_b32 s{sFlagMe}, s{sFlagMe}, 7"), I(f"s_add_u32 s{sFlagMe}, s{sFlagMe}, {F2:#x}"),
          I(f"v_bfe_u32 v171, v{ln}, 2, 1"), I(f"s_lshl_b32 s{sT}, s{sI}, 12"), I(f"s_sub_u32 s{sT}, {15*2048}, s{sT}"),
          I(f"v_mul_lo_u32 v{vP0}, v171, s{sT}"), I(f"v_and_b32 v171, 3, v{ln}"), I(f"v_lshl_add_u32 v{vP0}, v171, 7, v{vP0}"),
          I(f"s_lshl_b32 s{sT}, s{sI}, 11"), I(f"s_lshl_b32 s{sT2}, s{sWave}, 9"), I(f"s_add_u32 s{sT}, s{sT}, s{sT2}"),
          I(f"s_add_u32 s{sT}, s{sT}, {F0:#x}"), I(f"v_add_u32 v{vP0}, s{sT}, v{vP0}"),
          I(f"s_lshl_b32 s{sT}, s{sXcd}, 1"), I(f"s_lshr_b32 s{sT2}, s{sHl}, 1"), I(f"s_add_u32 s{sT}, s{sT}, s{sT2}"),
          I(f"s_lshl_b32 s{sT}, s{sT}, 11"), I(f"s_add_u32 s0, s{sT}, {F1:#x}"),
          I(f"v_and_b32 v171, 1, v{ln}"), I(f"v_lshlrev_b32 v{vF1}, 7, v171")]
    P += [I(f"s_lshl_b32 s{sW1024}, s{sWave}, 10"),
          I(f"s_mov_b32 s{sScale}, {f32(QSCALE)}"), I(f"s_mov_b32 s{sGC0}, {f32(GC0)}"),
          I(f"s_lshl_b32 s{sOb}, s3, 6"), I(f"s_lshl_b32 s{sT}, s{sRb}, 2"), I(f"s_add_u32 s{sOb}, s{sOb}, s{sT}"),
          I(f"s_add_u32 s{sOb}, s{sOb}, s{sWave}"), I(f"s_mul_i32 s{sOb}, s{sOb}, {TS}"),
          I(f"s_mul_i32 s{sT}, s{sType}, {WS_V:#x}"), I(f"s_add_u32 s{sOb}, s{sOb}, s{sT}"),
          I(f"s_lshl_b32 s3, s{sXcd}, 2"), I(f"s_add_u32 s3, s3, s{sHl}"),
          I(f"s_lshl_b32 s4, s{sHl}, 1"), I("s_min_u32 s4, s4, 5"), I(f"s_mul_i32 s{sT}, s{sXcd}, 7"), I(f"s_add_u32 s4, s4, s{sT}"),
          I(f"s_lshl_b32 s{sXL}, s{sI}, 3"), I(f"s_lshl_b32 s{sT}, s{sWave}, 1"), I(f"s_add_u32 s{sXL}, s{sXL}, s{sT}"),
          I(f"s_sub_u32 s{sXH}, 15, s{sI}"), I(f"s_lshl_b32 s{sXH}, s{sXH}, 3"), I(f"s_add_u32 s{sXH}, s{sXH}, s{sT}")]
    for d, q in ((sHL, sXL), (sHH, sXH)):
        P += [I(f"s_mul_i32 s{d}, s{q}, 56"), I(f"s_add_u32 s{d}, s{d}, s4"), I(f"s_lshl_b32 s{d}, s{d}, 10"), I(f"s_add_u32 s{d}, s{d}, {WS_H:#x}")]
    P += [I(f"s_lshl_b32 s{sT}, s3, 12"), I(f"s_add_u32 s{sT}, s{sT}, {WS_CTX:#x}")]
    for d, q in ((sCL, sXL), (sCH, sXH)):
        P += [I(f"s_lshl_b32 s{d}, s{q}, 17"), I(f"s_add_u32 s{d}, s{d}, s{sT}"),
              I(f"s_mul_i32 s{q}, s{q}, {XS}"), I(f"s_add_u32 s{q}, s{q}, {WS_XN:#x}")]
    P += [I(f"s_lshl_b32 s{sQo}, s{sWave}, 18"), I(f"s_lshl_b32 s{sT}, s3, 8"), I(f"s_add_u32 s{sQo}, s{sQo}, s{sT}"),
          I(f"s_lshl_b32 s{sB1o}, s4, 6"), I(f"s_mul_i32 s{s1o}, s{sWave}, {32*3584}"), I(f"s_add_u32 s{s1o}, s{s1o}, s{sB1o}"),
          I(f"s_mul_i32 s{sT}, s3, {32*TS}"),
          I(f"s_add_u32 s{sKS}, s{sWS}, s{sT}"), I(f"s_addc_u32 s{sKS+1}, s{sWS+1}, 0"),
          I(f"s_add_u32 s{sVS}, s{sKS}, {WS_V:#x}"), I(f"s_addc_u32 s{sVS+1}, s{sKS+1}, 0"),
          I(f"s_sub_u32 s{sT}, 16, s{sI}"), I(f"s_mul_i32 s{sKS+2}, s{sT}, {2*TS}"), I(f"s_mov_b32 s{sVS+2}, s{sKS+2}"),
          I(f"s_mov_b32 s{sKS+3}, 0x20000"), I(f"s_mov_b32 s{sVS+3}, 0x20000"),
          I(f"s_mov_b32 s{sKt}, 0"), I(f"s_mov_b32 s{sVt}, 0"), I(f"s_mov_b32 s{sKm}, s{sW4096}"), I(f"s_mov_b32 s{sVm}, s{sW4096}"),
          I(f"s_lshr_b32 s{sXrow}, s2, 1"), I(f"s_mul_i32 s{sXrow}, s{sXrow}, {XS}"), I(f"s_and_b32 s{sT}, s2, 1"), I(f"s_lshl_b32 s{sT}, s{sT}, 7"),
          I(f"s_add_u32 s{sXrow}, s{sXrow}, s{sT}"), I(f"s_add_u32 s{sXrow}, s{sXrow}, s{sW4096}"), I(f"s_add_u32 s{sXrow}, s{sXrow}, {WS_XN:#x}")]
    P += [I(f"v_and_b32 v{TMP}, 31, v{ln}"), I(f"v_lshrrev_b32 v{TMP+1}, 5, v{ln}"),
          I(f"v_lshlrev_b32 v152, 7, v{TMP}"), I(f"v_lshl_add_u32 v152, v{TMP+1}, 4, v152"),
          I(f"v_lshl_add_u32 v152, s{sWave}, 5, v152"), I(f"v_add_u32 v152, 90112, v152"),
          I(f"v_lshl_add_u32 v157, s{sWave}, 11, v{vL16}"), I(f"v_add_u32 v157, 90112, v157"),
          I(f"v_lshlrev_b32 v158, 10, v{TMP+1}"), I(f"v_bfe_u32 v{TMP}, v{ln}, 3, 2"), I(f"v_lshl_add_u32 v158, v{TMP}, 8, v158"),
          I(f"v_and_b32 v{TMP}, 7, v{ln}"), I(f"v_lshl_add_u32 v158, v{TMP}, 4, v158")]
    P += lane_wtr(vWtrS[0], PLAN[0][1]*16384, TMP, ln)
    P += [I(f"v_add_u32 v{vWtrS[1]+c}, {(PLAN[4][1] - PLAN[0][1])*16384}, v{vWtrS[0]+c}") for c in range(4)]
    P += lane_wdma(vW1d, 3584, TMP, ln)
    P += [I(f"v_and_b32 v{TMP}, 15, v{ln}"), I(f"v_bfe_u32 v{TMP+1}, v{ln}, 2, 1"), I(f"v_bfe_u32 v{TMP+2}, v{ln}, 3, 1"),
          I(f"v_xor_b32 v{TMP+1}, v{TMP+1}, v{TMP+2}"), I(f"v_mul_u32_u24 v{TMP+1}, 12, v{TMP+1}"),
          I(f"v_mul_lo_u32 v{TMP+1}, v{TMP+1}, s{sType}"), I(f"v_xor_b32 v{TMP}, v{TMP}, v{TMP+1}"),
          I(f"v_lshrrev_b32 v{TMP+1}, 1, v{TMP}"), I(f"v_lshrrev_b32 v{TMP+2}, 4, v{ln}"), I(f"v_xor_b32 v{TMP+1}, v{TMP+1}, v{TMP+2}"),
          I(f"v_lshlrev_b32 v{TMP}, 7, v{TMP}"), I(f"v_add_u32 v{TMP}, s{sM0c}, v{TMP}"),
          I(f"v_lshl_add_u32 v{vCr}, v{TMP+1}, 4, v{TMP}"), I(f"v_xor_b32 v{TMP+1}, 4, v{TMP+1}"),
          I(f"v_lshl_add_u32 v{vCr+1}, v{TMP+1}, 4, v{TMP}"),
          I(f"v_add_u32 v{vXo2}, {XS}, v{vL16}"), I(f"v_mov_b32 v{vGC1}, {f32(GC1)}"), *LATE,
          I(f"s_cmp_eq_u32 s{sType}, 0"), I("s_cbranch_scc0 F_V")]
    return P

def ln_stream():
    XR = 144; U = 128; S = 153; T2 = 154; MB_ = 155; RS = 156
    P = []
    for k in range(8): P += [I(f"v_lshlrev_b32 v{U+2*k}, 16, v{XR+k}"), I(f"v_and_b32 v{U+2*k+1}, 0xffff0000, v{XR+k}")]
    P += [I(f"v_add_f32 v{S}, v{U}, v{U+1}")] + [I(f"v_add_f32 v{S}, v{S}, v{U+k}") for k in range(2, 16)]
    P += sum32(S, T2) + [I(f"v_mul_f32 v{S}, {f32(1/512)}, v{S}")] + bf16_round(MB_, S)
    P += [I(f"v_sub_f32 v{T2}, v{U}, v{S}"), I(f"v_mul_f32 v{RS}, v{T2}, v{T2}")]
    for k in range(1, 16): P += [I(f"v_sub_f32 v{T2}, v{U+k}, v{S}"), I(f"v_fmac_f32 v{RS}, v{T2}, v{T2}")]
    P += sum32(RS, T2) + [I(f"v_mul_f32 v{RS}, {f32(1/512)}, v{RS}")] + bf16_round(RS, RS)
    P += [I(f"v_add_f32 v{RS}, {f32(1e-5)}, v{RS}")] + bf16_round(RS, RS) + [I(f"v_sqrt_f32 v{RS}, v{RS}")] + bf16_round(RS, RS)
    P += [I(f"v_rcp_f32 v{RS}, v{RS}")]
    for k in range(8):
        a, b = U+2*k, U+2*k+1
        P += [I(f"v_sub_f32 v{a}, v{a}, v{MB_}"), I(f"v_sub_f32 v{b}, v{b}, v{MB_}"), I(f"v_cvt_pk_bf16_f32 v{T2}, v{a}, v{b}"),
              I(f"v_lshlrev_b32 v{a}, 16, v{T2}"), I(f"v_and_b32 v{b}, 0xffff0000, v{T2}"),
              I(f"v_mul_f32 v{a}, v{a}, v{RS}"), I(f"v_mul_f32 v{b}, v{b}, v{RS}"), I(f"v_cvt_pk_bf16_f32 v{XR+k}, v{a}, v{b}")]
    return P
def xn_out():
    XR = 144
    return ([I(f"ds_write_b128 v152, {vr(XR)}"), I(f"ds_write_b128 v152, {vr(XR+4)} offset:4096")],
            [I(f"ds_read_b128 {vr(160)}, v157"), I(f"ds_read_b128 {vr(164)}, v157 offset:1024")],
            [I(f"buffer_store_dwordx4 {vr(160)}, v158, {sr(sWS)}, s{sXrow} offen {ST}", tag=('vm', 'xnst')),
             I(f"buffer_store_dwordx4 {vr(164)}, v158, {sr(sWS)}, s{sXrow} offen offset:2048 {ST}", tag=('vm', 'xnst'))])

def pack_swap(T, X, Y):
    return [I(f"v_cvt_pk_bf16_f32 v{T}, v{X}, v{X+1}"), I(f"v_cvt_pk_bf16_f32 v{T+2}, v{Y}, v{Y+1}"),
            I(f"v_cvt_pk_bf16_f32 v{T+1}, v{X+2}, v{X+3}"), I(f"v_cvt_pk_bf16_f32 v{T+3}, v{Y+2}, v{Y+3}")], \
           [I(f"v_permlane16_swap_b32 v{T}, v{T+2}"), I(f"v_permlane16_swap_b32 v{T+1}, v{T+3}")]

def kv_epilogue(cp, isV):
    acc = ACCB[cp]; out = []
    for k, f in enumerate([7, 5, 0, 1, 2, 3, 4, 6]):
        V = []
        if isV:
            kb, dbl = divmod(f, 2)
            X = acc + ((2*dbl)*4 + kb)*4; Y = X + 16
            soff = (cp//2)*32*TS + kb*4096; ioff = (2*(cp % 2) + dbl)*1024
        else:
            kb32, c = divmod(f, 4)
            X = acc + (c*4 + 2*kb32)*4; Y = X + 4
            soff = (cp//2)*32*TS + kb32*8192 + (cp % 2)*4096; ioff = c*1024
        T = PK + (k % 2)*4
        if not isV: V += [I(f"v_mul_f32 v{r}, s{sScale}, v{r}") for r in list(range(X, X+4)) + list(range(Y, Y+4))]
        else: V += [I("", tag=('pad',)) for r in range(8)]
        a, b = pack_swap(T, X, Y)
        V += a + [I(f"s_add_u32 s{sSt}, s{sOb}, {soff}")] + b
        V += [I(f"buffer_store_dwordx4 {vr(T)}, v{vL16}, {sr(sWS)}, s{sSt} offen offset:{ioff} {'' if flag('kvplain') else ST}", tag=('vm', 'kvst'))]
        if flag('nokvst'): V.pop()
        out.append(V)
    return out

def gelu_stream():
    P = []
    for b in range(4):
        for fs in range(2):
            T = GP[(b*2 + fs) % 2]
            for half in range(2):
                X = ACCB[4] + ((2*fs + half)*4 + b)*4
                regs = list(range(X, X+4)); tt = list(range(GT, GT + 4))
                P += [I(f"v_mul_f32 v{t}, v{r}, v{r}") for t, r in zip(tt, regs)]
                P += [I(f"v_fma_f32 v{t}, v{t}, v{vGC1}, s{sGC0}") for t in tt]
                P += [I(f"v_mul_f32 v{t}, v{t}, v{r}") for t, r in zip(tt, regs)]
                P += [I(f"v_exp_f32 v{t}, v{t}") for t in tt]
                P += [I(f"v_add_f32 v{t}, 1.0, v{t}") for t in tt]
                P += [I(f"v_rcp_f32 v{t}, v{t}") for t in tt]
                P += [I(f"v_mul_f32 v{t}, v{t}, v{r}") for t, r in zip(tt, regs)]
                P += [I(f"v_cvt_pk_bf16_f32 v{T+2*half+j}, v{tt[2*j]}, v{tt[2*j+1]}") for j in range(2)]
            P += [I(f"s_add_u32 s{sSt}, s{sHL if b < 2 else sHH}, {(b % 2)*56*1024}"),
                  I(f"buffer_store_dwordx4 {vr(T)}, v{vL16}, {sr(sWS)}, s{sSt} offen offset:{fs*1024} {ST}")]
    return P
def bias_stream():
    A = ACCB[4]; R = A + 56
    ld = [I(f"buffer_load_dwordx2 v[{R+2*c}:{R+2*c+1}], v{vBo}, {sr(sB1)}, s{sB1o} offen offset:{32*c}") for c in range(4)]
    un = []
    for c in range(4):
        for kb in ([0, 1, 2, 3] if c < 3 else [0]):
            d = A + (c*4 + kb)*4
            for k in range(2): un += [I(f"v_lshlrev_b32 v{d+2*k}, 16, v{R+2*c+k}"), I(f"v_and_b32 v{d+2*k+1}, 0xffff0000, v{R+2*c+k}")]
    un += [I(f"v_mov_b32 v{A+48+4*kb+j}, v{A+48+j}") for kb in (1, 2, 3) for j in range(4)]
    return ld, un

def qconv(cp, qb, c):
    X = ACCB[cp] + (c*4 + 2*qb)*4; T = GP[c % 2]
    a, b = pack_swap(T, X, X + 4)
    return a + b + [I(f"v_accvgpr_write_b32 a{QF(qb, 4*(cp-5) + c)+j}, v{T+j}") for j in range(4)]

def engine(isV):
    NF = 448
    grp = [(cp, ks, c) for cp, ks in ORDER for c in range(4)]
    def c_reads(ch):
        return [I(f"ds_read_b128 {ar(XF(kb, 2*ch + ks2))}, v{vCr+ks2} offset:{(ch % 3)*8192 + kb*2048}") for ks2 in range(2) for kb in range(4)]
    def w_reads(n):
        cp, ks, c = grp[n]; r = WF + (n % NWF)*4; va = vWtrS[cp % 2] + c; off = (ks % 4)*4096
        return [I(f"ds_read_b64_tr_b16 {vr(r,2)}, v{va} offset:{off}"), I(f"ds_read_b64_tr_b16 {vr(r+2,2)}, v{va} offset:{off+1024}")]
    head = stamp(1) + [needvm('c0')] + c_reads(0) + [needvm('w0'), I("s_barrier")] + stamp(2)
    for n in range(PF): head += w_reads(n)
    mf = []; post = {}; valu = []; dmaq = []
    def addpost(g, items): post.setdefault(g, []).extend(items)
    def add(mg, items):
        for it in items: valu.append((mg, it))
    G = lambda n: 4*n
    for n, (cp, ks, c) in enumerate(grp):
        wf = vr(WF + (n % NWF)*4)
        for kb in range(4):
            d = vr(ACCB[cp] + (c*4 + kb)*4); cf = ar(XF(kb, ks))
            cin = d if (ks or cp == 4) else "0"
            mf.append(I(f"{M16} {d}, {cf}, {wf}, {cin}" if (isV and cp < 4) else f"{M16} {d}, {wf}, {cf}, {cin}"))
        if n + 1 < NF: addpost(G(n) + 3, [needlg(regs_in(vr(WF + ((n + 1) % NWF)*4)))])
    cur = {0: PLAN[0][1], 1: PLAN[4][1]}
    for u in sorted(FU, key=lambda u: FU[u]):
        st = (u // 4) % 2; delta = (PLAN[u][1] - cur[st])*16384; cur[st] = PLAN[u][1]
        if delta:
            g = G(FU[u] - PF)
            addpost(g - 3, [I(f"v_add_u32 v{vWtrS[st]+k}, {delta & 0xffffffff:#x}, v{vWtrS[st]+k}") for k in range(2)])
            addpost(g - 2, [I(f"v_add_u32 v{vWtrS[st]+k}, {delta & 0xffffffff:#x}, v{vWtrS[st]+k}") for k in range(2, 4)])
    bs0, bs1 = val('bs0', 124), val('bs1', 348)
    assert bs0 in BARS and bs1 in BARS
    for k, p in enumerate(BARS):
        if p < 0: continue
        names = [f'w{u}' for u in NEED if NEED[u] == p] + (['xnst'] if p == bs0 else []) + (['kvst'] if p == bs1 else [])
        addpost(G(p) - 1, ([I("s_waitcnt lgkmcnt(0)")] if p == 72 else []) + ([needvm(*names)] if names else []) + ([] if flag('nobar') else [I("s_barrier")]) + (stamp(20 + k) if flag('fine') else []))
        for u in sorted(PLAN, key=lambda u: FU[u]):
            if PLAN[u][0] == p and not (flag('nowd') and p > 60): dmaq.append((G(p) + 1, w_dma(u)))
    addpost(G(bs0) + 1, flag_put(vFt, vZero, sF0me, 1))
    addpost(G(bs1) + 1, flag_put(vFt, vZero, sF1me, 1))
    for n in range(NF - PF): addpost(G(n), w_reads(n + PF))
    R = [None, 2, 10, 18, 26, 38, 50, 62]
    D = {3: 3, 4: 9, 5: val('d5', 18), 6: val('d6', 28), 7: val('d7', 41)}
    for ch in range(1, 8):
        addpost(G(R[ch]) + 1, [needvm(f'c{ch}')])
        rd = c_reads(ch)
        for k in range(4): addpost(G(R[ch]) + 2 + 4*k, rd[2*k:2*k+2])
    for ch, g in D.items():
        old = ch - 3
        assert old == 0 or g >= R[old] + 5
        regs = [r for x in c_reads(old) for r in x.wr]
        addpost(G(g) + 1, [needlg(regs)])
        for q in c_dma(ch): dmaq.append((G(g) + 1, q, 1 if ch < 5 else val('cstep', 3)))
    for ks in range(16):
        L = []
        if ks % 4 == 0: L += [I(f"s_add_u32 s{sXLc}, s{sXL}, {(ks//4)*4096}"), I(f"s_add_u32 s{sXHc}, s{sXH}, {(ks//4)*4096}")]
        L += [I(f"buffer_load_dwordx4 {ar(XF(b, ks))}, v{vXo2 if b % 2 else vL16}, {sr(sWS)}, s{sXHc if b >= 2 else sXLc} offen offset:{(ks % 4)*1024} {'' if flag('xnnosc') else LD}") for b in range(4)]
        if not flag('noxn'): dmaq.append((G(POS[(3, ks)] + 4) + 1, L))
    if not flag('nopfw'):
        dmaq.append((G(val('pfw', 14)), [pf_load(vJ, 170, sWkv, f"s{sWpf}")]))
        dmaq.append((G(val('pfw2', 52)), [I(f"s_add_u32 s{sWpf}, s{sWpf}, 32768"), pf_load(vJ, 170, sWkv, f"s{sWpf}")]))
    dmaq.append((G(56), [poll_issue(vPoll, vZero, sDBG, "0")]))
    addpost(G(110) + 2, epoch_check(vPoll, vZero, sT2))
    gs0 = val('gs0', 150)
    dmaq.append((G(gs0), [poll_issue(vPoll, vP0, sWS, "0")]))
    addpost(G(167) + 2, stamp(50) + poll_check(vPoll, vP0, sWS, "0", 1, sT2, sT3) + stamp(51))
    xw, xr, xs = xn_out()
    add(2, ln_stream()); add(G(60), xw)
    addpost(G(72) + 2, xr)
    dmaq.append((G(val('gxs', 90)), xs))
    dmaq.append((G(120), [pf_load(vJ, vBo, sB1, f"s{sB1o}")]))
    bl, bu = bias_stream()
    sp = val('esp', 7)
    for cp, g, w in ((0, 98, sp), (1, 162, val('esp1', 5)), (2, 226, sp), (3, 286, 0)):
        for k, fr in enumerate(kv_epilogue(cp, isV)):
            if not flag('noepi'): add(G(g + k*w), fr)
            if cp == 1 and k == 1: add(0, bl)
        if cp == 1:
            add(G(206), bu)
            if flag('fine'):
                for k, g in enumerate((val('f0', 157), val('f1', 160), val('f2', 163), val('f3', 165))): addpost(G(g) + 3, stamp(44 + k))
    if not flag('nogelu'): add(G(322), gelu_stream())
    for qb in range(2):
        for c in range(4): add(G(384) + 16*(8*qb + c) + 18, qconv(5, qb, c))
    gs1 = val('gs1', 398)
    dmaq.append((G(gs1), [poll_issue(vPoll, vF1, sWS, "s0")]))
    addpost(G(gs1 + 14) + 1, stamp(48) + poll_check(vPoll, vF1, sWS, "s0", 1, sT2, sT3) + stamp(49) + [I(f"v_add_u32 v{vKVd}, s{sW4096}, v{vL16}")])
    assert all(SLOTFREE[sl] <= gs1 + 14 for sl in (0, 4, 1, 2, 5)), SLOTFREE
    assert min(PLAN[u][0] for u in PLAN if PLAN[u][1] == 5) >= 92
    for k, wh in enumerate("KVKKV"): dmaq.append((G(gs1 + 15 + 6*k), kv_dma(wh, f'kv{k}')))
    def warm(g, V, M):
        if V: addpost(G(g) + 1, V[:2])
        if V[2:]: addpost(G(g) + 2, V[2:])
        dmaq.append((G(g + 1), M))
    if flag('pfqs'):
        g0 = val('pfq', 76); dq = val('pfqd', 18)
        for k in range(4):
            warm(g0 + dq*k, [I(f"v_lshlrev_b32 v252, 2, v{vL16}")] if k == 0 else [],
                 [I(f"s_lshl_b32 s{sT}, s2, 14"), I(f"s_add_u32 s{sT}, s{sT}, {4096*k}"), I(f"s_cmp_eq_u32 s{sWave}, {k}"),
                  I(f"s_cselect_b32 s{sT}, s{sT}, 0x1000000"), pf_load(vJ, 252, sWQ, f"s{sT}")])
    elif flag('pfqc'):
        warm(val('pfq', 130), [I(f"v_lshlrev_b32 v252, 2, v{vL16}")],
             [I(f"s_lshl_b32 s{sT}, s2, 14"), I(f"s_add_u32 s{sT}, s{sT}, s{sW4096}"), pf_load(vJ, 252, sWQ, f"s{sT}")])
    elif not flag('nopfq'):
        warm(val('pfq', 130), [I(f"v_bfe_u32 v252, v{vL16}, 4, 4"), I(f"v_lshlrev_b32 v253, 10, v{vBo}"), I(f"v_lshl_add_u32 v252, v252, 6, v253")],
             [I(f"s_lshl_b32 s{sT}, s97, 15"), I(f"s_lshl_b32 s{sT2}, s{sXcd}, 10"), I(f"s_add_u32 s{sT}, s{sT}, s{sT2}"), pf_load(vJ, 252, sWQ, f"s{sT}")])
    if not flag('nopf1'):
        warm(val('pf1', 16), [I(f"v_lshlrev_b32 v253, 1, v{vL16}")],
             [I(f"s_mul_i32 s{sT}, s2, 7168"), I(f"s_mul_i32 s{sT2}, s{sWave}, 1792"), I(f"s_add_u32 s{sT}, s{sT}, s{sT2}"), pf_load(vJ, 253, sW1, f"s{sT}")])
    if flag('pfo_old'):
        warm(330, [I(f"v_lshlrev_b32 v252, 2, v{vL16}"), I(f"v_lshlrev_b32 v253, 1, v{vL16}")],
             [I(f"s_lshl_b32 s{sT}, s{sXcd}, 19"), I(f"s_lshl_b32 s{sT2}, s97, 12"), I(f"s_add_u32 s{sT}, s{sT}, s{sT2}"), pf_load(vJ, 252, sWO, f"s{sT}")])
        dmaq.append((G(334), [I(f"s_mul_i32 s{sT}, s{sXcd}, {224*1024}"), I(f"s_mul_i32 s{sT2}, s97, 1792"), I(f"s_add_u32 s{sT}, s{sT}, s{sT2}"), pf_load(vJ, 253, sW2, f"s{sT}")]))
    if not flag('nopf2'):
        V, M = code_pf("F_AAe", "F_Bend", 252, vJ, vL16, 0); warm(352, V, M)
        V, M = code_pf("F_AAe", "F_Bend", 253, vJ, vL16, 1); warm(368, V, M)
    if flag('pf4'):
        V, M = code_pf("F_J", "F_AAe", 252, vJ, vL16); warm(val('gpf4', 270), V, M)
        addpost(G(150) + 1, [I(f"F_mid{int(isV)}:")])
        V, M = code_pf(f"F_mid{int(isV)}", "F_J" if isV else "F_V", 252, vJ, vL16); warm(val('gpf5', 112), V, M)
    place_dma(dmaq, addpost, step=val('estep', 4), ok=lambda g: g % 4 in (1, 2))
    for k, p in enumerate((32, 96, 160, 224, 288, 320)): addpost(G(p) - 1, stamp(3 + k))
    def budget(g, p):
        n = sum(1 for x in p if x.txt or (x.tag and x.tag[0] != 'needvm'))
        if any(x.kind == 'dsr' for x in p): return 1 if n == 1 else 0
        nd = sum(1 for x in p if x.kind in ('dma', 'vld', 'vst'))
        return max(0, 2 - max(0, n - 1) - nd)
    body, left = weave(mf, post, valu, budget)
    if OPT.verbose: print(f"[engine] leftover valu {left}", file=sys.stderr)
    mi = 0; start = {cp: G(POS[(cp, 0)]) for cp in range(7)}; end = {cp: G(POS[(cp, 15)] + 4) for cp in range(7)}
    for x in body:
        if x.kind == 'mfma': mi += 1; continue
        if x.kind == 'dsw': assert G(60) <= mi < G(72) - 1, mi
        for r in (x.rd | x.wr):
            if r[0] == 'v' and r != 'vcc' and int(r[1:]) < 192:
                q = int(r[1:])
                for cp in range(7):
                    if ACCB[cp] <= q < ACCB[cp] + 64:
                        blk = (q - ACCB[cp]) // 4
                        assert not (start[cp] + blk < mi <= end[cp] - 16 + blk), ("accumulator busy", cp, mi, x.txt)
    idx = [k for k, x in enumerate(body) if x.kind == 'mfma'][G(336)]
    return head + body[:idx], body[idx:]
```

```python
from f_common import *
import f_p1 as P1
from f_p1 import QF, kv_dma, sKt, sKm, sVt, sVm, sCL, sCH, vL16, vKVd, qconv

THRESH = 2.0**30
sCnt, sKey, sKr, sVr, sThr, sOffA, sOffB = range(74, 81)
sRet2 = 100
sRet = 82; MK = [84, 86, 88, 98]
sWoO, sW2o, sHLo, sHHo, sPo, sCc, sCc2 = 76, 3, 4, 5, 80, 81, 90
sFb = 97
sSib = [84, 85, 86]
sWoS = [87, 88, 89]
NEG = [128, 144]; T0 = 160
vK, vV, vL16V = 192, 193, 194
Lr = [[196, 197], [198, 199]]; vMx = [200, 201]; vF = [202, 203]; vThr, vNinf, vTm = 204, 205, 206
vPo, vF2, vF3, vZ, vFl = 207, 208, 209, 210, 211
vWtrA, vWtrB, vWd3, vC2, vH2 = 212, 216, 220, 221, 195
PKT = 226
OA = lambda qb, db: (qb*4 + db)*16
RING = 192
NPRE = 8

def blk_q(typ, blk): return (blk % 2) if typ == 'A' else 1
def qk_mfmas(typ, S):
    L = []
    if typ == 'A':
        for kb in range(2):
            for ks in range(8):
                for qb in range(2):
                    d = vr(S + (2*kb + qb)*16, 16)
                    L.append((d, kb*8 + ks, ar(QF(qb, ks)), d if ks else vr(NEG[qb], 16)))
    else:
        for kb in range(4):
            for ks in range(8):
                d = vr(S + kb*16, 16)
                L.append((d, kb*8 + ks, ar(QF(1, ks)), d if ks else vr(NEG[1], 16)))
    return L
def pv_mfmas(typ, S):
    L = []
    if typ == 'A':
        for ks4 in range(4):
            for db in range(4):
                for qb in range(2):
                    d = ar(OA(qb, db), 16)
                    L.append((d, ks4*4 + db, vr(S + (2*(ks4//2) + qb)*16 + 8*(ks4 % 2)), d))
    else:
        for ks8 in range(8):
            for db in range(4):
                d = ar(OA(1, db), 16)
                L.append((d, ks8*4 + db, vr(S + (ks8//2)*16 + 8*(ks8 % 2)), d))
    return L
def expblk(S, qb, first):
    lp = Lr[qb][1]
    E = []; C = []
    for j in range(8):
        a, b = S + 2*j, S + 2*j + 1
        E.append([I(f"v_exp_f32 v{a}, v{a}"), I(f"v_exp_f32 v{b}, v{b}")])
        cv = I(f"v_cvt_pk_bf16_f32 v{S + 8*(j//4) + j % 4}, v{a}, v{b}")
        if first and j == 0: C.append([I(f"v_add_f32 v{lp}, v{a}, v{b}"), cv])
        elif flag('tree'): C.append([I(f"v_add_f32 v{vMx[1]}, v{a}, v{b}"), cv, I(f"v_add_f32 v{lp}, v{lp}, v{vMx[1]}")])
        elif (S + 8*(j//4) + j % 4) in (a, b): C.append([I(f"v_add_f32 v{lp}, v{lp}, v{a}"), I(f"v_add_f32 v{lp}, v{lp}, v{b}"), cv])
        else: C.append([I(f"v_add_f32 v{lp}, v{lp}, v{a}"), cv, I(f"v_add_f32 v{lp}, v{lp}, v{b}")])
    L = []
    if flag('nodelay'):
        for j in range(8): L += E[j] + C[j]
    else:
        L += E[0]
        for j in range(8):
            if j + 1 < 8: L += E[j+1][:1] + C[j][:1] + E[j+1][1:] + C[j][1:]
            else: L += C[j]
    return L
def blk_first(typ, blk): return blk < 2 if typ == 'A' else blk == 0
def maxblk(S, mx, first):
    L = []; r = list(range(S, S + 16))
    if first: L.append(I(f"v_max3_f32 v{mx}, v{r[0]}, v{r[1]}, v{r[2]}")); r = r[3:]
    while len(r) >= 2: L.append(I(f"v_max3_f32 v{mx}, v{mx}, v{r[0]}, v{r[1]}")); r = r[2:]
    if r: L.append(I(f"v_max_f32 v{mx}, v{mx}, v{r[0]}"))
    return L
def maskblk(S, kbg, soff=None):
    L = []
    if soff is not None:
        L.append(I(f"v_add_u32 v{vTm}, s{soff}, v{vThr}"))
        if kbg: L.append(I(f"v_subrev_u32 v{vTm}, {32*kbg}, v{vTm}"))
        t = vTm
    elif kbg: L.append(I(f"v_subrev_u32 v{vTm}, {32*kbg}, v{vThr}")); t = vTm
    else: t = vThr
    for r0 in range(0, 16, 4):
        L += [I(f"v_cmp_le_i32 s[{MK[k]}:{MK[k]+1}], {8*((r0+k)//4) + (r0+k) % 4}, v{t}") for k in range(4)]
        L += [I(f"v_cndmask_b32 v{S+r0+k}, v{vNinf}, v{S+r0+k}, s[{MK[k]}:{MK[k]+1}]") for k in range(4)]
    return L
def xmax(v, t): return [I(f"v_mov_b32 v{t}, v{v}"), I(f"v_permlane32_swap_b32 v{v}, v{t}"), I(f"v_max_f32 v{v}, v{v}, v{t}")]
def kread(f, slot): return I(f"ds_read_b128 {ar(RING + (slot % 16)*4)}, v{vK} offset:{f*1024}")
def vread(f, slot): return I(f"ds_read_b128 {ar(RING + (slot % 16)*4)}, v{vV} offset:{f*1024}")
def kv_dma2(which):
    srd_, t, m = (sKS, sKt, sKm) if which == 'K' else (sVS, sVt, sVm)
    base = 0 if which == 'K' else 0x10000
    d = lambda so: [I(f"buffer_load_dwordx4 v{vKVd}, {sr(srd_)}, s{so} offen offset:{1024*b} {LD} lds") for b in range(4)]
    return [[I(f"s_add_u32 m0, s{m}, {base:#x}")] + d(t),
            [I(f"s_add_u32 m0, s{m}, {base + 0x4000:#x}"), I(f"s_add_u32 s{sT2}, s{t}, {TS}"),
             I(f"s_add_u32 s{t}, s{t}, {2*TS}"), I(f"s_xor_b32 s{m}, s{m}, 0x8000")] + d(sT2)]

uid = [0]
def step(cur, nxt, p, kadv, mask=None, xwait=16, name="", extra_dma=None, extra_valu=None, extra_post=None, extra_h1=None):
    uid[0] += 1; u = uid[0]
    Sc, Sn = 64*p, 64*(1 - p)
    mf = []; use = []
    qk = qk_mfmas(nxt, Sn) if nxt else []
    nK = (16 if nxt == 'A' else 32) if nxt else 0
    for d, f, q, cin in qk:
        mf.append(I(f"{M32} {d}, {ar(RING + (f % 16)*4)}, {q}, {cin}")); use.append(f)
    for d, f, pf, cin in pv_mfmas(cur, Sc):
        mf.append(I(f"{M32} {d}, {ar(RING + ((nK + f) % 16)*4)}, {pf}, {cin}")); use.append(nK + f)
    nV = 16 if cur == 'A' else 32
    NG = len(mf); fu = {}
    for g, f in enumerate(use): fu.setdefault(f, g)
    post = {}; dmaq = []
    def addpost(g, items): post.setdefault(g, []).extend(items)
    D = val('D', 8); BO = val('bo', 3)
    hasY = nxt is not None and (cur == 'B' or nxt == 'B')
    pre = []
    ring = lambda f: regs_in(ar(RING + (f % 16)*4))
    for f in range(0, nK + nV, 2):
        if fu[f] > 0: addpost(fu[f] - 1, [needlg(ring(f) + ring(f + 1))])
    last = -2
    for f in range(NPRE if nxt else 0, nK, 2):
        last = max(fu[f] - D, last + 1, 0)
        addpost(last, [kread(f, f), kread(f + 1, f + 1)])
    vadv = [I(f"v_add_u32 v{vV}, s{sVr}, v{vL16V}"),
            I(f"s_add_u32 s{sVr}, s{sVr}, {0x4000 if cur == 'A' else 0x8000}"), I(f"s_and_b32 s{sVr}, s{sVr}, 0xffff")]
    vf0 = 0
    if nxt is None:
        pre += vadv[:1] + [vread(f, nK + f) for f in range(8)]; vf0 = 8
    else:
        addpost(last + 1, vadv)
        if hasY:
            gY = last + BO
            addpost(gY, [I("s_waitcnt vmcnt(16) lgkmcnt(0)" if cur == 'B' else "s_waitcnt lgkmcnt(0)"), I("s_barrier")])
            last = gY
        else: last = last + 1
    for f in range(vf0, nV, 2):
        last = max(fu[nK + f] - D, last + 1, 0)
        addpost(last, [vread(f, nK + f), vread(f + 1, nK + f + 1)])
    gX = NG
    if nxt is not None:
        gX = last + BO
        addpost(gX - 1, [I(f"v_add_u32 v{vK}, s{sKr}, v{vL16}")] +
                ([I(f"s_add_u32 s{sKr}, s{sKr}, {kadv*0x4000}"), I(f"s_and_b32 s{sKr}, s{sKr}, 0xffff")] if kadv else []))
        addpost(gX, [I(f"s_waitcnt vmcnt({xwait}) lgkmcnt(0)"), I("s_barrier")])
        gs = [gX + 1, gX + 2, gX + 4, gX + 6] if gX + 6 < NG else [gX + 1, gX + 2, gX + 3, gX + 4]
        assert gs[-1] < NG, (name, gX, NG)
        for j in range(NPRE // 2): addpost(gs[j], [kread(2*j, 2*j), kread(2*j + 1, 2*j + 1)])
    dstep = 2
    if cur == 'A' and nxt == 'A': dmaq = [(1, kv_dma('K')), (1, kv_dma('V'))]; dstep = 3 if extra_dma else 4
    elif cur == 'A' and nxt == 'B': dmaq = [(1, kv_dma('K'))] + [(gY + 2, x) for x in kv_dma2('K')]
    elif cur == 'B' and nxt == 'B':
        dmaq = [(0, x) for x in kv_dma2('V')]
        if not mask: dmaq += [(gY + 3, x) for x in kv_dma2('K')]
    if extra_dma: dmaq += extra_dma
    for g, it in (extra_post or {}).items(): addpost(g, it)
    if dmaq:
        endg = place_dma(dmaq, addpost, step=dstep)
        assert endg - dstep < gX, (name, endg, gX)
        if hasY and cur == 'B': assert max(g for g, l in post.items() if any(x.kind == 'dma' and sr(sVS) in x.txt for x in l)) < gY
    valu = []
    def add(mg, items):
        for it in items: valu.append((mg, it))
    H1 = len(qk)
    for blk in (2, 3): add(0, expblk(Sc + 16*blk, blk_q(cur, blk), False))
    done = {}
    for g, (d, f, q, cin) in enumerate(qk): done[d] = g
    mdict = {m[0]: m for m in (mask or [])}
    def domask(blk):
        if blk in mdict: add(done[vr(Sn + 16*blk, 16)] + 3, maskblk(Sn + 16*blk, mdict[blk][1], mdict[blk][2]))
    domask(0); domask(1)
    add(0, extra_h1 or [])
    qbs = (0, 1) if cur == 'A' else (1,)
    if cur == 'A': add(0, [I(f"v_max_f32 v{vMx[0]}, v{Lr[0][1]}, v{Lr[1][1]}")])
    add(max(H1 - 1, 0), [I(f"v_cmp_lt_f32 vcc, s{sThr}, v{vMx[0] if cur == 'A' else Lr[1][1]}"),
            [I(f"s_cbranch_vccz F_c{u}"), I(f"s_call_b64 s[{sRet}:{sRet+1}], F_X{cur}{nxt or 'n'}{p}"), I(f"F_c{u}:")]])
    force = {H1: len(valu) - 1}
    add(0, [I(f"v_add_f32 v{Lr[q][0]}, v{Lr[q][0]}, v{Lr[q][1]}") for q in qbs])
    if nxt is not None:
        add(0, [I(f"s_add_u32 s{sKey}, s{sKey}, {64 if cur == 'A' else 128}")])
        add(0, expblk(Sn, blk_q(nxt, 0), True))
        domask(2); domask(3)
        add(done[vr(Sn + 16, 16)] + 3, expblk(Sn + 16, blk_q(nxt, 1), blk_first(nxt, 1)))
    add(0, extra_valu or [])
    def budget(g, pp):
        nd = sum(1 for x in pp if x.kind == 'dsr'); nm = sum(1 for x in pp if x.kind in ('dma', 'vld', 'vst'))
        return max(val('bud', 6) - max(0, len(pp) - 1) - (1 if nd else 0) - (val('dmac', 1) if nm else 0), 0)
    body, left = weave(mf, post, valu, budget, flush_dep=True, force=force)
    tail = []
    if OPT.verbose: print(f"[step {name}] leftover valu {left}", file=sys.stderr)
    return pre + body + tail

def finalize(qb, sbase, inter=None, tag='cst'):
    l0, l1 = Lr[qb]; inter = list(inter or [])
    l1 = vTm
    L = [I(f"v_mov_b32 v{l1}, v{l0}"), I(f"v_permlane32_swap_b32 v{l0}, v{l1}"),
         I(f"v_add_f32 v{l0}, v{l0}, v{l1}"), I(f"v_rcp_f32 v{l0}, v{l0}"), I(f"s_add_u32 s{sFb}, s{sbase}, 0x20000")]
    for db in range(4):
        t = T0 + (db % 2)*16; A = PKT + (db % 2)*8; B = A + 4
        for r0 in range(0, 16, 4):
            L += [I(f"v_accvgpr_read_b32 v{t+r}, a{OA(qb, db)+r}") for r in range(r0, r0 + 4)]
            if inter: L += inter.pop(0)
        for r0 in range(0, 16, 4):
            L += [I(f"v_mul_f32 v{t+r}, v{t+r}, v{l0}") for r in range(r0, r0 + 4)]
            if inter: L += inter.pop(0)
        for pc, T in ((0, A), (1, B)):
            L += [I(f"v_cvt_pk_bf16_f32 v{T}, v{t+4*pc}, v{t+4*pc+1}"), I(f"v_cvt_pk_bf16_f32 v{T+1}, v{t+4*pc+2}, v{t+4*pc+3}"),
                  I(f"v_cvt_pk_bf16_f32 v{T+2}, v{t+8+4*pc}, v{t+8+4*pc+1}"), I(f"v_cvt_pk_bf16_f32 v{T+3}, v{t+8+4*pc+2}, v{t+8+4*pc+3}")]
        L += [I(f"v_permlane32_swap_b32 v{A+j}, v{B+j}") for j in range(4)]
        L += [I(f"v_permlane16_swap_b32 v{A+j}, v{B+j}") for j in range(4)]
        L += [I(f"buffer_store_dwordx4 {vr(A)}, v{vL16}, {sr(sWS)}, s{sbase} offen offset:{db*1024} {ST}", tag=('vm', tag)),
              I(f"buffer_store_dwordx4 {vr(B)}, v{vL16}, {sr(sWS)}, s{sFb} offen offset:{db*1024} {ST}", tag=('vm', tag))]
        L += [I(f"v_accvgpr_write_b32 a{16*db + 8*qb + j}, v{A+j}") for j in range(8)]
    for g in inter: L += g
    return L

def fin_parts(qb, sbase):
    l0 = Lr[qb][0]; l1 = vF[0]; t = T0; A = PKT; B = A + 4
    head = [I(f"v_mov_b32 v{l1}, v{l0}"), I(f"s_add_u32 s{sFb}, s{sbase}, 0x20000"), I(f"v_permlane32_swap_b32 v{l0}, v{l1}"),
            I(f"v_add_f32 v{l0}, v{l0}, v{l1}"), I(f"v_rcp_f32 v{l0}, v{l0}")]
    parts = []
    for db in range(4):
        p1 = [I(f"v_accvgpr_read_b32 v{t+r}, a{OA(qb, db)+r}") for r in range(16)] + [I(f"v_mul_f32 v{t+r}, v{t+r}, v{l0}") for r in range(16)]
        p2 = []
        for pc, T in ((0, A), (1, B)):
            p2 += [I(f"v_cvt_pk_bf16_f32 v{T}, v{t+4*pc}, v{t+4*pc+1}"), I(f"v_cvt_pk_bf16_f32 v{T+1}, v{t+4*pc+2}, v{t+4*pc+3}"),
                   I(f"v_cvt_pk_bf16_f32 v{T+2}, v{t+8+4*pc}, v{t+8+4*pc+1}"), I(f"v_cvt_pk_bf16_f32 v{T+3}, v{t+8+4*pc+2}, v{t+8+4*pc+3}")]
        p2 += [I(f"v_permlane32_swap_b32 v{A+j}, v{B+j}") for j in range(4)] + [I(f"v_permlane16_swap_b32 v{A+j}, v{B+j}") for j in range(4)]
        p2 += [I(f"buffer_store_dwordx4 {vr(A)}, v{vL16}, {sr(sWS)}, s{sbase} offen offset:{db*1024} {ST}"),
               I(f"buffer_store_dwordx4 {vr(B)}, v{vL16}, {sr(sWS)}, s{sFb} offen offset:{db*1024} {ST}")]
        p2 += [I(f"v_accvgpr_write_b32 a{16*db + 8*qb + j}, v{A+j}") for j in range(8)]
        parts.append((p1, p2))
    return head, parts

def rare_redo(typ, p):
    S = 64*p; T = T0 + 16
    L = [I(f"F_R{typ}{p}:"), I("s_nop 15"), I(f"s_mul_i32 s{sT3}, s{sKey}, {TS // 64}")]
    qk = qk_mfmas(typ, S)
    nf = 16 if typ == 'A' else 32
    for f0 in range(0, nf, 4):
        L += [I(f"s_add_u32 s{sOffA}, s{sT3}, {(f0 % 16)*1024 + (f0 // 16)*TS}")]
        L += [I(f"buffer_load_dwordx4 {vr(T + 4*k)}, v{vL16}, {sr(sKS)}, s{sOffA} offen offset:{1024*k} {LD}") for k in range(4)]
        L += [I("s_waitcnt vmcnt(0)")]
        L += [I(f"{M32} {d}, {vr(T + 4*(f - f0))}, {q}, {cin}") for d, f, q, cin in qk if f0 <= f < f0 + 4]
        L += [I("s_nop 7")]
    for qb in ((0, 1) if typ == 'A' else (1,)):
        blks = [b for b in range(4) if blk_q(typ, b) == qb]; m = vMx[qb]
        L += [I(f"s_lshl_b32 s{sOffA}, s{sI}, 7")] if qb == 0 else [I(f"s_sub_u32 s{sOffA}, 15, s{sI}"), I(f"s_lshl_b32 s{sOffA}, s{sOffA}, 7")]
        L += [I(f"s_sub_u32 s{sOffA}, s{sOffA}, s{sKey}")]
        for k, b in enumerate(blks): L += maskblk(S + 16*b, k, sOffA)
        for k, b in enumerate(blks): L += maxblk(S + 16*b, m, k == 0)
        L += xmax(m, vTm) + [I(f"v_max_f32 v{m}, 0, v{m}"), I(f"v_exp_f32 v{vF[qb]}, -v{m}")]
        for b in blks: L += [I(f"v_sub_f32 v{S+16*b+r}, v{S+16*b+r}, v{m}") for r in range(16)]
        L += [I(f"v_sub_f32 v{NEG[qb]+r}, v{NEG[qb]+r}, v{m}") for r in range(16)]
        L += [I(f"v_mul_f32 v{Lr[qb][0]}, v{Lr[qb][0]}, v{vF[qb]}")]
        for k, b in enumerate(blks): L += expblk(S + 16*b, qb, k == 0)
        for r0 in range(0, 64, 8):
            a = qb*64 + r0
            L += [I(f"v_accvgpr_read_b32 v{T+k}, a{a+k}") for k in range(8)]
            L += [I(f"v_mul_f32 v{T+k}, v{T+k}, v{vF[qb]}") for k in range(8)]
            L += [I(f"v_accvgpr_write_b32 a{a+k}, v{T+k}") for k in range(8)]
    L += [I("s_nop 1"), I(f"s_setpc_b64 s[{sRet2}:{sRet2+1}]")]
    return pad_hazards(L)[0]
def rare_stub(cur, nxt, p):
    L = [I(f"F_X{cur}{nxt or 'n'}{p}:"), I(f"s_call_b64 s[{sRet2}:{sRet2+1}], F_R{cur}{p}")]
    if nxt:
        S = 64*(1 - p)
        for b in range(4): L += [I(f"v_sub_f32 v{S+16*b+r}, v{S+16*b+r}, v{vMx[blk_q(nxt, b)]}") for r in range(16)]
    L += [I("s_nop 1"), I(f"s_setpc_b64 s[{sRet}:{sRet+1}]")]
    return pad_hazards(L)[0]

def first_tile():
    P = stamp(9) + [I("s_waitcnt lgkmcnt(0)"), needvm('kv0', 'kv1', 'kv2'), I("s_barrier"),
         I(f"v_mov_b32 v{vK}, v{vL16}")]
    P += [kread(f, f) for f in (0, 8, 1, 9, 2, 10, 3, 11)]
    mf = []; post = {}
    order = [(ks, kb) for ks in range(8) for kb in range(2)]
    for k, (ks, kb) in enumerate(order):
        f = kb*8 + ks
        for qb in range(2):
            d = vr((2*kb + qb)*16, 16)
            mf.append(I(f"{M32} {d}, {ar(RING + f*4)}, {ar(QF(qb, ks))}, {d if ks else 0}"))
        if k + 8 < 16:
            ks2, kb2 = order[k + 8]; post.setdefault(2*k, []).append(kread(kb2*8 + ks2, kb2*8 + ks2))
    P += [I(f"v_bfe_u32 v{vF3}, v{vL16}, 4, 4"), I(f"v_lshlrev_b32 v{vF3}, 7, v{vF3}")]
    dq = [(1, kv_dma('K')), (1, kv_dma('V')), (1, [poll_issue(vPo, vF3, sWS, "s0")])]
    place_dma(dq, lambda g, it: post.setdefault(g, []).extend(it), step=2)
    valu = []
    for c in range(4):
        for qb in range(2): valu += [(0, x) for x in qconv(6, qb, c)]
    ln = 248
    C = [I(f"v_add_u32 v{vL16V}, 0x10000, v{vL16}"), I(f"v_lshrrev_b32 v{ln}, 4, v{vL16}"),
         I(f"s_mov_b32 s{sKey}, 0"), I(f"s_mov_b32 s{sThr}, {f32(THRESH)}"),
         I(f"s_lshl_b32 s{sOffB}, s{sI}, 8"), I(f"s_sub_u32 s{sOffB}, {128*14}, s{sOffB}"),
         I(f"v_and_b32 v{ln+1}, 31, v{ln}"), I(f"v_lshrrev_b32 v{ln+2}, 5, v{ln}"),
         I(f"v_lshl_add_u32 v{vThr}, s{sWave}, 5, v{ln+1}"), I(f"v_lshlrev_b32 v{ln+2}, 2, v{ln+2}"), I(f"v_sub_u32 v{vThr}, v{vThr}, v{ln+2}"),
         I(f"v_mov_b32 v{vNinf}, 0xff800000"), I(f"s_mov_b32 s{sKr}, 0x8000"), I(f"s_mov_b32 s{sVr}, 0")]
    C += [I(f"v_mov_b32 v{r}, 0") for r in (196, 198, 244, 245, 246, 247)] + consts_early(ln)
    valu += [(22, x) for x in C]
    body, _ = weave(mf, post, valu, lambda g, p: 5 if len(p) < 2 else 3, flush_dep=True)
    P += body
    P += [I(f"v_add_u32 v{vK}, 0x4000, v{vL16}")]
    P += [kread(f, f) for f in range(NPRE)]
    if not flag('pfo_old'):
        P += [I(f"v_lshlrev_b32 v250, 2, v{vL16}"), I(f"v_lshlrev_b32 v251, 1, v{vL16}"),
              I(f"s_lshl_b32 s{sT}, s2, 14"), I(f"s_add_u32 s{sT}, s{sT}, s{sW4096}"), pf_load(252, 250, sWO, f"s{sT}"),
              I(f"s_mul_i32 s{sT}, s2, 7168"), I(f"s_mul_i32 s{sT2}, s{sWave}, 1792"), I(f"s_add_u32 s{sT}, s{sT}, s{sT2}"), pf_load(252, 251, sW2, f"s{sT}")]
    P += [I(f"s_cmp_lg_u32 s{sI}, 0"), I("s_cbranch_scc1 F_nomask"), I("s_nop 7")]
    for kb in range(2): P += maskblk(16*(2*kb), kb)
    P += [I("F_nomask:")]
    X = []
    for qb in range(2): X += maxblk(16*qb, vMx[qb], True) + maxblk(16*(2 + qb), vMx[qb], False)
    X += [I(f"v_mov_b32 v{vTm}, v{vMx[0]}"), I(f"v_mov_b32 v{vF[0]}, v{vMx[1]}"), I("s_nop 0"),
          I(f"v_permlane32_swap_b32 v{vMx[0]}, v{vTm}"), I(f"v_permlane32_swap_b32 v{vMx[1]}, v{vF[0]}"),
          I(f"v_max_f32 v{vMx[0]}, v{vMx[0]}, v{vTm}"), I(f"v_max_f32 v{vMx[1]}, v{vMx[1]}, v{vF[0]}")]
    for qb in range(2):
        X += [I(f"v_sub_f32 v{NEG[qb] + r}, 0, v{vMx[qb]}") for r in range(16)]
        for blk in (qb, 2 + qb): X += [I(f"v_sub_f32 v{16*blk + r}, v{16*blk + r}, v{vMx[qb]}") for r in range(16)]
    for blk in (0, 1): X += expblk(16*blk, blk, True)
    zm = [I(f"{M32} {ar(16*k, 16)}, v[244:247], v[244:247], 0") for k in range(8)]
    body, _ = weave(zm, {}, [(0, x) for x in X], lambda g, p: 7)
    P += body
    P += poll_check(vPo, vF3, sWS, "s0", 1, sT2, 63)
    P += stamp(10) + [I(f"s_sub_u32 s{sCnt}, s{sI}, 1"), I("s_cbranch_scc1 F_AAme")]
    return P

def w3_addr(s):
    if s < 4: return 131072 + 8192*s
    if s < 11: return 8192*(s - 4)
    return 57344 + 8192*(s - 11)
def bslot(s, b):
    if s < 2: return 32*s + 16*(b // 2) + 8 + 4*(b % 2)
    if s < 4: return 128 + 16*(s - 2) + 4*b
    if s < 7: return 160 + 16*(s - 4) + 4*b
    if s < 11: return 16*(s - 7) + 4*b
    k = 2*(s - 11) + (b % 2)
    if b < 2: return 208 + 4*k if k < 12 else 128 + 4*(k - 12)
    return 64 + 4*k if k < 16 else 176 + 4*(k - 16)
def w3_dma(s):
    gs = []
    if s < 7: srd_, so, off = sW2, sW2o, s*32768
    elif s < 11: srd_, so, off = sWO, sWoO, (s - 7)*32768
    else: srd_, so, off = sWO, sWoS[(s - 11)//4], ((s - 11) % 4)*32768
    for h in range(2):
        gs.append([I(f"s_add_u32 m0, s{sW1024}, {w3_addr(s) + h*4096}"), I(f"s_add_u32 s{sT}, s{so}, {off + h*128}"),
                   I(f"buffer_load_dwordx4 v{vWd3}, {sr(srd_)}, s{sT} offen lds", tag=('vm', f'x{s}'))])
    return gs
def h_loads(s):
    L = []
    if s % 4 == 0: L += [I(f"s_add_u32 s{sCc}, s{sHLo}, {(s//4)*4096}"), I(f"s_add_u32 s{sCc2}, s{sHHo}, {(s//4)*4096}")]
    return L + [I(f"buffer_load_dwordx4 {ar(bslot(s, b))}, v{vH2 if b % 2 else vL16}, {sr(sWS)}, s{sCc2 if b >= 2 else sCc} offen offset:{(s % 4)*1024} {LD}") for b in range(4)]
def sib_loads(s, hi):
    t = (s - 11) % 4; L = []
    if t == 0: L += [I(f"s_add_u32 s{sCc}, s{sCH if hi else sCL}, s{sSib[(s-11)//4]}")]
    return L + [I(f"buffer_load_dwordx4 {ar(bslot(s, 2*hi + b))}, v{vC2 if b else vL16}, {sr(sWS)}, s{sCc} offen offset:{t*1024} {LD}") for b in range(2)]
def flag_store(level): return [I(f"v_add_u32 v{vFl}, 1, v{vFl}"), I(f"buffer_store_dword v{vFl}, v{vZ}, {sr(sWS)}, s{sFlagMe} offen {ST}")]

def consts_early(ln):
    t = ln + 1; a, b = sCnt, sOffA
    return [I(f"v_mov_b32 v{vZ}, 0"), I(f"v_mov_b32 v{vFl}, s{sE}"),
            I(f"s_and_b32 s{a}, s{sFlagMe}, 0xfffffe00"),
            I(f"v_bfe_u32 v{t}, v{vL16}, 4, 2"), I(f"v_lshlrev_b32 v{t}, 7, v{t}"), I(f"v_add_u32 v{vF2}, s{a}, v{t}"),
            I(f"s_lshl_b32 s{a}, s{sWave}, 13"), I(f"s_lshl_b32 s{b}, s{sHl}, 8"), I(f"s_add_u32 s{a}, s{a}, s{b}"),
            I(f"s_mul_i32 s{sW2o}, s{sXcd}, {224*1024}"), I(f"s_add_u32 s{sW2o}, s{sW2o}, s{a}")] + \
           lane_wdma(vWd3, 1024, t, ln, natural=False, nblk=1)
def h_bases():
    L = [I(f"v_add_u32 v{vH2}, {56*1024}, v{vL16}"), I(f"s_mul_i32 s{sCc}, s{sXcd}, 7")]
    for d, c in ((sHLo, sCL), (sHHo, sCH)):
        L += [I(f"s_sub_u32 s{d}, s{c}, {WS_CTX:#x}"), I(f"s_lshr_b32 s{d}, s{d}, 17"), I(f"s_mul_i32 s{d}, s{d}, 56"),
              I(f"s_add_u32 s{d}, s{d}, s{sCc}"), I(f"s_lshl_b32 s{d}, s{d}, 10"), I(f"s_add_u32 s{d}, s{d}, {WS_H:#x}")]
    return L
def bbf_steps():
    head, parts = fin_parts(0, sCL)
    lds = {s: [x for x in h_loads(s) if x.kind != 'salu'] for s in range(4)}
    V, _ = code_pf("F_Bend", "F_RA0", 250, 252, vL16)
    sp = lambda L, g0: {g0 + 2*k: [x] for k, x in enumerate(L)}
    posts = [{}, {1: poll_check(vPo, vF2, sWS, "0", 1, sT3, 63), **sp(lds[2], 49)}, {**sp(lds[3], 19), **sp(lds[0], 49)}, sp(lds[1], 49)]
    pre = [head, V, [], []]
    out = []
    for k in range(4):
        out.append(step('B', 'B', k % 2, 2, name=f'BBf{k}', extra_h1=pre[k] + parts[k][0],
                        extra_valu=parts[k][1] + (h_bases() + [I(f"s_mov_b32 s{sCc}, s{sHLo}"), I(f"s_mov_b32 s{sCc2}, s{sHHo}")] if k == 0 else []),
                        extra_post=posts[k]))
    return out
def finl_block():
    L = h_bases()
    L += [I("s_waitcnt vmcnt(0)"), I("s_barrier")] + poll_check(vPo, vF2, sWS, "0", 1, sT2, 63)
    inter = []
    pre2 = [I(f"s_mov_b32 s{sCc}, s{sHLo}"), I(f"s_mov_b32 s{sCc2}, s{sHHo}")]
    lds = [x for s in (2, 3, 0, 1) for x in h_loads(s) if x.kind != 'salu']
    for k, x in enumerate(lds): inter += [[x], []] if k < 8 else [[x], []]
    inter = inter[:16] + [[lds[8]], [], [lds[9]], [], [lds[10]], [], [lds[11]], []] + [[], [lds[12]], [], [lds[13]], [], [], [], []] + [[lds[14]], [lds[15]]]
    V, M = code_pf("F_Bend", "F_RA0", 250, 252, vL16)
    if flag('nopf3'): V, M = [], []
    return L + pre2 + V + M + finalize(0, sCL, inter, tag='cs0')
def bend_pre():
    L = [I(f"s_lshl_b32 s{sT}, s{sWave}, 13"), I(f"s_lshl_b32 s{sT2}, s{sHl}, 8"), I(f"s_add_u32 s{sT3}, s{sT}, s{sT2}"),
         I(f"s_lshl_b32 s{sT}, s{sXcd}, 19"), I(f"s_add_u32 s{sT}, s{sT}, s{sT3}"),
         I(f"s_lshl_b32 s{sT2}, s{sHl}, 17"), I(f"s_add_u32 s{sWoO}, s{sT}, s{sT2}")]
    for k in range(3):
        L += [I(f"s_add_u32 s{sT2}, s{sHl}, {k+1}"), I(f"s_and_b32 s{sT2}, s{sT2}, 3"),
              I(f"s_lshl_b32 s{sWoS[k]}, s{sT2}, 17"), I(f"s_add_u32 s{sWoS[k]}, s{sWoS[k]}, s{sT}"),
              I(f"s_sub_u32 s{sT2}, s{sT2}, s{sHl}"), I(f"s_lshl_b32 s{sSib[k]}, s{sT2}, 12")]
    return L
def bend_valu():
    t = T0; ln = T0 + 4
    L = [I(f"v_lshrrev_b32 v{ln}, 4, v{vL16}")] + lane_wtr(vWtrB, 0, t, ln, natural=False)
    L += [I(f"v_add_u32 v{vWtrA+c}, 131072, v{vWtrB+c}") for c in range(4)]
    L += [I(f"v_add_u32 v{vC2}, 0x20000, v{vL16}"),
          I(f"s_lshr_b32 s{sT3}, s2, 3"), I(f"s_lshl_b32 s{sT3}, s{sT3}, 2"), I(f"s_lshr_b32 s{sPo}, s{sXcd}, 1"), I(f"s_add_u32 s{sPo}, s{sT3}, s{sPo}"),
          I(f"s_lshl_b32 s{sPo}, s{sPo}, 10"), I(f"s_add_u32 s{sPo}, s{sPo}, {F3:#x}"),
          I(f"v_and_b32 v{t}, 7, v{ln}"), I(f"v_lshlrev_b32 v{t}, 7, v{t}"), I(f"v_add_u32 v{vF3}, s{sPo}, v{t}"),
          I(f"s_add_u32 s{sT3}, s{sT3}, s{sWave}"), I(f"s_lshl_b32 s{sT3}, s{sT3}, 3"), I(f"s_add_u32 s{sT3}, s{sT3}, s{sXcd}"),
          I(f"s_lshl_b32 s{sT3}, s{sT3}, 7"), I(f"s_add_u32 s1, s{sT3}, {F3:#x}"),
          I(f"s_mov_b32 s{sPo}, s2"),
          I(f"s_mul_i32 s{sPo}, s{sPo}, {8*PD}"), I(f"s_mul_i32 s{sT3}, s{sWave}, {2*PD}"), I(f"s_add_u32 s{sPo}, s{sPo}, s{sT3}"),
          I(f"s_add_u32 s{sPo}, s{sPo}, {WS_P:#x}")]
    return L

def p3p4():
    RG = 128; NR = 8
    seq = [(s, c8, (0, 1, 2, 3)) for s in range(7) for c8 in range(8)]
    seq += [(s, c8, (0, 1, 2, 3)) for s in range(7, 11) for c8 in range(8)]
    seq += [(s, c8, (0, 1)) for s in range(11, 23) for c8 in range(8)] + [(s, c8, (2, 3)) for c8 in range(8) for s in range(11, 23)]
    NF = len(seq)
    g0s = []; g = 0
    for e in seq: g0s.append(g); g += len(e[2])
    NGP = g
    def w_reads(n):
        s, c8, _ = seq[n]; h, c = divmod(c8, 4); a = w3_addr(s) + h*4096; r = RG + (n % NR)*4
        if s < 4: va, off = vWtrA, a - 131072
        elif s < 11: va, off = vWtrB, a
        elif s < 19: va, off = vWtrB, a - 57344
        else: va, off = vWtrA, a - 122880
        return [I(f"ds_read_b64_tr_b16 {vr(r,2)}, v{va+c} offset:{off}"), I(f"ds_read_b64_tr_b16 {vr(r+2,2)}, v{va+c} offset:{off+2048}")]
    L = stamp(13) + [I("s_waitcnt lgkmcnt(0)"), needvm('x4', 'x5', 'x6'), I("s_barrier")] + stamp(14)
    rd_at = {}
    for m in range(NF):
        n = m
        while n > 0 and m - n < 6 and g0s[m] - g0s[n] < val('p3pf', 14): n -= 1
        rd_at[m] = n if (g0s[m] - g0s[n] >= val('p3pf', 14) or m - n == 6) else -1
    for m in range(NF):
        if rd_at[m] < 0: L += w_reads(m)
    mf = []; post = {}; dmaq = []; valu = []
    def addpost(g, items): post.setdefault(g, []).extend(items)
    first = set()
    firstread = {}
    for m in range(NF): firstread.setdefault(seq[m][0], m)
    bars = {7: range(7, 11), 11: range(11, 17), 17: range(17, 23)}
    for n, (s, c8, bs) in enumerate(seq):
        for b in bs:
            d = vr((c8*4 + b)*4)
            mf.append(I(f"{M16} {d}, {vr(RG + (n % NR)*4)}, {ar(bslot(s, b))}, {d if s else 0}"))
        if n + 1 < NF: addpost(g0s[n + 1] - 1, [needlg(regs_in(vr(RG + ((n + 1) % NR)*4)))])
    bargap = {}
    for sb, rng in bars.items():
        m = firstread[sb]; g = g0s[rd_at[m]] - 1; bargap[sb] = g
        addpost(g, [needvm(*[f'x{k}' for k in rng]), I("s_barrier")] + stamp({7: 54, 11: 57, 17: 58}[sb]))
    lastA = max(m for m in range(NF) if seq[m][0] < 4); lastB = max(m for m in range(NF) if seq[m][0] < 11)
    for k in range(4): addpost(g0s[rd_at[lastA]] + 1 + 4*k, [I(f"v_subrev_u32 v{vWtrA+k}, 8192, v{vWtrA+k}")])
    addpost(g0s[rd_at[lastB]] + 1, [I(f"v_add_u32 v{vWtrB+k}, 57344, v{vWtrB+k}") for k in range(2)])
    addpost(g0s[rd_at[lastB]] + 2, [I(f"v_add_u32 v{vWtrB+k}, 57344, v{vWtrB+k}") for k in range(2, 4)])
    for m in range(NF):
        if rd_at[m] >= 0: addpost(g0s[rd_at[m]], w_reads(m))
    rdg = set(g0s[rd_at[m]] for m in range(NF) if rd_at[m] >= 0)
    G = lambda grp: 4*grp
    for s in range(4, 7): dmaq.append((1, h_loads(s)))
    for s in range(11, 20):
        for g in w3_dma(s): dmaq.append((G(13) + 8*(s - 11), g))
    for s in range(20, 23):
        for g in w3_dma(s): dmaq.append((max(bargap[7] + 1, G(66)), g))
    g2, g3 = val('g2', 30), val('g3', 62)
    valu += [((33 if min(int(r[1:]) for r in x.wr) < 32 else 65) if x.op == 'v_accvgpr_write_b32' else 2, x) for x in finalize(1, sCH, tag='cs1')] + [(G(g3), [needvm('cs1')] + flag_store(3))]
    dmaq.append((G(g2), [poll_issue(vPo, vF2, sWS, "0")]))
    addpost(G(g2 + 12) + 1, stamp(55) + poll_check(vPo, vF2, sWS, "0", 2, sT2, 63) + stamp(56))
    for s in range(11, 23): dmaq.append((G(g2 + 12) + 2, sib_loads(s, 0)))
    g4 = val('g4', 80)
    dmaq.append((G(g4), [poll_issue(vPo, vF2, sWS, "0")]))
    addpost(G(g4 + 12) + 1, stamp(59) + poll_check(vPo, vF2, sWS, "0", 3, sT2, 63) + stamp(60))
    for s in range(11, 23): dmaq.append((G(g4 + 12) + 2, sib_loads(s, 1)))
    PKP = 160
    def piece(c8, pr, k):
        X = (c8*4 + 2*pr)*4; T = PKP + (k % 8)*4
        a, b = P1.pack_swap(T, X, X + 4)
        return a + [I(f"s_add_u32 s{sT3}, s{sPo}, {pr*PD + (c8//4)*4096}")] + b + \
            [I(f"buffer_store_dwordx4 {vr(T)}, v{vL16}, {sr(sWS)}, s{sT3} offen offset:{(c8 % 4)*1024} {ST}", tag=('vm', 'pst'))]
    hi0 = NF - 96
    ev = [(g0s[hi0] + 3, c8, 0) for c8 in range(8)] + [((g0s[hi0 + 12*(c8 + 1)] + 3) if c8 < 7 else NGP, c8, 1) for c8 in range(8)]
    order = sorted(range(16), key=lambda k: (ev[k][0] + (0 if ev[k][2] else 12*ev[k][1])))
    for k, e in enumerate(order): valu += [(ev[e][0], x) for x in piece(ev[e][1], ev[e][2], k)]
    XO = 226; vXa, vBa = 222, 223
    p4pre = [I(f"s_lshr_b32 s{sT}, s{sXcd}, 1"), I(f"s_lshl_b32 s{sT}, s{sT}, 5"),
             I(f"s_sub_u32 s{sT2}, 15, s{sI}"), I(f"s_bitcmp1_b32 s{sXcd}, 0"), I(f"s_cselect_b32 s{sT2}, s{sT2}, s{sI}"),
             I(f"s_lshl_b32 s{sT2}, s{sT2}, 7"), I(f"s_add_u32 s{sT}, s{sT}, s{sT2}"), I(f"s_lshl_b32 s74, s{sT}, 10"),
             I(f"s_lshl_b32 s75, s{sHl}, 8"), I(f"s_lshl_b32 s{sT}, s{sWave}, 6"), I(f"s_add_u32 s75, s75, s{sT}"), I(f"s_add_u32 s74, s74, s75"),
             I(f"v_bfe_u32 v{vXa}, v{vL16}, 4, 5"), I(f"v_lshlrev_b32 v{vXa}, 10, v{vXa}"),
             I(f"v_lshrrev_b32 v{vBa}, 9, v{vL16}"), I(f"v_lshlrev_b32 v{vBa}, 4, v{vBa}"), I(f"v_add_u32 v{vXa}, v{vXa}, v{vBa}")]
    gp = G(126)
    dmaq.append((gp, p4pre[:12] + [I(f"buffer_load_dwordx4 {vr(XO + 8*pc)}, v{vXa}, {sr(sX)}, s74 offen offset:{pc*32}") for pc in range(2)] +
                        [I(f"buffer_load_dwordx4 {vr(XO + 4 + 8*pc)}, v{vBa}, {sr(sB2)}, s75 offen offset:{pc*32}") for pc in range(2)]))
    for k, x in enumerate(p4pre[12:]): addpost(gp - 11 + 2*k, [x])
    if flag('p3nold'): dmaq = [d for d in dmaq if not any(x.kind == 'vld' and 'a[' in x.txt for x in d[1])]
    if flag('p3nodma'): dmaq = [d for d in dmaq if not any(x.kind == 'dma' for x in d[1])]
    if flag('p3nofin'): valu = [v for v in valu if isinstance(v[1], list) or v[0] > 100 or v[1].kind == 'vst']
    place_dma(dmaq, addpost, step=val('p3step', 4), ok=lambda g: g not in rdg and (g >= 352 or g % 4 in (1, 2)))
    def budget(g, p):
        if any(x.kind == 'dsr' for x in p): return 0
        n = sum(1 for x in p if x.txt or (x.tag and x.tag[0] != 'needvm'))
        nd = sum(1 for x in p if x.kind in ('dma', 'vld', 'vst'))
        return max(0, 2 - max(0, n - 1) - nd)
    body, left = weave(mf, post, valu, budget, flush_dep=lambda g: 224 <= g < 352)
    if OPT.verbose:
        mi = 0
        for x in body:
            if x.kind == 'mfma': mi += 1
            if x.tag and x.tag[0] == 'vm' and x.tag[1] in ('cs0', 'cs1', 'pst'): print(f"[p3] {x.tag[1]} store at gap {mi} (group {mi/4:.1f})", file=sys.stderr)
    L += body + stamp(15)
    L += [I(f"s_mov_b32 s{sFlagMe}, s1"), needvm('pst')] + flag_store(1)
    L += [I(f"s_lshr_b32 s{sT}, s2, 3"), I(f"s_mul_i32 s{sT}, s{sT}, {64*PD}"), I(f"s_mul_i32 s{sT2}, s{sXcd}, {PD}"), I(f"s_add_u32 s{sT}, s{sT}, s{sT2}"),
          I(f"s_lshl_b32 s{sT2}, s{sWave}, 11"), I(f"s_add_u32 s{sT}, s{sT}, s{sT2}"), I(f"s_add_u32 s{sT}, s{sT}, {WS_P:#x}"),
          poll_issue(vPo, vF3, sWS, "0")]
    for pc in range(2):
        A = 64 + 8*pc
        for j in range(4):
            L += [I(f"v_lshlrev_b32 v{A+2*j}, 16, v{XO+8*pc+j}"), I(f"v_and_b32 v{A+2*j+1}, 0xffff0000, v{XO+8*pc+j}"),
                  I(f"v_lshlrev_b32 v80, 16, v{XO+4+8*pc+j}"), I(f"v_and_b32 v81, 0xffff0000, v{XO+4+8*pc+j}"),
                  I(f"v_add_f32 v{A+2*j}, v{A+2*j}, v80"), I(f"v_add_f32 v{A+2*j+1}, v{A+2*j+1}, v81")]
    L += poll_check(vPo, vF3, sWS, "0", 1, sT2, 63) + stamp(16)
    for x in range(8):
        L += [I(f"buffer_load_dwordx4 {vr((pc*8 + x)*4)}, v{vL16}, {sr(sWS)}, s{sT} offen offset:{pc*1024} {LD}") for pc in range(2)]
        if x < 7: L += [I(f"s_add_u32 s{sT}, s{sT}, {8*PD:#x}")]
    for x in range(8):
        for pc in range(2):
            A = 64 + 8*pc; r = (pc*8 + x)*4
            for j in range(4):
                L += [I(f"v_lshlrev_b32 v80, 16, v{r+j}"), I(f"v_and_b32 v81, 0xffff0000, v{r+j}"),
                      I(f"v_add_f32 v{A+2*j}, v{A+2*j}, v80"), I(f"v_add_f32 v{A+2*j+1}, v{A+2*j+1}, v81")]
    for pc in range(2):
        A = 64 + 8*pc
        L += [I(f"v_cvt_pk_bf16_f32 v{84+4*pc+j}, v{A+2*j}, v{A+2*j+1}") for j in range(4)]
        L += [I(f"buffer_store_dwordx4 {vr(84+4*pc)}, v{vXa}, {sr(sOUT)}, s74 offen offset:{pc*32} {ST if flag('outwt') else ''}")]
    L += stamp_out(17) + [I("s_endpgm")]
    return L

def l2_warm(with_ctx):
    G = []
    if with_ctx: G.append([pf_load(214, 215, sWS, f"s{sCL}", LD)])
    G.append([I(f"s_add_u32 s{sT}, s{sHLo}, 3072"), pf_load(214, 216, sWS, f"s{sT}", LD)])
    G.append([I(f"s_add_u32 s{sT}, s{sHHo}, 3072"), pf_load(214, 216, sWS, f"s{sT}", LD)])
    G.append([I(f"s_lshr_b32 s{sT}, s2, 3"), I(f"s_lshl_b32 s{sT}, s{sT}, 14"), I(f"s_add_u32 s{sT}, s{sT}, s{sW4096}"),
              I(f"s_lshl_b32 s{sT3}, s{sXcd}, 19"), I(f"s_add_u32 s{sT}, s{sT}, s{sT3}"), pf_load(214, 217, sWO, f"s{sT}")])
    return G
def warm_consts():
    return [I(f"v_bfe_u32 v215, v{vL16}, 4, 5"), I(f"v_lshlrev_b32 v215, 7, v215"), I(f"v_lshrrev_b32 v216, 9, v{vL16}"),
            I(f"v_lshlrev_b32 v217, 2, v{vL16}"),
            I(f"v_mad_u32_u24 v218, v216, s{sT3}, v215"), I(f"v_lshl_add_u32 v215, v216, 17, v215"), I(f"v_mov_b32 v216, v218")]
def bbm_pf():
    d = {}
    if not flag('nopf3'): d[2] = code_pf('F_Bend', 'F_RA0', 250, 252, vL16)[1]
    return d

def build():
    P = P1.prologue()
    P, lgq, vmq = finish(P, name="pro")
    aK, bK = P1.engine(False); aV, bV = P1.engine(True)
    assert text(bK).replace("PL_", "").count("\n") == text(bV).count("\n")
    aK, lq1, vq1 = finish(aK, lgq, vmq, P, name="engK")
    aV, lq2, vq2 = finish(aV, lgq, vmq, P, name="engV")
    assert lq1 == lq2 and [x[1] for x in vq1] == [x[1] for x in vq2] and [x[0] for x in vq1] == [x[0] for x in vq2]
    B, lq, vq = finish(bK + first_tile(), lq1, vq1, aK, name="engB")
    B2, _, _ = finish(bK + first_tile(), lq1, vq1, aV, name="engB'")
    assert len(B) == len(B2)
    Q0 = [set(regs_in(ar(RING + f*4))) for f in range(NPRE)]
    if not OPT.prof: assert lq == Q0, lq
    bend_dma = [(1, g) for s in range(4, 11) for g in w3_dma(s)]
    aame_dma = [(2, g) for s in range(4) for g in w3_dma(s)]
    raw = {
        'AAe': step('A', 'A', 0, 1, name='AAe'), 'AAo': step('A', 'A', 1, 1, name='AAo'),
        'AAmo': step('A', 'A', 1, 1, mask=[(0, 0, None), (2, 1, None)], name='AAmo'),
        'AAme': step('A', 'A', 0, 2, mask=[(0, 2, None), (2, 3, None)], xwait=16, name='AAme', extra_dma=aame_dma),
        'ABm': step('A', 'B', 1, 2, mask=[(k, k, sOffB) for k in range(4)], xwait=8, name='ABm', extra_post={3: flag_store(1), 45: [poll_issue(vPo, vF2, sWS, "0")]}),
        'BBe': step('B', 'B', 0, 2, name='BBe'), 'BBo': step('B', 'B', 1, 2, name='BBo'),
        'BBm': step('B', 'B', 1, 0, mask=[(k, k, None) for k in range(4)], xwait=0, name='BBm', extra_post=bbm_pf()),
        'FINL': stamp(11) + finl_block() + stamp(12) + [I(f"s_sub_u32 s{sCnt}, 6, s{sI}"), I("s_cbranch_scc1 F_Bend")],
    }
    for k, b in enumerate(bbf_steps()): raw[f'BBf{k}'] = b
    preds = {'AAe': ['PRO', 'AAo'], 'AAo': ['AAe'], 'AAmo': ['AAe'], 'AAme': ['PRO', 'AAmo'], 'ABm': ['AAme'], 'FINL': ['ABm'],
             'BBf0': ['ABm'], 'BBf1': ['BBf0'], 'BBf2': ['BBf1'], 'BBf3': ['BBf2'],
             'BBe': ['FINL', 'BBo', 'BBf3'], 'BBo': ['BBe'], 'BBm': ['BBe']}
    done = {'PRO': B}
    for nm in ['AAe', 'AAo', 'AAmo', 'AAme', 'ABm', 'FINL', 'BBf0', 'BBf1', 'BBf2', 'BBf3', 'BBe', 'BBo', 'BBm']:
        outs = [finish(raw[nm], Q0, None, done.get(pr) or raw[pr], name=nm + "<-" + pr, vm=False) for pr in preds[nm]]
        best = max(outs, key=lambda o: len(o[0]))
        done[nm] = best[0]
        if not OPT.prof or nm != 'FINL': assert best[1] == Q0, (nm, best[1])
    bend = step('B', None, 0, 0, name='Bend', extra_dma=bend_dma, extra_valu=bend_valu(), extra_post={26: [needvm('cs0')] + flag_store(2)})
    k = [j for j, x in enumerate(bend) if x.kind == 'mfma'][0]
    tailraw = bend[:k] + bend_pre() + bend[k:] + p3p4()
    outs = [finish(tailraw, Q0, [(set(), 'cs0')] + [(set(regs_in(ar(bslot(1, b)))), None) for b in (2, 3)], done[pr], name="tail<-" + pr) for pr in ('FINL', 'BBm')]
    tail = max(outs, key=lambda o: len(o[0]))[0]
    loopx = lambda lab: f" s_sub_u32 s{sCnt}, s{sCnt}, 1\n s_cbranch_scc1 {lab}\n"
    body = text(P) + "\n" + text(aK) + "\n s_branch F_J\nF_V:\n" + text(aV) + "\nF_J:\n" + text(B) + "\n"
    body += ".p2align 3\nF_AAe:\n" + text(done['AAe']) + "\n" + loopx("F_AAmo") + text(done['AAo']) + "\n s_branch F_AAe\n"
    body += "F_AAmo:\n" + text(done['AAmo']) + "\nF_AAme:\n" + text(done['AAme']) + "\n" + text(done['ABm']) + "\n"
    if flag('bbf'):
        body += f" s_cmp_gt_u32 s{sI}, 4\n s_cbranch_scc1 F_FINL\n" + text(stamp(11) + stamp(12)) + "\n"
        for k in range(4): body += text(done[f'BBf{k}']) + "\n"
        body += f" s_sub_u32 s{sCnt}, 4, s{sI}\n s_branch F_BBe\nF_FINL:\n"
    body += text(done['FINL']) + "\n"
    body += ".p2align 3\nF_BBe:\n" + text(done['BBe']) + "\n" + loopx("F_BBm") + text(done['BBo']) + "\n s_branch F_BBe\n"
    body += "F_BBm:\n" + text(done['BBm']) + "\nF_Bend:\n" + text(tail) + "\n"
    for typ in 'AB':
        for p in range(2): body += text(rare_redo(typ, p)) + "\n"
    for cur, nxt, p in (('A', 'A', 0), ('A', 'A', 1), ('A', 'B', 1), ('B', 'B', 0), ('B', 'B', 1), ('B', None, 0)):
        body += text(rare_stub(cur, nxt, p)) + "\n"
    hdr = open(f"cdna_kernels/{NAME}.s.ref").read().split("; Override")[0]
    kname = NAME + "_kernel"
    if "--list" in sys.argv: hdr += f"; @launch kernel={kname} grid=(256,1,1) block=(256,1,1) lds=163840\n"
    else: hdr += "; @launch grid=(256,1,1) block=(256,1,1) lds=163840\n"
    return hdr + '.amdgcn_target "amdgcn-amd-amdhsa--gfx950"\n' + kernel_text(kname, body, 512, 256)

if __name__ == "__main__":
    OPT.prof = "--prof" in sys.argv
    if "-q" in sys.argv: OPT.verbose = 0
    open(sys.argv[1], "w").write(build())
```

```python
import sys, math, struct
from asmlib import *

NAME = "parallel_sum__compressed_kv_cla__dense_activation_gelu__prompt"
MB = 1 << 20
WS_K, WS_V, WS_XN, WS_H, WS_CTX, WS_P, WS_F = 0, 18*MB, 36*MB, 39*MB, 48*MB, 64*MB, 96*MB
WS_SIZE = 97*MB
if '--pk' in sys.argv: WS_P = 0
_pad = 0 if '--nopad' in sys.argv else 1024
TS = XS = 16384 + _pad
PD = 8192 + _pad
F0, F1, F2, F3, FE = WS_F, WS_F + 32768, WS_F + 65536, WS_F + 196608, WS_F + 327680
sE = 62
A_X, A_CKV, A_WQ, A_WUK, A_WUV, A_WO, A_BX, A_W1, A_B1, A_W2, A_B2, A_OUT, A_DBG, A_WS = [8*i for i in range(14)]
def f32(x): return "0x%08x" % struct.unpack("<I", struct.pack("<f", x))[0]
QSCALE = (128 ** -0.5) * math.log2(math.e)
M16 = "v_mfma_f32_16x16x32_bf16"
M32 = "v_mfma_f32_32x32x16_bf16"
def vr(b, n=4): return f"v[{b}:{b+n-1}]"
def ar(b, n=4): return f"a[{b}:{b+n-1}]"
def sr(b, n=4): return f"s[{b}:{b+n-1}]"
ST = "sc0 sc1"
LD = "sc1"

class Opt:
    prof = False
    verbose = 4
OPT = Opt()
def flag(n): return ('--' + n) in sys.argv
def val(n, d):
    for a in sys.argv:
        if a.startswith('--' + n + '='): return type(d)(a.split('=')[1])
    return d

sWS, sX, sC, sWkv, sWQ, sW1, sB1, sKS, sVS, sWO, sW2, sB2, sOUT, sDBG = [8 + 4*i for i in range(14)]
sWave, sXcd, sI, sHl, sT, sT2, sT3, sW4096, sW1024, sFlagMe = range(64, 74)
PROF_BASE = 128*MB
vPR, vPC = 254, 255

def stamp(k):
    if not OPT.prof: return []
    return [I("s_waitcnt lgkmcnt(0)"), I("s_memrealtime s[100:101]"), I("s_waitcnt lgkmcnt(0)"), I(f"v_writelane_b32 v{vPR}, s100, {k}"), I("s_memtime s[100:101]"), I("s_waitcnt lgkmcnt(0)"),
            I("s_nop 0"), I(f"v_writelane_b32 v{vPC}, s100, {k}")]
def stamp_out(k):
    if not OPT.prof: return []
    if flag('dbgout'):
        return [I("s_waitcnt vmcnt(0)")] + stamp(k) + [
            I(f"s_cmp_eq_u32 s2, {val('dbgwg', 9)}"), I("s_cbranch_scc0 F_nodbg"), I(f"s_cmp_eq_u32 s{sWave}, 0"), I("s_cbranch_scc0 F_nodbg"),
            I(f"s_mov_b32 s{sDBG+2}, 256"), I(f"s_mov_b32 s{sDBG+3}, 0x20000"),
            I(f"v_readlane_b32 s4, v{vPR}, 0"), I("v_mbcnt_lo_u32_b32 v0, -1, 0"), I("v_mbcnt_hi_u32_b32 v0, -1, v0"),
            I(f"v_subrev_u32 v{vPR}, s4, v{vPR}"), I("v_lshlrev_b32 v0, 2, v0"), I("v_subrev_u32 v0, 8, v0"),
            I(f"buffer_store_dword v{vPR}, v0, {sr(sDBG)}, 0 offen"), I("F_nodbg:")]
    return [I("s_waitcnt vmcnt(0)")] + stamp(k) + [
        I(f"s_mov_b32 s{sWS+2}, {PROF_BASE + MB:#x}"),
        I("v_mbcnt_lo_u32_b32 v0, -1, 0"), I("v_mbcnt_hi_u32_b32 v0, -1, v0"), I("v_lshlrev_b32 v0, 3, v0"),
        I(f"s_lshl_b32 s4, s2, 2"), I(f"s_add_u32 s4, s4, s{sWave}"), I("s_lshl_b32 s4, s4, 9"), I(f"s_add_u32 s4, s4, {PROF_BASE:#x}"),
        I(f"buffer_store_dwordx2 v[{vPR}:{vPC}], v0, {sr(sWS)}, s4 offen")]

def finish(ins, lg_init=None, vm_init=None, prev=None, name="", vm=True):
    q1 = None
    if vm: ins, q1 = insert_vm(ins, vm_init)
    ins, q2 = insert_lgkm(ins, lg_init)
    vb = []
    ins, npad = pad_hazards(ins, prev, vb)
    if npad and OPT.verbose:
        print(f"[{name}] padded {npad} wait states", file=sys.stderr)
        for k, a, b in vb[:OPT.verbose]: print(f"    {k}: {a}  ->  {b}", file=sys.stderr)
    return ins, q2, q1

def place_dma(dmaq, addpost, step=2, ok=lambda g: True):
    nxt = 0
    step0 = step
    for ent in sorted(dmaq, key=lambda x: x[0]):
        g, items = ent[0], ent[1]; step = ent[2] if len(ent) > 2 else step0
        g = max(g, nxt)
        while not ok(g): g += 1
        k = 0
        while items[k].kind == 'salu': k += 1
        if k == 1 and 'm0' in items[0].wr:
            addpost(g, items[:1]); g += 1
            while not ok(g): g += 1
            addpost(g, items[1:2])
        else:
            addpost(g, items[:k+1])
        for it in items[k+1:]:
            g += step
            while not ok(g): g += 1
            addpost(g, [it])
        nxt = g + step
    return nxt

def lane_wtr(vdst, base, tmp, ln, natural=True):
    L = [I(f"v_lshrrev_b32 v{tmp}, 4, v{ln}"), I(f"v_bfe_u32 v{tmp+1}, v{ln}, 2, 2"), I(f"v_and_b32 v{tmp+2}, 1, v{tmp}"),
         I(f"v_lshl_add_u32 v{tmp+1}, v{tmp+2}, 2, v{tmp+1}"), I(f"v_lshrrev_b32 v{tmp}, 1, v{tmp}"),
         I(f"v_lshlrev_b32 v{tmp}, {11 if natural else 10}, v{tmp}"), I(f"v_lshl_add_u32 v{tmp}, v{tmp+1}, 7, v{tmp}"),
         I(f"v_and_b32 v{tmp+2}, 1, v{ln}"), I(f"v_lshl_add_u32 v{tmp}, v{tmp+2}, 3, v{tmp}"),
         I(f"v_bfe_u32 v{tmp+2}, v{ln}, 1, 1"), I(f"v_lshl_add_u32 v{tmp}, v{tmp+2}, 4, v{tmp}")]
    if base: L.append(I(f"v_add_u32 v{tmp}, {base}, v{tmp}"))
    L.append(I(f"v_and_b32 v{tmp+1}, 6, v{tmp+1}"))
    for c in range(4):
        L += [I(f"v_xor_b32 v{tmp+2}, {2*c}, v{tmp+1}"), I(f"v_lshl_add_u32 v{vdst+c}, v{tmp+2}, 4, v{tmp}")]
    return L

def lane_wdma(vdst, rowstride, tmp, ln, natural=True, nblk=4):
    L = [I(f"v_lshrrev_b32 v{tmp}, 3, v{ln}"), I(f"v_and_b32 v{tmp+1}, 7, v{ln}"), I(f"v_and_b32 v{tmp+2}, 6, v{tmp}"),
         I(f"v_xor_b32 v{tmp+1}, v{tmp+1}, v{tmp+2}"), I(f"v_lshlrev_b32 v{tmp+1}, 4, v{tmp+1}")]
    if natural:
        L += [I(f"v_and_b32 v{tmp+2}, 4, v{tmp}"), I(f"v_add_u32 v{tmp}, v{tmp}, v{tmp+2}")]
    L += [I(f"v_mul_u32_u24 v{tmp}, {rowstride}, v{tmp}"), I(f"v_add_u32 v{tmp}, v{tmp}, v{tmp+1}")]
    for b in range(nblk):
        rows = (4*(b % 2) + 16*(b // 2)) if natural else 8*b
        off = rows * rowstride - 1024 * b
        L.append(I(f"v_add_u32 v{vdst+b}, {off}, v{tmp}") if off else I(f"v_mov_b32 v{vdst+b}, v{tmp}"))
    return L

def pf_load(vj, voff, srd_, soff, extra=""):
    if (flag('pfnt') and srd_ in (sWkv, sWQ, sC)) or (flag('qnt2') and srd_ == sWQ) or (flag('wnt2') and srd_ == sWkv): extra += " nt"
    i = I(f"buffer_load_dword v{vj}, v{voff}, {sr(srd_)}, {soff} offen {extra}")
    i.wr = set()
    return i

_poll = [0]
def poll_issue(vp, vaddr, srd_, soff):
    return I(f"buffer_load_dword v{vp}, v{vaddr}, {sr(srd_)}, {soff} offen sc1")
def poll_check(vp, vaddr, srd_, soff, level, sc, st):
    _poll[0] += 1; u = _poll[0]
    t = lambda: [I(f"v_subrev_u32 v{vp}, s{st}, v{vp}"), I(f"v_cmp_le_u32 vcc, 8, v{vp}"), I(f"s_cbranch_vccz PL_ok{u}")]
    return [I(f"s_add_u32 s{st}, s{sE}, {level}")] + t() + [
            I(f"s_mov_b32 s{sc}, 0x100000"), I(f"PL_sp{u}:"), I(f"s_sleep {val('psl', 2)}"),
            I(f"buffer_load_dword v{vp}, v{vaddr}, {sr(srd_)}, {soff} offen sc1", tag=('novm',)),
            I("s_waitcnt vmcnt(0)", tag=('novm',))] + t() + [
            I(f"s_sub_u32 s{sc}, s{sc}, 1"), I(f"s_cbranch_scc0 PL_sp{u}"), I(f"PL_ok{u}:")]
def epoch_check(vp, vaddr, sc):
    _poll[0] += 1; u = _poll[0]
    t = lambda: [I(f"v_cmp_eq_u32 vcc, 0, v{vp}"), I(f"s_cbranch_vccz PL_ok{u}")]
    return t() + [I(f"s_mov_b32 s{sc}, 0x100000"), I(f"PL_sp{u}:"), I(f"s_sleep {val('psl', 2)}"),
            I(f"buffer_load_dword v{vp}, v{vaddr}, {sr(sDBG)}, 0 offen sc1", tag=('novm',)),
            I("s_waitcnt vmcnt(0)", tag=('novm',))] + t() + [
            I(f"s_sub_u32 s{sc}, s{sc}, 1"), I(f"s_cbranch_scc0 PL_sp{u}"), I(f"PL_ok{u}:"),
            I(f"v_readfirstlane_b32 s{sE}, v{vp}")]
def flag_put(vt, vz, soff, level, ioff=0):
    return [I(f"v_mov_b32 v{vt}, s{sE}"), I(f"v_add_u32 v{vt}, {level}, v{vt}"),
            I(f"buffer_store_dword v{vt}, v{vz}, {sr(sWS)}, s{soff} offen {ST}")]

def code_pf(lo, hi, vt, vj, vl16, k=0):
    V = [I(f"v_lshlrev_b32 v{vt}, 3, v{vl16}"), I(f"v_lshl_add_u32 v{vt}, s{sWave}, 13, v{vt}"),
         I(f"v_add_u32 v{vt}, {lo}-F_pc+{k*32768}, v{vt}"), I(f"v_min_u32 v{vt}, {hi}-F_pc, v{vt}")]
    i = I(f"global_load_dword v{vj}, v{vt}, s[6:7]"); i.wr = set()
    return V, [i]

def kernel_text(name, body, vgpr, accum, sgpr=102):
    return f""".text
.globl {name}
.p2align 8
.type {name},@function
{name}:
{body}
.section .rodata,"a"
.p2align 6
.amdhsa_kernel {name}
  .amdhsa_next_free_vgpr {vgpr}
  .amdhsa_next_free_sgpr {sgpr}
  .amdhsa_accum_offset {accum}
  .amdhsa_group_segment_fixed_size 0
  .amdhsa_kernarg_size 112
  .amdhsa_user_sgpr_count 2
  .amdhsa_user_sgpr_kernarg_segment_ptr 1
  .amdhsa_system_sgpr_workgroup_id_x 1
.end_amdhsa_kernel
"""
```

```python
import re

_REG = re.compile(r'\b([vas])\[(\d+):(\d+)\]|\b([vas])(\d+)\b|\b(vcc|exec|m0|scc)\b')

def regs_in(s):
    out = []
    for m in _REG.finditer(s):
        if m.group(1):
            out += [f"{m.group(1)}{i}" for i in range(int(m.group(2)), int(m.group(3)) + 1)]
        elif m.group(4):
            out.append(f"{m.group(4)}{m.group(5)}")
        else:
            out.append(m.group(6))
    return out

TRANS = ('v_exp_f32', 'v_log_f32', 'v_rcp_f32', 'v_rsq_f32', 'v_sqrt_f32', 'v_sin_f32', 'v_cos_f32')

class Ins:
    __slots__ = ('txt', 'op', 'kind', 'wr', 'rd', 'passes', 'A', 'B', 'C', 'D', 'tag', 'states', 'wide')
    def __init__(self, txt, tag=None):
        self.txt = txt.strip()
        self.tag = tag
        self.passes = 0
        self.A = self.B = self.C = self.D = ()
        self.states = 1
        self.wide = False
        t = self.txt.split(';')[0].strip()
        if t.endswith(':') or t.startswith('.') or not t:
            self.op = 'label'; self.kind = 'label'; self.wr = set(); self.rd = set(); self.states = 0
            return
        parts = t.split(None, 1)
        op = parts[0]; self.op = op
        rest = parts[1] if len(parts) > 1 else ''
        ops = [o.strip() for o in re.split(r',(?![^\[]*\])', rest)] if rest else []
        R = lambda i: regs_in(ops[i]) if i < len(ops) else []
        allr = lambda a: [r for o in ops[a:] for r in regs_in(o)]
        wr, rd = [], []
        if op.startswith('v_mfma'):
            self.kind = 'mfma'
            self.passes = 8 if '32x32x16' in op else 4
            self.D, self.A, self.B, self.C = tuple(R(0)), tuple(R(1)), tuple(R(2)), tuple(R(3))
            wr = list(self.D); rd = list(self.A + self.B + self.C)
        elif op.startswith('v_cmp'):
            self.kind = 'valu'; wr = R(0); rd = allr(1)
        elif op.startswith('v_permlane') and 'swap' in op:
            self.kind = 'valu'; wr = R(0) + R(1); rd = R(0) + R(1)
        elif op.startswith('v_'):
            self.kind = 'trans' if any(op.startswith(x) for x in TRANS) else 'valu'
            wr = R(0); rd = allr(1)
            if op.startswith(('v_fmac', 'v_dot2c', 'v_writelane')): rd += R(0)
            if op.startswith(('v_add_co', 'v_sub_co', 'v_addc_co')): wr += R(1); rd = allr(2)
            if op.startswith('v_cndmask') and len(ops) == 3: rd.append('vcc')
            if 'dpp' in t or 'row_' in t or 'quad_perm' in t: rd += R(0)
        elif op.startswith('ds_read') or op.startswith('ds_bpermute') or op.startswith('ds_swizzle'):
            self.kind = 'dsr'; wr = R(0); rd = allr(1)
        elif op.startswith('ds_write'):
            self.kind = 'dsw'; rd = allr(0)
        elif op.startswith(('buffer_load', 'global_load')):
            if re.search(r'\blds\b', t):
                self.kind = 'dma'; rd = allr(0) + ['m0']
            else:
                self.kind = 'vld'; wr = R(0); rd = allr(1)
        elif op.startswith(('buffer_store', 'global_store')):
            self.kind = 'vst'; rd = allr(0)
            self.wide = op.endswith(('x4', 'x3'))
            self.D = tuple(R(0))
        elif op.startswith('buffer_') or op.startswith('global_'):
            self.kind = 'vmisc'; rd = allr(0)
        elif op in ('s_sleep', 's_setprio'):
            self.kind = 'salu'
        elif op == 's_waitcnt':
            self.kind = 'wait'
        elif op == 's_barrier':
            self.kind = 'barrier'
        elif op == 's_nop':
            self.kind = 'nop'; self.states = int(ops[0], 0) + 1
        elif op.startswith(('s_cbranch', 's_branch', 's_setpc', 's_call', 's_swappc', 's_endpgm')):
            self.kind = 'branch'; rd = allr(0)
            if op.startswith('s_call'): wr = R(0); rd = []
        elif op.startswith(('s_load', 's_memtime', 's_memrealtime')):
            self.kind = 'smem'; wr = R(0); rd = allr(1)
        elif op.startswith('s_cmp') or op.startswith('s_bitcmp'):
            self.kind = 'salu'; rd = allr(0); wr = ['scc']
        elif op.startswith('s_'):
            self.kind = 'salu'; wr = R(0); rd = allr(1)
            if op.startswith(('s_addk', 's_mulk')): rd += R(0)
        else:
            raise ValueError("unknown instruction: " + txt)
        self.wr = set(wr); self.rd = set(rd)
    def __repr__(self): return self.txt

def I(txt, tag=None): return Ins(txt, tag)

def _need(p, c):
    n = 0
    pv = p.kind in ('valu', 'trans')
    cv = c.kind in ('valu', 'trans')
    if pv:
        vw = {r for r in p.wr if r[0] in 'va' and r != 'vcc'}
        sw = p.wr - vw
        if c.kind == 'mfma' and vw & c.rd: n = max(n, 2)
        if p.kind == 'trans' and c.kind == 'valu' and vw & c.rd: n = max(n, 1)
        if p.kind == 'trans' and c.kind in ('vst', 'dsw') and vw & c.rd: n = max(n, 1)
        if c.op.startswith('v_permlane') and vw & c.rd: n = max(n, 2)
        if c.op.startswith(('v_readlane', 'v_readfirstlane')) and vw & c.rd: n = max(n, 1)
        if cv and ('dpp' in c.txt or 'row_' in c.txt or 'quad_perm' in c.txt) and vw & c.rd: n = max(n, 2)
        if sw & c.rd:
            if cv: n = max(n, 2)
            if c.kind in ('vld', 'vst', 'dma', 'vmisc'): n = max(n, 5)
            if c.kind in ('salu', 'branch'): n = max(n, 1)
        if 'exec' in p.wr and c.kind == 'mfma': n = max(n, 4)
    if p.kind == 'mfma':
        big = 12 if p.passes == 8 else 8
        D = set(p.D)
        if c.kind == 'mfma':
            if D & set(c.A + c.B): n = max(n, big)
            if D & set(c.C):
                if not (tuple(c.C) == tuple(p.D) and c.passes == p.passes): n = max(n, big - 2)
            elif D & set(c.D): n = max(n, big - 2)
        elif c.kind in ('valu', 'trans'):
            if D & (c.rd | c.wr): n = max(n, big)
            if set(p.C) & c.wr: n = max(n, 7 if p.passes == 8 else 3)
        elif c.kind in ('vst', 'dsw', 'dma', 'vmisc'):
            if D & c.rd: n = max(n, big)
        elif c.kind in ('vld', 'dsr'):
            if D & (c.rd | c.wr): n = max(n, big)
            if set(p.C) & c.wr: n = max(n, 7 if p.passes == 8 else 3)
    if p.kind == 'vst' and p.wide and set(p.D) & c.wr:
        n = max(n, 2)
    if p.kind == 'salu' and 'm0' in p.wr and c.kind == 'dma': n = max(n, 1)
    return n

def pad_hazards(ins, prev=None, verbose=None):
    out = []
    hist = list(prev[-24:]) if prev else []
    npad = 0
    for c in ins:
        if c.kind == 'label':
            out.append(c); continue
        need = 0; dist = 0; why = None
        for p in reversed(hist):
            if dist >= 20: break
            n = _need(p, c)
            if n - dist > need: need = n - dist; why = p
            dist += p.states
        while need > 0:
            k = min(need, 16)
            nop = Ins(f"s_nop {k-1}")
            out.append(nop); hist.append(nop); need -= k; npad += k
            if verbose is not None: verbose.append((k, why.txt, c.txt))
        out.append(c); hist.append(c)
        if len(hist) > 64: hist = hist[-32:]
    return out, npad

def insert_lgkm(ins, init=None):
    q = [set(x) for x in (init or [])]
    out = []
    for c in ins:
        if c.tag and c.tag[0] == 'nolg':
            out.append(c); continue
        if c.kind == 'wait':
            m = re.search(r'lgkmcnt\((\d+)\)', c.txt)
            if m:
                k = int(m.group(1))
                while len(q) > k: q.pop(0)
            out.append(c); continue
        touched = c.rd | c.wr
        if c.kind == 'label' and c.tag and c.tag[0] == 'needlg': touched = c.tag[1]
        pos = -1
        for i, s in enumerate(q):
            if s & touched: pos = i
        if pos >= 0:
            n = len(q) - pos - 1
            n = min(n, 15)
            out.append(Ins(f"s_waitcnt lgkmcnt({n})"))
            while len(q) > n: q.pop(0)
        if c.kind == 'dsr': q.append(set(c.wr))
        elif c.kind == 'dsw': q.append(set())
        elif c.kind == 'smem':
            assert not q, "smem with ds ops outstanding"

        out.append(c)
    return out, q

def insert_vm(ins, init=None):
    q = list(init or [])
    out = []; closed = set(); total = [0]; mark = {}
    for c in ins:
        if c.tag and c.tag[0] == 'novm':
            out.append(c); continue
        if c.tag and c.tag[0] == 'cond':
            mark[c.tag[1]] = total[0]; out.append(c); continue
        if c.tag and c.tag[0] == 'needcond':
            out.append(Ins(f"s_waitcnt vmcnt({min(total[0] - mark[c.tag[1]], 63)})")); continue
        if c.kind == 'wait':
            m = re.search(r'vmcnt\((\d+)\)', c.txt)
            if m:
                k = int(m.group(1))
                while len(q) > k: q.pop(0)
            out.append(c); continue
        pos = -1
        if c.kind == 'label' and c.tag and c.tag[0] == 'needvm':
            names = c.tag[1:]
            closed.update(names)
            for i, (s, nm) in enumerate(q):
                if nm in names: pos = i
            if pos >= 0:
                n = min(len(q) - pos - 1, 63)
                out.append(Ins(f"s_waitcnt vmcnt({n})"))
                while len(q) > n: q.pop(0)
            continue
        touched = c.rd | c.wr
        for i, (s, nm) in enumerate(q):
            if s & touched: pos = i
        if pos >= 0:
            n = min(len(q) - pos - 1, 63)
            out.append(Ins(f"s_waitcnt vmcnt({n})"))
            while len(q) > n: q.pop(0)
        if c.kind in ('vld', 'dma', 'vst', 'vmisc'):
            nm = c.tag[1] if (c.tag and c.tag[0] == 'vm') else None
            assert nm is None or nm not in closed, f"vmem op tagged {nm} issued after its needvm"
            if len(q) >= 60:
                out.append(Ins("s_waitcnt vmcnt(52)"))
                while len(q) > 52: q.pop(0)
            q.append((set(c.wr) if c.kind == 'vld' else set(), nm)); total[0] += 1
        out.append(c)
    return out, q

def needlg(regs): return Ins("", tag=('needlg', set(regs)))
def needvm(*names): return Ins("", tag=('needvm',) + names)

def cost(c):
    if isinstance(c, list): return sum(cost(x) for x in c)
    if c.kind == 'trans' or c.op.startswith('v_permlane'): return 2
    if c.kind == 'label': return 1 if (c.tag and c.tag[0] == 'pad') else 0
    return 1

def weave(mfmas, post, valu, budget, flush_dep=False, force=None):
    out = []
    vi = 0
    for g, m in enumerate(mfmas):
        if flush_dep is True or (flush_dep and flush_dep(g)):
            need = set(m.A) | set(m.B); k = -1
            for j in range(vi, len(valu)):
                it = valu[j][1]
                if not isinstance(it, list) and it.wr & need: k = j
            while vi <= k:
                it = valu[vi][1]
                assert valu[vi][0] <= g, "forced flush violates min gap"
                out += it if isinstance(it, list) else [it]
                vi += 1
        while force and g in force and vi <= force[g]:
            it = valu[vi][1]
            out += it if isinstance(it, list) else [it]
            vi += 1
        out.append(m)
        p = post.get(g, [])
        out += p
        b = budget(g, p)
        while vi < len(valu) and valu[vi][0] <= g and b >= cost(valu[vi][1]):
            b -= cost(valu[vi][1])
            it = valu[vi][1]
            if isinstance(it, list): out += it
            else: out.append(it)
            vi += 1
    left = []
    for x in valu[vi:]:
        left += x[1] if isinstance(x[1], list) else [x[1]]
    out += left
    return out, len(left)

def text(ins):
    return "\n".join((c.txt if c.kind == 'label' else " " + c.txt.replace(", ", ",").replace("  ", " ").rstrip()) for c in ins if c.txt)
```

```python
from f_common import *

GC0 = -2.0 * math.sqrt(2.0 / math.pi) * math.log2(math.e)
GC1 = GC0 * 0.044715
sWoff, sCoff, sOb, sM0c, sScale, sType, s1o, sQo, sXL, sXH, sXLc, sXHc, sHL, sHH, sGC0, sB1o, sSt = range(74, 91)
sXrow, sWpf, sRb, sF0me, sF1me, sXcc = 98, 99, 96, 5, 1, 0
sKt, sKm, sVt, sVm = 91, 92, 93, 94
sCL, sCH = 95, 96
ACCB = [0, 64, 128, 0, 64, 0, 128]
WF = 192; NWF = 6
vZero, vPoll, vFt, vP0, vF1, vJ, vBo, vTm2 = range(216, 224)
vL16 = 224; vWtrS = [225, 229]; vWd, vW1d = 233, 237
vXo2, vGC1, vKVd = 241, 242, 243
PK = 244; GT = 237; GP = [244, 248]
vCd, vCr = 180, 178
QF = lambda qb, ks: 128 + (qb*8 + ks)*4
XF = lambda b, ks: (b*16 + ks)*4

def bf16_round(dst, src):
    return [I(f"v_cvt_pk_bf16_f32 v{dst}, v{src}, v{src}"), I(f"v_and_b32 v{dst}, 0xffff0000, v{dst}")]
def sum32(v, t):
    return [I(f"v_add_f32_dpp v{v}, v{v}, v{v} quad_perm:[1,0,3,2] row_mask:0xf bank_mask:0xf"),
            I(f"v_add_f32_dpp v{v}, v{v}, v{v} quad_perm:[2,3,0,1] row_mask:0xf bank_mask:0xf"),
            I(f"v_add_f32_dpp v{v}, v{v}, v{v} row_half_mirror row_mask:0xf bank_mask:0xf"),
            I(f"v_add_f32_dpp v{v}, v{v}, v{v} row_mirror row_mask:0xf bank_mask:0xf"),
            I(f"v_mov_b32 v{t}, v{v}"), I(f"v_permlane16_swap_b32 v{v}, v{t}"), I(f"v_add_f32 v{v}, v{v}, v{t}")]

def c_dma(ch):
    gs = []
    for grp in range(2):
        L = [I(f"s_add_u32 m0, s{sM0c}, {(ch % 3)*8192 + grp*4096}"), I(f"s_add_u32 s{sT}, s{sCoff}, {ch*128 + grp*32768}")]
        L += [I(f"buffer_load_dwordx4 v{vCd+b}, {sr(sC)}, s{sT} offen offset:{1024*b} {'nt' if flag('cnt') else ''} lds", tag=('vm', f'c{ch}')) for b in range(4)]
        gs.append(L)
    return gs
ORDER = [(0, k) for k in range(8)]
for cp in range(4):
    for k in range(8): ORDER += [(cp, 8 + k), (cp + 1, k)]
ORDER += [(4, k) for k in range(8, 16)] + [(5, k) for k in range(16)] + [(6, k) for k in range(16)]
POS = {e: 4*k for k, e in enumerate(ORDER)}
PF = 4
FU = {u: POS[(u//4, 4*(u % 4))] for u in range(28)}
LU = {u: POS[(u//4, 4*(u % 4) + 3)] + 3 for u in range(28)}
def make_plan(dist):
    need = {}; bars = []
    for u in sorted(FU, key=lambda u: FU[u]):
        p = FU[u] - PF
        if bars and (p - bars[-1] <= 4 or (u >= 19 and u % 2 == 1 and not flag('morebar'))): need[u] = bars[-1]
        else: bars.append(p); need[u] = p
    extra = [40, 72]
    bars = sorted(set(bars + extra))
    plan = {0: (-9, 6), 1: (-9, 7), 2: (-9, 8), 4: (-9, 9)}
    free = {sl: 72 for sl in range(6)}
    def rel(u): return min([p for p in bars if p > LU[u]] + [10**6])
    for u, (p, sl) in plan.items(): free[sl] = rel(u)
    rest = [u for u in sorted(FU, key=lambda u: FU[u]) if u not in plan]
    for u in rest:
        allowed = range(10) if u < 22 else (3, 5, 6, 7, 8, 9)
        sl = min(allowed, key=lambda x: (free[x], x in (3, 5, 6, 7, 8, 9) and u >= 16))
        cand = [p for p in bars if p >= free[sl] and p >= need[u] - dist]
        plan[u] = (cand[0], sl); assert cand[0] < need[u], u
        free[sl] = rel(u)
    return plan, need, bars, free
PLAN, NEED, BARS, SLOTFREE = make_plan(val('wdist', 100))
def w_dma(u):
    cp, kq = divmod(u, 4); slot = PLAN[u][1]
    if cp < 4: srd_, vo, so, off = sWkv, vWd, sWoff, kq*4*262144 + cp*128
    elif cp == 4: srd_, vo, so, off = sW1, vW1d, s1o, kq*4*32*3584
    else: srd_, vo, so, off = sWQ, vWd, sQo, kq*4*262144 + (cp - 5)*128
    L = [I(f"s_add_u32 m0, s{sW4096}, {slot*16384}"), I(f"s_add_u32 s{sT}, s{so}, {off}")]
    L += [I(f"buffer_load_dwordx4 v{vo+b}, {sr(srd_)}, s{sT} offen offset:{1024*b} {'nt' if (flag('wnt') or (flag('qnt') and cp >= 4)) else ''} lds", tag=('vm', f'w{u}')) for b in range(4)]
    return L
def kv_dma(which, tag=None):
    srd_, t, m = (sKS, sKt, sKm) if which == 'K' else (sVS, sVt, sVm)
    L = [I(f"s_mov_b32 m0, s{m}") if which == 'K' else I(f"s_add_u32 m0, s{m}, 0x10000"),
         I(f"s_mov_b32 s{sT2}, s{t}"),
         I(f"s_add_u32 s{t}, s{t}, {TS}"), I(f"s_add_u32 s{m}, s{m}, 0x4000"), I(f"s_and_b32 s{m}, s{m}, 0xffff")]
    L += [I(f"buffer_load_dwordx4 v{vKVd}, {sr(srd_)}, s{sT2} offen offset:{1024*b} {LD} lds", tag=('vm', tag)) for b in range(4)]
    return L

def prologue():
    TMP = 184; ln = 188; cb = val('cb', 3); wb = val('wb', 1)
    P = [I("s_cmp_lt_u32 s2, 256"), I("s_cbranch_scc1 F_go"), I("s_endpgm"), I("F_go:")]
    for s_, off in ((sDBG, A_DBG), (sC, A_CKV), (sWkv, A_WUK), (4, A_WUV), (sX, A_X), (sWS, A_WS), (sWQ, A_WQ), (sW1, A_W1), (sB1, A_B1),
                    (sWO, A_WO), (sW2, A_W2), (sB2, A_B2), (sOUT, A_OUT)):
        P.append(I(f"s_load_dwordx2 s[{s_}:{s_+1}], s[0:1], {off}"))
    P += [I(f"v_and_b32 v{ln}, 63, v0"), I(f"v_lshrrev_b32 v{TMP}, 6, v0"), I(f"v_mov_b32 v{vZero}, 0"),
          I(f"v_readfirstlane_b32 s{sWave}, v{TMP}"), I(f"v_mov_b32 v{vTm2}, 1"),
          I(f"s_getreg_b32 s{sXcd}, hwreg(HW_REG_XCC_ID, 0, 3)"),
          I(f"s_mov_b32 s{sDBG+2}, 256"), I(f"s_mov_b32 s{sDBG+3}, 0x20000"),
          I(f"s_lshl_b32 s{sT}, s{sXcd}, 5"), I(f"s_add_u32 s{sT}, s{sT}, 4"),
          I(f"v_bfe_u32 v{TMP}, v{ln}, {cb}, 3"), I(f"v_and_b32 v{TMP+1}, {(1 << cb) - 1}, v{ln}"), I(f"v_lshlrev_b32 v{TMP}, 10, v{TMP}"),
          I(f"v_lshl_add_u32 v{TMP}, v{TMP+1}, 7, v{TMP}"), I(f"v_and_b32 v{TMP+1}, {(8 << wb) - 1}, v{ln}"), I(f"v_lshlrev_b32 v{TMP+1}, 9, v{TMP+1}"),
          I(f"s_lshl_b32 s{sT2}, s2, 13"), I(f"s_lshl_b32 s{sT3}, s2, {12 + wb}"),
          I(f"s_cmp_lt_u32 s{sWave}, 2"), I(f"s_cselect_b32 s{sT2}, s{sT2}, s{sT3}"), I(f"s_cselect_b64 vcc, -1, 0"),
          I(f"s_cselect_b32 s{sKS+2}, 1, 2"), I(f"s_lshl_b32 s{sKS+2}, s{sKS+2}, 21"), I(f"s_mov_b32 s{sKS+3}, 0x20000"),
          I(f"v_cndmask_b32 v{TMP}, v{TMP+1}, v{TMP}, vcc"),
          I("s_waitcnt lgkmcnt(0)")] + stamp(0)
    P += [I(f"s_cmp_eq_u32 s{sWave}, 0"), I("s_cbranch_scc0 F_notk"), I("s_mov_b64 exec, 1"),
          I(f"buffer_atomic_add v{vTm2}, v{vZero}, {sr(sDBG)}, s{sT} offen sc0 sc1", tag=('cond', 'tk')),
          I("s_mov_b64 exec, -1"), I("F_notk:"),
          I(f"s_bitcmp1_b32 s{sWave}, 0"), I(f"s_cselect_b64 s[{sKS}:{sKS+1}], s[{sC}:{sC+1}], s[{sX}:{sX+1}]"),
          I(f"s_cselect_b64 s[{sVS}:{sVS+1}], s[4:5], s[{sWkv}:{sWkv+1}]"),
          I(f"s_cmp_lt_u32 s{sWave}, 2"), I(f"s_cselect_b64 s[{sKS}:{sKS+1}], s[{sKS}:{sKS+1}], s[{sVS}:{sVS+1}]"),
          pf_load(vJ, TMP, sKS, f"s{sT2}")]
    P += [I(f"v_lshrrev_b32 v{TMP+1}, 3, v{ln}"),
          I(f"s_mul_i32 s{sM0c}, s{sWave}, 24576"), I(f"s_lshl_b32 s{sW4096}, s{sWave}, 12"),
          I(f"s_mov_b32 s{sC+2}, {2*MB:#x}"), I(f"s_mov_b32 s{sC+3}, 0x20000"),
          I(f"s_mov_b32 s{sWkv+2}, {4*MB:#x}"), I(f"s_mov_b32 s{sWkv+3}, 0x20000"),
          I(f"v_and_b32 v{TMP+2}, 7, v{ln}"), I(f"v_lshrrev_b32 v{TMP}, 4, v{ln}"), I(f"v_xor_b32 v{TMP+2}, v{TMP+2}, v{TMP}"),
          I(f"v_lshlrev_b32 v{TMP}, 10, v{TMP+1}")]
    for b in range(4):
        P += [I(f"v_xor_b32 v{TMP+1}, {4*(b%2)}, v{TMP+2}"), I(f"v_lshl_add_u32 v{vCd+b}, v{TMP+1}, 4, v{TMP}")]
        if b: P.append(I(f"v_add_u32 v{vCd+b}, {7*b*1024}, v{vCd+b}"))
    P += lane_wdma(vWd, 8192, TMP, ln)
    P += lane_wtr(vWtrS[0], PLAN[0][1]*16384, TMP, ln)
    P += [I(f"v_add_u32 v{vWtrS[1]+c}, {(PLAN[4][1] - PLAN[0][1])*16384}, v{vWtrS[0]+c}") for c in range(4)]
    P += lane_wdma(vW1d, 3584, TMP, ln)
    n = lambda x: I(x, tag=('novm',))
    P += [I(f"s_cmp_eq_u32 s{sWave}, 0"), I("s_cbranch_scc0 F_tk2"), I("", tag=('needcond', 'tk')),
          I("F_tk0:"), I(f"v_readfirstlane_b32 s{sT2}, v{vTm2}"), I(f"s_cmp_lt_u32 s{sT2}, 32"), I("s_cbranch_scc1 F_tk1"),
          I(f"s_add_u32 s{sXcd}, s{sXcd}, 1"), I(f"s_and_b32 s{sXcd}, s{sXcd}, 7"),
          I(f"s_lshl_b32 s{sT}, s{sXcd}, 5"), I(f"s_add_u32 s{sT}, s{sT}, 4"), I(f"v_mov_b32 v{vTm2}, 1"), I("s_mov_b64 exec, 1"),
          n(f"buffer_atomic_add v{vTm2}, v{vZero}, {sr(sDBG)}, s{sT} offen sc0 sc1"), I("s_mov_b64 exec, -1"),
          n("s_waitcnt vmcnt(0)"), I("s_branch F_tk0"),
          I("F_tk1:"), I(f"s_lshl_b32 s{sT2}, s{sT2}, 3"), I(f"s_add_u32 s{sT2}, s{sT2}, s{sXcd}"), I(f"v_mov_b32 v{vTm2}, s{sT2}"),
          I(f"ds_write_b32 v{vZero}, v{vTm2}", tag=('nolg',)), I("s_waitcnt lgkmcnt(0)", tag=('nolg',)), I("F_tk2:"),
          I("s_barrier"), I(f"ds_read_b32 v{vTm2}, v{vZero}"), I(f"v_readfirstlane_b32 s2, v{vTm2}"), I("s_barrier"),
          I(f"s_and_b32 s{sXcd}, s2, 7"), I(f"s_lshr_b32 s{sI}, s2, 5"), I(f"s_bfe_u32 s{sHl}, s2, 0x20003"),
          I(f"s_and_b32 s{sType}, s{sI}, 1"),
          I(f"s_and_b32 s{sRb}, s2, 1"), I(f"s_lshl_b32 s{sRb}, s{sRb}, 2"), I(f"s_add_u32 s{sRb}, s{sRb}, s{sHl}"),
          I(f"s_lshl_b32 s{sCoff}, s{sRb}, 18"), I(f"s_lshl_b32 s{sT}, s{sWave}, 16"), I(f"s_add_u32 s{sCoff}, s{sCoff}, s{sT}"),
          I(f"s_lshr_b32 s3, s{sXcd}, 1"), I("s_lshl_b32 s3, s3, 2"), I(f"s_lshr_b32 s{sT}, s{sI}, 1"), I(f"s_add_u32 s3, s3, s{sT}"),
          I(f"s_lshl_b32 s{sWoff}, s{sWave}, 18"), I(f"s_lshl_b32 s{sT}, s3, 9"), I(f"s_add_u32 s{sWoff}, s{sWoff}, s{sT}")]
    P += stamp(19)
    P += [I(f"s_or_b32 s{sT3}, s2, s{sWave}"), I(f"s_cmp_eq_u32 s{sT3}, 0"), I("s_cbranch_scc0 F_noep0"),
          I(f"s_mov_b32 s{sWS+2}, {WS_SIZE:#x}"), I(f"s_mov_b32 s{sWS+3}, 0x20000"), I(f"s_mov_b32 s{sT}, {FE:#x}"),
          I(f"buffer_load_dword v{vFt}, v{vZero}, {sr(sWS)}, s{sT} offen sc1", tag=('novm',)), I("F_noep0:")]
    nv0 = len(P)
    c0 = c_dma(0)
    P += c0[0] + c0[1]
    P += [I(f"s_cmp_eq_u32 s{sType}, 0"), I(f"s_cselect_b64 s[{sWkv}:{sWkv+1}], s[{sWkv}:{sWkv+1}], s[4:5]")]
    P += w_dma(0)
    P += [I(f"s_mov_b32 s{sX+2}, {2*MB:#x}"), I(f"s_mov_b32 s{sX+3}, 0x20000"),
          I(f"s_lshl_b32 s{sT2}, s2, 13"), I(f"s_lshl_b32 s{sT}, s{sWave}, 11"), I(f"s_add_u32 s{sT2}, s{sT2}, s{sT}"),
          I(f"v_lshlrev_b32 v{vL16}, 4, v{ln}"), I(f"v_and_b32 v{TMP}, 32, v{ln}"), I(f"v_lshl_add_u32 v{TMP}, v{TMP}, 4, v{vL16}"),
          I(f"buffer_load_dwordx4 {vr(144)}, v{TMP}, {sr(sX)}, s{sT2} offen"),
          I(f"buffer_load_dwordx4 {vr(148)}, v{TMP}, {sr(sX)}, s{sT2} offen offset:512")]
    g = c_dma(1); P += g[0] + g[1]
    if flag('early'):
        g = c_dma(2); P += w_dma(1) + g[0] + g[1] + w_dma(2) + w_dma(4)
    for s_, size in ((sWS, WS_SIZE), (sWQ, 4*MB), (sW1, 512*3584), (sB1, 3584), (sWO, 4*MB), (sW2, 1792*1024), (sB2, 1024), (sOUT, 2*MB)):
        P += [I(f"s_mov_b32 s{s_+2}, {size:#x}"), I(f"s_mov_b32 s{s_+3}, 0x20000")]
    P += [I(f"s_lshr_b32 s{sT}, s2, 3"), I(f"s_lshl_b32 s{sT}, s{sT}, 2"), I(f"s_add_u32 s97, s{sT}, s{sWave}"),
          I(f"v_lshlrev_b32 v169, 7, v{ln}"), I(f"s_lshl_b32 s{sT}, s97, 13"), I(f"s_and_b32 s{sT2}, s2, 1"), I(f"s_lshl_b32 s{sT2}, s{sT2}, 20"),
          I(f"s_add_u32 s{sT}, s{sT}, s{sT2}"),
          *([I(f"s_mov_b32 s{sSt}, s{sT}")] if not flag('early') else [pf_load(vJ, 169, sC, f"s{sT}")]),
          I("s_getpc_b64 s[6:7]"), I("F_pc:"),
          I(f"s_lshl_b32 s{sT}, s97, 12"), I(f"v_lshlrev_b32 v{TMP+2}, 6, v{ln}"), I(f"v_add_u32 v{TMP+2}, s{sT}, v{TMP+2}"),
          I(f"v_min_u32 v{TMP+2}, F_RA0-F_pc, v{TMP+2}")]
    P.append(I(f"v_mov_b32 v168, v{TMP+2}"))
    cl = I(f"global_load_dword v{vJ}, v168, s[6:7]"); cl.wr = set()
    LATE = []
    if not flag('early'):
        g = c_dma(2)
        global LATEQ
        LATEQ = [g[0], g[1], w_dma(1)] + ([] if not flag('cpf') else [[pf_load(vJ, 169, sC, f"s{sSt}")]]) + [w_dma(2), w_dma(4)]
        global CODEPF
        CODEPF = cl
        if val('gcode', 52) < 0: LATEQ.append([cl])
        k = val('nlate', 2)
        LATE = sum(LATEQ[:k], []); LATEQ = LATEQ[k:]
    else: P.append(cl)
    if flag('tlb'):
        P += [I(f"v_lshl_add_u32 v{TMP+2}, s97, 6, v{ln}"), I(f"v_mul_u32_u24 v{TMP+2}, {TS}, v{TMP+2}"), I(f"s_mov_b32 s{sT}, 16384"),
              pf_load(vJ, TMP+2, sWS, f"s{sT}")]
    P += [I(f"s_lshr_b32 s{sT}, s{sI}, 1"), I(f"s_lshl_b32 s{sT}, s{sT}, 2"), I(f"s_add_u32 s{sT}, s{sT}, s{sHl}"),
          I(f"s_lshl_b32 s{sT}, s{sT}, 2"), I(f"s_add_u32 s{sT}, s{sT}, s{sWave}"), I(f"s_lshl_b32 s{sT}, s{sT}, 16"),
          I(f"s_lshr_b32 s{sT2}, s{sXcd}, 1"), I(f"s_lshl_b32 s{sT2}, s{sT2}, 11"), I(f"s_add_u32 s{sWpf}, s{sT}, s{sT2}"),
          I(f"v_lshrrev_b32 v{vBo}, 4, v{ln}"), I(f"v_and_b32 v{TMP}, 15, v{ln}"),
          I(f"v_lshlrev_b32 v170, 13, v{vBo}"), I(f"v_lshl_add_u32 v170, v{TMP}, 7, v170"),
          I(f"v_lshlrev_b32 v{vBo}, 3, v{vBo}")]
    nyoung = sum(1 for x in P[nv0:] if x.kind in ('dma', 'vld', 'vst', 'vmisc'))
    P += [I(f"s_cmp_eq_u32 s{sT3}, 0"), I("s_cbranch_scc0 F_noep"),
          I(f"s_mov_b32 s{sT}, {FE:#x}"), I(f"s_waitcnt vmcnt({nyoung})", tag=('novm',)),
          I(f"v_add_u32 v{vFt}, 16, v{vFt}"), I(f"v_max_u32 v{vFt}, 1, v{vFt}"),
          I(f"buffer_store_dword v{vFt}, v{vZero}, {sr(sDBG)}, 0 offen {ST}", tag=('novm',)),
          I(f"buffer_store_dword v{vFt}, v{vZero}, {sr(sWS)}, s{sT} offen {ST}", tag=('novm',)),
          I("F_noep:")]
    P += [I(f"s_lshl_b32 s{sF0me}, s2, 7"), I(f"s_add_u32 s{sF0me}, s{sF0me}, {F0:#x}"),
          I(f"s_lshl_b32 s{sF1me}, s3, 3"), I(f"s_add_u32 s{sF1me}, s{sF1me}, s{sRb}"), I(f"s_lshl_b32 s{sF1me}, s{sF1me}, 1"),
          I(f"s_add_u32 s{sF1me}, s{sF1me}, s{sType}"), I(f"s_lshl_b32 s{sF1me}, s{sF1me}, 7"), I(f"s_add_u32 s{sF1me}, s{sF1me}, {F1:#x}"),
          ]
    P += [I(f"s_lshl_b32 s{sW1024}, s{sWave}, 10"),
          I(f"s_mov_b32 s{sScale}, {f32(QSCALE)}"), I(f"s_mov_b32 s{sGC0}, {f32(GC0)}"),
          I(f"s_lshl_b32 s{sOb}, s3, 6"), I(f"s_lshl_b32 s{sT}, s{sRb}, 2"), I(f"s_add_u32 s{sOb}, s{sOb}, s{sT}"),
          I(f"s_add_u32 s{sOb}, s{sOb}, s{sWave}"), I(f"s_mul_i32 s{sOb}, s{sOb}, {TS}"),
          I(f"s_mul_i32 s{sT}, s{sType}, {WS_V:#x}"), I(f"s_add_u32 s{sOb}, s{sOb}, s{sT}"),
          I(f"s_mov_b32 s{sKt}, 0"), I(f"s_mov_b32 s{sVt}, 0"), I(f"s_mov_b32 s{sKm}, s{sW4096}"), I(f"s_mov_b32 s{sVm}, s{sW4096}"),
          I(f"s_lshr_b32 s{sXrow}, s2, 1"), I(f"s_mul_i32 s{sXrow}, s{sXrow}, {XS}"), I(f"s_and_b32 s{sT}, s2, 1"), I(f"s_lshl_b32 s{sT}, s{sT}, 7"),
          I(f"s_add_u32 s{sXrow}, s{sXrow}, s{sT}"), I(f"s_add_u32 s{sXrow}, s{sXrow}, s{sW4096}"), I(f"s_add_u32 s{sXrow}, s{sXrow}, {WS_XN:#x}")]
    P += [I(f"v_and_b32 v{TMP}, 31, v{ln}"), I(f"v_lshrrev_b32 v{TMP+1}, 5, v{ln}"),
          I(f"v_lshlrev_b32 v152, 7, v{TMP}"), I(f"v_lshl_add_u32 v152, v{TMP+1}, 4, v152"),
          I(f"v_lshl_add_u32 v152, s{sWave}, 5, v152"), I(f"v_add_u32 v152, 90112, v152"),
          I(f"v_lshl_add_u32 v157, s{sWave}, 11, v{vL16}"), I(f"v_add_u32 v157, 90112, v157"),
          I(f"v_lshlrev_b32 v158, 10, v{TMP+1}"), I(f"v_bfe_u32 v{TMP}, v{ln}, 3, 2"), I(f"v_lshl_add_u32 v158, v{TMP}, 8, v158"),
          I(f"v_and_b32 v{TMP}, 7, v{ln}"), I(f"v_lshl_add_u32 v158, v{TMP}, 4, v158")]
    P += [I(f"v_and_b32 v{TMP}, 15, v{ln}"), I(f"v_bfe_u32 v{TMP+1}, v{ln}, 2, 1"), I(f"v_bfe_u32 v{TMP+2}, v{ln}, 3, 1"),
          I(f"v_xor_b32 v{TMP+1}, v{TMP+1}, v{TMP+2}"), I(f"v_mul_u32_u24 v{TMP+1}, 12, v{TMP+1}"),
          I(f"v_mul_lo_u32 v{TMP+1}, v{TMP+1}, s{sType}"), I(f"v_xor_b32 v{TMP}, v{TMP}, v{TMP+1}"),
          I(f"v_lshrrev_b32 v{TMP+1}, 1, v{TMP}"), I(f"v_lshrrev_b32 v{TMP+2}, 4, v{ln}"), I(f"v_xor_b32 v{TMP+1}, v{TMP+1}, v{TMP+2}"),
          I(f"v_lshlrev_b32 v{TMP}, 7, v{TMP}"), I(f"v_add_u32 v{TMP}, s{sM0c}, v{TMP}"),
          I(f"v_lshl_add_u32 v{vCr}, v{TMP+1}, 4, v{TMP}"), I(f"v_xor_b32 v{TMP+1}, 4, v{TMP+1}"),
          I(f"v_lshl_add_u32 v{vCr+1}, v{TMP+1}, 4, v{TMP}"),
          I(f"v_add_u32 v{vXo2}, {XS}, v{vL16}"), I(f"v_mov_b32 v{vGC1}, {f32(GC1)}"), *LATE,
          I(f"s_cmp_eq_u32 s{sType}, 0"), I("s_cbranch_scc0 F_V")]
    return P

def role():
    sT, sT2 = sSt, sT3; ln = 252
    P = [I(f"s_and_b32 s{sXcd}, s2, 7"), I(f"s_lshr_b32 s{sI}, s2, 5"), I(f"s_bfe_u32 s{sHl}, s2, 0x20003"),
         I(f"s_lshr_b32 s97, s2, 3"), I(f"s_lshl_b32 s97, s97, 2"), I(f"s_add_u32 s97, s97, s{sWave}"),
         I(f"v_lshrrev_b32 v{ln}, 4, v{vL16}"),
          I(f"s_lshl_b32 s3, s{sXcd}, 2"), I(f"s_add_u32 s3, s3, s{sHl}"),
          I(f"s_lshl_b32 s4, s{sHl}, 1"), I("s_min_u32 s4, s4, 5"), I(f"s_mul_i32 s{sT}, s{sXcd}, 7"), I(f"s_add_u32 s4, s4, s{sT}"),
          I(f"s_lshl_b32 s{sXL}, s{sI}, 3"), I(f"s_lshl_b32 s{sT}, s{sWave}, 1"), I(f"s_add_u32 s{sXL}, s{sXL}, s{sT}"),
          I(f"s_sub_u32 s{sXH}, 15, s{sI}"), I(f"s_lshl_b32 s{sXH}, s{sXH}, 3"), I(f"s_add_u32 s{sXH}, s{sXH}, s{sT}")]
    for d, q in ((sHL, sXL), (sHH, sXH)):
        P += [I(f"s_mul_i32 s{d}, s{q}, 56"), I(f"s_add_u32 s{d}, s{d}, s4"), I(f"s_lshl_b32 s{d}, s{d}, 10"), I(f"s_add_u32 s{d}, s{d}, {WS_H:#x}")]
    P += [I(f"s_lshl_b32 s{sT}, s3, 12"), I(f"s_add_u32 s{sT}, s{sT}, {WS_CTX:#x}")]
    for d, q in ((sCL, sXL), (sCH, sXH)):
        P += [I(f"s_lshl_b32 s{d}, s{q}, 17"), I(f"s_add_u32 s{d}, s{d}, s{sT}"),
              I(f"s_mul_i32 s{q}, s{q}, {XS}"), I(f"s_add_u32 s{q}, s{q}, {WS_XN:#x}")]
    P += [I(f"s_lshl_b32 s{sQo}, s{sWave}, 18"), I(f"s_lshl_b32 s{sT}, s3, 8"), I(f"s_add_u32 s{sQo}, s{sQo}, s{sT}"),
          I(f"s_lshl_b32 s{sB1o}, s4, 6"), I(f"s_mul_i32 s{s1o}, s{sWave}, {32*3584}"), I(f"s_add_u32 s{s1o}, s{s1o}, s{sB1o}"),
          I(f"s_mul_i32 s{sT}, s3, {32*TS}"),
          [I(f"s_add_u32 s{sKS}, s{sWS}, s{sT}"), I(f"s_addc_u32 s{sKS+1}, s{sWS+1}, 0")],
          [I(f"s_add_u32 s{sVS}, s{sKS}, {WS_V:#x}"), I(f"s_addc_u32 s{sVS+1}, s{sKS+1}, 0")],
          I(f"s_sub_u32 s{sT}, 16, s{sI}"), I(f"s_mul_i32 s{sKS+2}, s{sT}, {2*TS}"), I(f"s_mov_b32 s{sVS+2}, s{sKS+2}"),
          I(f"s_mov_b32 s{sKS+3}, 0x20000"), I(f"s_mov_b32 s{sVS+3}, 0x20000"),
          ]
    P += [
          I(f"s_lshl_b32 s{sFlagMe}, s{sI}, 3"), I(f"s_add_u32 s{sFlagMe}, s{sFlagMe}, s{sXcd}"), I(f"s_lshl_b32 s{sFlagMe}, s{sFlagMe}, 2"),
          I(f"s_add_u32 s{sFlagMe}, s{sFlagMe}, s{sWave}"), I(f"s_lshl_b32 s{sFlagMe}, s{sFlagMe}, 2"), I(f"s_add_u32 s{sFlagMe}, s{sFlagMe}, s{sHl}"),
          I(f"s_lshl_b32 s{sFlagMe}, s{sFlagMe}, 7"), I(f"s_add_u32 s{sFlagMe}, s{sFlagMe}, {F2:#x}"),
          I(f"v_bfe_u32 v253, v{ln}, 2, 1"), I(f"s_lshl_b32 s{sT}, s{sI}, 12"), I(f"s_sub_u32 s{sT}, {15*2048}, s{sT}"),
          I(f"v_mul_lo_u32 v{vP0}, v253, s{sT}"), I(f"v_and_b32 v253, 3, v{ln}"), I(f"v_lshl_add_u32 v{vP0}, v253, 7, v{vP0}"),
          I(f"s_lshl_b32 s{sT}, s{sI}, 11"), I(f"s_lshl_b32 s{sT2}, s{sWave}, 9"), I(f"s_add_u32 s{sT}, s{sT}, s{sT2}"),
          I(f"s_add_u32 s{sT}, s{sT}, {F0:#x}"), I(f"v_add_u32 v{vP0}, s{sT}, v{vP0}"),
          I(f"s_lshl_b32 s{sT}, s{sXcd}, 1"), I(f"s_lshr_b32 s{sT2}, s{sHl}, 1"), I(f"s_add_u32 s{sT}, s{sT}, s{sT2}"),
          I(f"s_lshl_b32 s{sT}, s{sT}, 11"), I(f"s_add_u32 s0, s{sT}, {F1:#x}"),
          I(f"v_and_b32 v253, 1, v{ln}"), I(f"v_lshlrev_b32 v{vF1}, 7, v253")]
    return P

def ln_stream():
    XR = 144; U = 128; S = 153; T2 = 154; MB_ = 155; RS = 156
    P = []
    for k in range(8): P += [I(f"v_lshlrev_b32 v{U+2*k}, 16, v{XR+k}"), I(f"v_and_b32 v{U+2*k+1}, 0xffff0000, v{XR+k}")]
    P += [I(f"v_add_f32 v{S}, v{U}, v{U+1}")] + [I(f"v_add_f32 v{S}, v{S}, v{U+k}") for k in range(2, 16)]
    P += sum32(S, T2) + [I(f"v_mul_f32 v{S}, {f32(1/512)}, v{S}")] + bf16_round(MB_, S)
    P += [I(f"v_sub_f32 v{T2}, v{U}, v{S}"), I(f"v_mul_f32 v{RS}, v{T2}, v{T2}")]
    for k in range(1, 16): P += [I(f"v_sub_f32 v{T2}, v{U+k}, v{S}"), I(f"v_fmac_f32 v{RS}, v{T2}, v{T2}")]
    P += sum32(RS, T2) + [I(f"v_mul_f32 v{RS}, {f32(1/512)}, v{RS}")] + bf16_round(RS, RS)
    P += [I(f"v_add_f32 v{RS}, {f32(1e-5)}, v{RS}")] + bf16_round(RS, RS) + [I(f"v_sqrt_f32 v{RS}, v{RS}")] + bf16_round(RS, RS)
    P += [I(f"v_rcp_f32 v{RS}, v{RS}")]
    for k in range(8):
        a, b = U+2*k, U+2*k+1
        P += [I(f"v_sub_f32 v{a}, v{a}, v{MB_}"), I(f"v_sub_f32 v{b}, v{b}, v{MB_}"), I(f"v_cvt_pk_bf16_f32 v{T2}, v{a}, v{b}"),
              I(f"v_lshlrev_b32 v{a}, 16, v{T2}"), I(f"v_and_b32 v{b}, 0xffff0000, v{T2}"),
              I(f"v_mul_f32 v{a}, v{a}, v{RS}"), I(f"v_mul_f32 v{b}, v{b}, v{RS}"), I(f"v_cvt_pk_bf16_f32 v{XR+k}, v{a}, v{b}")]
    return P
def xn_out():
    XR = 144
    return ([I(f"ds_write_b128 v152, {vr(XR)}"), I(f"ds_write_b128 v152, {vr(XR+4)} offset:4096")],
            [I(f"ds_read_b128 {vr(160)}, v157"), I(f"ds_read_b128 {vr(164)}, v157 offset:1024")],
            [I(f"buffer_store_dwordx4 {vr(160)}, v158, {sr(sWS)}, s{sXrow} offen {ST}", tag=('vm', 'xnst')),
             I(f"buffer_store_dwordx4 {vr(164)}, v158, {sr(sWS)}, s{sXrow} offen offset:2048 {ST}", tag=('vm', 'xnst'))])

def pack_swap(T, X, Y):
    return [I(f"v_cvt_pk_bf16_f32 v{T}, v{X}, v{X+1}"), I(f"v_cvt_pk_bf16_f32 v{T+2}, v{Y}, v{Y+1}"),
            I(f"v_cvt_pk_bf16_f32 v{T+1}, v{X+2}, v{X+3}"), I(f"v_cvt_pk_bf16_f32 v{T+3}, v{Y+2}, v{Y+3}")], \
           [I(f"v_permlane16_swap_b32 v{T}, v{T+2}"), I(f"v_permlane16_swap_b32 v{T+1}, v{T+3}")]

def kv_epilogue(cp, isV):
    acc = ACCB[cp]; out = []
    for k, f in enumerate([7, 5, 0, 1, 2, 3, 4, 6]):
        V = []
        if isV:
            kb, dbl = divmod(f, 2)
            X = acc + ((2*dbl)*4 + kb)*4; Y = X + 16
            soff = (cp//2)*32*TS + kb*4096; ioff = (2*(cp % 2) + dbl)*1024
        else:
            kb32, c = divmod(f, 4)
            X = acc + (c*4 + 2*kb32)*4; Y = X + 4
            soff = (cp//2)*32*TS + kb32*8192 + (cp % 2)*4096; ioff = c*1024
        T = PK + (k % 2)*4
        if not isV: V += [I(f"v_mul_f32 v{r}, s{sScale}, v{r}") for r in list(range(X, X+4)) + list(range(Y, Y+4))]
        else: V += [I("", tag=('pad',)) for r in range(8)]
        a, b = pack_swap(T, X, Y)
        V += a + [I(f"s_add_u32 s{sSt}, s{sOb}, {soff}")] + b
        V += [I(f"buffer_store_dwordx4 {vr(T)}, v{vL16}, {sr(sWS)}, s{sSt} offen offset:{ioff} {'' if flag('kvplain') else ST}", tag=('vm', 'kvst'))]
        if flag('nokvst'): V.pop()
        out.append(V)
    return out

def gelu_stream():
    P = []
    for b in range(4):
        for fs in range(2):
            T = GP[(b*2 + fs) % 2]
            for half in range(2):
                X = ACCB[4] + ((2*fs + half)*4 + b)*4
                regs = list(range(X, X+4)); tt = list(range(GT, GT + 4))
                P += [I(f"v_mul_f32 v{t}, v{r}, v{r}") for t, r in zip(tt, regs)]
                P += [I(f"v_fma_f32 v{t}, v{t}, v{vGC1}, s{sGC0}") for t in tt]
                P += [I(f"v_mul_f32 v{t}, v{t}, v{r}") for t, r in zip(tt, regs)]
                P += [I(f"v_exp_f32 v{t}, v{t}") for t in tt]
                P += [I(f"v_add_f32 v{t}, 1.0, v{t}") for t in tt]
                P += [I(f"v_rcp_f32 v{t}, v{t}") for t in tt]
                P += [I(f"v_mul_f32 v{t}, v{t}, v{r}") for t, r in zip(tt, regs)]
                P += [I(f"v_cvt_pk_bf16_f32 v{T+2*half+j}, v{tt[2*j]}, v{tt[2*j+1]}") for j in range(2)]
            P += [I(f"s_add_u32 s{sSt}, s{sHL if b < 2 else sHH}, {(b % 2)*56*1024}"),
                  I(f"buffer_store_dwordx4 {vr(T)}, v{vL16}, {sr(sWS)}, s{sSt} offen offset:{fs*1024} {ST}")]
    return P
def bias_stream():
    A = ACCB[4]; R = A + 56
    ld = [I(f"buffer_load_dwordx2 v[{R+2*c}:{R+2*c+1}], v{vBo}, {sr(sB1)}, s{sB1o} offen offset:{32*c}") for c in range(4)]
    un = []
    for c in range(4):
        for kb in ([0, 1, 2, 3] if c < 3 else [0]):
            d = A + (c*4 + kb)*4
            for k in range(2): un += [I(f"v_lshlrev_b32 v{d+2*k}, 16, v{R+2*c+k}"), I(f"v_and_b32 v{d+2*k+1}, 0xffff0000, v{R+2*c+k}")]
    un += [I(f"v_mov_b32 v{A+48+4*kb+j}, v{A+48+j}") for kb in (1, 2, 3) for j in range(4)]
    return ld, un

def qconv(cp, qb, c):
    X = ACCB[cp] + (c*4 + 2*qb)*4; T = GP[c % 2]
    a, b = pack_swap(T, X, X + 4)
    return a + b + [I(f"v_accvgpr_write_b32 a{QF(qb, 4*(cp-5) + c)+j}, v{T+j}") for j in range(4)]

def engine(isV):
    NF = 448
    grp = [(cp, ks, c) for cp, ks in ORDER for c in range(4)]
    def c_reads(ch):
        return [I(f"ds_read_b128 {ar(XF(kb, 2*ch + ks2))}, v{vCr+ks2} offset:{(ch % 3)*8192 + kb*2048}") for ks2 in range(2) for kb in range(4)]
    def w_reads(n):
        cp, ks, c = grp[n]; r = WF + (n % NWF)*4; va = vWtrS[cp % 2] + c; off = (ks % 4)*4096
        return [I(f"ds_read_b64_tr_b16 {vr(r,2)}, v{va} offset:{off}"), I(f"ds_read_b64_tr_b16 {vr(r+2,2)}, v{va} offset:{off+1024}")]
    head = stamp(1) + [needvm('c0')] + c_reads(0) + [needvm('w0'), I("s_barrier")] + stamp(2)
    for n in range(PF): head += w_reads(n)
    mf = []; post = {}; valu = []; dmaq = []
    def addpost(g, items): post.setdefault(g, []).extend(items)
    def add(mg, items):
        for it in items: valu.append((mg, it))
    G = lambda n: 4*n
    for n, (cp, ks, c) in enumerate(grp):
        wf = vr(WF + (n % NWF)*4)
        for kb in range(4):
            d = vr(ACCB[cp] + (c*4 + kb)*4); cf = ar(XF(kb, ks))
            cin = d if (ks or cp == 4) else "0"
            mf.append(I(f"{M16} {d}, {cf}, {wf}, {cin}" if (isV and cp < 4) else f"{M16} {d}, {wf}, {cf}, {cin}"))
        if n + 1 < NF: addpost(G(n) + 3, [needlg(regs_in(vr(WF + ((n + 1) % NWF)*4)))])
    cur = {0: PLAN[0][1], 1: PLAN[4][1]}
    for u in sorted(FU, key=lambda u: FU[u]):
        st = (u // 4) % 2; delta = (PLAN[u][1] - cur[st])*16384; cur[st] = PLAN[u][1]
        if delta:
            g = G(FU[u] - PF)
            addpost(g - 3, [I(f"v_add_u32 v{vWtrS[st]+k}, {delta & 0xffffffff:#x}, v{vWtrS[st]+k}") for k in range(2)])
            addpost(g - 2, [I(f"v_add_u32 v{vWtrS[st]+k}, {delta & 0xffffffff:#x}, v{vWtrS[st]+k}") for k in range(2, 4)])
    bs0, bs1 = val('bs0', 124), val('bs1', 348)
    assert bs0 in BARS and bs1 in BARS
    for k, p in enumerate(BARS):
        if p < 0: continue
        names = [f'w{u}' for u in NEED if NEED[u] == p] + (['xnst'] if p == bs0 else []) + (['kvst'] if p == bs1 else [])
        addpost(G(p) - 1, ([I("s_waitcnt lgkmcnt(0)")] if p == 72 else []) + ([needvm(*names)] if names else []) + ([] if flag('nobar') else [I("s_barrier")]) + (stamp(20 + k) if flag('fine') else []))
        for u in sorted(PLAN, key=lambda u: FU[u]):
            if PLAN[u][0] == p and not (flag('nowd') and p > 60): dmaq.append((G(p) + 1, w_dma(u)))
    addpost(G(bs0) + 1, flag_put(vFt, vZero, sF0me, 1))
    addpost(G(bs1) + 1, flag_put(vFt, vZero, sF1me, 1))
    for n in range(NF - PF): addpost(G(n), w_reads(n + PF))
    for q in LATEQ: dmaq.append((0, q, 1))
    if val('gcode', 52) >= 0: dmaq.append((G(val('gcode', 52)), [CODEPF]))
    R = [None, 2, 10, 18, 26, 38, 50, 62]
    D = {3: val('d3', 5), 4: val('d4', 10), 5: val('d5', 18), 6: val('d6', 28), 7: val('d7', 41)}
    for ch in range(1, 8):
        addpost(G(R[ch]) + 1, [needvm(f'c{ch}')])
        rd = c_reads(ch)
        for k in range(4): addpost(G(R[ch]) + 2 + 4*k, rd[2*k:2*k+2])
    for ch, g in D.items():
        old = ch - 3
        assert old == 0 or g >= R[old] + 5
        regs = [r for x in c_reads(old) for r in x.wr]
        addpost(G(g) + 1, [needlg(regs)])
        for q in c_dma(ch): dmaq.append((G(g) + 1, q, 1 if ch < 5 else val('cstep', 3)))
    for ks in range(16):
        L = []
        if ks % 4 == 0: L += [I(f"s_add_u32 s{sXLc}, s{sXL}, {(ks//4)*4096}"), I(f"s_add_u32 s{sXHc}, s{sXH}, {(ks//4)*4096}")]
        L += [I(f"buffer_load_dwordx4 {ar(XF(b, ks))}, v{vXo2 if b % 2 else vL16}, {sr(sWS)}, s{sXHc if b >= 2 else sXLc} offen offset:{(ks % 4)*1024} {'' if flag('xnnosc') else LD}") for b in range(4)]
        if not flag('noxn'): dmaq.append((G(POS[(3, ks)] + 4) + 1, L))
    if not flag('nopfw'):
        dmaq.append((G(val('pfw', 14)), [pf_load(vJ, 170, sWkv, f"s{sWpf}")]))
        dmaq.append((G(val('pfw2', 52)), [I(f"s_add_u32 s{sWpf}, s{sWpf}, 32768"), pf_load(vJ, 170, sWkv, f"s{sWpf}")]))
    dmaq.append((G(val('gep', 44)), [poll_issue(vPoll, vZero, sDBG, "0")]))
    addpost(G(110) + 2, epoch_check(vPoll, vZero, sT2))
    gs0 = val('gs0', 150)
    dmaq.append((G(gs0), [poll_issue(vPoll, vP0, sWS, "0")]))
    addpost(G(167) + 2, stamp(50) + poll_check(vPoll, vP0, sWS, "0", 1, sT2, sT3) + stamp(51))
    xw, xr, xs = xn_out()
    add(G(val('gln', 0)) + 2, ln_stream()); add(G(60), xw)
    addpost(G(72) + 2, xr)
    dmaq.append((G(val('gxs', 90)), xs))
    R = role()
    add(G(66), R)
    dmaq.append((G(121), [pf_load(vJ, vBo, sB1, f"s{sB1o}")]))
    bl, bu = bias_stream()
    sp = val('esp', 7)
    for cp, g, w in ((0, 98, sp), (1, 162, val('esp1', 5)), (2, 226, sp), (3, 286, 0)):
        for k, fr in enumerate(kv_epilogue(cp, isV)):
            if not flag('noepi'): add(G(g + k*w), fr)
            if cp == 1 and k == 1: add(0, bl)
        if cp == 1:
            add(G(206), bu)
            if flag('fine'):
                for k, g in enumerate((val('f0', 157), val('f1', 160), val('f2', 163), val('f3', 165))): addpost(G(g) + 3, stamp(44 + k))
    if not flag('nogelu'): add(G(322), gelu_stream())
    for qb in range(2):
        for c in range(4): add(G(384) + 16*(8*qb + c) + 18, qconv(5, qb, c))
    gs1 = val('gs1', 398)
    dmaq.append((G(gs1), [poll_issue(vPoll, vF1, sWS, "s0")]))
    addpost(G(gs1 + 14) + 1, stamp(48) + poll_check(vPoll, vF1, sWS, "s0", 1, sT2, sT3) + stamp(49) + [I(f"v_add_u32 v{vKVd}, s{sW4096}, v{vL16}")])
    assert all(SLOTFREE[sl] <= gs1 + 14 for sl in (0, 4, 1, 2, 5)), SLOTFREE
    assert min(PLAN[u][0] for u in PLAN if PLAN[u][1] == 5) >= 92
    for k, wh in enumerate("KVKKV"): dmaq.append((G(gs1 + 15 + 6*k), kv_dma(wh, f'kv{k}')))
    def warm(g, V, M):
        if V: addpost(G(g) + 1, V[:2])
        if V[2:]: addpost(G(g) + 2, V[2:])
        dmaq.append((G(g + 1), M))
    if flag('pfqs'):
        g0 = val('pfq', 76); dq = val('pfqd', 18)
        for k in range(4):
            warm(g0 + dq*k, [I(f"v_lshlrev_b32 v252, 2, v{vL16}")] if k == 0 else [],
                 [I(f"s_lshl_b32 s{sT}, s2, 14"), I(f"s_add_u32 s{sT}, s{sT}, {4096*k}"), I(f"s_cmp_eq_u32 s{sWave}, {k}"),
                  I(f"s_cselect_b32 s{sT}, s{sT}, 0x1000000"), pf_load(vJ, 252, sWQ, f"s{sT}")])
    elif flag('pfqc'):
        warm(val('pfq', 130), [I(f"v_lshlrev_b32 v252, 2, v{vL16}")],
             [I(f"s_lshl_b32 s{sT}, s2, 14"), I(f"s_add_u32 s{sT}, s{sT}, s{sW4096}"), pf_load(vJ, 252, sWQ, f"s{sT}")])
    elif not flag('nopfq'):
        warm(val('pfq', 130), [I(f"v_bfe_u32 v252, v{vL16}, 4, 4"), I(f"v_lshlrev_b32 v253, 10, v{vBo}"), I(f"v_lshl_add_u32 v252, v252, 6, v253")],
             [I(f"s_lshl_b32 s{sT}, s97, 15"), I(f"s_lshl_b32 s{sT2}, s{sXcd}, 10"), I(f"s_add_u32 s{sT}, s{sT}, s{sT2}"), pf_load(vJ, 252, sWQ, f"s{sT}")])
    if not flag('nopf1'):
        warm(val('pf1', 16), [I(f"v_lshlrev_b32 v253, 1, v{vL16}")],
             [I(f"s_mul_i32 s{sT}, s2, 7168"), I(f"s_mul_i32 s{sT2}, s{sWave}, 1792"), I(f"s_add_u32 s{sT}, s{sT}, s{sT2}"), pf_load(vJ, 253, sW1, f"s{sT}")])
    if flag('pfo_old'):
        warm(330, [I(f"v_lshlrev_b32 v252, 2, v{vL16}"), I(f"v_lshlrev_b32 v253, 1, v{vL16}")],
             [I(f"s_lshl_b32 s{sT}, s{sXcd}, 19"), I(f"s_lshl_b32 s{sT2}, s97, 12"), I(f"s_add_u32 s{sT}, s{sT}, s{sT2}"), pf_load(vJ, 252, sWO, f"s{sT}")])
        dmaq.append((G(334), [I(f"s_mul_i32 s{sT}, s{sXcd}, {224*1024}"), I(f"s_mul_i32 s{sT2}, s97, 1792"), I(f"s_add_u32 s{sT}, s{sT}, s{sT2}"), pf_load(vJ, 253, sW2, f"s{sT}")]))
    if not flag('nopf2'):
        V, M = code_pf("F_AAe", "F_Bend", 252, vJ, vL16, 0); warm(352, V, M)
        V, M = code_pf("F_AAe", "F_Bend", 253, vJ, vL16, 1); warm(368, V, M)
    if flag('pf4'):
        V, M = code_pf("F_J", "F_AAe", 252, vJ, vL16); warm(val('gpf4', 270), V, M)
        addpost(G(150) + 1, [I(f"F_mid{int(isV)}:")])
        V, M = code_pf(f"F_mid{int(isV)}", "F_J" if isV else "F_V", 252, vJ, vL16); warm(val('gpf5', 112), V, M)
    place_dma(dmaq, addpost, step=val('estep', 4), ok=lambda g: g % 4 in (1, 2))
    for k, p in enumerate((32, 96, 160, 224, 288, 320)): addpost(G(p) - 1, stamp(3 + k))
    def budget(g, p):
        n = sum(1 for x in p if x.txt or (x.tag and x.tag[0] != 'needvm'))
        if any(x.kind == 'dsr' for x in p): return 1 if n == 1 else 0
        nd = sum(1 for x in p if x.kind in ('dma', 'vld', 'vst'))
        return max(0, 2 - max(0, n - 1) - nd)
    body, left = weave(mf, post, valu, budget)
    if OPT.verbose: print(f"[engine] leftover valu {left}", file=sys.stderr)
    mi = 0; start = {cp: G(POS[(cp, 0)]) for cp in range(7)}; end = {cp: G(POS[(cp, 15)] + 4) for cp in range(7)}
    for x in body:
        if x.kind == 'mfma': mi += 1; continue
        if x.op == 'ds_write_b128': assert G(60) <= mi < G(72) - 1, mi
        if x is R[-1]: assert mi < G(120), mi
        for r in (x.rd | x.wr):
            if r[0] == 'v' and r != 'vcc' and int(r[1:]) < 192:
                q = int(r[1:])
                for cp in range(7):
                    if ACCB[cp] <= q < ACCB[cp] + 64:
                        blk = (q - ACCB[cp]) // 4
                        assert not (start[cp] + blk < mi <= end[cp] - 16 + blk), ("accumulator busy", cp, mi, x.txt)
    idx = [k for k, x in enumerate(body) if x.kind == 'mfma'][G(336)]
    return head + body[:idx], body[idx:]
```

```python
from f_common import *

GC0 = -2.0 * math.sqrt(2.0 / math.pi) * math.log2(math.e)
GC1 = GC0 * 0.044715
sWoff, sCoff, sOb, sM0c, sScale, sType, s1o, sQo, sXL, sXH, sXLc, sXHc, sHL, sHH, sGC0, sB1o, sSt = range(74, 91)
sXrow, sWpf, sRb, sF0me, sF1me, sXcc = 98, 99, 96, 5, 1, 0
sKt, sKm, sVt, sVm = 91, 92, 93, 94
sCL, sCH = 95, 96
ACCB = [0, 64, 128, 0, 64, 0, 128]
WF = 192; NWF = 6
vZero, vPoll, vFt, vP0, vF1, vJ, vBo, vTm2 = range(216, 224)
vL16 = 224; vWtrS = [225, 229]; vWd, vW1d = 233, 237
vXo2, vGC1, vKVd = 241, 242, 243
PK = 244; GT = 237; GP = [244, 248]
vCd, vCr = 180, 178
QF = lambda qb, ks: 128 + (qb*8 + ks)*4
XF = lambda b, ks: (b*16 + ks)*4

def bf16_round(dst, src):
    return [I(f"v_cvt_pk_bf16_f32 v{dst}, v{src}, v{src}"), I(f"v_and_b32 v{dst}, 0xffff0000, v{dst}")]
def sum32(v, t):
    return [I(f"v_add_f32_dpp v{v}, v{v}, v{v} quad_perm:[1,0,3,2] row_mask:0xf bank_mask:0xf"),
            I(f"v_add_f32_dpp v{v}, v{v}, v{v} quad_perm:[2,3,0,1] row_mask:0xf bank_mask:0xf"),
            I(f"v_add_f32_dpp v{v}, v{v}, v{v} row_half_mirror row_mask:0xf bank_mask:0xf"),
            I(f"v_add_f32_dpp v{v}, v{v}, v{v} row_mirror row_mask:0xf bank_mask:0xf"),
            I(f"v_mov_b32 v{t}, v{v}"), I(f"v_permlane16_swap_b32 v{v}, v{t}"), I(f"v_add_f32 v{v}, v{v}, v{t}")]

def c_dma(ch):
    gs = []
    for grp in range(2):
        L = [I(f"s_add_u32 m0, s{sM0c}, {(ch % 3)*8192 + grp*4096}"), I(f"s_add_u32 s{sT}, s{sCoff}, {ch*128 + grp*32768}")]
        L += [I(f"buffer_load_dwordx4 v{vCd+b}, {sr(sC)}, s{sT} offen offset:{1024*b} {'nt' if flag('cnt') else ''} lds", tag=('vm', f'c{ch}')) for b in range(4)]
        gs.append(L)
    return gs
ORDER = [(0, k) for k in range(8)]
for cp in range(4):
    for k in range(8): ORDER += [(cp, 8 + k), (cp + 1, k)]
ORDER += [(4, k) for k in range(8, 16)] + [(5, k) for k in range(16)] + [(6, k) for k in range(16)]
POS = {e: 4*k for k, e in enumerate(ORDER)}
PF = 4
FU = {u: POS[(u//4, 4*(u % 4))] for u in range(28)}
LU = {u: POS[(u//4, 4*(u % 4) + 3)] + 3 for u in range(28)}
def make_plan(dist):
    need = {}; bars = []
    for u in sorted(FU, key=lambda u: FU[u]):
        p = FU[u] - PF
        if bars and (p - bars[-1] <= 4 or (u >= 19 and u % 2 == 1 and not flag('morebar'))): need[u] = bars[-1]
        else: bars.append(p); need[u] = p
    extra = [40, 72]
    bars = sorted(set(bars + extra))
    plan = {0: (-9, 6), 1: (-9, 7), 2: (-9, 8), 4: (-9, 9)}
    free = {sl: 72 for sl in range(6)}
    def rel(u): return min([p for p in bars if p > LU[u]] + [10**6])
    for u, (p, sl) in plan.items(): free[sl] = rel(u)
    rest = [u for u in sorted(FU, key=lambda u: FU[u]) if u not in plan]
    for u in rest:
        allowed = range(10) if u < 22 else (3, 5, 6, 7, 8, 9)
        sl = min(allowed, key=lambda x: (free[x], x in (3, 5, 6, 7, 8, 9) and u >= 16))
        cand = [p for p in bars if p >= free[sl] and p >= need[u] - dist]
        plan[u] = (cand[0], sl); assert cand[0] < need[u], u
        free[sl] = rel(u)
    return plan, need, bars, free
PLAN, NEED, BARS, SLOTFREE = make_plan(val('wdist', 100))
def w_dma(u):
    cp, kq = divmod(u, 4); slot = PLAN[u][1]
    if cp < 4: srd_, vo, so, off = sWkv, vWd, sWoff, kq*4*262144 + cp*128
    elif cp == 4: srd_, vo, so, off = sW1, vW1d, s1o, kq*4*32*3584
    else: srd_, vo, so, off = sWQ, vWd, sQo, kq*4*262144 + (cp - 5)*128
    L = [I(f"s_add_u32 m0, s{sW4096}, {slot*16384}"), I(f"s_add_u32 s{sT}, s{so}, {off}")]
    L += [I(f"buffer_load_dwordx4 v{vo+b}, {sr(srd_)}, s{sT} offen offset:{1024*b} {'nt' if (flag('wnt') or (flag('qnt') and cp >= 4)) else ''} lds", tag=('vm', f'w{u}')) for b in range(4)]
    return L
def kv_dma(which, tag=None):
    srd_, t, m = (sKS, sKt, sKm) if which == 'K' else (sVS, sVt, sVm)
    L = [I(f"s_mov_b32 m0, s{m}") if which == 'K' else I(f"s_add_u32 m0, s{m}, 0x10000"),
         I(f"s_mov_b32 s{sT2}, s{t}"),
         I(f"s_add_u32 s{t}, s{t}, {TS}"), I(f"s_add_u32 s{m}, s{m}, 0x4000"), I(f"s_and_b32 s{m}, s{m}, 0xffff")]
    L += [I(f"buffer_load_dwordx4 v{vKVd}, {sr(srd_)}, s{sT2} offen offset:{1024*b} {LD} lds", tag=('vm', tag)) for b in range(4)]
    return L

def prologue():
    TMP = 184; ln = 188; cb = val('cb', 3); wb = val('wb', 3)
    P = [I("s_cmp_lt_u32 s2, 256"), I("s_cbranch_scc1 F_go"), I("s_endpgm"), I("F_go:")]
    for s_, off in ((sDBG, A_DBG), (sC, A_CKV), (sWkv, A_WUK), (4, A_WUV), (sX, A_X), (sWS, A_WS), (sWQ, A_WQ), (sW1, A_W1), (sB1, A_B1),
                    (sWO, A_WO), (sW2, A_W2), (sB2, A_B2), (sOUT, A_OUT)):
        P.append(I(f"s_load_dwordx2 s[{s_}:{s_+1}], s[0:1], {off}"))
    P += [I(f"v_and_b32 v{ln}, 63, v0"), I(f"v_lshrrev_b32 v{TMP}, 6, v0"), I(f"v_mov_b32 v{vZero}, 0"),
          I(f"v_readfirstlane_b32 s{sWave}, v{TMP}"), I(f"v_mov_b32 v{vTm2}, 1"),
          I(f"s_getreg_b32 s{sXcd}, hwreg(HW_REG_XCC_ID, 0, 3)"),
          I(f"s_mov_b32 s{sDBG+2}, 256"), I(f"s_mov_b32 s{sDBG+3}, 0x20000"),
          I(f"s_lshl_b32 s{sT}, s{sXcd}, 5"), I(f"s_add_u32 s{sT}, s{sT}, 4"),
          I(f"v_bfe_u32 v{TMP}, v{ln}, {cb}, 3"), I(f"v_and_b32 v{TMP+1}, {(1 << cb) - 1}, v{ln}"), I(f"v_lshlrev_b32 v{TMP}, 10, v{TMP}"),
          I(f"v_lshl_add_u32 v{TMP}, v{TMP+1}, 7, v{TMP}"), *([I(f"v_and_b32 v{TMP+1}, {(8 << wb) - 1}, v{ln}"), I(f"v_lshlrev_b32 v{TMP+1}, 9, v{TMP+1}")] if wb < 3 else
            [I(f"v_lshrrev_b32 v{TMP+1}, 1, v{ln}"), I(f"v_lshlrev_b32 v{TMP+1}, 9, v{TMP+1}"), I(f"v_and_b32 v{TMP+2}, 1, v{ln}"), I(f"v_lshl_add_u32 v{TMP+1}, v{TMP+2}, 7, v{TMP+1}")]),
          I(f"s_lshl_b32 s{sT2}, s2, 13"), I(f"s_lshl_b32 s{sT3}, s2, {12 + min(wb, 2)}"),
          I(f"s_cmp_lt_u32 s{sWave}, 2"), I(f"s_cselect_b32 s{sT2}, s{sT2}, s{sT3}"), I(f"s_cselect_b64 vcc, -1, 0"),
          I(f"s_cselect_b32 s{sKS+2}, 1, 2"), I(f"s_lshl_b32 s{sKS+2}, s{sKS+2}, 21"), I(f"s_mov_b32 s{sKS+3}, 0x20000"),
          I(f"v_cndmask_b32 v{TMP}, v{TMP+1}, v{TMP}, vcc"),
          I("s_waitcnt lgkmcnt(0)")] + stamp(0)
    P += [I(f"s_cmp_eq_u32 s{sWave}, 0"), I("s_cbranch_scc0 F_notk"), I("s_mov_b64 exec, 1"),
          I(f"buffer_atomic_add v{vTm2}, v{vZero}, {sr(sDBG)}, s{sT} offen sc0 sc1", tag=('cond', 'tk')),
          I("s_mov_b64 exec, -1"), I("F_notk:"),
          I(f"s_bitcmp1_b32 s{sWave}, 0"), I(f"s_cselect_b64 s[{sKS}:{sKS+1}], s[{sC}:{sC+1}], s[{sX}:{sX+1}]"),
          I(f"s_cselect_b64 s[{sVS}:{sVS+1}], s[4:5], s[{sWkv}:{sWkv+1}]"),
          I(f"s_cmp_lt_u32 s{sWave}, 2"), I(f"s_cselect_b64 s[{sKS}:{sKS+1}], s[{sKS}:{sKS+1}], s[{sVS}:{sVS+1}]"),
          pf_load(vJ, TMP, sKS, f"s{sT2}")]
    P += [I(f"v_lshrrev_b32 v{TMP+1}, 3, v{ln}"),
          I(f"s_mul_i32 s{sM0c}, s{sWave}, 24576"), I(f"s_lshl_b32 s{sW4096}, s{sWave}, 12"),
          I(f"s_mov_b32 s{sC+2}, {2*MB:#x}"), I(f"s_mov_b32 s{sC+3}, 0x20000"),
          I(f"s_mov_b32 s{sWkv+2}, {4*MB:#x}"), I(f"s_mov_b32 s{sWkv+3}, 0x20000"),
          I(f"v_and_b32 v{TMP+2}, 7, v{ln}"), I(f"v_lshrrev_b32 v{TMP}, 4, v{ln}"), I(f"v_xor_b32 v{TMP+2}, v{TMP+2}, v{TMP}"),
          I(f"v_lshlrev_b32 v{TMP}, 10, v{TMP+1}")]
    for b in range(4):
        P += [I(f"v_xor_b32 v{TMP+1}, {4*(b%2)}, v{TMP+2}"), I(f"v_lshl_add_u32 v{vCd+b}, v{TMP+1}, 4, v{TMP}")]
        if b: P.append(I(f"v_add_u32 v{vCd+b}, {7*b*1024}, v{vCd+b}"))
    P += lane_wdma(vWd, 8192, TMP, ln)
    P += lane_wtr(vWtrS[0], PLAN[0][1]*16384, TMP, ln)
    P += [I(f"v_add_u32 v{vWtrS[1]+c}, {(PLAN[4][1] - PLAN[0][1])*16384}, v{vWtrS[0]+c}") for c in range(4)]
    P += lane_wdma(vW1d, 3584, TMP, ln)
    n = lambda x: I(x, tag=('novm',))
    P += [I(f"s_cmp_eq_u32 s{sWave}, 0"), I("s_cbranch_scc0 F_tk2"), I(f"s_mov_b32 s{sT3}, 7"), I("", tag=('needcond', 'tk')),
          I("F_tk0:"), I(f"v_readfirstlane_b32 s{sT2}, v{vTm2}"), I(f"s_cmp_lt_u32 s{sT2}, 32"), I("s_cbranch_scc1 F_tk1"),
          I(f"s_sub_u32 s{sT3}, s{sT3}, 1"), I("s_cbranch_scc1 F_tk3"),
          I(f"s_add_u32 s{sXcd}, s{sXcd}, 1"), I(f"s_and_b32 s{sXcd}, s{sXcd}, 7"),
          I(f"s_lshl_b32 s{sT}, s{sXcd}, 5"), I(f"s_add_u32 s{sT}, s{sT}, 4"), I(f"v_mov_b32 v{vTm2}, 1"), I("s_mov_b64 exec, 1"),
          n(f"buffer_atomic_add v{vTm2}, v{vZero}, {sr(sDBG)}, s{sT} offen sc0 sc1"), I("s_mov_b64 exec, -1"),
          n("s_waitcnt vmcnt(0)"), I("s_branch F_tk0"),
          I("F_tk1:"), I(f"s_lshl_b32 s{sT2}, s{sT2}, 3"), I(f"s_add_u32 s2, s{sT2}, s{sXcd}"),
          I("F_tk3:"), I(f"v_mov_b32 v{vTm2}, s2"),
          I(f"ds_write_b32 v{vZero}, v{vTm2}", tag=('nolg',)), I("s_waitcnt lgkmcnt(0)", tag=('nolg',)), I("F_tk2:"),
          I("s_barrier"), I(f"ds_read_b32 v{vTm2}, v{vZero}"), I(f"v_readfirstlane_b32 s2, v{vTm2}"), I("s_barrier"),
          I(f"s_and_b32 s{sXcd}, s2, 7"), I(f"s_lshr_b32 s{sI}, s2, 5"), I(f"s_bfe_u32 s{sHl}, s2, 0x20003"),
          I(f"s_and_b32 s{sType}, s{sI}, 1"),
          I(f"s_and_b32 s{sRb}, s2, 1"), I(f"s_lshl_b32 s{sRb}, s{sRb}, 2"), I(f"s_add_u32 s{sRb}, s{sRb}, s{sHl}"),
          I(f"s_lshl_b32 s{sCoff}, s{sRb}, 18"), I(f"s_lshl_b32 s{sT}, s{sWave}, 16"), I(f"s_add_u32 s{sCoff}, s{sCoff}, s{sT}"),
          I(f"s_lshr_b32 s3, s{sXcd}, 1"), I("s_lshl_b32 s3, s3, 2"), I(f"s_lshr_b32 s{sT}, s{sI}, 1"), I(f"s_add_u32 s3, s3, s{sT}"),
          I(f"s_lshl_b32 s{sWoff}, s{sWave}, 18"), I(f"s_lshl_b32 s{sT}, s3, 9"), I(f"s_add_u32 s{sWoff}, s{sWoff}, s{sT}")]
    P += stamp(19)
    P += [I(f"s_or_b32 s{sT3}, s2, s{sWave}"), I(f"s_cmp_eq_u32 s{sT3}, 0"), I("s_cbranch_scc0 F_noep0"),
          I(f"s_mov_b32 s{sWS+2}, {WS_SIZE:#x}"), I(f"s_mov_b32 s{sWS+3}, 0x20000"), I(f"s_mov_b32 s{sT}, {FE:#x}"),
          I(f"buffer_load_dword v{vFt}, v{vZero}, {sr(sWS)}, s{sT} offen sc1", tag=('novm',)), I("F_noep0:")]
    nv0 = len(P)
    c0 = c_dma(0)
    P += c0[0] + c0[1]
    P += [I(f"s_cmp_eq_u32 s{sType}, 0"), I(f"s_cselect_b64 s[{sWkv}:{sWkv+1}], s[{sWkv}:{sWkv+1}], s[4:5]")]
    P += w_dma(0)
    P += [I(f"s_mov_b32 s{sX+2}, {2*MB:#x}"), I(f"s_mov_b32 s{sX+3}, 0x20000"),
          I(f"s_lshl_b32 s{sT2}, s2, 13"), I(f"s_lshl_b32 s{sT}, s{sWave}, 11"), I(f"s_add_u32 s{sT2}, s{sT2}, s{sT}"),
          I(f"v_lshlrev_b32 v{vL16}, 4, v{ln}"), I(f"v_and_b32 v{TMP}, 32, v{ln}"), I(f"v_lshl_add_u32 v{TMP}, v{TMP}, 4, v{vL16}"),
          I(f"buffer_load_dwordx4 {vr(144)}, v{TMP}, {sr(sX)}, s{sT2} offen"),
          I(f"buffer_load_dwordx4 {vr(148)}, v{TMP}, {sr(sX)}, s{sT2} offen offset:512")]
    g = c_dma(1); P += g[0] + g[1]
    if flag('early'):
        g = c_dma(2); P += w_dma(1) + g[0] + g[1] + w_dma(2) + w_dma(4)
    for s_, size in ((sWS, WS_SIZE), (sWQ, 4*MB), (sW1, 512*3584), (sB1, 3584), (sWO, 4*MB), (sW2, 1792*1024), (sB2, 1024), (sOUT, 2*MB)):
        P += [I(f"s_mov_b32 s{s_+2}, {size:#x}"), I(f"s_mov_b32 s{s_+3}, 0x20000")]
    P += [I(f"s_lshr_b32 s{sT}, s2, 3"), I(f"s_lshl_b32 s{sT}, s{sT}, 2"), I(f"s_add_u32 s97, s{sT}, s{sWave}"),
          I(f"v_lshlrev_b32 v169, 7, v{ln}"), I(f"s_lshl_b32 s{sT}, s97, 13"), I(f"s_and_b32 s{sT2}, s2, 1"), I(f"s_lshl_b32 s{sT2}, s{sT2}, 20"),
          I(f"s_add_u32 s{sT}, s{sT}, s{sT2}"),
          *([I(f"s_mov_b32 s{sSt}, s{sT}")] if not flag('early') else [pf_load(vJ, 169, sC, f"s{sT}")]),
          I("s_getpc_b64 s[6:7]"), I("F_pc:"),
          I(f"s_lshl_b32 s{sT}, s97, 12"), I(f"v_lshlrev_b32 v{TMP+2}, 6, v{ln}"), I(f"v_add_u32 v{TMP+2}, s{sT}, v{TMP+2}"),
          I(f"v_min_u32 v{TMP+2}, F_RA0-F_pc, v{TMP+2}")]
    P.append(I(f"v_mov_b32 v168, v{TMP+2}"))
    cl = I(f"global_load_dword v{vJ}, v168, s[6:7]"); cl.wr = set()
    LATE = []
    if not flag('early'):
        g = c_dma(2)
        global LATEQ
        LATEQ = [g[0], g[1], w_dma(1)] + ([] if not flag('cpf') else [[pf_load(vJ, 169, sC, f"s{sSt}")]]) + [w_dma(2), w_dma(4)]
        global CODEPF
        CODEPF = cl
        if val('gcode', 14) < 0: LATEQ.append([cl])
        k = val('nlate', 2)
        LATE = sum(LATEQ[:k], []); LATEQ = LATEQ[k:]
    else: P.append(cl)
    if flag('tlb'):
        P += [I(f"v_lshl_add_u32 v{TMP+2}, s97, 6, v{ln}"), I(f"v_mul_u32_u24 v{TMP+2}, {TS}, v{TMP+2}"), I(f"s_mov_b32 s{sT}, 16384"),
              pf_load(vJ, TMP+2, sWS, f"s{sT}")]
    P += [I(f"s_lshr_b32 s{sT}, s{sI}, 1"), I(f"s_lshl_b32 s{sT}, s{sT}, 2"), I(f"s_add_u32 s{sT}, s{sT}, s{sHl}"),
          I(f"s_lshl_b32 s{sT}, s{sT}, 2"), I(f"s_add_u32 s{sT}, s{sT}, s{sWave}"), I(f"s_lshl_b32 s{sT}, s{sT}, 16"),
          I(f"s_lshr_b32 s{sT2}, s{sXcd}, 1"), I(f"s_lshl_b32 s{sT2}, s{sT2}, 11"), I(f"s_add_u32 s{sWpf}, s{sT}, s{sT2}"),
          I(f"v_lshrrev_b32 v{vBo}, 4, v{ln}"), I(f"v_and_b32 v{TMP}, 15, v{ln}"),
          I(f"v_lshlrev_b32 v170, 13, v{vBo}"), I(f"v_lshl_add_u32 v170, v{TMP}, 7, v170"),
          I(f"v_lshlrev_b32 v{vBo}, 3, v{vBo}")]
    nyoung = sum(1 for x in P[nv0:] if x.kind in ('dma', 'vld', 'vst', 'vmisc'))
    P += [I(f"s_cmp_eq_u32 s{sT3}, 0"), I("s_cbranch_scc0 F_noep"),
          I(f"s_mov_b32 s{sT}, {FE:#x}"), I(f"s_waitcnt vmcnt({nyoung})", tag=('novm',)),
          I(f"v_add_u32 v{vFt}, 16, v{vFt}"), I(f"v_max_u32 v{vFt}, 1, v{vFt}"),
          I(f"buffer_store_dword v{vFt}, v{vZero}, {sr(sDBG)}, 0 offen {ST}", tag=('novm',)),
          I(f"buffer_store_dword v{vFt}, v{vZero}, {sr(sWS)}, s{sT} offen {ST}", tag=('novm',)),
          I("F_noep:")]
    P += [I(f"s_lshl_b32 s{sF0me}, s2, 7"), I(f"s_add_u32 s{sF0me}, s{sF0me}, {F0:#x}"),
          I(f"s_lshl_b32 s{sF1me}, s3, 3"), I(f"s_add_u32 s{sF1me}, s{sF1me}, s{sRb}"), I(f"s_lshl_b32 s{sF1me}, s{sF1me}, 1"),
          I(f"s_add_u32 s{sF1me}, s{sF1me}, s{sType}"), I(f"s_lshl_b32 s{sF1me}, s{sF1me}, 7"), I(f"s_add_u32 s{sF1me}, s{sF1me}, {F1:#x}"),
          ]
    P += [I(f"s_lshl_b32 s{sW1024}, s{sWave}, 10"),
          I(f"s_mov_b32 s{sScale}, {f32(QSCALE)}"), I(f"s_mov_b32 s{sGC0}, {f32(GC0)}"),
          I(f"s_lshl_b32 s{sOb}, s3, 6"), I(f"s_lshl_b32 s{sT}, s{sRb}, 2"), I(f"s_add_u32 s{sOb}, s{sOb}, s{sT}"),
          I(f"s_add_u32 s{sOb}, s{sOb}, s{sWave}"), I(f"s_mul_i32 s{sOb}, s{sOb}, {TS}"),
          I(f"s_mul_i32 s{sT}, s{sType}, {WS_V:#x}"), I(f"s_add_u32 s{sOb}, s{sOb}, s{sT}"),
          I(f"s_mov_b32 s{sKt}, 0"), I(f"s_mov_b32 s{sVt}, 0"), I(f"s_mov_b32 s{sKm}, s{sW4096}"), I(f"s_mov_b32 s{sVm}, s{sW4096}"),
          I(f"s_lshr_b32 s{sXrow}, s2, 1"), I(f"s_mul_i32 s{sXrow}, s{sXrow}, {XS}"), I(f"s_and_b32 s{sT}, s2, 1"), I(f"s_lshl_b32 s{sT}, s{sT}, 7"),
          I(f"s_add_u32 s{sXrow}, s{sXrow}, s{sT}"), I(f"s_add_u32 s{sXrow}, s{sXrow}, s{sW4096}"), I(f"s_add_u32 s{sXrow}, s{sXrow}, {WS_XN:#x}")]
    P += [I(f"v_and_b32 v{TMP}, 31, v{ln}"), I(f"v_lshrrev_b32 v{TMP+1}, 5, v{ln}"),
          I(f"v_lshlrev_b32 v152, 7, v{TMP}"), I(f"v_lshl_add_u32 v152, v{TMP+1}, 4, v152"),
          I(f"v_lshl_add_u32 v152, s{sWave}, 5, v152"), I(f"v_add_u32 v152, 90112, v152"),
          I(f"v_lshl_add_u32 v157, s{sWave}, 11, v{vL16}"), I(f"v_add_u32 v157, 90112, v157"),
          I(f"v_lshlrev_b32 v158, 10, v{TMP+1}"), I(f"v_bfe_u32 v{TMP}, v{ln}, 3, 2"), I(f"v_lshl_add_u32 v158, v{TMP}, 8, v158"),
          I(f"v_and_b32 v{TMP}, 7, v{ln}"), I(f"v_lshl_add_u32 v158, v{TMP}, 4, v158")]
    P += [I(f"v_and_b32 v{TMP}, 15, v{ln}"), I(f"v_bfe_u32 v{TMP+1}, v{ln}, 2, 1"), I(f"v_bfe_u32 v{TMP+2}, v{ln}, 3, 1"),
          I(f"v_xor_b32 v{TMP+1}, v{TMP+1}, v{TMP+2}"), I(f"v_mul_u32_u24 v{TMP+1}, 12, v{TMP+1}"),
          I(f"v_mul_lo_u32 v{TMP+1}, v{TMP+1}, s{sType}"), I(f"v_xor_b32 v{TMP}, v{TMP}, v{TMP+1}"),
          I(f"v_lshrrev_b32 v{TMP+1}, 1, v{TMP}"), I(f"v_lshrrev_b32 v{TMP+2}, 4, v{ln}"), I(f"v_xor_b32 v{TMP+1}, v{TMP+1}, v{TMP+2}"),
          I(f"v_lshlrev_b32 v{TMP}, 7, v{TMP}"), I(f"v_add_u32 v{TMP}, s{sM0c}, v{TMP}"),
          I(f"v_lshl_add_u32 v{vCr}, v{TMP+1}, 4, v{TMP}"), I(f"v_xor_b32 v{TMP+1}, 4, v{TMP+1}"),
          I(f"v_lshl_add_u32 v{vCr+1}, v{TMP+1}, 4, v{TMP}"),
          I(f"v_add_u32 v{vXo2}, {XS}, v{vL16}"), I(f"v_mov_b32 v{vGC1}, {f32(GC1)}"), *LATE,
          I(f"s_cmp_eq_u32 s{sType}, 0"), I("s_cbranch_scc0 F_V")]
    return P

def role():
    sT, sT2 = sSt, sT3; ln = 252
    P = [I(f"s_and_b32 s{sXcd}, s2, 7"), I(f"s_lshr_b32 s{sI}, s2, 5"), I(f"s_bfe_u32 s{sHl}, s2, 0x20003"),
         I(f"s_lshr_b32 s97, s2, 3"), I(f"s_lshl_b32 s97, s97, 2"), I(f"s_add_u32 s97, s97, s{sWave}"),
         I(f"v_lshrrev_b32 v{ln}, 4, v{vL16}"),
          I(f"s_lshl_b32 s3, s{sXcd}, 2"), I(f"s_add_u32 s3, s3, s{sHl}"),
          I(f"s_lshl_b32 s4, s{sHl}, 1"), I("s_min_u32 s4, s4, 5"), I(f"s_mul_i32 s{sT}, s{sXcd}, 7"), I(f"s_add_u32 s4, s4, s{sT}"),
          I(f"s_lshl_b32 s{sXL}, s{sI}, 3"), I(f"s_lshl_b32 s{sT}, s{sWave}, 1"), I(f"s_add_u32 s{sXL}, s{sXL}, s{sT}"),
          I(f"s_sub_u32 s{sXH}, 15, s{sI}"), I(f"s_lshl_b32 s{sXH}, s{sXH}, 3"), I(f"s_add_u32 s{sXH}, s{sXH}, s{sT}")]
    for d, q in ((sHL, sXL), (sHH, sXH)):
        P += [I(f"s_mul_i32 s{d}, s{q}, 56"), I(f"s_add_u32 s{d}, s{d}, s4"), I(f"s_lshl_b32 s{d}, s{d}, 10"), I(f"s_add_u32 s{d}, s{d}, {WS_H:#x}")]
    P += [I(f"s_lshl_b32 s{sT}, s3, 12"), I(f"s_add_u32 s{sT}, s{sT}, {WS_CTX:#x}")]
    for d, q in ((sCL, sXL), (sCH, sXH)):
        P += [I(f"s_lshl_b32 s{d}, s{q}, 17"), I(f"s_add_u32 s{d}, s{d}, s{sT}"),
              I(f"s_mul_i32 s{q}, s{q}, {XS}"), I(f"s_add_u32 s{q}, s{q}, {WS_XN:#x}")]
    P += [I(f"s_lshl_b32 s{sQo}, s{sWave}, 18"), I(f"s_lshl_b32 s{sT}, s3, 8"), I(f"s_add_u32 s{sQo}, s{sQo}, s{sT}"),
          I(f"s_lshl_b32 s{sB1o}, s4, 6"), I(f"s_mul_i32 s{s1o}, s{sWave}, {32*3584}"), I(f"s_add_u32 s{s1o}, s{s1o}, s{sB1o}"),
          I(f"s_mul_i32 s{sT}, s3, {32*TS}"),
          [I(f"s_add_u32 s{sKS}, s{sWS}, s{sT}"), I(f"s_addc_u32 s{sKS+1}, s{sWS+1}, 0")],
          [I(f"s_add_u32 s{sVS}, s{sKS}, {WS_V:#x}"), I(f"s_addc_u32 s{sVS+1}, s{sKS+1}, 0")],
          I(f"s_sub_u32 s{sT}, 16, s{sI}"), I(f"s_mul_i32 s{sKS+2}, s{sT}, {2*TS}"), I(f"s_mov_b32 s{sVS+2}, s{sKS+2}"),
          I(f"s_mov_b32 s{sKS+3}, 0x20000"), I(f"s_mov_b32 s{sVS+3}, 0x20000"),
          ]
    P += [
          I(f"s_lshl_b32 s{sFlagMe}, s{sI}, 3"), I(f"s_add_u32 s{sFlagMe}, s{sFlagMe}, s{sXcd}"), I(f"s_lshl_b32 s{sFlagMe}, s{sFlagMe}, 2"),
          I(f"s_add_u32 s{sFlagMe}, s{sFlagMe}, s{sWave}"), I(f"s_lshl_b32 s{sFlagMe}, s{sFlagMe}, 2"), I(f"s_add_u32 s{sFlagMe}, s{sFlagMe}, s{sHl}"),
          I(f"s_lshl_b32 s{sFlagMe}, s{sFlagMe}, 7"), I(f"s_add_u32 s{sFlagMe}, s{sFlagMe}, {F2:#x}"),
          I(f"v_bfe_u32 v253, v{ln}, 2, 1"), I(f"s_lshl_b32 s{sT}, s{sI}, 12"), I(f"s_sub_u32 s{sT}, {15*2048}, s{sT}"),
          I(f"v_mul_lo_u32 v{vP0}, v253, s{sT}"), I(f"v_and_b32 v253, 3, v{ln}"), I(f"v_lshl_add_u32 v{vP0}, v253, 7, v{vP0}"),
          I(f"s_lshl_b32 s{sT}, s{sI}, 11"), I(f"s_lshl_b32 s{sT2}, s{sWave}, 9"), I(f"s_add_u32 s{sT}, s{sT}, s{sT2}"),
          I(f"s_add_u32 s{sT}, s{sT}, {F0:#x}"), I(f"v_add_u32 v{vP0}, s{sT}, v{vP0}"),
          I(f"s_lshl_b32 s{sT}, s{sXcd}, 1"), I(f"s_lshr_b32 s{sT2}, s{sHl}, 1"), I(f"s_add_u32 s{sT}, s{sT}, s{sT2}"),
          I(f"s_lshl_b32 s{sT}, s{sT}, 11"), I(f"s_add_u32 s0, s{sT}, {F1:#x}"),
          I(f"v_and_b32 v253, 1, v{ln}"), I(f"v_lshlrev_b32 v{vF1}, 7, v253")]
    return P

def ln_stream():
    XR = 144; U = 128; S = 153; T2 = 154; MB_ = 155; RS = 156
    P = []
    for k in range(8): P += [I(f"v_lshlrev_b32 v{U+2*k}, 16, v{XR+k}"), I(f"v_and_b32 v{U+2*k+1}, 0xffff0000, v{XR+k}")]
    P += [I(f"v_add_f32 v{S}, v{U}, v{U+1}")] + [I(f"v_add_f32 v{S}, v{S}, v{U+k}") for k in range(2, 16)]
    P += sum32(S, T2) + [I(f"v_mul_f32 v{S}, {f32(1/512)}, v{S}")] + bf16_round(MB_, S)
    P += [I(f"v_sub_f32 v{T2}, v{U}, v{S}"), I(f"v_mul_f32 v{RS}, v{T2}, v{T2}")]
    for k in range(1, 16): P += [I(f"v_sub_f32 v{T2}, v{U+k}, v{S}"), I(f"v_fmac_f32 v{RS}, v{T2}, v{T2}")]
    P += sum32(RS, T2) + [I(f"v_mul_f32 v{RS}, {f32(1/512)}, v{RS}")] + bf16_round(RS, RS)
    P += [I(f"v_add_f32 v{RS}, {f32(1e-5)}, v{RS}")] + bf16_round(RS, RS) + [I(f"v_sqrt_f32 v{RS}, v{RS}")] + bf16_round(RS, RS)
    P += [I(f"v_rcp_f32 v{RS}, v{RS}")]
    for k in range(8):
        a, b = U+2*k, U+2*k+1
        P += [I(f"v_sub_f32 v{a}, v{a}, v{MB_}"), I(f"v_sub_f32 v{b}, v{b}, v{MB_}"), I(f"v_cvt_pk_bf16_f32 v{T2}, v{a}, v{b}"),
              I(f"v_lshlrev_b32 v{a}, 16, v{T2}"), I(f"v_and_b32 v{b}, 0xffff0000, v{T2}"),
              I(f"v_mul_f32 v{a}, v{a}, v{RS}"), I(f"v_mul_f32 v{b}, v{b}, v{RS}"), I(f"v_cvt_pk_bf16_f32 v{XR+k}, v{a}, v{b}")]
    return P
def xn_out():
    XR = 144
    return ([I(f"ds_write_b128 v152, {vr(XR)}"), I(f"ds_write_b128 v152, {vr(XR+4)} offset:4096")],
            [I(f"ds_read_b128 {vr(160)}, v157"), I(f"ds_read_b128 {vr(164)}, v157 offset:1024")],
            [I(f"buffer_store_dwordx4 {vr(160)}, v158, {sr(sWS)}, s{sXrow} offen {ST}", tag=('vm', 'xnst')),
             I(f"buffer_store_dwordx4 {vr(164)}, v158, {sr(sWS)}, s{sXrow} offen offset:2048 {ST}", tag=('vm', 'xnst'))])

def pack_swap(T, X, Y):
    return [I(f"v_cvt_pk_bf16_f32 v{T}, v{X}, v{X+1}"), I(f"v_cvt_pk_bf16_f32 v{T+2}, v{Y}, v{Y+1}"),
            I(f"v_cvt_pk_bf16_f32 v{T+1}, v{X+2}, v{X+3}"), I(f"v_cvt_pk_bf16_f32 v{T+3}, v{Y+2}, v{Y+3}")], \
           [I(f"v_permlane16_swap_b32 v{T}, v{T+2}"), I(f"v_permlane16_swap_b32 v{T+1}, v{T+3}")]

def kv_epilogue(cp, isV):
    acc = ACCB[cp]; out = []
    for k, f in enumerate([7, 5, 0, 1, 2, 3, 4, 6]):
        V = []
        if isV:
            kb, dbl = divmod(f, 2)
            X = acc + ((2*dbl)*4 + kb)*4; Y = X + 16
            soff = (cp//2)*32*TS + kb*4096; ioff = (2*(cp % 2) + dbl)*1024
        else:
            kb32, c = divmod(f, 4)
            X = acc + (c*4 + 2*kb32)*4; Y = X + 4
            soff = (cp//2)*32*TS + kb32*8192 + (cp % 2)*4096; ioff = c*1024
        T = PK + (k % 2)*4
        if not isV: V += [I(f"v_mul_f32 v{r}, s{sScale}, v{r}") for r in list(range(X, X+4)) + list(range(Y, Y+4))]
        else: V += [I("", tag=('pad',)) for r in range(8)]
        a, b = pack_swap(T, X, Y)
        V += a + [I(f"s_add_u32 s{sSt}, s{sOb}, {soff}")] + b
        V += [I(f"buffer_store_dwordx4 {vr(T)}, v{vL16}, {sr(sWS)}, s{sSt} offen offset:{ioff} {'' if flag('kvplain') else ST}", tag=('vm', 'kvst'))]
        if flag('nokvst'): V.pop()
        out.append(V)
    return out

def gelu_stream():
    P = []
    for b in range(4):
        for fs in range(2):
            T = GP[(b*2 + fs) % 2]
            for half in range(2):
                X = ACCB[4] + ((2*fs + half)*4 + b)*4
                regs = list(range(X, X+4)); tt = list(range(GT, GT + 4))
                P += [I(f"v_mul_f32 v{t}, v{r}, v{r}") for t, r in zip(tt, regs)]
                P += [I(f"v_fma_f32 v{t}, v{t}, v{vGC1}, s{sGC0}") for t in tt]
                P += [I(f"v_mul_f32 v{t}, v{t}, v{r}") for t, r in zip(tt, regs)]
                P += [I(f"v_exp_f32 v{t}, v{t}") for t in tt]
                P += [I(f"v_add_f32 v{t}, 1.0, v{t}") for t in tt]
                P += [I(f"v_rcp_f32 v{t}, v{t}") for t in tt]
                P += [I(f"v_mul_f32 v{t}, v{t}, v{r}") for t, r in zip(tt, regs)]
                P += [I(f"v_cvt_pk_bf16_f32 v{T+2*half+j}, v{tt[2*j]}, v{tt[2*j+1]}") for j in range(2)]
            P += [I(f"s_add_u32 s{sSt}, s{sHL if b < 2 else sHH}, {(b % 2)*56*1024}"),
                  I(f"buffer_store_dwordx4 {vr(T)}, v{vL16}, {sr(sWS)}, s{sSt} offen offset:{fs*1024} {ST}")]
    return P
def bias_stream():
    A = ACCB[4]; R = A + 56
    ld = [I(f"buffer_load_dwordx2 v[{R+2*c}:{R+2*c+1}], v{vBo}, {sr(sB1)}, s{sB1o} offen offset:{32*c}") for c in range(4)]
    un = []
    for c in range(4):
        for kb in ([0, 1, 2, 3] if c < 3 else [0]):
            d = A + (c*4 + kb)*4
            for k in range(2): un += [I(f"v_lshlrev_b32 v{d+2*k}, 16, v{R+2*c+k}"), I(f"v_and_b32 v{d+2*k+1}, 0xffff0000, v{R+2*c+k}")]
    un += [I(f"v_mov_b32 v{A+48+4*kb+j}, v{A+48+j}") for kb in (1, 2, 3) for j in range(4)]
    return ld, un

def qconv(cp, qb, c):
    X = ACCB[cp] + (c*4 + 2*qb)*4; T = GP[c % 2]
    a, b = pack_swap(T, X, X + 4)
    return a + b + [I(f"v_accvgpr_write_b32 a{QF(qb, 4*(cp-5) + c)+j}, v{T+j}") for j in range(4)]

def engine(isV):
    NF = 448
    grp = [(cp, ks, c) for cp, ks in ORDER for c in range(4)]
    def c_reads(ch):
        return [I(f"ds_read_b128 {ar(XF(kb, 2*ch + ks2))}, v{vCr+ks2} offset:{(ch % 3)*8192 + kb*2048}") for ks2 in range(2) for kb in range(4)]
    def w_reads(n):
        cp, ks, c = grp[n]; r = WF + (n % NWF)*4; va = vWtrS[cp % 2] + c; off = (ks % 4)*4096
        return [I(f"ds_read_b64_tr_b16 {vr(r,2)}, v{va} offset:{off}"), I(f"ds_read_b64_tr_b16 {vr(r+2,2)}, v{va} offset:{off+1024}")]
    head = stamp(1) + [needvm('c0')] + c_reads(0) + [needvm('w0'), I("s_barrier")] + stamp(2)
    for n in range(PF): head += w_reads(n)
    mf = []; post = {}; valu = []; dmaq = []
    def addpost(g, items): post.setdefault(g, []).extend(items)
    def add(mg, items):
        for it in items: valu.append((mg, it))
    G = lambda n: 4*n
    for n, (cp, ks, c) in enumerate(grp):
        wf = vr(WF + (n % NWF)*4)
        for kb in range(4):
            d = vr(ACCB[cp] + (c*4 + kb)*4); cf = ar(XF(kb, ks))
            cin = d if (ks or cp == 4) else "0"
            mf.append(I(f"{M16} {d}, {cf}, {wf}, {cin}" if (isV and cp < 4) else f"{M16} {d}, {wf}, {cf}, {cin}"))
        if n + 1 < NF: addpost(G(n) + 3, [needlg(regs_in(vr(WF + ((n + 1) % NWF)*4)))])
    cur = {0: PLAN[0][1], 1: PLAN[4][1]}
    for u in sorted(FU, key=lambda u: FU[u]):
        st = (u // 4) % 2; delta = (PLAN[u][1] - cur[st])*16384; cur[st] = PLAN[u][1]
        if delta:
            g = G(FU[u] - PF)
            addpost(g - 3, [I(f"v_add_u32 v{vWtrS[st]+k}, {delta & 0xffffffff:#x}, v{vWtrS[st]+k}") for k in range(2)])
            addpost(g - 2, [I(f"v_add_u32 v{vWtrS[st]+k}, {delta & 0xffffffff:#x}, v{vWtrS[st]+k}") for k in range(2, 4)])
    bs0, bs1 = val('bs0', 124), val('bs1', 348)
    assert bs0 in BARS and bs1 in BARS
    for k, p in enumerate(BARS):
        if p < 0: continue
        names = [f'w{u}' for u in NEED if NEED[u] == p] + (['xnst'] if p == bs0 else []) + (['kvst'] if p == bs1 else [])
        addpost(G(p) - 1, ([I("s_waitcnt lgkmcnt(0)")] if p == 72 else []) + ([needvm(*names)] if names else []) + ([] if flag('nobar') else [I("s_barrier")]) + (stamp(20 + k) if flag('fine') else []))
        for u in sorted(PLAN, key=lambda u: FU[u]):
            if PLAN[u][0] == p and not (flag('nowd') and p > 60): dmaq.append((G(p) + 1, w_dma(u)))
    addpost(G(bs0) + 1, flag_put(vFt, vZero, sF0me, 1))
    addpost(G(bs1) + 1, flag_put(vFt, vZero, sF1me, 1))
    for n in range(NF - PF): addpost(G(n), w_reads(n + PF))
    for q in LATEQ: dmaq.append((0, q, 1))
    if val('gcode', 14) >= 0: dmaq.append((G(val('gcode', 14)), [CODEPF]))
    R = [None, 2, 10, 18, 26, 38, 50, 62]
    D = {3: val('d3', 5), 4: val('d4', 10), 5: val('d5', 18), 6: val('d6', 28), 7: val('d7', 41)}
    for ch in range(1, 8):
        addpost(G(R[ch]) + 1, [needvm(f'c{ch}')])
        rd = c_reads(ch)
        for k in range(4): addpost(G(R[ch]) + 2 + 4*k, rd[2*k:2*k+2])
    for ch, g in D.items():
        old = ch - 3
        assert old == 0 or g >= R[old] + 5
        regs = [r for x in c_reads(old) for r in x.wr]
        addpost(G(g) + 1, [needlg(regs)])
        for q in c_dma(ch): dmaq.append((G(g) + 1, q, 1 if ch < 5 else val('cstep', 3)))
    for ks in range(16):
        L = []
        if ks % 4 == 0: L += [I(f"s_add_u32 s{sXLc}, s{sXL}, {(ks//4)*4096}"), I(f"s_add_u32 s{sXHc}, s{sXH}, {(ks//4)*4096}")]
        L += [I(f"buffer_load_dwordx4 {ar(XF(b, ks))}, v{vXo2 if b % 2 else vL16}, {sr(sWS)}, s{sXHc if b >= 2 else sXLc} offen offset:{(ks % 4)*1024} {'' if flag('xnnosc') else LD}") for b in range(4)]
        if not flag('noxn'): dmaq.append((G(POS[(3, ks)] + 4) + 1, L))
    if not flag('pfwfull'):
        addpost(G(val('pfw', 53)) - 3, [I(f"v_lshrrev_b32 v170, 7, v{vL16}"), I(f"v_lshlrev_b32 v170, 13, v170")])
        addpost(G(val('pfw', 53)) - 2, [I(f"v_bfe_u32 v171, v{vL16}, 5, 2"), I(f"v_lshl_add_u32 v170, v171, 9, v170")])
        addpost(G(val('pfw', 53)) - 1, [I(f"v_bfe_u32 v171, v{vL16}, 4, 1"), I(f"v_lshl_add_u32 v170, v171, 7, v170")])
        dmaq.append((G(val('pfw', 53)), [pf_load(vJ, 170, sWkv, f"s{sWpf}", "offset:256")]))
    elif not flag('nopfw'):
        dmaq.append((G(val('pfw', 53)), [pf_load(vJ, 170, sWkv, f"s{sWpf}")]))
        dmaq.append((G(val('pfw2', 52)), [I(f"s_add_u32 s{sWpf}, s{sWpf}, 32768"), pf_load(vJ, 170, sWkv, f"s{sWpf}")]))
    dmaq.append((G(val('gep', 44)), [poll_issue(vPoll, vZero, sDBG, "0")]))
    addpost(G(110) + 2, epoch_check(vPoll, vZero, sT2))
    gs0 = val('gs0', 150)
    dmaq.append((G(gs0), [poll_issue(vPoll, vP0, sWS, "0")]))
    addpost(G(167) + 2, stamp(50) + poll_check(vPoll, vP0, sWS, "0", 1, sT2, sT3) + stamp(51))
    xw, xr, xs = xn_out()
    add(G(val('gln', 0)) + 2, ln_stream()); add(G(60), xw)
    addpost(G(72) + 2, xr)
    dmaq.append((G(val('gxs', 90)), xs))
    R = role()
    add(G(66), R)
    dmaq.append((G(121), [pf_load(vJ, vBo, sB1, f"s{sB1o}")]))
    bl, bu = bias_stream()
    sp = val('esp', 7)
    for cp, g, w in ((0, 98, sp), (1, 162, val('esp1', 5)), (2, 226, sp), (3, 286, 0)):
        for k, fr in enumerate(kv_epilogue(cp, isV)):
            if not flag('noepi'): add(G(g + k*w), fr)
            if cp == 1 and k == 1: add(0, bl)
        if cp == 1:
            add(G(206), bu)
            if flag('fine'):
                for k, g in enumerate((val('f0', 157), val('f1', 160), val('f2', 163), val('f3', 165))): addpost(G(g) + 3, stamp(44 + k))
    if not flag('nogelu'): add(G(322), gelu_stream())
    for qb in range(2):
        for c in range(4): add(G(384) + 16*(8*qb + c) + 18, qconv(5, qb, c))
    gs1 = val('gs1', 398)
    dmaq.append((G(gs1), [poll_issue(vPoll, vF1, sWS, "s0")]))
    addpost(G(gs1 + 14) + 1, stamp(48) + poll_check(vPoll, vF1, sWS, "s0", 1, sT2, sT3) + stamp(49) + [I(f"v_add_u32 v{vKVd}, s{sW4096}, v{vL16}")])
    assert all(SLOTFREE[sl] <= gs1 + 14 for sl in (0, 4, 1, 2, 5)), SLOTFREE
    assert min(PLAN[u][0] for u in PLAN if PLAN[u][1] == 5) >= 92
    for k, wh in enumerate("KVKKV"): dmaq.append((G(gs1 + 15 + 6*k), kv_dma(wh, f'kv{k}')))
    def warm(g, V, M):
        if V: addpost(G(g) + 1, V[:2])
        if V[2:]: addpost(G(g) + 2, V[2:])
        dmaq.append((G(g + 1), M))
    if flag('pfqs'):
        g0 = val('pfq', 76); dq = val('pfqd', 18)
        for k in range(4):
            warm(g0 + dq*k, [I(f"v_lshlrev_b32 v252, 2, v{vL16}")] if k == 0 else [],
                 [I(f"s_lshl_b32 s{sT}, s2, 14"), I(f"s_add_u32 s{sT}, s{sT}, {4096*k}"), I(f"s_cmp_eq_u32 s{sWave}, {k}"),
                  I(f"s_cselect_b32 s{sT}, s{sT}, 0x1000000"), pf_load(vJ, 252, sWQ, f"s{sT}")])
    elif flag('pfqc'):
        warm(val('pfq', 130), [I(f"v_lshlrev_b32 v252, 2, v{vL16}")],
             [I(f"s_lshl_b32 s{sT}, s2, 14"), I(f"s_add_u32 s{sT}, s{sT}, s{sW4096}"), pf_load(vJ, 252, sWQ, f"s{sT}")])
    elif not flag('nopfq'):
        warm(val('pfq', 130), [I(f"v_bfe_u32 v252, v{vL16}, 4, 4"), I(f"v_lshlrev_b32 v253, 10, v{vBo}"), I(f"v_lshl_add_u32 v252, v252, 6, v253")],
             [I(f"s_lshl_b32 s{sT}, s97, 15"), I(f"s_lshl_b32 s{sT2}, s{sXcd}, 10"), I(f"s_add_u32 s{sT}, s{sT}, s{sT2}"), pf_load(vJ, 252, sWQ, f"s{sT}")])
    if not flag('nopf1'):
        warm(val('pf1', 16), [I(f"v_lshlrev_b32 v253, 1, v{vL16}")],
             [I(f"s_mul_i32 s{sT}, s2, 7168"), I(f"s_mul_i32 s{sT2}, s{sWave}, 1792"), I(f"s_add_u32 s{sT}, s{sT}, s{sT2}"), pf_load(vJ, 253, sW1, f"s{sT}")])
    if flag('pfo_old'):
        warm(330, [I(f"v_lshlrev_b32 v252, 2, v{vL16}"), I(f"v_lshlrev_b32 v253, 1, v{vL16}")],
             [I(f"s_lshl_b32 s{sT}, s{sXcd}, 19"), I(f"s_lshl_b32 s{sT2}, s97, 12"), I(f"s_add_u32 s{sT}, s{sT}, s{sT2}"), pf_load(vJ, 252, sWO, f"s{sT}")])
        dmaq.append((G(334), [I(f"s_mul_i32 s{sT}, s{sXcd}, {224*1024}"), I(f"s_mul_i32 s{sT2}, s97, 1792"), I(f"s_add_u32 s{sT}, s{sT}, s{sT2}"), pf_load(vJ, 253, sW2, f"s{sT}")]))
    if not flag('nopf2'):
        V, M = code_pf("F_AAe", "F_Bend", 252, vJ, vL16, 0); warm(352, V, M)
        V, M = code_pf("F_AAe", "F_Bend", 253, vJ, vL16, 1); warm(368, V, M)
    if flag('pf4'):
        V, M = code_pf("F_J", "F_AAe", 252, vJ, vL16); warm(val('gpf4', 270), V, M)
        addpost(G(150) + 1, [I(f"F_mid{int(isV)}:")])
        V, M = code_pf(f"F_mid{int(isV)}", "F_J" if isV else "F_V", 252, vJ, vL16); warm(val('gpf5', 112), V, M)
    place_dma(dmaq, addpost, step=val('estep', 4), ok=lambda g: g % 4 in (1, 2))
    for k, p in enumerate((32, 96, 160, 224, 288, 320)): addpost(G(p) - 1, stamp(3 + k))
    def budget(g, p):
        n = sum(1 for x in p if x.txt or (x.tag and x.tag[0] != 'needvm'))
        if any(x.kind == 'dsr' for x in p): return 1 if n == 1 else 0
        nd = sum(1 for x in p if x.kind in ('dma', 'vld', 'vst'))
        return max(0, 2 - max(0, n - 1) - nd)
    body, left = weave(mf, post, valu, budget)
    if OPT.verbose: print(f"[engine] leftover valu {left}", file=sys.stderr)
    mi = 0; start = {cp: G(POS[(cp, 0)]) for cp in range(7)}; end = {cp: G(POS[(cp, 15)] + 4) for cp in range(7)}
    for x in body:
        if x.kind == 'mfma': mi += 1; continue
        if x.op == 'ds_write_b128': assert G(60) <= mi < G(72) - 1, mi
        if x is R[-1]: assert mi < G(120), mi
        for r in (x.rd | x.wr):
            if r[0] == 'v' and r != 'vcc' and int(r[1:]) < 192:
                q = int(r[1:])
                for cp in range(7):
                    if ACCB[cp] <= q < ACCB[cp] + 64:
                        blk = (q - ACCB[cp]) // 4
                        assert not (start[cp] + blk < mi <= end[cp] - 16 + blk), ("accumulator busy", cp, mi, x.txt)
    idx = [k for k, x in enumerate(body) if x.kind == 'mfma'][G(336)]
    return head + body[:idx], body[idx:]
```

```python
from f_common import *
import f_p1 as P1
from f_p1 import QF, kv_dma, sKt, sKm, sVt, sVm, sCL, sCH, vL16, vKVd, qconv

THRESH = 2.0**30
sCnt, sKey, sKr, sVr, sThr, sOffA, sOffB = range(74, 81)
sRet2 = 100
sRet = 82; MK = [84, 86, 88, 98]
sWoO, sW2o, sHLo, sHHo, sPo, sCc, sCc2 = 76, 3, 4, 5, 80, 81, 90
sFb = 97
sSib = [84, 85, 86]
sWoS = [87, 88, 89]
NEG = [128, 144]; T0 = 160
vK, vV, vL16V = 192, 193, 194
Lr = [[196, 197], [198, 199]]; vMx = [200, 201]; vF = [202, 203]; vThr, vNinf, vTm = 204, 205, 206
vPo, vF2, vF3, vZ, vFl = 207, 208, 209, 210, 211
vWtrA, vWtrB, vWd3, vC2, vH2 = 212, 216, 220, 221, 195
PKT = 226
OA = lambda qb, db: (qb*4 + db)*16
RING = 192
NPRE = 8

def blk_q(typ, blk): return (blk % 2) if typ == 'A' else 1
def qk_mfmas(typ, S):
    L = []
    if typ == 'A':
        for kb in range(2):
            for ks in range(8):
                for qb in range(2):
                    d = vr(S + (2*kb + qb)*16, 16)
                    L.append((d, kb*8 + ks, ar(QF(qb, ks)), d if ks else vr(NEG[qb], 16)))
    else:
        for kb in range(4):
            for ks in range(8):
                d = vr(S + kb*16, 16)
                L.append((d, kb*8 + ks, ar(QF(1, ks)), d if ks else vr(NEG[1], 16)))
    return L
def pv_mfmas(typ, S):
    L = []
    if typ == 'A':
        for ks4 in range(4):
            for db in range(4):
                for qb in range(2):
                    d = ar(OA(qb, db), 16)
                    L.append((d, ks4*4 + db, vr(S + (2*(ks4//2) + qb)*16 + 8*(ks4 % 2)), d))
    else:
        for ks8 in range(8):
            for db in range(4):
                d = ar(OA(1, db), 16)
                L.append((d, ks8*4 + db, vr(S + (ks8//2)*16 + 8*(ks8 % 2)), d))
    return L
def expblk(S, qb, first):
    lp = Lr[qb][1]
    E = []; C = []
    for j in range(8):
        a, b = S + 2*j, S + 2*j + 1
        E.append([I(f"v_exp_f32 v{a}, v{a}"), I(f"v_exp_f32 v{b}, v{b}")])
        cv = I(f"v_cvt_pk_bf16_f32 v{S + 8*(j//4) + j % 4}, v{a}, v{b}")
        if first and j == 0: C.append([I(f"v_add_f32 v{lp}, v{a}, v{b}"), cv])
        elif flag('tree'): C.append([I(f"v_add_f32 v{vMx[1]}, v{a}, v{b}"), cv, I(f"v_add_f32 v{lp}, v{lp}, v{vMx[1]}")])
        elif (S + 8*(j//4) + j % 4) in (a, b): C.append([I(f"v_add_f32 v{lp}, v{lp}, v{a}"), I(f"v_add_f32 v{lp}, v{lp}, v{b}"), cv])
        else: C.append([I(f"v_add_f32 v{lp}, v{lp}, v{a}"), cv, I(f"v_add_f32 v{lp}, v{lp}, v{b}")])
    L = []
    if flag('nodelay'):
        for j in range(8): L += E[j] + C[j]
    else:
        L += E[0]
        for j in range(8):
            if j + 1 < 8: L += E[j+1][:1] + C[j][:1] + E[j+1][1:] + C[j][1:]
            else: L += C[j]
    return L
def blk_first(typ, blk): return blk < 2 if typ == 'A' else blk == 0
def maxblk(S, mx, first):
    L = []; r = list(range(S, S + 16))
    if first: L.append(I(f"v_max3_f32 v{mx}, v{r[0]}, v{r[1]}, v{r[2]}")); r = r[3:]
    while len(r) >= 2: L.append(I(f"v_max3_f32 v{mx}, v{mx}, v{r[0]}, v{r[1]}")); r = r[2:]
    if r: L.append(I(f"v_max_f32 v{mx}, v{mx}, v{r[0]}"))
    return L
def maskblk(S, kbg, soff=None):
    L = []
    if soff is not None:
        L.append(I(f"v_add_u32 v{vTm}, s{soff}, v{vThr}"))
        if kbg: L.append(I(f"v_subrev_u32 v{vTm}, {32*kbg}, v{vTm}"))
        t = vTm
    elif kbg: L.append(I(f"v_subrev_u32 v{vTm}, {32*kbg}, v{vThr}")); t = vTm
    else: t = vThr
    for r0 in range(0, 16, 4):
        L += [I(f"v_cmp_le_i32 s[{MK[k]}:{MK[k]+1}], {8*((r0+k)//4) + (r0+k) % 4}, v{t}") for k in range(4)]
        L += [I(f"v_cndmask_b32 v{S+r0+k}, v{vNinf}, v{S+r0+k}, s[{MK[k]}:{MK[k]+1}]") for k in range(4)]
    return L
def xmax(v, t): return [I(f"v_mov_b32 v{t}, v{v}"), I(f"v_permlane32_swap_b32 v{v}, v{t}"), I(f"v_max_f32 v{v}, v{v}, v{t}")]
def kread(f, slot): return I(f"ds_read_b128 {ar(RING + (slot % 16)*4)}, v{vK} offset:{f*1024}")
def vread(f, slot): return I(f"ds_read_b128 {ar(RING + (slot % 16)*4)}, v{vV} offset:{f*1024}")
def kv_dma2(which):
    srd_, t, m = (sKS, sKt, sKm) if which == 'K' else (sVS, sVt, sVm)
    base = 0 if which == 'K' else 0x10000
    d = lambda so: [I(f"buffer_load_dwordx4 v{vKVd}, {sr(srd_)}, s{so} offen offset:{1024*b} {LD} lds") for b in range(4)]
    return [[I(f"s_add_u32 m0, s{m}, {base:#x}")] + d(t),
            [I(f"s_add_u32 m0, s{m}, {base + 0x4000:#x}"), I(f"s_add_u32 s{sT2}, s{t}, {TS}"),
             I(f"s_add_u32 s{t}, s{t}, {2*TS}"), I(f"s_xor_b32 s{m}, s{m}, 0x8000")] + d(sT2)]

uid = [0]
def step(cur, nxt, p, kadv, mask=None, xwait=16, name="", extra_dma=None, extra_valu=None, extra_post=None, extra_h1=None):
    uid[0] += 1; u = uid[0]
    Sc, Sn = 64*p, 64*(1 - p)
    mf = []; use = []
    qk = qk_mfmas(nxt, Sn) if nxt else []
    nK = (16 if nxt == 'A' else 32) if nxt else 0
    for d, f, q, cin in qk:
        mf.append(I(f"{M32} {d}, {ar(RING + (f % 16)*4)}, {q}, {cin}")); use.append(f)
    for d, f, pf, cin in pv_mfmas(cur, Sc):
        mf.append(I(f"{M32} {d}, {ar(RING + ((nK + f) % 16)*4)}, {pf}, {cin}")); use.append(nK + f)
    nV = 16 if cur == 'A' else 32
    NG = len(mf); fu = {}
    for g, f in enumerate(use): fu.setdefault(f, g)
    post = {}; dmaq = []
    def addpost(g, items): post.setdefault(g, []).extend(items)
    D = val('D', 8); BO = val('bo', 3)
    hasY = nxt is not None and (cur == 'B' or nxt == 'B')
    pre = []
    ring = lambda f: regs_in(ar(RING + (f % 16)*4))
    for f in range(0, nK + nV, 2):
        if fu[f] > 0: addpost(fu[f] - 1, [needlg(ring(f) + ring(f + 1))])
    last = -2
    for f in range(NPRE if nxt else 0, nK, 2):
        last = max(fu[f] - D, last + 1, 0)
        addpost(last, [kread(f, f), kread(f + 1, f + 1)])
    vadv = [I(f"v_add_u32 v{vV}, s{sVr}, v{vL16V}"),
            I(f"s_add_u32 s{sVr}, s{sVr}, {0x4000 if cur == 'A' else 0x8000}"), I(f"s_and_b32 s{sVr}, s{sVr}, 0xffff")]
    vf0 = 0
    if nxt is None:
        pre += vadv[:1] + [vread(f, nK + f) for f in range(8)]; vf0 = 8
    else:
        addpost(last + 1, vadv)
        if hasY:
            gY = last + BO
            addpost(gY, [I("s_waitcnt vmcnt(16) lgkmcnt(0)" if cur == 'B' else "s_waitcnt lgkmcnt(0)"), I("s_barrier")])
            last = gY
        else: last = last + 1
    for f in range(vf0, nV, 2):
        last = max(fu[nK + f] - D, last + 1, 0)
        addpost(last, [vread(f, nK + f), vread(f + 1, nK + f + 1)])
    gX = NG
    if nxt is not None:
        gX = last + BO
        addpost(gX - 1, [I(f"v_add_u32 v{vK}, s{sKr}, v{vL16}")] +
                ([I(f"s_add_u32 s{sKr}, s{sKr}, {kadv*0x4000}"), I(f"s_and_b32 s{sKr}, s{sKr}, 0xffff")] if kadv else []))
        addpost(gX, [I(f"s_waitcnt vmcnt({xwait}) lgkmcnt(0)"), I("s_barrier")])
        gs = [gX + 1, gX + 2, gX + 4, gX + 6] if gX + 6 < NG else [gX + 1, gX + 2, gX + 3, gX + 4]
        assert gs[-1] < NG, (name, gX, NG)
        for j in range(NPRE // 2): addpost(gs[j], [kread(2*j, 2*j), kread(2*j + 1, 2*j + 1)])
    dstep = 2
    if cur == 'A' and nxt == 'A': dmaq = [(1, kv_dma('K')), (1, kv_dma('V'))]; dstep = 3 if extra_dma else 4
    elif cur == 'A' and nxt == 'B': dmaq = [(1, kv_dma('K'))] + [(gY + 2, x) for x in kv_dma2('K')]
    elif cur == 'B' and nxt == 'B':
        dmaq = [(0, x) for x in kv_dma2('V')]
        if not mask: dmaq += [(gY + 3, x) for x in kv_dma2('K')]
    if extra_dma: dmaq += extra_dma
    for g, it in (extra_post or {}).items(): addpost(g, it)
    if dmaq:
        endg = place_dma(dmaq, addpost, step=dstep)
        assert endg - dstep < gX, (name, endg, gX)
        if hasY and cur == 'B': assert max(g for g, l in post.items() if any(x.kind == 'dma' and sr(sVS) in x.txt for x in l)) < gY
    valu = []
    def add(mg, items):
        for it in items: valu.append((mg, it))
    H1 = len(qk)
    for blk in (2, 3): add(0, expblk(Sc + 16*blk, blk_q(cur, blk), False))
    done = {}
    for g, (d, f, q, cin) in enumerate(qk): done[d] = g
    mdict = {m[0]: m for m in (mask or [])}
    def domask(blk):
        if blk in mdict: add(done[vr(Sn + 16*blk, 16)] + 3, maskblk(Sn + 16*blk, mdict[blk][1], mdict[blk][2]))
    domask(0); domask(1)
    add(0, extra_h1 or [])
    qbs = (0, 1) if cur == 'A' else (1,)
    if cur == 'A': add(0, [I(f"v_max_f32 v{vMx[0]}, v{Lr[0][1]}, v{Lr[1][1]}")])
    add(max(H1 - 1, 0), [I(f"v_cmp_lt_f32 vcc, s{sThr}, v{vMx[0] if cur == 'A' else Lr[1][1]}"),
            [I(f"s_cbranch_vccz F_c{u}"), I(f"s_call_b64 s[{sRet}:{sRet+1}], F_X{cur}{nxt or 'n'}{p}"), I(f"F_c{u}:")]])
    force = {H1: len(valu) - 1}
    add(0, [I(f"v_add_f32 v{Lr[q][0]}, v{Lr[q][0]}, v{Lr[q][1]}") for q in qbs])
    if nxt is not None:
        add(0, [I(f"s_add_u32 s{sKey}, s{sKey}, {64 if cur == 'A' else 128}")])
        add(0, expblk(Sn, blk_q(nxt, 0), True))
        domask(2); domask(3)
        add(done[vr(Sn + 16, 16)] + 3, expblk(Sn + 16, blk_q(nxt, 1), blk_first(nxt, 1)))
    add(0, extra_valu or [])
    def budget(g, pp):
        nd = sum(1 for x in pp if x.kind == 'dsr'); nm = sum(1 for x in pp if x.kind in ('dma', 'vld', 'vst'))
        return max(val('bud', 6) - max(0, len(pp) - 1) - (1 if nd else 0) - (val('dmac', 1) if nm else 0), 0)
    if flag('halfrd') and cur == 'B' and nxt == 'B':
        for g in post:
            rd = [x for x in post[g] if x.kind == 'dsr']
            if len(rd) == 2 and g < gX: post[g].remove(rd[1])
    if flag('noexp'):
        valu = [v for v in valu if isinstance(v[1], list) or v[1].op != 'v_exp_f32']
    if flag('nodma') and nxt:
        for g in post: post[g] = [x for x in post[g] if x.kind != 'dma']
    body, left = weave(mf, post, valu, budget, flush_dep=True, force=force if not flag('noexp') else None)
    tail = []
    if OPT.verbose: print(f"[step {name}] leftover valu {left}", file=sys.stderr)
    return pre + body + tail

def finalize(qb, sbase, inter=None, tag='cst'):
    l0, l1 = Lr[qb]; inter = list(inter or [])
    l1 = vTm
    L = [I(f"v_mov_b32 v{l1}, v{l0}"), I(f"v_permlane32_swap_b32 v{l0}, v{l1}"),
         I(f"v_add_f32 v{l0}, v{l0}, v{l1}"), I(f"v_rcp_f32 v{l0}, v{l0}"), I(f"s_add_u32 s{sFb}, s{sbase}, 0x20000")]
    for db in range(4):
        t = T0 + (db % 2)*16; A = PKT + (db % 2)*8; B = A + 4
        for r0 in range(0, 16, 4):
            L += [I(f"v_accvgpr_read_b32 v{t+r}, a{OA(qb, db)+r}") for r in range(r0, r0 + 4)]
            if inter: L += inter.pop(0)
        for r0 in range(0, 16, 4):
            L += [I(f"v_mul_f32 v{t+r}, v{t+r}, v{l0}") for r in range(r0, r0 + 4)]
            if inter: L += inter.pop(0)
        for pc, T in ((0, A), (1, B)):
            L += [I(f"v_cvt_pk_bf16_f32 v{T}, v{t+4*pc}, v{t+4*pc+1}"), I(f"v_cvt_pk_bf16_f32 v{T+1}, v{t+4*pc+2}, v{t+4*pc+3}"),
                  I(f"v_cvt_pk_bf16_f32 v{T+2}, v{t+8+4*pc}, v{t+8+4*pc+1}"), I(f"v_cvt_pk_bf16_f32 v{T+3}, v{t+8+4*pc+2}, v{t+8+4*pc+3}")]
        L += [I(f"v_permlane32_swap_b32 v{A+j}, v{B+j}") for j in range(4)]
        L += [I(f"v_permlane16_swap_b32 v{A+j}, v{B+j}") for j in range(4)]
        L += [I(f"buffer_store_dwordx4 {vr(A)}, v{vL16}, {sr(sWS)}, s{sbase} offen offset:{db*1024} {ST}", tag=('vm', tag)),
              I(f"buffer_store_dwordx4 {vr(B)}, v{vL16}, {sr(sWS)}, s{sFb} offen offset:{db*1024} {ST}", tag=('vm', tag))]
        L += [I(f"v_accvgpr_write_b32 a{16*db + 8*qb + j}, v{A+j}") for j in range(8)]
    for g in inter: L += g
    return L

def fin_parts(qb, sbase):
    l0 = Lr[qb][0]; l1 = vF[0]; t = T0; A = PKT; B = A + 4
    head = [I(f"v_mov_b32 v{l1}, v{l0}"), I(f"s_add_u32 s{sFb}, s{sbase}, 0x20000"), I(f"v_permlane32_swap_b32 v{l0}, v{l1}"),
            I(f"v_add_f32 v{l0}, v{l0}, v{l1}"), I(f"v_rcp_f32 v{l0}, v{l0}")]
    parts = []
    for db in range(4):
        p1 = [I(f"v_accvgpr_read_b32 v{t+r}, a{OA(qb, db)+r}") for r in range(16)] + [I(f"v_mul_f32 v{t+r}, v{t+r}, v{l0}") for r in range(16)]
        p2 = []
        for pc, T in ((0, A), (1, B)):
            p2 += [I(f"v_cvt_pk_bf16_f32 v{T}, v{t+4*pc}, v{t+4*pc+1}"), I(f"v_cvt_pk_bf16_f32 v{T+1}, v{t+4*pc+2}, v{t+4*pc+3}"),
                   I(f"v_cvt_pk_bf16_f32 v{T+2}, v{t+8+4*pc}, v{t+8+4*pc+1}"), I(f"v_cvt_pk_bf16_f32 v{T+3}, v{t+8+4*pc+2}, v{t+8+4*pc+3}")]
        p2 += [I(f"v_permlane32_swap_b32 v{A+j}, v{B+j}") for j in range(4)] + [I(f"v_permlane16_swap_b32 v{A+j}, v{B+j}") for j in range(4)]
        p2 += [I(f"buffer_store_dwordx4 {vr(A)}, v{vL16}, {sr(sWS)}, s{sbase} offen offset:{db*1024} {ST}"),
               I(f"buffer_store_dwordx4 {vr(B)}, v{vL16}, {sr(sWS)}, s{sFb} offen offset:{db*1024} {ST}")]
        p2 += [I(f"v_accvgpr_write_b32 a{16*db + 8*qb + j}, v{A+j}") for j in range(8)]
        parts.append((p1, p2))
    return head, parts

def rare_redo(typ, p):
    S = 64*p; T = T0 + 16
    L = [I(f"F_R{typ}{p}:"), I("s_nop 15"), I(f"s_mul_i32 s{sT3}, s{sKey}, {TS // 64}")]
    qk = qk_mfmas(typ, S)
    nf = 16 if typ == 'A' else 32
    for f0 in range(0, nf, 4):
        L += [I(f"s_add_u32 s{sOffA}, s{sT3}, {(f0 % 16)*1024 + (f0 // 16)*TS}")]
        L += [I(f"buffer_load_dwordx4 {vr(T + 4*k)}, v{vL16}, {sr(sKS)}, s{sOffA} offen offset:{1024*k} {LD}") for k in range(4)]
        L += [I("s_waitcnt vmcnt(0)")]
        L += [I(f"{M32} {d}, {vr(T + 4*(f - f0))}, {q}, {cin}") for d, f, q, cin in qk if f0 <= f < f0 + 4]
        L += [I("s_nop 7")]
    for qb in ((0, 1) if typ == 'A' else (1,)):
        blks = [b for b in range(4) if blk_q(typ, b) == qb]; m = vMx[qb]
        L += [I(f"s_lshl_b32 s{sOffA}, s{sI}, 7")] if qb == 0 else [I(f"s_sub_u32 s{sOffA}, 15, s{sI}"), I(f"s_lshl_b32 s{sOffA}, s{sOffA}, 7")]
        L += [I(f"s_sub_u32 s{sOffA}, s{sOffA}, s{sKey}")]
        for k, b in enumerate(blks): L += maskblk(S + 16*b, k, sOffA)
        for k, b in enumerate(blks): L += maxblk(S + 16*b, m, k == 0)
        L += xmax(m, vTm) + [I(f"v_max_f32 v{m}, 0, v{m}"), I(f"v_exp_f32 v{vF[qb]}, -v{m}")]
        for b in blks: L += [I(f"v_sub_f32 v{S+16*b+r}, v{S+16*b+r}, v{m}") for r in range(16)]
        L += [I(f"v_sub_f32 v{NEG[qb]+r}, v{NEG[qb]+r}, v{m}") for r in range(16)]
        L += [I(f"v_mul_f32 v{Lr[qb][0]}, v{Lr[qb][0]}, v{vF[qb]}")]
        for k, b in enumerate(blks): L += expblk(S + 16*b, qb, k == 0)
        for r0 in range(0, 64, 8):
            a = qb*64 + r0
            L += [I(f"v_accvgpr_read_b32 v{T+k}, a{a+k}") for k in range(8)]
            L += [I(f"v_mul_f32 v{T+k}, v{T+k}, v{vF[qb]}") for k in range(8)]
            L += [I(f"v_accvgpr_write_b32 a{a+k}, v{T+k}") for k in range(8)]
    L += [I("s_nop 1"), I(f"s_setpc_b64 s[{sRet2}:{sRet2+1}]")]
    return pad_hazards(L)[0]
def rare_stub(cur, nxt, p):
    L = [I(f"F_X{cur}{nxt or 'n'}{p}:"), I(f"s_call_b64 s[{sRet2}:{sRet2+1}], F_R{cur}{p}")]
    if nxt:
        S = 64*(1 - p)
        for b in range(4): L += [I(f"v_sub_f32 v{S+16*b+r}, v{S+16*b+r}, v{vMx[blk_q(nxt, b)]}") for r in range(16)]
    L += [I("s_nop 1"), I(f"s_setpc_b64 s[{sRet}:{sRet+1}]")]
    return pad_hazards(L)[0]

def first_tile():
    P = stamp(9) + [I("s_waitcnt lgkmcnt(0)"), needvm('kv0', 'kv1', 'kv2'), I("s_barrier"),
         I(f"v_mov_b32 v{vK}, v{vL16}")]
    P += [kread(f, f) for f in (0, 8, 1, 9, 2, 10, 3, 11)]
    mf = []; post = {}
    order = [(ks, kb) for ks in range(8) for kb in range(2)]
    for k, (ks, kb) in enumerate(order):
        f = kb*8 + ks
        for qb in range(2):
            d = vr((2*kb + qb)*16, 16)
            mf.append(I(f"{M32} {d}, {ar(RING + f*4)}, {ar(QF(qb, ks))}, {d if ks else 0}"))
        if k + 8 < 16:
            ks2, kb2 = order[k + 8]; post.setdefault(2*k, []).append(kread(kb2*8 + ks2, kb2*8 + ks2))
    P += [I(f"v_bfe_u32 v{vF3}, v{vL16}, 4, 4"), I(f"v_lshlrev_b32 v{vF3}, 7, v{vF3}")]
    dq = [(1, kv_dma('K')), (1, kv_dma('V')), (1, [poll_issue(vPo, vF3, sWS, "s0")])]
    place_dma(dq, lambda g, it: post.setdefault(g, []).extend(it), step=2)
    valu = []
    for c in range(4):
        for qb in range(2): valu += [(0, x) for x in qconv(6, qb, c)]
    ln = 248
    C = [I(f"v_add_u32 v{vL16V}, 0x10000, v{vL16}"), I(f"v_lshrrev_b32 v{ln}, 4, v{vL16}"),
         I(f"s_mov_b32 s{sKey}, 0"), I(f"s_mov_b32 s{sThr}, {f32(THRESH)}"),
         I(f"s_lshl_b32 s{sOffB}, s{sI}, 8"), I(f"s_sub_u32 s{sOffB}, {128*14}, s{sOffB}"),
         I(f"v_and_b32 v{ln+1}, 31, v{ln}"), I(f"v_lshrrev_b32 v{ln+2}, 5, v{ln}"),
         I(f"v_lshl_add_u32 v{vThr}, s{sWave}, 5, v{ln+1}"), I(f"v_lshlrev_b32 v{ln+2}, 2, v{ln+2}"), I(f"v_sub_u32 v{vThr}, v{vThr}, v{ln+2}"),
         I(f"v_mov_b32 v{vNinf}, 0xff800000"), I(f"s_mov_b32 s{sKr}, 0x8000"), I(f"s_mov_b32 s{sVr}, 0")]
    C += [I(f"v_mov_b32 v{r}, 0") for r in (196, 198, 244, 245, 246, 247)] + consts_early(ln)
    valu += [(22, x) for x in C]
    body, _ = weave(mf, post, valu, lambda g, p: 5 if len(p) < 2 else 3, flush_dep=True)
    P += body
    P += [I(f"v_add_u32 v{vK}, 0x4000, v{vL16}")]
    P += [kread(f, f) for f in range(NPRE)]
    if not flag('pfo_old'):
        P += [I(f"v_lshlrev_b32 v250, 2, v{vL16}"), I(f"v_lshlrev_b32 v251, 1, v{vL16}"),
              I(f"s_lshl_b32 s{sT}, s2, 14"), I(f"s_add_u32 s{sT}, s{sT}, s{sW4096}"), pf_load(252, 250, sWO, f"s{sT}"),
              I(f"s_mul_i32 s{sT}, s2, 7168"), I(f"s_mul_i32 s{sT2}, s{sWave}, 1792"), I(f"s_add_u32 s{sT}, s{sT}, s{sT2}"), pf_load(252, 251, sW2, f"s{sT}")]
    P += [I(f"s_cmp_lg_u32 s{sI}, 0"), I("s_cbranch_scc1 F_nomask"), I("s_nop 7")]
    for kb in range(2): P += maskblk(16*(2*kb), kb)
    P += [I("F_nomask:")]
    X = []
    for qb in range(2): X += maxblk(16*qb, vMx[qb], True) + maxblk(16*(2 + qb), vMx[qb], False)
    X += [I(f"v_mov_b32 v{vTm}, v{vMx[0]}"), I(f"v_mov_b32 v{vF[0]}, v{vMx[1]}"), I("s_nop 0"),
          I(f"v_permlane32_swap_b32 v{vMx[0]}, v{vTm}"), I(f"v_permlane32_swap_b32 v{vMx[1]}, v{vF[0]}"),
          I(f"v_max_f32 v{vMx[0]}, v{vMx[0]}, v{vTm}"), I(f"v_max_f32 v{vMx[1]}, v{vMx[1]}, v{vF[0]}")]
    for qb in range(2):
        X += [I(f"v_sub_f32 v{NEG[qb] + r}, 0, v{vMx[qb]}") for r in range(16)]
        for blk in (qb, 2 + qb): X += [I(f"v_sub_f32 v{16*blk + r}, v{16*blk + r}, v{vMx[qb]}") for r in range(16)]
    for blk in (0, 1): X += expblk(16*blk, blk, True)
    zm = [I(f"{M32} {ar(16*k, 16)}, v[244:247], v[244:247], 0") for k in range(8)]
    body, _ = weave(zm, {}, [(0, x) for x in X], lambda g, p: 7)
    P += body
    P += poll_check(vPo, vF3, sWS, "s0", 1, sT2, 63)
    P += stamp(10) + [I(f"s_sub_u32 s{sCnt}, s{sI}, 1"), I("s_cbranch_scc1 F_AAme")]
    return P

def w3_addr(s):
    if s < 4: return 131072 + 8192*s
    if s < 11: return 8192*(s - 4)
    return 57344 + 8192*(s - 11)
def bslot(s, b):
    if s < 2: return 32*s + 16*(b // 2) + 8 + 4*(b % 2)
    if s < 4: return 128 + 16*(s - 2) + 4*b
    if s < 7: return 160 + 16*(s - 4) + 4*b
    if s < 11: return 16*(s - 7) + 4*b
    k = 2*(s - 11) + (b % 2)
    if b < 2: return 208 + 4*k if k < 12 else 128 + 4*(k - 12)
    return 64 + 4*k if k < 16 else 176 + 4*(k - 16)
def w3_dma(s):
    gs = []
    if s < 7: srd_, so, off = sW2, sW2o, s*32768
    elif s < 11: srd_, so, off = sWO, sWoO, (s - 7)*32768
    else: srd_, so, off = sWO, sWoS[(s - 11)//4], ((s - 11) % 4)*32768
    for h in range(2):
        gs.append([I(f"s_add_u32 m0, s{sW1024}, {w3_addr(s) + h*4096}"), I(f"s_add_u32 s{sT}, s{so}, {off + h*128}"),
                   I(f"buffer_load_dwordx4 v{vWd3}, {sr(srd_)}, s{sT} offen lds", tag=('vm', f'x{s}'))])
    return gs
def h_loads(s):
    L = []
    if s % 4 == 0: L += [I(f"s_add_u32 s{sCc}, s{sHLo}, {(s//4)*4096}"), I(f"s_add_u32 s{sCc2}, s{sHHo}, {(s//4)*4096}")]
    return L + [I(f"buffer_load_dwordx4 {ar(bslot(s, b))}, v{vH2 if b % 2 else vL16}, {sr(sWS)}, s{sCc2 if b >= 2 else sCc} offen offset:{(s % 4)*1024} {LD}") for b in range(4)]
def sib_loads(s, hi):
    t = (s - 11) % 4; L = []
    if t == 0: L += [I(f"s_add_u32 s{sCc}, s{sCH if hi else sCL}, s{sSib[(s-11)//4]}")]
    return L + [I(f"buffer_load_dwordx4 {ar(bslot(s, 2*hi + b))}, v{vC2 if b else vL16}, {sr(sWS)}, s{sCc} offen offset:{t*1024} {LD}") for b in range(2)]
def flag_store(level): return [I(f"v_add_u32 v{vFl}, 1, v{vFl}"), I(f"buffer_store_dword v{vFl}, v{vZ}, {sr(sWS)}, s{sFlagMe} offen {ST}")]

def consts_early(ln):
    t = ln + 1; a, b = sCnt, sOffA
    return [I(f"v_mov_b32 v{vZ}, 0"), I(f"v_mov_b32 v{vFl}, s{sE}"),
            I(f"s_and_b32 s{a}, s{sFlagMe}, 0xfffffe00"),
            I(f"v_bfe_u32 v{t}, v{vL16}, 4, 2"), I(f"v_lshlrev_b32 v{t}, 7, v{t}"), I(f"v_add_u32 v{vF2}, s{a}, v{t}"),
            I(f"s_lshl_b32 s{a}, s{sWave}, 13"), I(f"s_lshl_b32 s{b}, s{sHl}, 8"), I(f"s_add_u32 s{a}, s{a}, s{b}"),
            I(f"s_mul_i32 s{sW2o}, s{sXcd}, {224*1024}"), I(f"s_add_u32 s{sW2o}, s{sW2o}, s{a}")] + \
           lane_wdma(vWd3, 1024, t, ln, natural=False, nblk=1)
def h_bases():
    L = [I(f"v_add_u32 v{vH2}, {56*1024}, v{vL16}"), I(f"s_mul_i32 s{sCc}, s{sXcd}, 7")]
    for d, c in ((sHLo, sCL), (sHHo, sCH)):
        L += [I(f"s_sub_u32 s{d}, s{c}, {WS_CTX:#x}"), I(f"s_lshr_b32 s{d}, s{d}, 17"), I(f"s_mul_i32 s{d}, s{d}, 56"),
              I(f"s_add_u32 s{d}, s{d}, s{sCc}"), I(f"s_lshl_b32 s{d}, s{d}, 10"), I(f"s_add_u32 s{d}, s{d}, {WS_H:#x}")]
    return L
def bbf_steps():
    head, parts = fin_parts(0, sCL)
    lds = {s: [x for x in h_loads(s) if x.kind != 'salu'] for s in range(4)}
    V, _ = code_pf("F_Bend", "F_RA0", 250, 252, vL16)
    sp = lambda L, g0: {g0 + 2*k: [x] for k, x in enumerate(L)}
    posts = [{}, {1: poll_check(vPo, vF2, sWS, "0", 1, sT3, 63), **sp(lds[2], 49)}, {**sp(lds[3], 19), **sp(lds[0], 49)}, sp(lds[1], 49)]
    pre = [head, V, [], []]
    out = []
    for k in range(4):
        out.append(step('B', 'B', k % 2, 2, name=f'BBf{k}', extra_h1=pre[k] + parts[k][0],
                        extra_valu=parts[k][1] + (h_bases() + [I(f"s_mov_b32 s{sCc}, s{sHLo}"), I(f"s_mov_b32 s{sCc2}, s{sHHo}")] if k == 0 else []),
                        extra_post=posts[k]))
    return out
def finl_block():
    L = h_bases()
    L += [I("s_waitcnt vmcnt(0)"), I("s_barrier")] + poll_check(vPo, vF2, sWS, "0", 1, sT2, 63)
    inter = []
    pre2 = [I(f"s_mov_b32 s{sCc}, s{sHLo}"), I(f"s_mov_b32 s{sCc2}, s{sHHo}")]
    lds = [x for s in (2, 3, 0, 1) for x in h_loads(s) if x.kind != 'salu']
    for k, x in enumerate(lds): inter += [[x], []] if k < 8 else [[x], []]
    inter = inter[:16] + [[lds[8]], [], [lds[9]], [], [lds[10]], [], [lds[11]], []] + [[], [lds[12]], [], [lds[13]], [], [], [], []] + [[lds[14]], [lds[15]]]
    V, M = code_pf("F_Bend", "F_RA0", 250, 252, vL16)
    if flag('nopf3'): V, M = [], []
    return L + pre2 + V + M + finalize(0, sCL, inter, tag='cs0')
def bend_pre():
    L = [I(f"s_lshl_b32 s{sT}, s{sWave}, 13"), I(f"s_lshl_b32 s{sT2}, s{sHl}, 8"), I(f"s_add_u32 s{sT3}, s{sT}, s{sT2}"),
         I(f"s_lshl_b32 s{sT}, s{sXcd}, 19"), I(f"s_add_u32 s{sT}, s{sT}, s{sT3}"),
         I(f"s_lshl_b32 s{sT2}, s{sHl}, 17"), I(f"s_add_u32 s{sWoO}, s{sT}, s{sT2}")]
    for k in range(3):
        L += [I(f"s_add_u32 s{sT2}, s{sHl}, {k+1}"), I(f"s_and_b32 s{sT2}, s{sT2}, 3"),
              I(f"s_lshl_b32 s{sWoS[k]}, s{sT2}, 17"), I(f"s_add_u32 s{sWoS[k]}, s{sWoS[k]}, s{sT}"),
              I(f"s_sub_u32 s{sT2}, s{sT2}, s{sHl}"), I(f"s_lshl_b32 s{sSib[k]}, s{sT2}, 12")]
    return L
def bend_valu():
    t = T0; ln = T0 + 4
    L = [I(f"v_lshrrev_b32 v{ln}, 4, v{vL16}")] + lane_wtr(vWtrB, 0, t, ln, natural=False)
    L += [I(f"v_add_u32 v{vWtrA+c}, 131072, v{vWtrB+c}") for c in range(4)]
    L += [I(f"v_add_u32 v{vC2}, 0x20000, v{vL16}"),
          I(f"s_lshr_b32 s{sT3}, s2, 3"), I(f"s_lshl_b32 s{sT3}, s{sT3}, 2"), I(f"s_lshr_b32 s{sPo}, s{sXcd}, 1"), I(f"s_add_u32 s{sPo}, s{sT3}, s{sPo}"),
          I(f"s_lshl_b32 s{sPo}, s{sPo}, 10"), I(f"s_add_u32 s{sPo}, s{sPo}, {F3:#x}"),
          I(f"v_and_b32 v{t}, 7, v{ln}"), I(f"v_lshlrev_b32 v{t}, 7, v{t}"), I(f"v_add_u32 v{vF3}, s{sPo}, v{t}"),
          I(f"s_add_u32 s{sT3}, s{sT3}, s{sWave}"), I(f"s_lshl_b32 s{sT3}, s{sT3}, 3"), I(f"s_add_u32 s{sT3}, s{sT3}, s{sXcd}"),
          I(f"s_lshl_b32 s{sT3}, s{sT3}, 7"), I(f"s_add_u32 s1, s{sT3}, {F3:#x}"),
          I(f"s_mov_b32 s{sPo}, s2"),
          I(f"s_mul_i32 s{sPo}, s{sPo}, {8*PD}"), I(f"s_mul_i32 s{sT3}, s{sWave}, {2*PD}"), I(f"s_add_u32 s{sPo}, s{sPo}, s{sT3}"),
          I(f"s_add_u32 s{sPo}, s{sPo}, {WS_P:#x}")]
    return L

def p3p4():
    RG = 128; NR = 8
    seq = [(s, c8, (0, 1, 2, 3)) for s in range(7) for c8 in range(8)]
    seq += [(s, c8, (0, 1, 2, 3)) for s in range(7, 11) for c8 in range(8)]
    seq += [(s, c8, (0, 1)) for s in range(11, 23) for c8 in range(8)] + [(s, c8, (2, 3)) for c8 in range(8) for s in range(11, 23)]
    NF = len(seq)
    g0s = []; g = 0
    for e in seq: g0s.append(g); g += len(e[2])
    NGP = g
    def w_reads(n):
        s, c8, _ = seq[n]; h, c = divmod(c8, 4); a = w3_addr(s) + h*4096; r = RG + (n % NR)*4
        if s < 4: va, off = vWtrA, a - 131072
        elif s < 11: va, off = vWtrB, a
        elif s < 19: va, off = vWtrB, a - 57344
        else: va, off = vWtrA, a - 122880
        return [I(f"ds_read_b64_tr_b16 {vr(r,2)}, v{va+c} offset:{off}"), I(f"ds_read_b64_tr_b16 {vr(r+2,2)}, v{va+c} offset:{off+2048}")]
    L = stamp(13) + [I("s_waitcnt lgkmcnt(0)"), needvm('x4', 'x5', 'x6'), I("s_barrier")] + stamp(14)
    rd_at = {}
    for m in range(NF):
        n = m
        while n > 0 and m - n < 6 and g0s[m] - g0s[n] < val('p3pf', 14): n -= 1
        rd_at[m] = n if (g0s[m] - g0s[n] >= val('p3pf', 14) or m - n == 6) else -1
    for m in range(NF):
        if rd_at[m] < 0: L += w_reads(m)
    mf = []; post = {}; dmaq = []; valu = []
    def addpost(g, items): post.setdefault(g, []).extend(items)
    first = set()
    firstread = {}
    for m in range(NF): firstread.setdefault(seq[m][0], m)
    bars = {7: range(7, 11), 11: range(11, 17), 17: range(17, 23)}
    for n, (s, c8, bs) in enumerate(seq):
        for b in bs:
            d = vr((c8*4 + b)*4)
            mf.append(I(f"{M16} {d}, {vr(RG + (n % NR)*4)}, {ar(bslot(s, b))}, {d if s else 0}"))
        if n + 1 < NF: addpost(g0s[n + 1] - 1, [needlg(regs_in(vr(RG + ((n + 1) % NR)*4)))])
    bargap = {}
    for sb, rng in bars.items():
        m = firstread[sb]; g = g0s[rd_at[m]] - 1; bargap[sb] = g
        addpost(g, [needvm(*[f'x{k}' for k in rng]), I("s_barrier")] + stamp({7: 54, 11: 57, 17: 58}[sb]))
    lastA = max(m for m in range(NF) if seq[m][0] < 4); lastB = max(m for m in range(NF) if seq[m][0] < 11)
    for k in range(4): addpost(g0s[rd_at[lastA]] + 1 + 4*k, [I(f"v_subrev_u32 v{vWtrA+k}, 8192, v{vWtrA+k}")])
    addpost(g0s[rd_at[lastB]] + 1, [I(f"v_add_u32 v{vWtrB+k}, 57344, v{vWtrB+k}") for k in range(2)])
    addpost(g0s[rd_at[lastB]] + 2, [I(f"v_add_u32 v{vWtrB+k}, 57344, v{vWtrB+k}") for k in range(2, 4)])
    for m in range(NF):
        if rd_at[m] >= 0: addpost(g0s[rd_at[m]], w_reads(m))
    rdg = set(g0s[rd_at[m]] for m in range(NF) if rd_at[m] >= 0)
    G = lambda grp: 4*grp
    for s in range(4, 7): dmaq.append((1, h_loads(s)))
    for s in range(11, 20):
        for g in w3_dma(s): dmaq.append((G(13) + 8*(s - 11), g))
    for s in range(20, 23):
        for g in w3_dma(s): dmaq.append((max(bargap[7] + 1, G(66)), g))
    g2, g3 = val('g2', 30), val('g3', 62)
    valu += [((33 if min(int(r[1:]) for r in x.wr) < 32 else 65) if x.op == 'v_accvgpr_write_b32' else 2, x) for x in finalize(1, sCH, tag='cs1')] + [(G(g3), [needvm('cs1')] + flag_store(3))]
    dmaq.append((G(g2), [poll_issue(vPo, vF2, sWS, "0")]))
    addpost(G(g2 + 12) + 1, stamp(55) + poll_check(vPo, vF2, sWS, "0", 2, sT2, 63) + stamp(56))
    for s in range(11, 23): dmaq.append((G(g2 + 12) + 2, sib_loads(s, 0)))
    g4 = val('g4', 80)
    dmaq.append((G(g4), [poll_issue(vPo, vF2, sWS, "0")]))
    addpost(G(g4 + 12) + 1, stamp(59) + poll_check(vPo, vF2, sWS, "0", 3, sT2, 63) + stamp(60))
    for s in range(11, 23): dmaq.append((G(g4 + 12) + 2, sib_loads(s, 1)))
    PKP = 160
    def piece(c8, pr, k):
        X = (c8*4 + 2*pr)*4; T = PKP + (k % 8)*4
        a, b = P1.pack_swap(T, X, X + 4)
        return a + [I(f"s_add_u32 s{sT3}, s{sPo}, {pr*PD + (c8//4)*4096}")] + b + \
            [I(f"buffer_store_dwordx4 {vr(T)}, v{vL16}, {sr(sWS)}, s{sT3} offen offset:{(c8 % 4)*1024} {ST}", tag=('vm', 'pst'))]
    hi0 = NF - 96
    ev = [(g0s[hi0] + 3, c8, 0) for c8 in range(8)] + [((g0s[hi0 + 12*(c8 + 1)] + 3) if c8 < 7 else NGP, c8, 1) for c8 in range(8)]
    order = sorted(range(16), key=lambda k: (ev[k][0] + (0 if ev[k][2] else 12*ev[k][1])))
    for k, e in enumerate(order): valu += [(ev[e][0], x) for x in piece(ev[e][1], ev[e][2], k)]
    XO = 226; vXa, vBa = 222, 223
    p4pre = [I(f"s_lshr_b32 s{sT}, s{sXcd}, 1"), I(f"s_lshl_b32 s{sT}, s{sT}, 5"),
             I(f"s_sub_u32 s{sT2}, 15, s{sI}"), I(f"s_bitcmp1_b32 s{sXcd}, 0"), I(f"s_cselect_b32 s{sT2}, s{sT2}, s{sI}"),
             I(f"s_lshl_b32 s{sT2}, s{sT2}, 7"), I(f"s_add_u32 s{sT}, s{sT}, s{sT2}"), I(f"s_lshl_b32 s74, s{sT}, 10"),
             I(f"s_lshl_b32 s75, s{sHl}, 8"), I(f"s_lshl_b32 s{sT}, s{sWave}, 6"), I(f"s_add_u32 s75, s75, s{sT}"), I(f"s_add_u32 s74, s74, s75"),
             I(f"v_bfe_u32 v{vXa}, v{vL16}, 4, 5"), I(f"v_lshlrev_b32 v{vXa}, 10, v{vXa}"),
             I(f"v_lshrrev_b32 v{vBa}, 9, v{vL16}"), I(f"v_lshlrev_b32 v{vBa}, 4, v{vBa}"), I(f"v_add_u32 v{vXa}, v{vXa}, v{vBa}")]
    gp = G(126)
    dmaq.append((gp, p4pre[:12] + [I(f"buffer_load_dwordx4 {vr(XO + 8*pc)}, v{vXa}, {sr(sX)}, s74 offen offset:{pc*32}") for pc in range(2)] +
                        [I(f"buffer_load_dwordx4 {vr(XO + 4 + 8*pc)}, v{vBa}, {sr(sB2)}, s75 offen offset:{pc*32}") for pc in range(2)]))
    for k, x in enumerate(p4pre[12:]): addpost(gp - 11 + 2*k, [x])
    if flag('p3nold'): dmaq = [d for d in dmaq if not any(x.kind == 'vld' and 'a[' in x.txt for x in d[1])]
    if flag('p3nodma'): dmaq = [d for d in dmaq if not any(x.kind == 'dma' for x in d[1])]
    if flag('p3nofin'): valu = [v for v in valu if isinstance(v[1], list) or v[0] > 100 or v[1].kind == 'vst']
    place_dma(dmaq, addpost, step=val('p3step', 4), ok=lambda g: g not in rdg and (g >= 352 or g % 4 in (1, 2)))
    def budget(g, p):
        if any(x.kind == 'dsr' for x in p): return 0
        n = sum(1 for x in p if x.txt or (x.tag and x.tag[0] != 'needvm'))
        nd = sum(1 for x in p if x.kind in ('dma', 'vld', 'vst'))
        return max(0, 2 - max(0, n - 1) - nd)
    body, left = weave(mf, post, valu, budget, flush_dep=lambda g: 224 <= g < 352)
    if OPT.verbose:
        mi = 0
        for x in body:
            if x.kind == 'mfma': mi += 1
            if x.tag and x.tag[0] == 'vm' and x.tag[1] in ('cs0', 'cs1', 'pst'): print(f"[p3] {x.tag[1]} store at gap {mi} (group {mi/4:.1f})", file=sys.stderr)
    L += body + stamp(15)
    L += [I(f"s_mov_b32 s{sFlagMe}, s1"), needvm('pst')] + flag_store(1)
    L += [I(f"s_lshr_b32 s{sT}, s2, 3"), I(f"s_mul_i32 s{sT}, s{sT}, {64*PD}"), I(f"s_mul_i32 s{sT2}, s{sXcd}, {PD}"), I(f"s_add_u32 s{sT}, s{sT}, s{sT2}"),
          I(f"s_lshl_b32 s{sT2}, s{sWave}, 11"), I(f"s_add_u32 s{sT}, s{sT}, s{sT2}"), I(f"s_add_u32 s{sT}, s{sT}, {WS_P:#x}"),
          poll_issue(vPo, vF3, sWS, "0")]
    for pc in range(2):
        A = 64 + 8*pc
        for j in range(4):
            L += [I(f"v_lshlrev_b32 v{A+2*j}, 16, v{XO+8*pc+j}"), I(f"v_and_b32 v{A+2*j+1}, 0xffff0000, v{XO+8*pc+j}"),
                  I(f"v_lshlrev_b32 v80, 16, v{XO+4+8*pc+j}"), I(f"v_and_b32 v81, 0xffff0000, v{XO+4+8*pc+j}"),
                  I(f"v_add_f32 v{A+2*j}, v{A+2*j}, v80"), I(f"v_add_f32 v{A+2*j+1}, v{A+2*j+1}, v81")]
    L += poll_check(vPo, vF3, sWS, "0", 1, sT2, 63) + stamp(16)
    for x in range(8):
        L += [I(f"buffer_load_dwordx4 {vr((pc*8 + x)*4)}, v{vL16}, {sr(sWS)}, s{sT} offen offset:{pc*1024} {LD}") for pc in range(2)]
        if x < 7: L += [I(f"s_add_u32 s{sT}, s{sT}, {8*PD:#x}")]
    for x in range(8):
        for pc in range(2):
            A = 64 + 8*pc; r = (pc*8 + x)*4
            for j in range(4):
                L += [I(f"v_lshlrev_b32 v80, 16, v{r+j}"), I(f"v_and_b32 v81, 0xffff0000, v{r+j}"),
                      I(f"v_add_f32 v{A+2*j}, v{A+2*j}, v80"), I(f"v_add_f32 v{A+2*j+1}, v{A+2*j+1}, v81")]
    for pc in range(2):
        A = 64 + 8*pc
        L += [I(f"v_cvt_pk_bf16_f32 v{84+4*pc+j}, v{A+2*j}, v{A+2*j+1}") for j in range(4)]
        if not flag('noout'): L += [I(f"buffer_store_dwordx4 {vr(84+4*pc)}, v{vXa}, {sr(sOUT)}, s74 offen offset:{pc*32} {val('outf', '').replace('_', ' ')}")]
    L += stamp_out(17) + [I("s_endpgm")]
    return L

def l2_warm(with_ctx):
    G = []
    if with_ctx: G.append([pf_load(214, 215, sWS, f"s{sCL}", LD)])
    G.append([I(f"s_add_u32 s{sT}, s{sHLo}, 3072"), pf_load(214, 216, sWS, f"s{sT}", LD)])
    G.append([I(f"s_add_u32 s{sT}, s{sHHo}, 3072"), pf_load(214, 216, sWS, f"s{sT}", LD)])
    G.append([I(f"s_lshr_b32 s{sT}, s2, 3"), I(f"s_lshl_b32 s{sT}, s{sT}, 14"), I(f"s_add_u32 s{sT}, s{sT}, s{sW4096}"),
              I(f"s_lshl_b32 s{sT3}, s{sXcd}, 19"), I(f"s_add_u32 s{sT}, s{sT}, s{sT3}"), pf_load(214, 217, sWO, f"s{sT}")])
    return G
def warm_consts():
    return [I(f"v_bfe_u32 v215, v{vL16}, 4, 5"), I(f"v_lshlrev_b32 v215, 7, v215"), I(f"v_lshrrev_b32 v216, 9, v{vL16}"),
            I(f"v_lshlrev_b32 v217, 2, v{vL16}"),
            I(f"v_mad_u32_u24 v218, v216, s{sT3}, v215"), I(f"v_lshl_add_u32 v215, v216, 17, v215"), I(f"v_mov_b32 v216, v218")]
def bbm_pf():
    d = {}
    if not flag('nopf3'): d[2] = code_pf('F_Bend', 'F_RA0', 250, 252, vL16)[1]
    return d

def build():
    P = P1.prologue()
    P, lgq, vmq = finish(P, name="pro")
    aK, bK = P1.engine(False); aV, bV = P1.engine(True)
    assert text(bK).replace("PL_", "").count("\n") == text(bV).count("\n")
    aK, lq1, vq1 = finish(aK, lgq, vmq, P, name="engK")
    aV, lq2, vq2 = finish(aV, lgq, vmq, P, name="engV")
    assert lq1 == lq2 and [x[1] for x in vq1] == [x[1] for x in vq2] and [x[0] for x in vq1] == [x[0] for x in vq2]
    B, lq, vq = finish(bK + first_tile(), lq1, vq1, aK, name="engB")
    B2, _, _ = finish(bK + first_tile(), lq1, vq1, aV, name="engB'")
    assert len(B) == len(B2)
    Q0 = [set(regs_in(ar(RING + f*4))) for f in range(NPRE)]
    if not OPT.prof: assert lq == Q0, lq
    bend_dma = [(1, g) for s in range(4, 11) for g in w3_dma(s)]
    aame_dma = [(2, g) for s in range(4) for g in w3_dma(s)]
    raw = {
        'AAe': step('A', 'A', 0, 1, name='AAe'), 'AAo': step('A', 'A', 1, 1, name='AAo'),
        'AAmo': step('A', 'A', 1, 1, mask=[(0, 0, None), (2, 1, None)], name='AAmo'),
        'AAme': step('A', 'A', 0, 2, mask=[(0, 2, None), (2, 3, None)], xwait=16, name='AAme', extra_dma=aame_dma),
        'ABm': step('A', 'B', 1, 2, mask=[(k, k, sOffB) for k in range(4)], xwait=8, name='ABm', extra_post={3: flag_store(1), 45: [poll_issue(vPo, vF2, sWS, "0")]}),
        'BBe': step('B', 'B', 0, 2, name='BBe'), 'BBo': step('B', 'B', 1, 2, name='BBo'),
        'BBm': step('B', 'B', 1, 0, mask=[(k, k, None) for k in range(4)], xwait=0, name='BBm', extra_post=bbm_pf()),
        'FINL': stamp(11) + finl_block() + stamp(12) + [I(f"s_sub_u32 s{sCnt}, 6, s{sI}"), I("s_cbranch_scc1 F_Bend")],
    }
    for k, b in enumerate(bbf_steps()): raw[f'BBf{k}'] = b
    preds = {'AAe': ['PRO', 'AAo'], 'AAo': ['AAe'], 'AAmo': ['AAe'], 'AAme': ['PRO', 'AAmo'], 'ABm': ['AAme'], 'FINL': ['ABm'],
             'BBf0': ['ABm'], 'BBf1': ['BBf0'], 'BBf2': ['BBf1'], 'BBf3': ['BBf2'],
             'BBe': ['FINL', 'BBo', 'BBf3'], 'BBo': ['BBe'], 'BBm': ['BBe']}
    done = {'PRO': B}
    for nm in ['AAe', 'AAo', 'AAmo', 'AAme', 'ABm', 'FINL', 'BBf0', 'BBf1', 'BBf2', 'BBf3', 'BBe', 'BBo', 'BBm']:
        outs = [finish(raw[nm], Q0, None, done.get(pr) or raw[pr], name=nm + "<-" + pr, vm=False) for pr in preds[nm]]
        best = max(outs, key=lambda o: len(o[0]))
        done[nm] = best[0]
        if not OPT.prof: assert best[1] == Q0, (nm, best[1])
    bend = step('B', None, 0, 0, name='Bend', extra_dma=bend_dma, extra_valu=bend_valu(), extra_post={26: [needvm('cs0')] + flag_store(2)})
    k = [j for j, x in enumerate(bend) if x.kind == 'mfma'][0]
    tailraw = bend[:k] + bend_pre() + bend[k:] + p3p4()
    outs = [finish(tailraw, Q0, [(set(), 'cs0')] + [(set(regs_in(ar(bslot(1, b)))), None) for b in (2, 3)], done[pr], name="tail<-" + pr) for pr in ('FINL', 'BBm')]
    tail = max(outs, key=lambda o: len(o[0]))[0]
    loopx = lambda lab: f" s_sub_u32 s{sCnt}, s{sCnt}, 1\n s_cbranch_scc1 {lab}\n"
    body = text(P) + "\n" + text(aK) + "\n s_branch F_J\nF_V:\n" + text(aV) + "\nF_J:\n" + text(B) + "\n"
    body += f".p2align {val('al', 3)}\nF_AAe:\n" + text(done['AAe']) + "\n" + loopx("F_AAmo") + text(done['AAo']) + "\n s_branch F_AAe\n"
    body += "F_AAmo:\n" + text(done['AAmo']) + "\nF_AAme:\n" + text(done['AAme']) + "\n" + text(done['ABm']) + "\n"
    if flag('bbf'):
        body += f" s_cmp_gt_u32 s{sI}, 4\n s_cbranch_scc1 F_FINL\n" + text(stamp(11) + stamp(12)) + "\n"
        for k in range(4): body += text(done[f'BBf{k}']) + "\n"
        body += f" s_sub_u32 s{sCnt}, 4, s{sI}\n s_branch F_BBe\nF_FINL:\n"
    body += text(done['FINL']) + "\n"
    body += f".p2align {val('al', 3)}\nF_BBe:\n" + text(done['BBe']) + "\n" + loopx("F_BBm") + text(done['BBo']) + "\n s_branch F_BBe\n"
    body += "F_BBm:\n" + text(done['BBm']) + "\nF_Bend:\n" + text(tail) + "\n"
    for typ in 'AB':
        for p in range(2): body += text(rare_redo(typ, p)) + "\n"
    for cur, nxt, p in (('A', 'A', 0), ('A', 'A', 1), ('A', 'B', 1), ('B', 'B', 0), ('B', 'B', 1), ('B', None, 0)):
        body += text(rare_stub(cur, nxt, p)) + "\n"
    hdr = open(f"cdna_kernels/{NAME}.s.ref").read().split("; Override")[0]
    kname = NAME + "_kernel"
    if "--list" in sys.argv: hdr += f"; @launch kernel={kname} grid=(256,1,1) block=(256,1,1) lds=163840\n"
    else: hdr += "; @launch grid=(256,1,1) block=(256,1,1) lds=163840\n"
    return hdr + '.amdgcn_target "amdgcn-amd-amdhsa--gfx950"\n' + kernel_text(kname, body, 512, 256)

if __name__ == "__main__":
    OPT.prof = "--prof" in sys.argv
    if "-q" in sys.argv: OPT.verbose = 0
    open(sys.argv[1], "w").write(build())
```

```python
from f_common import *

GC0 = -2.0 * math.sqrt(2.0 / math.pi) * math.log2(math.e)
GC1 = GC0 * 0.044715
sWoff, sCoff, sOb, sM0c, sScale, sType, s1o, sQo, sXL, sXH, sXLc, sXHc, sHL, sHH, sGC0, sB1o, sSt = range(74, 91)
sXrow, sWpf, sRb, sF0me, sF1me, sXcc = 98, 99, 96, 5, 1, 0
sKt, sKm, sVt, sVm = 91, 92, 93, 94
sCL, sCH = 95, 96
ACCB = [0, 64, 128, 0, 64, 0, 128]
WF = 192; NWF = 6
vZero, vPoll, vFt, vP0, vF1, vJ, vBo, vTm2 = range(216, 224)
vL16 = 224; vWtrS = [225, 229]; vWd, vW1d = 233, 237
vXo2, vGC1, vKVd = 241, 242, 243
PK = 244; GT = 237; GP = [244, 248]
vCd, vCr = 180, 178
QF = lambda qb, ks: 128 + (qb*8 + ks)*4
XF = lambda b, ks: (b*16 + ks)*4

def bf16_round(dst, src):
    return [I(f"v_cvt_pk_bf16_f32 v{dst}, v{src}, v{src}"), I(f"v_and_b32 v{dst}, 0xffff0000, v{dst}")]
def sum32(v, t):
    return [I(f"v_add_f32_dpp v{v}, v{v}, v{v} quad_perm:[1,0,3,2] row_mask:0xf bank_mask:0xf"),
            I(f"v_add_f32_dpp v{v}, v{v}, v{v} quad_perm:[2,3,0,1] row_mask:0xf bank_mask:0xf"),
            I(f"v_add_f32_dpp v{v}, v{v}, v{v} row_half_mirror row_mask:0xf bank_mask:0xf"),
            I(f"v_add_f32_dpp v{v}, v{v}, v{v} row_mirror row_mask:0xf bank_mask:0xf"),
            I(f"v_mov_b32 v{t}, v{v}"), I(f"v_permlane16_swap_b32 v{v}, v{t}"), I(f"v_add_f32 v{v}, v{v}, v{t}")]

def c_dma(ch):
    gs = []
    for grp in range(2):
        L = [I(f"s_add_u32 m0, s{sM0c}, {(ch % 3)*8192 + grp*4096}"), I(f"s_add_u32 s{sT}, s{sCoff}, {ch*128 + grp*32768}")]
        L += [I(f"buffer_load_dwordx4 v{vCd+b}, {sr(sC)}, s{sT} offen offset:{1024*b} {'nt' if flag('cnt') else ''} lds", tag=('vm', f'c{ch}')) for b in range(4)]
        gs.append(L)
    return gs
ORDER = [(0, k) for k in range(8)]
for cp in range(4):
    for k in range(8): ORDER += [(cp, 8 + k), (cp + 1, k)]
ORDER += [(4, k) for k in range(8, 16)] + [(5, k) for k in range(16)] + [(6, k) for k in range(16)]
POS = {e: 4*k for k, e in enumerate(ORDER)}
PF = 4
FU = {u: POS[(u//4, 4*(u % 4))] for u in range(28)}
LU = {u: POS[(u//4, 4*(u % 4) + 3)] + 3 for u in range(28)}
def make_plan(dist):
    need = {}; bars = []
    for u in sorted(FU, key=lambda u: FU[u]):
        p = FU[u] - PF
        if bars and (p - bars[-1] <= 4 or (u >= 19 and u % 2 == 1 and not flag('morebar'))): need[u] = bars[-1]
        else: bars.append(p); need[u] = p
    extra = [40, 72]
    bars = sorted(set(bars + extra))
    plan = {0: (-9, 6), 1: (-9, 7), 2: (-9, 8), 4: (-9, 9)}
    free = {sl: 72 for sl in range(6)}
    def rel(u): return min([p for p in bars if p > LU[u]] + [10**6])
    for u, (p, sl) in plan.items(): free[sl] = rel(u)
    rest = [u for u in sorted(FU, key=lambda u: FU[u]) if u not in plan]
    for u in rest:
        allowed = range(10) if u < 22 else (3, 5, 6, 7, 8, 9)
        sl = min(allowed, key=lambda x: (free[x], x in (3, 5, 6, 7, 8, 9) and u >= 16))
        cand = [p for p in bars if p >= free[sl] and p >= need[u] - dist]
        plan[u] = (cand[0], sl); assert cand[0] < need[u], u
        free[sl] = rel(u)
    return plan, need, bars, free
PLAN, NEED, BARS, SLOTFREE = make_plan(val('wdist', 100))
def w_dma(u):
    cp, kq = divmod(u, 4); slot = PLAN[u][1]
    if cp < 4: srd_, vo, so, off = sWkv, vWd, sWoff, kq*4*262144 + cp*128
    elif cp == 4: srd_, vo, so, off = sW1, vW1d, s1o, kq*4*32*3584
    else: srd_, vo, so, off = sWQ, vWd, sQo, kq*4*262144 + (cp - 5)*128
    L = [I(f"s_add_u32 m0, s{sW4096}, {slot*16384}"), I(f"s_add_u32 s{sT}, s{so}, {off}")]
    L += [I(f"buffer_load_dwordx4 v{vo+b}, {sr(srd_)}, s{sT} offen offset:{1024*b} {'nt' if (flag('wnt') or (flag('qnt') and cp >= 4)) else ''} lds", tag=('vm', f'w{u}')) for b in range(4)]
    return L
def kv_dma(which, tag=None):
    srd_, t, m = (sKS, sKt, sKm) if which == 'K' else (sVS, sVt, sVm)
    L = [I(f"s_mov_b32 m0, s{m}") if which == 'K' else I(f"s_add_u32 m0, s{m}, 0x10000"),
         I(f"s_mov_b32 s{sT2}, s{t}"),
         I(f"s_add_u32 s{t}, s{t}, {TS}"), I(f"s_add_u32 s{m}, s{m}, 0x4000"), I(f"s_and_b32 s{m}, s{m}, 0xffff")]
    L += [I(f"buffer_load_dwordx4 v{vKVd}, {sr(srd_)}, s{sT2} offen offset:{1024*b} {LD} lds", tag=('vm', tag)) for b in range(4)]
    return L

def prologue():
    TMP = 184; ln = 188; cb = val('cb', 3); wb = val('wb', 3)
    P = [I("s_cmp_lt_u32 s2, 256"), I("s_cbranch_scc1 F_go"), I("s_endpgm"), I("F_go:")]
    for s_, off in ((sDBG, A_DBG), (sC, A_CKV), (sWkv, A_WUK), (4, A_WUV), (sX, A_X), (sWS, A_WS), (sWQ, A_WQ), (sW1, A_W1), (sB1, A_B1),
                    (sWO, A_WO), (sW2, A_W2), (sB2, A_B2), (sOUT, A_OUT)):
        P.append(I(f"s_load_dwordx2 s[{s_}:{s_+1}], s[0:1], {off}"))
    P += [I(f"v_and_b32 v{ln}, 63, v0"), I(f"v_lshrrev_b32 v{TMP}, 6, v0"), I(f"v_mov_b32 v{vZero}, 0"),
          I(f"v_readfirstlane_b32 s{sWave}, v{TMP}"), I(f"v_mov_b32 v{vTm2}, 1"),
          I(f"s_getreg_b32 s{sXcd}, hwreg(HW_REG_XCC_ID, 0, 3)"),
          I(f"s_mov_b32 s{sDBG+2}, 256"), I(f"s_mov_b32 s{sDBG+3}, 0x20000"),
          I(f"s_lshl_b32 s{sT}, s{sXcd}, 5"), I(f"s_add_u32 s{sT}, s{sT}, 4"),
          I(f"v_bfe_u32 v{TMP}, v{ln}, {cb}, 3"), I(f"v_and_b32 v{TMP+1}, {(1 << cb) - 1}, v{ln}"), I(f"v_lshlrev_b32 v{TMP}, 10, v{TMP}"),
          I(f"v_lshl_add_u32 v{TMP}, v{TMP+1}, 7, v{TMP}"), *([I(f"v_and_b32 v{TMP+1}, {(8 << wb) - 1}, v{ln}"), I(f"v_lshlrev_b32 v{TMP+1}, 9, v{TMP+1}")] if wb < 3 else
            [I(f"v_lshrrev_b32 v{TMP+1}, 1, v{ln}"), I(f"v_lshlrev_b32 v{TMP+1}, 9, v{TMP+1}"), I(f"v_and_b32 v{TMP+2}, 1, v{ln}"), I(f"v_lshl_add_u32 v{TMP+1}, v{TMP+2}, 7, v{TMP+1}")]),
          I(f"s_lshl_b32 s{sT2}, s2, 13"), I(f"s_lshl_b32 s{sT3}, s2, {12 + min(wb, 2)}"),
          I(f"s_cmp_lt_u32 s{sWave}, 2"), I(f"s_cselect_b32 s{sT2}, s{sT2}, s{sT3}"), I(f"s_cselect_b64 vcc, -1, 0"),
          I(f"s_cselect_b32 s{sKS+2}, 1, 2"), I(f"s_lshl_b32 s{sKS+2}, s{sKS+2}, 21"), I(f"s_mov_b32 s{sKS+3}, 0x20000"),
          I(f"v_cndmask_b32 v{TMP}, v{TMP+1}, v{TMP}, vcc"),
          I("s_waitcnt lgkmcnt(0)")] + stamp(0)
    if not flag('notk'):
        P += [I(f"s_cmp_eq_u32 s{sWave}, 0"), I("s_cbranch_scc0 F_notk"), I("s_mov_b64 exec, 1"),
              I(f"buffer_atomic_add v{vTm2}, v{vZero}, {sr(sDBG)}, s{sT} offen sc0 sc1", tag=('cond', 'tk')),
              I("s_mov_b64 exec, -1"), I("F_notk:")]
    P += [
          I(f"s_bitcmp1_b32 s{sWave}, 0"), I(f"s_cselect_b64 s[{sKS}:{sKS+1}], s[{sC}:{sC+1}], s[{sX}:{sX+1}]"),
          I(f"s_cselect_b64 s[{sVS}:{sVS+1}], s[4:5], s[{sWkv}:{sWkv+1}]"),
          I(f"s_cmp_lt_u32 s{sWave}, 2"), I(f"s_cselect_b64 s[{sKS}:{sKS+1}], s[{sKS}:{sKS+1}], s[{sVS}:{sVS+1}]"),
          pf_load(vJ, TMP, sKS, f"s{sT2}")]
    P += [I(f"v_lshrrev_b32 v{TMP+1}, 3, v{ln}"),
          I(f"s_mul_i32 s{sM0c}, s{sWave}, 24576"), I(f"s_lshl_b32 s{sW4096}, s{sWave}, 12"),
          I(f"s_mov_b32 s{sC+2}, {2*MB:#x}"), I(f"s_mov_b32 s{sC+3}, 0x20000"),
          I(f"s_mov_b32 s{sWkv+2}, {4*MB:#x}"), I(f"s_mov_b32 s{sWkv+3}, 0x20000"),
          I(f"v_and_b32 v{TMP+2}, 7, v{ln}"), I(f"v_lshrrev_b32 v{TMP}, 4, v{ln}"), I(f"v_xor_b32 v{TMP+2}, v{TMP+2}, v{TMP}"),
          I(f"v_lshlrev_b32 v{TMP}, 10, v{TMP+1}")]
    for b in range(4):
        P += [I(f"v_xor_b32 v{TMP+1}, {4*(b%2)}, v{TMP+2}"), I(f"v_lshl_add_u32 v{vCd+b}, v{TMP+1}, 4, v{TMP}")]
        if b: P.append(I(f"v_add_u32 v{vCd+b}, {7*b*1024}, v{vCd+b}"))
    P += lane_wdma(vWd, 8192, TMP, ln)
    P += lane_wtr(vWtrS[0], PLAN[0][1]*16384, TMP, ln)
    P += [I(f"v_add_u32 v{vWtrS[1]+c}, {(PLAN[4][1] - PLAN[0][1])*16384}, v{vWtrS[0]+c}") for c in range(4)]
    P += lane_wdma(vW1d, 3584, TMP, ln)
    n = lambda x: I(x, tag=('novm',))
    TK = [I(f"s_cmp_eq_u32 s{sWave}, 0"), I("s_cbranch_scc0 F_tk2"), I(f"s_mov_b32 s{sT3}, 7"), I("", tag=('needcond', 'tk')),
          I("F_tk0:"), I(f"v_readfirstlane_b32 s{sT2}, v{vTm2}"), I(f"s_cmp_lt_u32 s{sT2}, 32"), I("s_cbranch_scc1 F_tk1"),
          I(f"s_sub_u32 s{sT3}, s{sT3}, 1"), I("s_cbranch_scc1 F_tk3"),
          I(f"s_add_u32 s{sXcd}, s{sXcd}, 1"), I(f"s_and_b32 s{sXcd}, s{sXcd}, 7"),
          I(f"s_lshl_b32 s{sT}, s{sXcd}, 5"), I(f"s_add_u32 s{sT}, s{sT}, 4"), I(f"v_mov_b32 v{vTm2}, 1"), I("s_mov_b64 exec, 1"),
          n(f"buffer_atomic_add v{vTm2}, v{vZero}, {sr(sDBG)}, s{sT} offen sc0 sc1"), I("s_mov_b64 exec, -1"),
          n("s_waitcnt vmcnt(0)"), I("s_branch F_tk0"),
          I("F_tk1:"), I(f"s_lshl_b32 s{sT2}, s{sT2}, 3"), I(f"s_add_u32 s2, s{sT2}, s{sXcd}"),
          I("F_tk3:"), I(f"v_mov_b32 v{vTm2}, s2"),
          I(f"ds_write_b32 v{vZero}, v{vTm2}", tag=('nolg',)), I("s_waitcnt lgkmcnt(0)", tag=('nolg',)), I("F_tk2:"),
          I("s_barrier"), I(f"ds_read_b32 v{vTm2}, v{vZero}"), I(f"v_readfirstlane_b32 s2, v{vTm2}"), I("s_barrier")]
    if not flag('notk'): P += TK
    P += [
          I(f"s_and_b32 s{sXcd}, s2, 7"), I(f"s_lshr_b32 s{sI}, s2, 5"), I(f"s_bfe_u32 s{sHl}, s2, 0x20003"),
          I(f"s_and_b32 s{sType}, s{sI}, 1"),
          I(f"s_and_b32 s{sRb}, s2, 1"), I(f"s_lshl_b32 s{sRb}, s{sRb}, 2"), I(f"s_add_u32 s{sRb}, s{sRb}, s{sHl}"),
          I(f"s_lshl_b32 s{sCoff}, s{sRb}, 18"), I(f"s_lshl_b32 s{sT}, s{sWave}, 16"), I(f"s_add_u32 s{sCoff}, s{sCoff}, s{sT}"),
          I(f"s_lshr_b32 s3, s{sXcd}, 1"), I("s_lshl_b32 s3, s3, 2"), I(f"s_lshr_b32 s{sT}, s{sI}, 1"), I(f"s_add_u32 s3, s3, s{sT}"),
          I(f"s_lshl_b32 s{sWoff}, s{sWave}, 18"), I(f"s_lshl_b32 s{sT}, s3, 9"), I(f"s_add_u32 s{sWoff}, s{sWoff}, s{sT}")]
    P += stamp(19)
    P += [I(f"s_or_b32 s{sT3}, s2, s{sWave}"), I(f"s_cmp_eq_u32 s{sT3}, 0"), I("s_cbranch_scc0 F_noep0"),
          I(f"s_mov_b32 s{sWS+2}, {WS_SIZE:#x}"), I(f"s_mov_b32 s{sWS+3}, 0x20000"), I(f"s_mov_b32 s{sT}, {FE:#x}"),
          I(f"buffer_load_dword v{vFt}, v{vZero}, {sr(sWS)}, s{sT} offen sc1", tag=('novm',)), I("F_noep0:")]
    nv0 = len(P)
    c0 = c_dma(0)
    P += c0[0] + c0[1]
    P += [I(f"s_cmp_eq_u32 s{sType}, 0"), I(f"s_cselect_b64 s[{sWkv}:{sWkv+1}], s[{sWkv}:{sWkv+1}], s[4:5]")]
    P += w_dma(0)
    P += [I(f"s_mov_b32 s{sX+2}, {2*MB:#x}"), I(f"s_mov_b32 s{sX+3}, 0x20000"),
          I(f"s_lshl_b32 s{sT2}, s2, 13"), I(f"s_lshl_b32 s{sT}, s{sWave}, 11"), I(f"s_add_u32 s{sT2}, s{sT2}, s{sT}"),
          I(f"v_lshlrev_b32 v{vL16}, 4, v{ln}"), I(f"v_and_b32 v{TMP}, 32, v{ln}"), I(f"v_lshl_add_u32 v{TMP}, v{TMP}, 4, v{vL16}"),
          I(f"buffer_load_dwordx4 {vr(144)}, v{TMP}, {sr(sX)}, s{sT2} offen"),
          I(f"buffer_load_dwordx4 {vr(148)}, v{TMP}, {sr(sX)}, s{sT2} offen offset:512")]
    g = c_dma(1); P += g[0] + g[1]
    if flag('early'):
        g = c_dma(2); P += w_dma(1) + g[0] + g[1] + w_dma(2) + w_dma(4)
    for s_, size in ((sWS, WS_SIZE), (sWQ, 4*MB), (sW1, 512*3584), (sB1, 3584), (sWO, 4*MB), (sW2, 1792*1024), (sB2, 1024), (sOUT, 2*MB)):
        P += [I(f"s_mov_b32 s{s_+2}, {size:#x}"), I(f"s_mov_b32 s{s_+3}, 0x20000")]
    P += [I(f"s_lshr_b32 s{sT}, s2, 3"), I(f"s_lshl_b32 s{sT}, s{sT}, 2"), I(f"s_add_u32 s97, s{sT}, s{sWave}"),
          I(f"v_lshlrev_b32 v169, 7, v{ln}"), I(f"s_lshl_b32 s{sT}, s97, 13"), I(f"s_and_b32 s{sT2}, s2, 1"), I(f"s_lshl_b32 s{sT2}, s{sT2}, 20"),
          I(f"s_add_u32 s{sT}, s{sT}, s{sT2}"),
          *([I(f"s_mov_b32 s{sSt}, s{sT}")] if not flag('early') else [pf_load(vJ, 169, sC, f"s{sT}")]),
          I("s_getpc_b64 s[6:7]"), I("F_pc:"),
          I(f"s_lshl_b32 s{sT}, s97, 12"), I(f"v_lshlrev_b32 v{TMP+2}, 6, v{ln}"), I(f"v_add_u32 v{TMP+2}, s{sT}, v{TMP+2}"),
          I(f"v_min_u32 v{TMP+2}, F_RA0-F_pc, v{TMP+2}")]
    P.append(I(f"v_mov_b32 v168, v{TMP+2}"))
    cl = I(f"global_load_dword v{vJ}, v168, s[6:7]"); cl.wr = set()
    LATE = []
    if not flag('early'):
        g = c_dma(2)
        global LATEQ
        LATEQ = [g[0], g[1], w_dma(1)] + ([] if not flag('cpf') else [[pf_load(vJ, 169, sC, f"s{sSt}")]]) + [w_dma(2), w_dma(4)]
        global CODEPF
        CODEPF = cl
        if val('gcode', 14) < 0: LATEQ.append([cl])
        k = val('nlate', 2)
        LATE = sum(LATEQ[:k], []); LATEQ = LATEQ[k:]
    else: P.append(cl)
    if flag('tlb'):
        P += [I(f"v_lshl_add_u32 v{TMP+2}, s97, 6, v{ln}"), I(f"v_mul_u32_u24 v{TMP+2}, {TS}, v{TMP+2}"), I(f"s_mov_b32 s{sT}, 16384"),
              pf_load(vJ, TMP+2, sWS, f"s{sT}")]
    P += [I(f"s_lshr_b32 s{sT}, s{sI}, 1"), I(f"s_lshl_b32 s{sT}, s{sT}, 2"), I(f"s_add_u32 s{sT}, s{sT}, s{sHl}"),
          I(f"s_lshl_b32 s{sT}, s{sT}, 2"), I(f"s_add_u32 s{sT}, s{sT}, s{sWave}"), I(f"s_lshl_b32 s{sT}, s{sT}, 16"),
          I(f"s_lshr_b32 s{sT2}, s{sXcd}, 1"), I(f"s_lshl_b32 s{sT2}, s{sT2}, 11"), I(f"s_add_u32 s{sWpf}, s{sT}, s{sT2}"),
          I(f"v_lshrrev_b32 v{vBo}, 4, v{ln}"), I(f"v_and_b32 v{TMP}, 15, v{ln}"),
          I(f"v_lshlrev_b32 v170, 13, v{vBo}"), I(f"v_lshl_add_u32 v170, v{TMP}, 7, v170"),
          I(f"v_lshlrev_b32 v{vBo}, 3, v{vBo}")]
    nyoung = sum(1 for x in P[nv0:] if x.kind in ('dma', 'vld', 'vst', 'vmisc'))
    P += [I(f"s_cmp_eq_u32 s{sT3}, 0"), I("s_cbranch_scc0 F_noep"),
          I(f"s_mov_b32 s{sT}, {FE:#x}"), I(f"s_waitcnt vmcnt({nyoung})", tag=('novm',)),
          I(f"v_add_u32 v{vFt}, 16, v{vFt}"), I(f"v_max_u32 v{vFt}, 1, v{vFt}"),
          I(f"buffer_store_dword v{vFt}, v{vZero}, {sr(sDBG)}, 0 offen {ST}", tag=('novm',)),
          I(f"buffer_store_dword v{vFt}, v{vZero}, {sr(sWS)}, s{sT} offen {ST}", tag=('novm',)),
          I("F_noep:")]
    P += [I(f"s_lshl_b32 s{sF0me}, s2, 7"), I(f"s_add_u32 s{sF0me}, s{sF0me}, {F0:#x}"),
          I(f"s_lshl_b32 s{sF1me}, s3, 3"), I(f"s_add_u32 s{sF1me}, s{sF1me}, s{sRb}"), I(f"s_lshl_b32 s{sF1me}, s{sF1me}, 1"),
          I(f"s_add_u32 s{sF1me}, s{sF1me}, s{sType}"), I(f"s_lshl_b32 s{sF1me}, s{sF1me}, 7"), I(f"s_add_u32 s{sF1me}, s{sF1me}, {F1:#x}"),
          ]
    P += [I(f"s_lshl_b32 s{sW1024}, s{sWave}, 10"),
          I(f"s_mov_b32 s{sScale}, {f32(QSCALE)}"), I(f"s_mov_b32 s{sGC0}, {f32(GC0)}"),
          I(f"s_lshl_b32 s{sOb}, s3, 6"), I(f"s_lshl_b32 s{sT}, s{sRb}, 2"), I(f"s_add_u32 s{sOb}, s{sOb}, s{sT}"),
          I(f"s_add_u32 s{sOb}, s{sOb}, s{sWave}"), I(f"s_mul_i32 s{sOb}, s{sOb}, {TS}"),
          I(f"s_mul_i32 s{sT}, s{sType}, {WS_V:#x}"), I(f"s_add_u32 s{sOb}, s{sOb}, s{sT}"),
          I(f"s_mov_b32 s{sKt}, 0"), I(f"s_mov_b32 s{sVt}, 0"), I(f"s_mov_b32 s{sKm}, s{sW4096}"), I(f"s_mov_b32 s{sVm}, s{sW4096}"),
          I(f"s_lshr_b32 s{sXrow}, s2, 1"), I(f"s_mul_i32 s{sXrow}, s{sXrow}, {XS}"), I(f"s_and_b32 s{sT}, s2, 1"), I(f"s_lshl_b32 s{sT}, s{sT}, 7"),
          I(f"s_add_u32 s{sXrow}, s{sXrow}, s{sT}"), I(f"s_add_u32 s{sXrow}, s{sXrow}, s{sW4096}"), I(f"s_add_u32 s{sXrow}, s{sXrow}, {WS_XN:#x}")]
    P += [I(f"v_and_b32 v{TMP}, 31, v{ln}"), I(f"v_lshrrev_b32 v{TMP+1}, 5, v{ln}"),
          I(f"v_lshlrev_b32 v152, 7, v{TMP}"), I(f"v_lshl_add_u32 v152, v{TMP+1}, 4, v152"),
          I(f"v_lshl_add_u32 v152, s{sWave}, 5, v152"), I(f"v_add_u32 v152, 90112, v152"),
          I(f"v_lshl_add_u32 v157, s{sWave}, 11, v{vL16}"), I(f"v_add_u32 v157, 90112, v157"),
          I(f"v_lshlrev_b32 v158, 10, v{TMP+1}"), I(f"v_bfe_u32 v{TMP}, v{ln}, 3, 2"), I(f"v_lshl_add_u32 v158, v{TMP}, 8, v158"),
          I(f"v_and_b32 v{TMP}, 7, v{ln}"), I(f"v_lshl_add_u32 v158, v{TMP}, 4, v158")]
    P += [I(f"v_and_b32 v{TMP}, 15, v{ln}"), I(f"v_bfe_u32 v{TMP+1}, v{ln}, 2, 1"), I(f"v_bfe_u32 v{TMP+2}, v{ln}, 3, 1"),
          I(f"v_xor_b32 v{TMP+1}, v{TMP+1}, v{TMP+2}"), I(f"v_mul_u32_u24 v{TMP+1}, 12, v{TMP+1}"),
          I(f"v_mul_lo_u32 v{TMP+1}, v{TMP+1}, s{sType}"), I(f"v_xor_b32 v{TMP}, v{TMP}, v{TMP+1}"),
          I(f"v_lshrrev_b32 v{TMP+1}, 1, v{TMP}"), I(f"v_lshrrev_b32 v{TMP+2}, 4, v{ln}"), I(f"v_xor_b32 v{TMP+1}, v{TMP+1}, v{TMP+2}"),
          I(f"v_lshlrev_b32 v{TMP}, 7, v{TMP}"), I(f"v_add_u32 v{TMP}, s{sM0c}, v{TMP}"),
          I(f"v_lshl_add_u32 v{vCr}, v{TMP+1}, 4, v{TMP}"), I(f"v_xor_b32 v{TMP+1}, 4, v{TMP+1}"),
          I(f"v_lshl_add_u32 v{vCr+1}, v{TMP+1}, 4, v{TMP}"),
          I(f"v_add_u32 v{vXo2}, {XS}, v{vL16}"), I(f"v_mov_b32 v{vGC1}, {f32(GC1)}"), *LATE,
          I(f"s_cmp_eq_u32 s{sType}, 0"), I("s_cbranch_scc0 F_V")]
    return P

def role():
    sT, sT2 = sSt, sT3; ln = 252
    P = [I(f"s_and_b32 s{sXcd}, s2, 7"), I(f"s_lshr_b32 s{sI}, s2, 5"), I(f"s_bfe_u32 s{sHl}, s2, 0x20003"),
         I(f"s_lshr_b32 s97, s2, 3"), I(f"s_lshl_b32 s97, s97, 2"), I(f"s_add_u32 s97, s97, s{sWave}"),
         I(f"v_lshrrev_b32 v{ln}, 4, v{vL16}"),
          I(f"s_lshl_b32 s3, s{sXcd}, 2"), I(f"s_add_u32 s3, s3, s{sHl}"),
          I(f"s_lshl_b32 s4, s{sHl}, 1"), I("s_min_u32 s4, s4, 5"), I(f"s_mul_i32 s{sT}, s{sXcd}, 7"), I(f"s_add_u32 s4, s4, s{sT}"),
          I(f"s_lshl_b32 s{sXL}, s{sI}, 3"), I(f"s_lshl_b32 s{sT}, s{sWave}, 1"), I(f"s_add_u32 s{sXL}, s{sXL}, s{sT}"),
          I(f"s_sub_u32 s{sXH}, 15, s{sI}"), I(f"s_lshl_b32 s{sXH}, s{sXH}, 3"), I(f"s_add_u32 s{sXH}, s{sXH}, s{sT}")]
    for d, q in ((sHL, sXL), (sHH, sXH)):
        P += [I(f"s_mul_i32 s{d}, s{q}, 56"), I(f"s_add_u32 s{d}, s{d}, s4"), I(f"s_lshl_b32 s{d}, s{d}, 10"), I(f"s_add_u32 s{d}, s{d}, {WS_H:#x}")]
    P += [I(f"s_lshl_b32 s{sT}, s3, 12"), I(f"s_add_u32 s{sT}, s{sT}, {WS_CTX:#x}")]
    for d, q in ((sCL, sXL), (sCH, sXH)):
        P += [I(f"s_lshl_b32 s{d}, s{q}, 17"), I(f"s_add_u32 s{d}, s{d}, s{sT}"),
              I(f"s_mul_i32 s{q}, s{q}, {XS}"), I(f"s_add_u32 s{q}, s{q}, {WS_XN:#x}")]
    P += [I(f"s_lshl_b32 s{sQo}, s{sWave}, 18"), I(f"s_lshl_b32 s{sT}, s3, 8"), I(f"s_add_u32 s{sQo}, s{sQo}, s{sT}"),
          I(f"s_lshl_b32 s{sB1o}, s4, 6"), I(f"s_mul_i32 s{s1o}, s{sWave}, {32*3584}"), I(f"s_add_u32 s{s1o}, s{s1o}, s{sB1o}"),
          I(f"s_mul_i32 s{sT}, s3, {32*TS}"),
          [I(f"s_add_u32 s{sKS}, s{sWS}, s{sT}"), I(f"s_addc_u32 s{sKS+1}, s{sWS+1}, 0")],
          [I(f"s_add_u32 s{sVS}, s{sKS}, {WS_V:#x}"), I(f"s_addc_u32 s{sVS+1}, s{sKS+1}, 0")],
          I(f"s_sub_u32 s{sT}, 16, s{sI}"), I(f"s_mul_i32 s{sKS+2}, s{sT}, {2*TS}"), I(f"s_mov_b32 s{sVS+2}, s{sKS+2}"),
          I(f"s_mov_b32 s{sKS+3}, 0x20000"), I(f"s_mov_b32 s{sVS+3}, 0x20000"),
          ]
    P += [
          I(f"s_lshl_b32 s{sFlagMe}, s{sI}, 3"), I(f"s_add_u32 s{sFlagMe}, s{sFlagMe}, s{sXcd}"), I(f"s_lshl_b32 s{sFlagMe}, s{sFlagMe}, 2"),
          I(f"s_add_u32 s{sFlagMe}, s{sFlagMe}, s{sWave}"), I(f"s_lshl_b32 s{sFlagMe}, s{sFlagMe}, 2"), I(f"s_add_u32 s{sFlagMe}, s{sFlagMe}, s{sHl}"),
          I(f"s_lshl_b32 s{sFlagMe}, s{sFlagMe}, 7"), I(f"s_add_u32 s{sFlagMe}, s{sFlagMe}, {F2:#x}"),
          I(f"v_bfe_u32 v253, v{ln}, 2, 1"), I(f"s_lshl_b32 s{sT}, s{sI}, 12"), I(f"s_sub_u32 s{sT}, {15*2048}, s{sT}"),
          I(f"v_mul_lo_u32 v{vP0}, v253, s{sT}"), I(f"v_and_b32 v253, 3, v{ln}"), I(f"v_lshl_add_u32 v{vP0}, v253, 7, v{vP0}"),
          I(f"s_lshl_b32 s{sT}, s{sI}, 11"), I(f"s_lshl_b32 s{sT2}, s{sWave}, 9"), I(f"s_add_u32 s{sT}, s{sT}, s{sT2}"),
          I(f"s_add_u32 s{sT}, s{sT}, {F0:#x}"), I(f"v_add_u32 v{vP0}, s{sT}, v{vP0}"),
          I(f"s_lshl_b32 s{sT}, s{sXcd}, 1"), I(f"s_lshr_b32 s{sT2}, s{sHl}, 1"), I(f"s_add_u32 s{sT}, s{sT}, s{sT2}"),
          I(f"s_lshl_b32 s{sT}, s{sT}, 11"), I(f"s_add_u32 s0, s{sT}, {F1:#x}"),
          I(f"v_and_b32 v253, 1, v{ln}"), I(f"v_lshlrev_b32 v{vF1}, 7, v253")]
    return P

def ln_stream():
    XR = 144; U = 128; S = 153; T2 = 154; MB_ = 155; RS = 156
    P = []
    for k in range(8): P += [I(f"v_lshlrev_b32 v{U+2*k}, 16, v{XR+k}"), I(f"v_and_b32 v{U+2*k+1}, 0xffff0000, v{XR+k}")]
    P += [I(f"v_add_f32 v{S}, v{U}, v{U+1}")] + [I(f"v_add_f32 v{S}, v{S}, v{U+k}") for k in range(2, 16)]
    P += sum32(S, T2) + [I(f"v_mul_f32 v{S}, {f32(1/512)}, v{S}")] + bf16_round(MB_, S)
    P += [I(f"v_sub_f32 v{T2}, v{U}, v{S}"), I(f"v_mul_f32 v{RS}, v{T2}, v{T2}")]
    for k in range(1, 16): P += [I(f"v_sub_f32 v{T2}, v{U+k}, v{S}"), I(f"v_fmac_f32 v{RS}, v{T2}, v{T2}")]
    P += sum32(RS, T2) + [I(f"v_mul_f32 v{RS}, {f32(1/512)}, v{RS}")] + bf16_round(RS, RS)
    P += [I(f"v_add_f32 v{RS}, {f32(1e-5)}, v{RS}")] + bf16_round(RS, RS) + [I(f"v_sqrt_f32 v{RS}, v{RS}")] + bf16_round(RS, RS)
    P += [I(f"v_rcp_f32 v{RS}, v{RS}")]
    for k in range(8):
        a, b = U+2*k, U+2*k+1
        P += [I(f"v_sub_f32 v{a}, v{a}, v{MB_}"), I(f"v_sub_f32 v{b}, v{b}, v{MB_}"), I(f"v_cvt_pk_bf16_f32 v{T2}, v{a}, v{b}"),
              I(f"v_lshlrev_b32 v{a}, 16, v{T2}"), I(f"v_and_b32 v{b}, 0xffff0000, v{T2}"),
              I(f"v_mul_f32 v{a}, v{a}, v{RS}"), I(f"v_mul_f32 v{b}, v{b}, v{RS}"), I(f"v_cvt_pk_bf16_f32 v{XR+k}, v{a}, v{b}")]
    return P
def xn_out():
    XR = 144
    return ([I(f"ds_write_b128 v152, {vr(XR)}"), I(f"ds_write_b128 v152, {vr(XR+4)} offset:4096")],
            [I(f"ds_read_b128 {vr(160)}, v157"), I(f"ds_read_b128 {vr(164)}, v157 offset:1024")],
            [I(f"buffer_store_dwordx4 {vr(160)}, v158, {sr(sWS)}, s{sXrow} offen {ST}", tag=('vm', 'xnst')),
             I(f"buffer_store_dwordx4 {vr(164)}, v158, {sr(sWS)}, s{sXrow} offen offset:2048 {ST}", tag=('vm', 'xnst'))])

def pack_swap(T, X, Y):
    return [I(f"v_cvt_pk_bf16_f32 v{T}, v{X}, v{X+1}"), I(f"v_cvt_pk_bf16_f32 v{T+2}, v{Y}, v{Y+1}"),
            I(f"v_cvt_pk_bf16_f32 v{T+1}, v{X+2}, v{X+3}"), I(f"v_cvt_pk_bf16_f32 v{T+3}, v{Y+2}, v{Y+3}")], \
           [I(f"v_permlane16_swap_b32 v{T}, v{T+2}"), I(f"v_permlane16_swap_b32 v{T+1}, v{T+3}")]

def kv_epilogue(cp, isV):
    acc = ACCB[cp]; out = []
    for k, f in enumerate([7, 5, 0, 1, 2, 3, 4, 6]):
        V = []
        if isV:
            kb, dbl = divmod(f, 2)
            X = acc + ((2*dbl)*4 + kb)*4; Y = X + 16
            soff = (cp//2)*32*TS + kb*4096; ioff = (2*(cp % 2) + dbl)*1024
        else:
            kb32, c = divmod(f, 4)
            X = acc + (c*4 + 2*kb32)*4; Y = X + 4
            soff = (cp//2)*32*TS + kb32*8192 + (cp % 2)*4096; ioff = c*1024
        T = PK + (k % 2)*4
        if not isV: V += [I(f"v_mul_f32 v{r}, s{sScale}, v{r}") for r in list(range(X, X+4)) + list(range(Y, Y+4))]
        else: V += [I("", tag=('pad',)) for r in range(8)]
        a, b = pack_swap(T, X, Y)
        V += a + [I(f"s_add_u32 s{sSt}, s{sOb}, {soff}")] + b
        V += [I(f"buffer_store_dwordx4 {vr(T)}, v{vL16}, {sr(sWS)}, s{sSt} offen offset:{ioff} {'' if flag('kvplain') else ST}", tag=('vm', 'kvst'))]
        if flag('nokvst'): V.pop()
        out.append(V)
    return out

def gelu_stream():
    P = []
    for b in range(4):
        for fs in range(2):
            T = GP[(b*2 + fs) % 2]
            for half in range(2):
                X = ACCB[4] + ((2*fs + half)*4 + b)*4
                regs = list(range(X, X+4)); tt = list(range(GT, GT + 4))
                P += [I(f"v_mul_f32 v{t}, v{r}, v{r}") for t, r in zip(tt, regs)]
                P += [I(f"v_fma_f32 v{t}, v{t}, v{vGC1}, s{sGC0}") for t in tt]
                P += [I(f"v_mul_f32 v{t}, v{t}, v{r}") for t, r in zip(tt, regs)]
                P += [I(f"v_exp_f32 v{t}, v{t}") for t in tt]
                P += [I(f"v_add_f32 v{t}, 1.0, v{t}") for t in tt]
                P += [I(f"v_rcp_f32 v{t}, v{t}") for t in tt]
                P += [I(f"v_mul_f32 v{t}, v{t}, v{r}") for t, r in zip(tt, regs)]
                P += [I(f"v_cvt_pk_bf16_f32 v{T+2*half+j}, v{tt[2*j]}, v{tt[2*j+1]}") for j in range(2)]
            P += [I(f"s_add_u32 s{sSt}, s{sHL if b < 2 else sHH}, {(b % 2)*56*1024}"),
                  I(f"buffer_store_dwordx4 {vr(T)}, v{vL16}, {sr(sWS)}, s{sSt} offen offset:{fs*1024} {ST}")]
    return P
def bias_stream():
    A = ACCB[4]; R = A + 56
    ld = [I(f"buffer_load_dwordx2 v[{R+2*c}:{R+2*c+1}], v{vBo}, {sr(sB1)}, s{sB1o} offen offset:{32*c}") for c in range(4)]
    un = []
    for c in range(4):
        for kb in ([0, 1, 2, 3] if c < 3 else [0]):
            d = A + (c*4 + kb)*4
            for k in range(2): un += [I(f"v_lshlrev_b32 v{d+2*k}, 16, v{R+2*c+k}"), I(f"v_and_b32 v{d+2*k+1}, 0xffff0000, v{R+2*c+k}")]
    un += [I(f"v_mov_b32 v{A+48+4*kb+j}, v{A+48+j}") for kb in (1, 2, 3) for j in range(4)]
    return ld, un

def qconv(cp, qb, c):
    X = ACCB[cp] + (c*4 + 2*qb)*4; T = GP[c % 2]
    a, b = pack_swap(T, X, X + 4)
    return a + b + [I(f"v_accvgpr_write_b32 a{QF(qb, 4*(cp-5) + c)+j}, v{T+j}") for j in range(4)]

def engine(isV):
    NF = 448
    grp = [(cp, ks, c) for cp, ks in ORDER for c in range(4)]
    def c_reads(ch):
        return [I(f"ds_read_b128 {ar(XF(kb, 2*ch + ks2))}, v{vCr+ks2} offset:{(ch % 3)*8192 + kb*2048}") for ks2 in range(2) for kb in range(4)]
    def w_reads(n):
        cp, ks, c = grp[n]; r = WF + (n % NWF)*4; va = vWtrS[cp % 2] + c; off = (ks % 4)*4096
        return [I(f"ds_read_b64_tr_b16 {vr(r,2)}, v{va} offset:{off}"), I(f"ds_read_b64_tr_b16 {vr(r+2,2)}, v{va} offset:{off+1024}")]
    head = stamp(1) + [needvm('c0')] + c_reads(0) + [needvm('w0'), I("s_barrier")] + stamp(2)
    for n in range(PF): head += w_reads(n)
    mf = []; post = {}; valu = []; dmaq = []
    def addpost(g, items): post.setdefault(g, []).extend(items)
    def add(mg, items):
        for it in items: valu.append((mg, it))
    G = lambda n: 4*n
    for n, (cp, ks, c) in enumerate(grp):
        wf = vr(WF + (n % NWF)*4)
        for kb in range(4):
            d = vr(ACCB[cp] + (c*4 + kb)*4); cf = ar(XF(kb, ks))
            cin = d if (ks or cp == 4) else "0"
            mf.append(I(f"{M16} {d}, {cf}, {wf}, {cin}" if (isV and cp < 4) else f"{M16} {d}, {wf}, {cf}, {cin}"))
        if n + 1 < NF: addpost(G(n) + 3, [needlg(regs_in(vr(WF + ((n + 1) % NWF)*4)))])
    cur = {0: PLAN[0][1], 1: PLAN[4][1]}
    for u in sorted(FU, key=lambda u: FU[u]):
        st = (u // 4) % 2; delta = (PLAN[u][1] - cur[st])*16384; cur[st] = PLAN[u][1]
        if delta:
            g = G(FU[u] - PF)
            addpost(g - 3, [I(f"v_add_u32 v{vWtrS[st]+k}, {delta & 0xffffffff:#x}, v{vWtrS[st]+k}") for k in range(2)])
            addpost(g - 2, [I(f"v_add_u32 v{vWtrS[st]+k}, {delta & 0xffffffff:#x}, v{vWtrS[st]+k}") for k in range(2, 4)])
    bs0, bs1 = val('bs0', 124), val('bs1', 348)
    assert bs0 in BARS and bs1 in BARS
    for k, p in enumerate(BARS):
        if p < 0: continue
        names = [f'w{u}' for u in NEED if NEED[u] == p] + (['xnst'] if p == bs0 else []) + (['kvst'] if p == bs1 else [])
        addpost(G(p) - 1, ([I("s_waitcnt lgkmcnt(0)")] if p == 72 else []) + ([needvm(*names)] if names else []) + ([] if flag('nobar') else [I("s_barrier")]) + (stamp(20 + k) if flag('fine') else []))
        for u in sorted(PLAN, key=lambda u: FU[u]):
            if PLAN[u][0] == p and not (flag('nowd') and p > 60): dmaq.append((G(p) + 1, w_dma(u)))
    addpost(G(bs0) + 1, flag_put(vFt, vZero, sF0me, 1))
    addpost(G(bs1) + 1, flag_put(vFt, vZero, sF1me, 1))
    for n in range(NF - PF): addpost(G(n), w_reads(n + PF))
    for q in LATEQ: dmaq.append((0, q, 1))
    if val('gcode', 14) >= 0: dmaq.append((G(val('gcode', 14)), [CODEPF]))
    R = [None, 2, 10, 18, 26, 38, 50, 62]
    D = {3: val('d3', 5), 4: val('d4', 10), 5: val('d5', 18), 6: val('d6', 28), 7: val('d7', 41)}
    for ch in range(1, 8):
        addpost(G(R[ch]) + 1, [needvm(f'c{ch}')])
        rd = c_reads(ch)
        for k in range(4): addpost(G(R[ch]) + 2 + 4*k, rd[2*k:2*k+2])
    for ch, g in D.items():
        old = ch - 3
        assert old == 0 or g >= R[old] + 5
        regs = [r for x in c_reads(old) for r in x.wr]
        addpost(G(g) + 1, [needlg(regs)])
        for q in c_dma(ch): dmaq.append((G(g) + 1, q, 1 if ch < 5 else val('cstep', 3)))
    for ks in range(16):
        L = []
        if ks % 4 == 0: L += [I(f"s_add_u32 s{sXLc}, s{sXL}, {(ks//4)*4096}"), I(f"s_add_u32 s{sXHc}, s{sXH}, {(ks//4)*4096}")]
        L += [I(f"buffer_load_dwordx4 {ar(XF(b, ks))}, v{vXo2 if b % 2 else vL16}, {sr(sWS)}, s{sXHc if b >= 2 else sXLc} offen offset:{(ks % 4)*1024} {'' if flag('xnnosc') else LD}") for b in range(4)]
        if not flag('noxn'): dmaq.append((G(POS[(3, ks)] + 4) + 1, L))
    if not flag('pfwfull'):
        addpost(G(val('pfw', 53)) - 3, [I(f"v_lshrrev_b32 v170, 7, v{vL16}"), I(f"v_lshlrev_b32 v170, 13, v170")])
        addpost(G(val('pfw', 53)) - 2, [I(f"v_bfe_u32 v171, v{vL16}, 5, 2"), I(f"v_lshl_add_u32 v170, v171, 9, v170")])
        addpost(G(val('pfw', 53)) - 1, [I(f"v_bfe_u32 v171, v{vL16}, 4, 1"), I(f"v_lshl_add_u32 v170, v171, 7, v170")])
        dmaq.append((G(val('pfw', 53)), [pf_load(vJ, 170, sWkv, f"s{sWpf}", "offset:256")]))
    elif not flag('nopfw'):
        dmaq.append((G(val('pfw', 53)), [pf_load(vJ, 170, sWkv, f"s{sWpf}")]))
        dmaq.append((G(val('pfw2', 52)), [I(f"s_add_u32 s{sWpf}, s{sWpf}, 32768"), pf_load(vJ, 170, sWkv, f"s{sWpf}")]))
    dmaq.append((G(val('gep', 44)), [poll_issue(vPoll, vZero, sDBG, "0")]))
    addpost(G(110) + 2, epoch_check(vPoll, vZero, sT2))
    gs0 = val('gs0', 150)
    dmaq.append((G(gs0), [poll_issue(vPoll, vP0, sWS, "0")]))
    addpost(G(167) + 2, stamp(50) + poll_check(vPoll, vP0, sWS, "0", 1, sT2, sT3) + stamp(51))
    xw, xr, xs = xn_out()
    add(G(val('gln', 0)) + 2, ln_stream()); add(G(60), xw)
    addpost(G(72) + 2, xr)
    dmaq.append((G(val('gxs', 90)), xs))
    R = role()
    add(G(66), R)
    dmaq.append((G(121), [pf_load(vJ, vBo, sB1, f"s{sB1o}")]))
    bl, bu = bias_stream()
    sp = val('esp', 7)
    for cp, g, w in ((0, 98, sp), (1, 162, val('esp1', 5)), (2, 226, sp), (3, 286, 0)):
        for k, fr in enumerate(kv_epilogue(cp, isV)):
            if not flag('noepi'): add(G(g + k*w), fr)
            if cp == 1 and k == 1: add(0, bl)
        if cp == 1:
            add(G(206), bu)
            if flag('fine'):
                for k, g in enumerate((val('f0', 157), val('f1', 160), val('f2', 163), val('f3', 165))): addpost(G(g) + 3, stamp(44 + k))
    if not flag('nogelu'): add(G(322), gelu_stream())
    for qb in range(2):
        for c in range(4): add(G(384) + 16*(8*qb + c) + 18, qconv(5, qb, c))
    gs1 = val('gs1', 398)
    dmaq.append((G(gs1), [poll_issue(vPoll, vF1, sWS, "s0")]))
    addpost(G(gs1 + 14) + 1, stamp(48) + poll_check(vPoll, vF1, sWS, "s0", 1, sT2, sT3) + stamp(49) + [I(f"v_add_u32 v{vKVd}, s{sW4096}, v{vL16}")])
    assert all(SLOTFREE[sl] <= gs1 + 14 for sl in (0, 4, 1, 2, 5)), SLOTFREE
    assert min(PLAN[u][0] for u in PLAN if PLAN[u][1] == 5) >= 92
    for k, wh in enumerate("KVKKV"): dmaq.append((G(gs1 + 15 + 6*k), kv_dma(wh, f'kv{k}')))
    def warm(g, V, M):
        if V: addpost(G(g) + 1, V[:2])
        if V[2:]: addpost(G(g) + 2, V[2:])
        dmaq.append((G(g + 1), M))
    if flag('pfqs'):
        g0 = val('pfq', 76); dq = val('pfqd', 18)
        for k in range(4):
            warm(g0 + dq*k, [I(f"v_lshlrev_b32 v252, 2, v{vL16}")] if k == 0 else [],
                 [I(f"s_lshl_b32 s{sT}, s2, 14"), I(f"s_add_u32 s{sT}, s{sT}, {4096*k}"), I(f"s_cmp_eq_u32 s{sWave}, {k}"),
                  I(f"s_cselect_b32 s{sT}, s{sT}, 0x1000000"), pf_load(vJ, 252, sWQ, f"s{sT}")])
    elif flag('pfqc'):
        warm(val('pfq', 130), [I(f"v_lshlrev_b32 v252, 2, v{vL16}")],
             [I(f"s_lshl_b32 s{sT}, s2, 14"), I(f"s_add_u32 s{sT}, s{sT}, s{sW4096}"), pf_load(vJ, 252, sWQ, f"s{sT}")])
    elif not flag('nopfq'):
        warm(val('pfq', 130), [I(f"v_bfe_u32 v252, v{vL16}, 4, 4"), I(f"v_lshlrev_b32 v253, 10, v{vBo}"), I(f"v_lshl_add_u32 v252, v252, 6, v253")],
             [I(f"s_lshl_b32 s{sT}, s97, 15"), I(f"s_lshl_b32 s{sT2}, s{sXcd}, 10"), I(f"s_add_u32 s{sT}, s{sT}, s{sT2}"), pf_load(vJ, 252, sWQ, f"s{sT}")])
    if not flag('nopf1'):
        warm(val('pf1', 16), [I(f"v_lshlrev_b32 v253, 1, v{vL16}")],
             [I(f"s_mul_i32 s{sT}, s2, 7168"), I(f"s_mul_i32 s{sT2}, s{sWave}, 1792"), I(f"s_add_u32 s{sT}, s{sT}, s{sT2}"), pf_load(vJ, 253, sW1, f"s{sT}")])
    if flag('pfo_old'):
        warm(330, [I(f"v_lshlrev_b32 v252, 2, v{vL16}"), I(f"v_lshlrev_b32 v253, 1, v{vL16}")],
             [I(f"s_lshl_b32 s{sT}, s{sXcd}, 19"), I(f"s_lshl_b32 s{sT2}, s97, 12"), I(f"s_add_u32 s{sT}, s{sT}, s{sT2}"), pf_load(vJ, 252, sWO, f"s{sT}")])
        dmaq.append((G(334), [I(f"s_mul_i32 s{sT}, s{sXcd}, {224*1024}"), I(f"s_mul_i32 s{sT2}, s97, 1792"), I(f"s_add_u32 s{sT}, s{sT}, s{sT2}"), pf_load(vJ, 253, sW2, f"s{sT}")]))
    if not flag('nopf2'):
        V, M = code_pf("F_AAe", "F_Bend", 252, vJ, vL16, 0); warm(352, V, M)
        V, M = code_pf("F_AAe", "F_Bend", 253, vJ, vL16, 1); warm(368, V, M)
    if flag('pf4'):
        V, M = code_pf("F_J", "F_AAe", 252, vJ, vL16); warm(val('gpf4', 270), V, M)
        addpost(G(150) + 1, [I(f"F_mid{int(isV)}:")])
        V, M = code_pf(f"F_mid{int(isV)}", "F_J" if isV else "F_V", 252, vJ, vL16); warm(val('gpf5', 112), V, M)
    place_dma(dmaq, addpost, step=val('estep', 4), ok=lambda g: g % 4 in (1, 2))
    for k, p in enumerate((32, 96, 160, 224, 288, 320)): addpost(G(p) - 1, stamp(3 + k))
    def budget(g, p):
        n = sum(1 for x in p if x.txt or (x.tag and x.tag[0] != 'needvm'))
        if any(x.kind == 'dsr' for x in p): return 1 if n == 1 else 0
        nd = sum(1 for x in p if x.kind in ('dma', 'vld', 'vst'))
        return max(0, 2 - max(0, n - 1) - nd)
    body, left = weave(mf, post, valu, budget)
    if OPT.verbose: print(f"[engine] leftover valu {left}", file=sys.stderr)
    mi = 0; start = {cp: G(POS[(cp, 0)]) for cp in range(7)}; end = {cp: G(POS[(cp, 15)] + 4) for cp in range(7)}
    for x in body:
        if x.kind == 'mfma': mi += 1; continue
        if x.op == 'ds_write_b128': assert G(60) <= mi < G(72) - 1, mi
        if x is R[-1]: assert mi < G(120), mi
        for r in (x.rd | x.wr):
            if r[0] == 'v' and r != 'vcc' and int(r[1:]) < 192:
                q = int(r[1:])
                for cp in range(7):
                    if ACCB[cp] <= q < ACCB[cp] + 64:
                        blk = (q - ACCB[cp]) // 4
                        assert not (start[cp] + blk < mi <= end[cp] - 16 + blk), ("accumulator busy", cp, mi, x.txt)
    idx = [k for k, x in enumerate(body) if x.kind == 'mfma'][G(336)]
    return head + body[:idx], body[idx:]
```

```python
from f_common import *
import f_p1 as P1
from f_p1 import QF, kv_dma, sKt, sKm, sVt, sVm, sCL, sCH, vL16, vKVd, qconv

THRESH = 2.0**30
sCnt, sKey, sKr, sVr, sThr, sOffA, sOffB = range(74, 81)
sRet2 = 100
sRet = 82; MK = [84, 86, 88, 98]
sWoO, sW2o, sHLo, sHHo, sPo, sCc, sCc2 = 76, 3, 4, 5, 80, 81, 90
sFb = 97
sSib = [84, 85, 86]
sWoS = [87, 88, 89]
NEG = [128, 144]; T0 = 160
vK, vV, vL16V = 192, 193, 194
Lr = [[196, 197], [198, 199]]; vMx = [200, 201]; vF = [202, 203]; vThr, vNinf, vTm = 204, 205, 206
vPo, vF2, vF3, vZ, vFl = 207, 208, 209, 210, 211
vWtrA, vWtrB, vWd3, vC2, vH2 = 212, 216, 220, 221, 195
PKT = 226
OA = lambda qb, db: (qb*4 + db)*16
RING = 192
NPRE = 8

def blk_q(typ, blk): return (blk % 2) if typ == 'A' else 1
def qk_mfmas(typ, S):
    L = []
    if typ == 'A':
        for kb in range(2):
            for ks in range(8):
                for qb in range(2):
                    d = vr(S + (2*kb + qb)*16, 16)
                    L.append((d, kb*8 + ks, ar(QF(qb, ks)), d if ks else vr(NEG[qb], 16)))
    else:
        for kb in range(4):
            for ks in range(8):
                d = vr(S + kb*16, 16)
                L.append((d, kb*8 + ks, ar(QF(1, ks)), d if ks else vr(NEG[1], 16)))
    return L
def pv_mfmas(typ, S):
    L = []
    if typ == 'A':
        for ks4 in range(4):
            for db in range(4):
                for qb in range(2):
                    d = ar(OA(qb, db), 16)
                    L.append((d, ks4*4 + db, vr(S + (2*(ks4//2) + qb)*16 + 8*(ks4 % 2)), d))
    else:
        for ks8 in range(8):
            for db in range(4):
                d = ar(OA(1, db), 16)
                L.append((d, ks8*4 + db, vr(S + (ks8//2)*16 + 8*(ks8 % 2)), d))
    return L
def expblk(S, qb, first):
    lp = Lr[qb][1]
    E = []; C = []
    for j in range(8):
        a, b = S + 2*j, S + 2*j + 1
        E.append([I(f"v_exp_f32 v{a}, v{a}"), I(f"v_exp_f32 v{b}, v{b}")])
        cv = I(f"v_cvt_pk_bf16_f32 v{S + 8*(j//4) + j % 4}, v{a}, v{b}")
        if first and j == 0: C.append([I(f"v_add_f32 v{lp}, v{a}, v{b}"), cv])
        elif flag('tree'): C.append([I(f"v_add_f32 v{vMx[1]}, v{a}, v{b}"), cv, I(f"v_add_f32 v{lp}, v{lp}, v{vMx[1]}")])
        elif (S + 8*(j//4) + j % 4) in (a, b): C.append([I(f"v_add_f32 v{lp}, v{lp}, v{a}"), I(f"v_add_f32 v{lp}, v{lp}, v{b}"), cv])
        else: C.append([I(f"v_add_f32 v{lp}, v{lp}, v{a}"), cv, I(f"v_add_f32 v{lp}, v{lp}, v{b}")])
    L = []
    if flag('nodelay'):
        for j in range(8): L += E[j] + C[j]
    else:
        L += E[0]
        for j in range(8):
            if j + 1 < 8: L += E[j+1][:1] + C[j][:1] + E[j+1][1:] + C[j][1:]
            else: L += C[j]
    return L
def blk_first(typ, blk): return blk < 2 if typ == 'A' else blk == 0
def maxblk(S, mx, first):
    L = []; r = list(range(S, S + 16))
    if first: L.append(I(f"v_max3_f32 v{mx}, v{r[0]}, v{r[1]}, v{r[2]}")); r = r[3:]
    while len(r) >= 2: L.append(I(f"v_max3_f32 v{mx}, v{mx}, v{r[0]}, v{r[1]}")); r = r[2:]
    if r: L.append(I(f"v_max_f32 v{mx}, v{mx}, v{r[0]}"))
    return L
def maskblk(S, kbg, soff=None):
    L = []
    if soff is not None:
        L.append(I(f"v_add_u32 v{vTm}, s{soff}, v{vThr}"))
        if kbg: L.append(I(f"v_subrev_u32 v{vTm}, {32*kbg}, v{vTm}"))
        t = vTm
    elif kbg: L.append(I(f"v_subrev_u32 v{vTm}, {32*kbg}, v{vThr}")); t = vTm
    else: t = vThr
    for r0 in range(0, 16, 4):
        L += [I(f"v_cmp_le_i32 s[{MK[k]}:{MK[k]+1}], {8*((r0+k)//4) + (r0+k) % 4}, v{t}") for k in range(4)]
        L += [I(f"v_cndmask_b32 v{S+r0+k}, v{vNinf}, v{S+r0+k}, s[{MK[k]}:{MK[k]+1}]") for k in range(4)]
    return L
def xmax(v, t): return [I(f"v_mov_b32 v{t}, v{v}"), I(f"v_permlane32_swap_b32 v{v}, v{t}"), I(f"v_max_f32 v{v}, v{v}, v{t}")]
def kread(f, slot): return I(f"ds_read_b128 {ar(RING + (slot % 16)*4)}, v{vK} offset:{f*1024}")
def vread(f, slot): return I(f"ds_read_b128 {ar(RING + (slot % 16)*4)}, v{vV} offset:{f*1024}")
def kv_dma2(which):
    srd_, t, m = (sKS, sKt, sKm) if which == 'K' else (sVS, sVt, sVm)
    base = 0 if which == 'K' else 0x10000
    d = lambda so: [I(f"buffer_load_dwordx4 v{vKVd}, {sr(srd_)}, s{so} offen offset:{1024*b} {val('kvld', LD).replace('_', ' ')} lds") for b in range(4)]
    return [[I(f"s_add_u32 m0, s{m}, {base:#x}")] + d(t),
            [I(f"s_add_u32 m0, s{m}, {base + 0x4000:#x}"), I(f"s_add_u32 s{sT2}, s{t}, {TS}"),
             I(f"s_add_u32 s{t}, s{t}, {2*TS}"), I(f"s_xor_b32 s{m}, s{m}, 0x8000")] + d(sT2)]

uid = [0]
def step(cur, nxt, p, kadv, mask=None, xwait=16, name="", extra_dma=None, extra_valu=None, extra_post=None, extra_h1=None):
    uid[0] += 1; u = uid[0]
    Sc, Sn = 64*p, 64*(1 - p)
    mf = []; use = []
    qk = qk_mfmas(nxt, Sn) if nxt else []
    nK = (16 if nxt == 'A' else 32) if nxt else 0
    for d, f, q, cin in qk:
        mf.append(I(f"{M32} {d}, {ar(RING + (f % 16)*4)}, {q}, {cin}")); use.append(f)
    for d, f, pf, cin in pv_mfmas(cur, Sc):
        mf.append(I(f"{M32} {d}, {ar(RING + ((nK + f) % 16)*4)}, {pf}, {cin}")); use.append(nK + f)
    nV = 16 if cur == 'A' else 32
    NG = len(mf); fu = {}
    for g, f in enumerate(use): fu.setdefault(f, g)
    post = {}; dmaq = []
    def addpost(g, items): post.setdefault(g, []).extend(items)
    D = val('D', 8); BO = val('bo', 3)
    hasY = nxt is not None and (cur == 'B' or nxt == 'B')
    pre = []
    ring = lambda f: regs_in(ar(RING + (f % 16)*4))
    for f in range(0, nK + nV, 2):
        if fu[f] > 0: addpost(fu[f] - 1, [needlg(ring(f) + ring(f + 1))])
    last = -2
    for f in range(NPRE if nxt else 0, nK, 2):
        last = max(fu[f] - D, last + 1, 0)
        addpost(last, [kread(f, f), kread(f + 1, f + 1)])
    vadv = [I(f"v_add_u32 v{vV}, s{sVr}, v{vL16V}"),
            I(f"s_add_u32 s{sVr}, s{sVr}, {0x4000 if cur == 'A' else 0x8000}"), I(f"s_and_b32 s{sVr}, s{sVr}, 0xffff")]
    vf0 = 0
    if nxt is None:
        pre += vadv[:1] + [vread(f, nK + f) for f in range(8)]; vf0 = 8
    else:
        addpost(last + 1, vadv)
        if hasY:
            gY = last + BO
            addpost(gY, [I("s_waitcnt vmcnt(16) lgkmcnt(0)" if cur == 'B' else "s_waitcnt lgkmcnt(0)"), I("s_barrier")])
            last = gY
        else: last = last + 1
    for f in range(vf0, nV, 2):
        last = max(fu[nK + f] - D, last + 1, 0)
        addpost(last, [vread(f, nK + f), vread(f + 1, nK + f + 1)])
    gX = NG
    if nxt is not None:
        gX = last + BO
        addpost(gX - 1, [I(f"v_add_u32 v{vK}, s{sKr}, v{vL16}")] +
                ([I(f"s_add_u32 s{sKr}, s{sKr}, {kadv*0x4000}"), I(f"s_and_b32 s{sKr}, s{sKr}, 0xffff")] if kadv else []))
        addpost(gX, [I(f"s_waitcnt vmcnt({xwait}) lgkmcnt(0)"), I("s_barrier")])
        gs = [gX + 1, gX + 2, gX + 4, gX + 6] if gX + 6 < NG else [gX + 1, gX + 2, gX + 3, gX + 4]
        assert gs[-1] < NG, (name, gX, NG)
        for j in range(NPRE // 2): addpost(gs[j], [kread(2*j, 2*j), kread(2*j + 1, 2*j + 1)])
    dstep = 2
    if cur == 'A' and nxt == 'A': dmaq = [(1, kv_dma('K')), (1, kv_dma('V'))]; dstep = 3 if extra_dma else 4
    elif cur == 'A' and nxt == 'B': dmaq = [(1, kv_dma('K'))] + [(gY + 2, x) for x in kv_dma2('K')]
    elif cur == 'B' and nxt == 'B':
        dmaq = [(0, x) for x in kv_dma2('V')]
        if not mask: dmaq += [(gY + 3, x) for x in kv_dma2('K')]
    if extra_dma: dmaq += extra_dma
    for g, it in (extra_post or {}).items(): addpost(g, it)
    if dmaq:
        endg = place_dma(dmaq, addpost, step=dstep)
        assert endg - dstep < gX, (name, endg, gX)
        if hasY and cur == 'B': assert max(g for g, l in post.items() if any(x.kind == 'dma' and sr(sVS) in x.txt for x in l)) < gY
    valu = []
    def add(mg, items):
        for it in items: valu.append((mg, it))
    H1 = len(qk)
    for blk in (2, 3): add(0, expblk(Sc + 16*blk, blk_q(cur, blk), False))
    done = {}
    for g, (d, f, q, cin) in enumerate(qk): done[d] = g
    mdict = {m[0]: m for m in (mask or [])}
    def domask(blk):
        if blk in mdict: add(done[vr(Sn + 16*blk, 16)] + 3, maskblk(Sn + 16*blk, mdict[blk][1], mdict[blk][2]))
    domask(0); domask(1)
    add(0, extra_h1 or [])
    qbs = (0, 1) if cur == 'A' else (1,)
    if cur == 'A': add(0, [I(f"v_max_f32 v{vMx[0]}, v{Lr[0][1]}, v{Lr[1][1]}")])
    add(max(H1 - 1, 0), [I(f"v_cmp_lt_f32 vcc, s{sThr}, v{vMx[0] if cur == 'A' else Lr[1][1]}"),
            [I(f"s_cbranch_vccz F_c{u}"), I(f"s_call_b64 s[{sRet}:{sRet+1}], F_X{cur}{nxt or 'n'}{p}"), I(f"F_c{u}:")]])
    force = {H1: len(valu) - 1}
    add(0, [I(f"v_add_f32 v{Lr[q][0]}, v{Lr[q][0]}, v{Lr[q][1]}") for q in qbs])
    if nxt is not None:
        add(0, [I(f"s_add_u32 s{sKey}, s{sKey}, {64 if cur == 'A' else 128}")])
        add(0, expblk(Sn, blk_q(nxt, 0), True))
        domask(2); domask(3)
        add(done[vr(Sn + 16, 16)] + 3, expblk(Sn + 16, blk_q(nxt, 1), blk_first(nxt, 1)))
    add(0, extra_valu or [])
    def budget(g, pp):
        nd = sum(1 for x in pp if x.kind == 'dsr'); nm = sum(1 for x in pp if x.kind in ('dma', 'vld', 'vst'))
        return max(val('bud', 6) - max(0, len(pp) - 1) - (1 if nd else 0) - (val('dmac', 1) if nm else 0), 0)
    if flag('halfrd') and cur == 'B' and nxt == 'B':
        for g in post:
            rd = [x for x in post[g] if x.kind == 'dsr']
            if len(rd) == 2 and g < gX: post[g].remove(rd[1])
    if flag('noexp'):
        valu = [v for v in valu if isinstance(v[1], list) or v[1].op != 'v_exp_f32']
    if flag('nodma') and nxt:
        for g in post: post[g] = [x for x in post[g] if x.kind != 'dma']
    body, left = weave(mf, post, valu, budget, flush_dep=True, force=force if not flag('noexp') else None)
    tail = []
    if OPT.verbose: print(f"[step {name}] leftover valu {left}", file=sys.stderr)
    return pre + body + tail

def finalize(qb, sbase, inter=None, tag='cst'):
    l0, l1 = Lr[qb]; inter = list(inter or [])
    l1 = vTm
    L = [I(f"v_mov_b32 v{l1}, v{l0}"), I(f"v_permlane32_swap_b32 v{l0}, v{l1}"),
         I(f"v_add_f32 v{l0}, v{l0}, v{l1}"), I(f"v_rcp_f32 v{l0}, v{l0}"), I(f"s_add_u32 s{sFb}, s{sbase}, 0x20000")]
    for db in range(4):
        t = T0 + (db % 2)*16; A = PKT + (db % 2)*8; B = A + 4
        for r0 in range(0, 16, 4):
            L += [I(f"v_accvgpr_read_b32 v{t+r}, a{OA(qb, db)+r}") for r in range(r0, r0 + 4)]
            if inter: L += inter.pop(0)
        for r0 in range(0, 16, 4):
            L += [I(f"v_mul_f32 v{t+r}, v{t+r}, v{l0}") for r in range(r0, r0 + 4)]
            if inter: L += inter.pop(0)
        for pc, T in ((0, A), (1, B)):
            L += [I(f"v_cvt_pk_bf16_f32 v{T}, v{t+4*pc}, v{t+4*pc+1}"), I(f"v_cvt_pk_bf16_f32 v{T+1}, v{t+4*pc+2}, v{t+4*pc+3}"),
                  I(f"v_cvt_pk_bf16_f32 v{T+2}, v{t+8+4*pc}, v{t+8+4*pc+1}"), I(f"v_cvt_pk_bf16_f32 v{T+3}, v{t+8+4*pc+2}, v{t+8+4*pc+3}")]
        L += [I(f"v_permlane32_swap_b32 v{A+j}, v{B+j}") for j in range(4)]
        L += [I(f"v_permlane16_swap_b32 v{A+j}, v{B+j}") for j in range(4)]
        L += [I(f"buffer_store_dwordx4 {vr(A)}, v{vL16}, {sr(sWS)}, s{sbase} offen offset:{db*1024} {ST}", tag=('vm', tag)),
              I(f"buffer_store_dwordx4 {vr(B)}, v{vL16}, {sr(sWS)}, s{sFb} offen offset:{db*1024} {ST}", tag=('vm', tag))]
        L += [I(f"v_accvgpr_write_b32 a{16*db + 8*qb + j}, v{A+j}") for j in range(8)]
    for g in inter: L += g
    return L

def fin_parts(qb, sbase):
    l0 = Lr[qb][0]; l1 = vF[0]; t = T0; A = PKT; B = A + 4
    head = [I(f"v_mov_b32 v{l1}, v{l0}"), I(f"s_add_u32 s{sFb}, s{sbase}, 0x20000"), I(f"v_permlane32_swap_b32 v{l0}, v{l1}"),
            I(f"v_add_f32 v{l0}, v{l0}, v{l1}"), I(f"v_rcp_f32 v{l0}, v{l0}")]
    parts = []
    for db in range(4):
        p1 = [I(f"v_accvgpr_read_b32 v{t+r}, a{OA(qb, db)+r}") for r in range(16)] + [I(f"v_mul_f32 v{t+r}, v{t+r}, v{l0}") for r in range(16)]
        p2 = []
        for pc, T in ((0, A), (1, B)):
            p2 += [I(f"v_cvt_pk_bf16_f32 v{T}, v{t+4*pc}, v{t+4*pc+1}"), I(f"v_cvt_pk_bf16_f32 v{T+1}, v{t+4*pc+2}, v{t+4*pc+3}"),
                   I(f"v_cvt_pk_bf16_f32 v{T+2}, v{t+8+4*pc}, v{t+8+4*pc+1}"), I(f"v_cvt_pk_bf16_f32 v{T+3}, v{t+8+4*pc+2}, v{t+8+4*pc+3}")]
        p2 += [I(f"v_permlane32_swap_b32 v{A+j}, v{B+j}") for j in range(4)] + [I(f"v_permlane16_swap_b32 v{A+j}, v{B+j}") for j in range(4)]
        p2 += [I(f"buffer_store_dwordx4 {vr(A)}, v{vL16}, {sr(sWS)}, s{sbase} offen offset:{db*1024} {ST}"),
               I(f"buffer_store_dwordx4 {vr(B)}, v{vL16}, {sr(sWS)}, s{sFb} offen offset:{db*1024} {ST}")]
        p2 += [I(f"v_accvgpr_write_b32 a{16*db + 8*qb + j}, v{A+j}") for j in range(8)]
        parts.append((p1, p2))
    return head, parts

def rare_redo(typ, p):
    S = 64*p; T = T0 + 16
    L = [I(f"F_R{typ}{p}:"), I("s_nop 15"), I(f"s_mul_i32 s{sT3}, s{sKey}, {TS // 64}")]
    qk = qk_mfmas(typ, S)
    nf = 16 if typ == 'A' else 32
    for f0 in range(0, nf, 4):
        L += [I(f"s_add_u32 s{sOffA}, s{sT3}, {(f0 % 16)*1024 + (f0 // 16)*TS}")]
        L += [I(f"buffer_load_dwordx4 {vr(T + 4*k)}, v{vL16}, {sr(sKS)}, s{sOffA} offen offset:{1024*k} {LD}") for k in range(4)]
        L += [I("s_waitcnt vmcnt(0)")]
        L += [I(f"{M32} {d}, {vr(T + 4*(f - f0))}, {q}, {cin}") for d, f, q, cin in qk if f0 <= f < f0 + 4]
        L += [I("s_nop 7")]
    for qb in ((0, 1) if typ == 'A' else (1,)):
        blks = [b for b in range(4) if blk_q(typ, b) == qb]; m = vMx[qb]
        L += [I(f"s_lshl_b32 s{sOffA}, s{sI}, 7")] if qb == 0 else [I(f"s_sub_u32 s{sOffA}, 15, s{sI}"), I(f"s_lshl_b32 s{sOffA}, s{sOffA}, 7")]
        L += [I(f"s_sub_u32 s{sOffA}, s{sOffA}, s{sKey}")]
        for k, b in enumerate(blks): L += maskblk(S + 16*b, k, sOffA)
        for k, b in enumerate(blks): L += maxblk(S + 16*b, m, k == 0)
        L += xmax(m, vTm) + [I(f"v_max_f32 v{m}, 0, v{m}"), I(f"v_exp_f32 v{vF[qb]}, -v{m}")]
        for b in blks: L += [I(f"v_sub_f32 v{S+16*b+r}, v{S+16*b+r}, v{m}") for r in range(16)]
        L += [I(f"v_sub_f32 v{NEG[qb]+r}, v{NEG[qb]+r}, v{m}") for r in range(16)]
        L += [I(f"v_mul_f32 v{Lr[qb][0]}, v{Lr[qb][0]}, v{vF[qb]}")]
        for k, b in enumerate(blks): L += expblk(S + 16*b, qb, k == 0)
        for r0 in range(0, 64, 8):
            a = qb*64 + r0
            L += [I(f"v_accvgpr_read_b32 v{T+k}, a{a+k}") for k in range(8)]
            L += [I(f"v_mul_f32 v{T+k}, v{T+k}, v{vF[qb]}") for k in range(8)]
            L += [I(f"v_accvgpr_write_b32 a{a+k}, v{T+k}") for k in range(8)]
    L += [I("s_nop 1"), I(f"s_setpc_b64 s[{sRet2}:{sRet2+1}]")]
    return pad_hazards(L)[0]
def rare_stub(cur, nxt, p):
    L = [I(f"F_X{cur}{nxt or 'n'}{p}:"), I(f"s_call_b64 s[{sRet2}:{sRet2+1}], F_R{cur}{p}")]
    if nxt:
        S = 64*(1 - p)
        for b in range(4): L += [I(f"v_sub_f32 v{S+16*b+r}, v{S+16*b+r}, v{vMx[blk_q(nxt, b)]}") for r in range(16)]
    L += [I("s_nop 1"), I(f"s_setpc_b64 s[{sRet}:{sRet+1}]")]
    return pad_hazards(L)[0]

def first_tile():
    P = stamp(9) + [I("s_waitcnt lgkmcnt(0)"), needvm('kv0', 'kv1', 'kv2'), I("s_barrier"),
         I(f"v_mov_b32 v{vK}, v{vL16}")]
    P += [kread(f, f) for f in (0, 8, 1, 9, 2, 10, 3, 11)]
    mf = []; post = {}
    order = [(ks, kb) for ks in range(8) for kb in range(2)]
    for k, (ks, kb) in enumerate(order):
        f = kb*8 + ks
        for qb in range(2):
            d = vr((2*kb + qb)*16, 16)
            mf.append(I(f"{M32} {d}, {ar(RING + f*4)}, {ar(QF(qb, ks))}, {d if ks else 0}"))
        if k + 8 < 16:
            ks2, kb2 = order[k + 8]; post.setdefault(2*k, []).append(kread(kb2*8 + ks2, kb2*8 + ks2))
    P += [I(f"v_bfe_u32 v{vF3}, v{vL16}, 4, 4"), I(f"v_lshlrev_b32 v{vF3}, 7, v{vF3}")]
    dq = [(1, kv_dma('K')), (1, kv_dma('V')), (1, [poll_issue(vPo, vF3, sWS, "s0")])]
    place_dma(dq, lambda g, it: post.setdefault(g, []).extend(it), step=2)
    valu = []
    for c in range(4):
        for qb in range(2): valu += [(0, x) for x in qconv(6, qb, c)]
    ln = 248
    C = [I(f"v_add_u32 v{vL16V}, 0x10000, v{vL16}"), I(f"v_lshrrev_b32 v{ln}, 4, v{vL16}"),
         I(f"s_mov_b32 s{sKey}, 0"), I(f"s_mov_b32 s{sThr}, {f32(THRESH)}"),
         I(f"s_lshl_b32 s{sOffB}, s{sI}, 8"), I(f"s_sub_u32 s{sOffB}, {128*14}, s{sOffB}"),
         I(f"v_and_b32 v{ln+1}, 31, v{ln}"), I(f"v_lshrrev_b32 v{ln+2}, 5, v{ln}"),
         I(f"v_lshl_add_u32 v{vThr}, s{sWave}, 5, v{ln+1}"), I(f"v_lshlrev_b32 v{ln+2}, 2, v{ln+2}"), I(f"v_sub_u32 v{vThr}, v{vThr}, v{ln+2}"),
         I(f"v_mov_b32 v{vNinf}, 0xff800000"), I(f"s_mov_b32 s{sKr}, 0x8000"), I(f"s_mov_b32 s{sVr}, 0")]
    C += [I(f"v_mov_b32 v{r}, 0") for r in (196, 198, 244, 245, 246, 247)] + consts_early(ln)
    valu += [(22, x) for x in C]
    body, _ = weave(mf, post, valu, lambda g, p: 5 if len(p) < 2 else 3, flush_dep=True)
    P += body
    P += [I(f"v_add_u32 v{vK}, 0x4000, v{vL16}")]
    P += [kread(f, f) for f in range(NPRE)]
    if not flag('pfo_old'):
        P += [I(f"v_lshlrev_b32 v250, 2, v{vL16}"), I(f"v_lshlrev_b32 v251, 1, v{vL16}"),
              I(f"s_lshl_b32 s{sT}, s2, 14"), I(f"s_add_u32 s{sT}, s{sT}, s{sW4096}"), pf_load(252, 250, sWO, f"s{sT}"),
              I(f"s_mul_i32 s{sT}, s2, 7168"), I(f"s_mul_i32 s{sT2}, s{sWave}, 1792"), I(f"s_add_u32 s{sT}, s{sT}, s{sT2}"), pf_load(252, 251, sW2, f"s{sT}")]
    P += [I(f"s_cmp_lg_u32 s{sI}, 0"), I("s_cbranch_scc1 F_nomask"), I("s_nop 7")]
    for kb in range(2): P += maskblk(16*(2*kb), kb)
    P += [I("F_nomask:")]
    X = []
    for qb in range(2): X += maxblk(16*qb, vMx[qb], True) + maxblk(16*(2 + qb), vMx[qb], False)
    X += [I(f"v_mov_b32 v{vTm}, v{vMx[0]}"), I(f"v_mov_b32 v{vF[0]}, v{vMx[1]}"), I("s_nop 0"),
          I(f"v_permlane32_swap_b32 v{vMx[0]}, v{vTm}"), I(f"v_permlane32_swap_b32 v{vMx[1]}, v{vF[0]}"),
          I(f"v_max_f32 v{vMx[0]}, v{vMx[0]}, v{vTm}"), I(f"v_max_f32 v{vMx[1]}, v{vMx[1]}, v{vF[0]}")]
    for qb in range(2):
        X += [I(f"v_sub_f32 v{NEG[qb] + r}, 0, v{vMx[qb]}") for r in range(16)]
        for blk in (qb, 2 + qb): X += [I(f"v_sub_f32 v{16*blk + r}, v{16*blk + r}, v{vMx[qb]}") for r in range(16)]
    for blk in (0, 1): X += expblk(16*blk, blk, True)
    zm = [I(f"{M32} {ar(16*k, 16)}, v[244:247], v[244:247], 0") for k in range(8)]
    body, _ = weave(zm, {}, [(0, x) for x in X], lambda g, p: 7)
    P += body
    P += poll_check(vPo, vF3, sWS, "s0", 1, sT2, 63)
    P += stamp(10) + [I(f"s_sub_u32 s{sCnt}, s{sI}, 1"), I("s_cbranch_scc1 F_AAme")]
    return P

def w3_addr(s):
    if s < 4: return 131072 + 8192*s
    if s < 11: return 8192*(s - 4)
    return 57344 + 8192*(s - 11)
def bslot(s, b):
    if s < 2: return 32*s + 16*(b // 2) + 8 + 4*(b % 2)
    if s < 4: return 128 + 16*(s - 2) + 4*b
    if s < 7: return 160 + 16*(s - 4) + 4*b
    if s < 11: return 16*(s - 7) + 4*b
    k = 2*(s - 11) + (b % 2)
    if b < 2: return 208 + 4*k if k < 12 else 128 + 4*(k - 12)
    return 64 + 4*k if k < 16 else 176 + 4*(k - 16)
def w3_dma(s):
    gs = []
    if s < 7: srd_, so, off = sW2, sW2o, s*32768
    elif s < 11: srd_, so, off = sWO, sWoO, (s - 7)*32768
    else: srd_, so, off = sWO, sWoS[(s - 11)//4], ((s - 11) % 4)*32768
    for h in range(2):
        gs.append([I(f"s_add_u32 m0, s{sW1024}, {w3_addr(s) + h*4096}"), I(f"s_add_u32 s{sT}, s{so}, {off + h*128}"),
                   I(f"buffer_load_dwordx4 v{vWd3}, {sr(srd_)}, s{sT} offen lds", tag=('vm', f'x{s}'))])
    return gs
def h_loads(s):
    L = []
    if s % 4 == 0: L += [I(f"s_add_u32 s{sCc}, s{sHLo}, {(s//4)*4096}"), I(f"s_add_u32 s{sCc2}, s{sHHo}, {(s//4)*4096}")]
    return L + [I(f"buffer_load_dwordx4 {ar(bslot(s, b))}, v{vH2 if b % 2 else vL16}, {sr(sWS)}, s{sCc2 if b >= 2 else sCc} offen offset:{(s % 4)*1024} {LD}") for b in range(4)]
def sib_loads(s, hi):
    t = (s - 11) % 4; L = []
    if t == 0: L += [I(f"s_add_u32 s{sCc}, s{sCH if hi else sCL}, s{sSib[(s-11)//4]}")]
    return L + [I(f"buffer_load_dwordx4 {ar(bslot(s, 2*hi + b))}, v{vC2 if b else vL16}, {sr(sWS)}, s{sCc} offen offset:{t*1024} {LD}") for b in range(2)]
def flag_store(level): return [I(f"v_add_u32 v{vFl}, 1, v{vFl}"), I(f"buffer_store_dword v{vFl}, v{vZ}, {sr(sWS)}, s{sFlagMe} offen {ST}")]

def consts_early(ln):
    t = ln + 1; a, b = sCnt, sOffA
    return [I(f"v_mov_b32 v{vZ}, 0"), I(f"v_mov_b32 v{vFl}, s{sE}"),
            I(f"s_and_b32 s{a}, s{sFlagMe}, 0xfffffe00"),
            I(f"v_bfe_u32 v{t}, v{vL16}, 4, 2"), I(f"v_lshlrev_b32 v{t}, 7, v{t}"), I(f"v_add_u32 v{vF2}, s{a}, v{t}"),
            I(f"s_lshl_b32 s{a}, s{sWave}, 13"), I(f"s_lshl_b32 s{b}, s{sHl}, 8"), I(f"s_add_u32 s{a}, s{a}, s{b}"),
            I(f"s_mul_i32 s{sW2o}, s{sXcd}, {224*1024}"), I(f"s_add_u32 s{sW2o}, s{sW2o}, s{a}")] + \
           lane_wdma(vWd3, 1024, t, ln, natural=False, nblk=1)
def h_bases():
    L = [I(f"v_add_u32 v{vH2}, {56*1024}, v{vL16}"), I(f"s_mul_i32 s{sCc}, s{sXcd}, 7")]
    for d, c in ((sHLo, sCL), (sHHo, sCH)):
        L += [I(f"s_sub_u32 s{d}, s{c}, {WS_CTX:#x}"), I(f"s_lshr_b32 s{d}, s{d}, 17"), I(f"s_mul_i32 s{d}, s{d}, 56"),
              I(f"s_add_u32 s{d}, s{d}, s{sCc}"), I(f"s_lshl_b32 s{d}, s{d}, 10"), I(f"s_add_u32 s{d}, s{d}, {WS_H:#x}")]
    return L
def bbf_steps():
    head, parts = fin_parts(0, sCL)
    lds = {s: [x for x in h_loads(s) if x.kind != 'salu'] for s in range(4)}
    V, _ = code_pf("F_Bend", "F_RA0", 250, 252, vL16)
    sp = lambda L, g0: {g0 + 2*k: [x] for k, x in enumerate(L)}
    posts = [{}, {1: poll_check(vPo, vF2, sWS, "0", 1, sT3, 63), **sp(lds[2], 49)}, {**sp(lds[3], 19), **sp(lds[0], 49)}, sp(lds[1], 49)]
    pre = [head, V, [], []]
    out = []
    for k in range(4):
        out.append(step('B', 'B', k % 2, 2, name=f'BBf{k}', extra_h1=pre[k] + parts[k][0],
                        extra_valu=parts[k][1] + (h_bases() + [I(f"s_mov_b32 s{sCc}, s{sHLo}"), I(f"s_mov_b32 s{sCc2}, s{sHHo}")] if k == 0 else []),
                        extra_post=posts[k]))
    return out
def finl_block():
    L = h_bases()
    L += [I("s_waitcnt vmcnt(0)"), I("s_barrier")] + poll_check(vPo, vF2, sWS, "0", 1, sT2, 63)
    inter = []
    pre2 = [I(f"s_mov_b32 s{sCc}, s{sHLo}"), I(f"s_mov_b32 s{sCc2}, s{sHHo}")]
    lds = [x for s in (2, 3, 0, 1) for x in h_loads(s) if x.kind != 'salu']
    for k, x in enumerate(lds): inter += [[x], []] if k < 8 else [[x], []]
    inter = inter[:16] + [[lds[8]], [], [lds[9]], [], [lds[10]], [], [lds[11]], []] + [[], [lds[12]], [], [lds[13]], [], [], [], []] + [[lds[14]], [lds[15]]]
    V, M = code_pf("F_Bend", "F_RA0", 250, 252, vL16)
    if flag('nopf3'): V, M = [], []
    return L + pre2 + V + M + finalize(0, sCL, inter, tag='cs0')
def bend_pre():
    L = [I(f"s_lshl_b32 s{sT}, s{sWave}, 13"), I(f"s_lshl_b32 s{sT2}, s{sHl}, 8"), I(f"s_add_u32 s{sT3}, s{sT}, s{sT2}"),
         I(f"s_lshl_b32 s{sT}, s{sXcd}, 19"), I(f"s_add_u32 s{sT}, s{sT}, s{sT3}"),
         I(f"s_lshl_b32 s{sT2}, s{sHl}, 17"), I(f"s_add_u32 s{sWoO}, s{sT}, s{sT2}")]
    for k in range(3):
        L += [I(f"s_add_u32 s{sT2}, s{sHl}, {k+1}"), I(f"s_and_b32 s{sT2}, s{sT2}, 3"),
              I(f"s_lshl_b32 s{sWoS[k]}, s{sT2}, 17"), I(f"s_add_u32 s{sWoS[k]}, s{sWoS[k]}, s{sT}"),
              I(f"s_sub_u32 s{sT2}, s{sT2}, s{sHl}"), I(f"s_lshl_b32 s{sSib[k]}, s{sT2}, 12")]
    return L
def bend_valu():
    t = T0; ln = T0 + 4
    L = [I(f"v_lshrrev_b32 v{ln}, 4, v{vL16}")] + lane_wtr(vWtrB, 0, t, ln, natural=False)
    L += [I(f"v_add_u32 v{vWtrA+c}, 131072, v{vWtrB+c}") for c in range(4)]
    L += [I(f"v_add_u32 v{vC2}, 0x20000, v{vL16}"),
          I(f"s_lshr_b32 s{sT3}, s2, 3"), I(f"s_lshl_b32 s{sT3}, s{sT3}, 2"), I(f"s_lshr_b32 s{sPo}, s{sXcd}, 1"), I(f"s_add_u32 s{sPo}, s{sT3}, s{sPo}"),
          I(f"s_lshl_b32 s{sPo}, s{sPo}, 10"), I(f"s_add_u32 s{sPo}, s{sPo}, {F3:#x}"),
          I(f"v_and_b32 v{t}, 7, v{ln}"), I(f"v_lshlrev_b32 v{t}, 7, v{t}"), I(f"v_add_u32 v{vF3}, s{sPo}, v{t}"),
          I(f"s_add_u32 s{sT3}, s{sT3}, s{sWave}"), I(f"s_lshl_b32 s{sT3}, s{sT3}, 3"), I(f"s_add_u32 s{sT3}, s{sT3}, s{sXcd}"),
          I(f"s_lshl_b32 s{sT3}, s{sT3}, 7"), I(f"s_add_u32 s1, s{sT3}, {F3:#x}"),
          I(f"s_mov_b32 s{sPo}, s2"),
          I(f"s_mul_i32 s{sPo}, s{sPo}, {8*PD}"), I(f"s_mul_i32 s{sT3}, s{sWave}, {2*PD}"), I(f"s_add_u32 s{sPo}, s{sPo}, s{sT3}"),
          I(f"s_add_u32 s{sPo}, s{sPo}, {WS_P:#x}")]
    return L

def p3p4():
    RG = 128; NR = 8
    seq = [(s, c8, (0, 1, 2, 3)) for s in range(7) for c8 in range(8)]
    seq += [(s, c8, (0, 1, 2, 3)) for s in range(7, 11) for c8 in range(8)]
    seq += [(s, c8, (0, 1)) for s in range(11, 23) for c8 in range(8)] + [(s, c8, (2, 3)) for c8 in range(8) for s in range(11, 23)]
    NF = len(seq)
    g0s = []; g = 0
    for e in seq: g0s.append(g); g += len(e[2])
    NGP = g
    def w_reads(n):
        s, c8, _ = seq[n]; h, c = divmod(c8, 4); a = w3_addr(s) + h*4096; r = RG + (n % NR)*4
        if s < 4: va, off = vWtrA, a - 131072
        elif s < 11: va, off = vWtrB, a
        elif s < 19: va, off = vWtrB, a - 57344
        else: va, off = vWtrA, a - 122880
        return [I(f"ds_read_b64_tr_b16 {vr(r,2)}, v{va+c} offset:{off}"), I(f"ds_read_b64_tr_b16 {vr(r+2,2)}, v{va+c} offset:{off+2048}")]
    L = stamp(13) + [I("s_waitcnt lgkmcnt(0)"), needvm('x4', 'x5', 'x6'), I("s_barrier")] + stamp(14)
    rd_at = {}
    for m in range(NF):
        n = m
        while n > 0 and m - n < 6 and g0s[m] - g0s[n] < val('p3pf', 14): n -= 1
        rd_at[m] = n if (g0s[m] - g0s[n] >= val('p3pf', 14) or m - n == 6) else -1
    for m in range(NF):
        if rd_at[m] < 0: L += w_reads(m)
    mf = []; post = {}; dmaq = []; valu = []
    def addpost(g, items): post.setdefault(g, []).extend(items)
    first = set()
    firstread = {}
    for m in range(NF): firstread.setdefault(seq[m][0], m)
    bars = {7: range(7, 11), 11: range(11, 17), 17: range(17, 23)}
    for n, (s, c8, bs) in enumerate(seq):
        for b in bs:
            d = vr((c8*4 + b)*4)
            mf.append(I(f"{M16} {d}, {vr(RG + (n % NR)*4)}, {ar(bslot(s, b))}, {d if s else 0}"))
        if n + 1 < NF: addpost(g0s[n + 1] - 1, [needlg(regs_in(vr(RG + ((n + 1) % NR)*4)))])
    bargap = {}
    for sb, rng in bars.items():
        m = firstread[sb]; g = g0s[rd_at[m]] - 1; bargap[sb] = g
        addpost(g, [needvm(*[f'x{k}' for k in rng]), I("s_barrier")] + stamp({7: 54, 11: 57, 17: 58}[sb]))
    lastA = max(m for m in range(NF) if seq[m][0] < 4); lastB = max(m for m in range(NF) if seq[m][0] < 11)
    for k in range(4): addpost(g0s[rd_at[lastA]] + 1 + 4*k, [I(f"v_subrev_u32 v{vWtrA+k}, 8192, v{vWtrA+k}")])
    addpost(g0s[rd_at[lastB]] + 1, [I(f"v_add_u32 v{vWtrB+k}, 57344, v{vWtrB+k}") for k in range(2)])
    addpost(g0s[rd_at[lastB]] + 2, [I(f"v_add_u32 v{vWtrB+k}, 57344, v{vWtrB+k}") for k in range(2, 4)])
    for m in range(NF):
        if rd_at[m] >= 0: addpost(g0s[rd_at[m]], w_reads(m))
    rdg = set(g0s[rd_at[m]] for m in range(NF) if rd_at[m] >= 0)
    G = lambda grp: 4*grp
    for s in range(4, 7): dmaq.append((1, h_loads(s)))
    for s in range(11, 20):
        for g in w3_dma(s): dmaq.append((G(13) + 8*(s - 11), g))
    for s in range(20, 23):
        for g in w3_dma(s): dmaq.append((max(bargap[7] + 1, G(66)), g))
    g2, g3 = val('g2', 30), val('g3', 62)
    valu += [((33 if min(int(r[1:]) for r in x.wr) < 32 else 65) if x.op == 'v_accvgpr_write_b32' else 2, x) for x in finalize(1, sCH, tag='cs1')] + [(G(g3), [needvm('cs1')] + flag_store(3))]
    dmaq.append((G(g2), [poll_issue(vPo, vF2, sWS, "0")]))
    addpost(G(g2 + 12) + 1, stamp(55) + poll_check(vPo, vF2, sWS, "0", 2, sT2, 63) + stamp(56))
    for s in range(11, 23): dmaq.append((G(g2 + 12) + 2, sib_loads(s, 0)))
    g4 = val('g4', 80)
    dmaq.append((G(g4), [poll_issue(vPo, vF2, sWS, "0")]))
    addpost(G(g4 + 12) + 1, stamp(59) + poll_check(vPo, vF2, sWS, "0", 3, sT2, 63) + stamp(60))
    for s in range(11, 23): dmaq.append((G(g4 + 12) + 2, sib_loads(s, 1)))
    PKP = 160
    def piece(c8, pr, k):
        X = (c8*4 + 2*pr)*4; T = PKP + (k % 8)*4
        a, b = P1.pack_swap(T, X, X + 4)
        return a + [I(f"s_add_u32 s{sT3}, s{sPo}, {pr*PD + (c8//4)*4096}")] + b + \
            [I(f"buffer_store_dwordx4 {vr(T)}, v{vL16}, {sr(sWS)}, s{sT3} offen offset:{(c8 % 4)*1024} {ST}", tag=('vm', 'pst'))]
    hi0 = NF - 96
    ev = [(g0s[hi0] + 3, c8, 0) for c8 in range(8)] + [((g0s[hi0 + 12*(c8 + 1)] + 3) if c8 < 7 else NGP, c8, 1) for c8 in range(8)]
    order = sorted(range(16), key=lambda k: (ev[k][0] + (0 if ev[k][2] else 12*ev[k][1])))
    for k, e in enumerate(order): valu += [(ev[e][0], x) for x in piece(ev[e][1], ev[e][2], k)]
    XO = 226; vXa, vBa = 222, 223
    p4pre = [I(f"s_lshr_b32 s{sT}, s{sXcd}, 1"), I(f"s_lshl_b32 s{sT}, s{sT}, 5"),
             I(f"s_sub_u32 s{sT2}, 15, s{sI}"), I(f"s_bitcmp1_b32 s{sXcd}, 0"), I(f"s_cselect_b32 s{sT2}, s{sT2}, s{sI}"),
             I(f"s_lshl_b32 s{sT2}, s{sT2}, 7"), I(f"s_add_u32 s{sT}, s{sT}, s{sT2}"), I(f"s_lshl_b32 s74, s{sT}, 10"),
             I(f"s_lshl_b32 s75, s{sHl}, 8"), I(f"s_lshl_b32 s{sT}, s{sWave}, 6"), I(f"s_add_u32 s75, s75, s{sT}"), I(f"s_add_u32 s74, s74, s75"),
             I(f"v_bfe_u32 v{vXa}, v{vL16}, 4, 5"), I(f"v_lshlrev_b32 v{vXa}, 10, v{vXa}"),
             I(f"v_lshrrev_b32 v{vBa}, 9, v{vL16}"), I(f"v_lshlrev_b32 v{vBa}, 4, v{vBa}"), I(f"v_add_u32 v{vXa}, v{vXa}, v{vBa}")]
    gp = G(126)
    dmaq.append((gp, p4pre[:12] + [I(f"buffer_load_dwordx4 {vr(XO + 8*pc)}, v{vXa}, {sr(sX)}, s74 offen offset:{pc*32}") for pc in range(2)] +
                        [I(f"buffer_load_dwordx4 {vr(XO + 4 + 8*pc)}, v{vBa}, {sr(sB2)}, s75 offen offset:{pc*32}") for pc in range(2)]))
    for k, x in enumerate(p4pre[12:]): addpost(gp - 11 + 2*k, [x])
    if flag('p3nold'): dmaq = [d for d in dmaq if not any(x.kind == 'vld' and 'a[' in x.txt for x in d[1])]
    if flag('p3nodma'): dmaq = [d for d in dmaq if not any(x.kind == 'dma' for x in d[1])]
    if flag('p3nofin'): valu = [v for v in valu if isinstance(v[1], list) or v[0] > 100 or v[1].kind == 'vst']
    place_dma(dmaq, addpost, step=val('p3step', 4), ok=lambda g: g not in rdg and (g >= 352 or g % 4 in (1, 2)))
    def budget(g, p):
        if any(x.kind == 'dsr' for x in p): return 0
        n = sum(1 for x in p if x.txt or (x.tag and x.tag[0] != 'needvm'))
        nd = sum(1 for x in p if x.kind in ('dma', 'vld', 'vst'))
        return max(0, 2 - max(0, n - 1) - nd)
    body, left = weave(mf, post, valu, budget, flush_dep=lambda g: 224 <= g < 352)
    if OPT.verbose:
        mi = 0
        for x in body:
            if x.kind == 'mfma': mi += 1
            if x.tag and x.tag[0] == 'vm' and x.tag[1] in ('cs0', 'cs1', 'pst'): print(f"[p3] {x.tag[1]} store at gap {mi} (group {mi/4:.1f})", file=sys.stderr)
    L += body + stamp(15)
    L += [I(f"s_mov_b32 s{sFlagMe}, s1"), needvm('pst')] + flag_store(1)
    L += [I(f"s_lshr_b32 s{sT}, s2, 3"), I(f"s_mul_i32 s{sT}, s{sT}, {64*PD}"), I(f"s_mul_i32 s{sT2}, s{sXcd}, {PD}"), I(f"s_add_u32 s{sT}, s{sT}, s{sT2}"),
          I(f"s_lshl_b32 s{sT2}, s{sWave}, 11"), I(f"s_add_u32 s{sT}, s{sT}, s{sT2}"), I(f"s_add_u32 s{sT}, s{sT}, {WS_P:#x}"),
          poll_issue(vPo, vF3, sWS, "0")]
    for pc in range(2):
        A = 64 + 8*pc
        for j in range(4):
            L += [I(f"v_lshlrev_b32 v{A+2*j}, 16, v{XO+8*pc+j}"), I(f"v_and_b32 v{A+2*j+1}, 0xffff0000, v{XO+8*pc+j}"),
                  I(f"v_lshlrev_b32 v80, 16, v{XO+4+8*pc+j}"), I(f"v_and_b32 v81, 0xffff0000, v{XO+4+8*pc+j}"),
                  I(f"v_add_f32 v{A+2*j}, v{A+2*j}, v80"), I(f"v_add_f32 v{A+2*j+1}, v{A+2*j+1}, v81")]
    L += poll_check(vPo, vF3, sWS, "0", 1, sT2, 63) + stamp(16)
    for x in range(8):
        L += [I(f"buffer_load_dwordx4 {vr((pc*8 + x)*4)}, v{vL16}, {sr(sWS)}, s{sT} offen offset:{pc*1024} {LD}") for pc in range(2)]
        if x < 7: L += [I(f"s_add_u32 s{sT}, s{sT}, {8*PD:#x}")]
    for x in range(8):
        for pc in range(2):
            A = 64 + 8*pc; r = (pc*8 + x)*4
            for j in range(4):
                L += [I(f"v_lshlrev_b32 v80, 16, v{r+j}"), I(f"v_and_b32 v81, 0xffff0000, v{r+j}"),
                      I(f"v_add_f32 v{A+2*j}, v{A+2*j}, v80"), I(f"v_add_f32 v{A+2*j+1}, v{A+2*j+1}, v81")]
    for pc in range(2):
        A = 64 + 8*pc
        L += [I(f"v_cvt_pk_bf16_f32 v{84+4*pc+j}, v{A+2*j}, v{A+2*j+1}") for j in range(4)]
        if not flag('noout'): L += [I(f"buffer_store_dwordx4 {vr(84+4*pc)}, v{vXa}, {sr(sOUT)}, s74 offen offset:{pc*32} {val('outf', '').replace('_', ' ')}")]
    L += stamp_out(17) + [I("s_endpgm")]
    return L

def l2_warm(with_ctx):
    G = []
    if with_ctx: G.append([pf_load(214, 215, sWS, f"s{sCL}", LD)])
    G.append([I(f"s_add_u32 s{sT}, s{sHLo}, 3072"), pf_load(214, 216, sWS, f"s{sT}", LD)])
    G.append([I(f"s_add_u32 s{sT}, s{sHHo}, 3072"), pf_load(214, 216, sWS, f"s{sT}", LD)])
    G.append([I(f"s_lshr_b32 s{sT}, s2, 3"), I(f"s_lshl_b32 s{sT}, s{sT}, 14"), I(f"s_add_u32 s{sT}, s{sT}, s{sW4096}"),
              I(f"s_lshl_b32 s{sT3}, s{sXcd}, 19"), I(f"s_add_u32 s{sT}, s{sT}, s{sT3}"), pf_load(214, 217, sWO, f"s{sT}")])
    return G
def warm_consts():
    return [I(f"v_bfe_u32 v215, v{vL16}, 4, 5"), I(f"v_lshlrev_b32 v215, 7, v215"), I(f"v_lshrrev_b32 v216, 9, v{vL16}"),
            I(f"v_lshlrev_b32 v217, 2, v{vL16}"),
            I(f"v_mad_u32_u24 v218, v216, s{sT3}, v215"), I(f"v_lshl_add_u32 v215, v216, 17, v215"), I(f"v_mov_b32 v216, v218")]
def bbm_pf():
    d = {}
    if not flag('nopf3'): d[2] = code_pf('F_Bend', 'F_RA0', 250, 252, vL16)[1]
    return d

def build():
    P = P1.prologue()
    P, lgq, vmq = finish(P, name="pro")
    aK, bK = P1.engine(False); aV, bV = P1.engine(True)
    assert text(bK).replace("PL_", "").count("\n") == text(bV).count("\n")
    aK, lq1, vq1 = finish(aK, lgq, vmq, P, name="engK")
    aV, lq2, vq2 = finish(aV, lgq, vmq, P, name="engV")
    assert lq1 == lq2 and [x[1] for x in vq1] == [x[1] for x in vq2] and [x[0] for x in vq1] == [x[0] for x in vq2]
    B, lq, vq = finish(bK + first_tile(), lq1, vq1, aK, name="engB")
    B2, _, _ = finish(bK + first_tile(), lq1, vq1, aV, name="engB'")
    assert len(B) == len(B2)
    Q0 = [set(regs_in(ar(RING + f*4))) for f in range(NPRE)]
    if not OPT.prof: assert lq == Q0, lq
    bend_dma = [(1, g) for s in range(4, 11) for g in w3_dma(s)]
    aame_dma = [(2, g) for s in range(4) for g in w3_dma(s)]
    raw = {
        'AAe': step('A', 'A', 0, 1, name='AAe'), 'AAo': step('A', 'A', 1, 1, name='AAo'),
        'AAmo': step('A', 'A', 1, 1, mask=[(0, 0, None), (2, 1, None)], name='AAmo'),
        'AAme': step('A', 'A', 0, 2, mask=[(0, 2, None), (2, 3, None)], xwait=16, name='AAme', extra_dma=aame_dma),
        'ABm': step('A', 'B', 1, 2, mask=[(k, k, sOffB) for k in range(4)], xwait=8, name='ABm', extra_post={3: flag_store(1), 45: [poll_issue(vPo, vF2, sWS, "0")]}),
        'BBe': step('B', 'B', 0, 2, name='BBe'), 'BBo': step('B', 'B', 1, 2, name='BBo'),
        'BBm': step('B', 'B', 1, 0, mask=[(k, k, None) for k in range(4)], xwait=0, name='BBm', extra_post=bbm_pf()),
        'FINL': stamp(11) + finl_block() + stamp(12) + [I(f"s_sub_u32 s{sCnt}, 6, s{sI}"), I("s_cbranch_scc1 F_Bend")],
    }
    for k, b in enumerate(bbf_steps()): raw[f'BBf{k}'] = b
    preds = {'AAe': ['PRO', 'AAo'], 'AAo': ['AAe'], 'AAmo': ['AAe'], 'AAme': ['PRO', 'AAmo'], 'ABm': ['AAme'], 'FINL': ['ABm'],
             'BBf0': ['ABm'], 'BBf1': ['BBf0'], 'BBf2': ['BBf1'], 'BBf3': ['BBf2'],
             'BBe': ['FINL', 'BBo', 'BBf3'], 'BBo': ['BBe'], 'BBm': ['BBe']}
    done = {'PRO': B}
    for nm in ['AAe', 'AAo', 'AAmo', 'AAme', 'ABm', 'FINL', 'BBf0', 'BBf1', 'BBf2', 'BBf3', 'BBe', 'BBo', 'BBm']:
        outs = [finish(raw[nm], Q0, None, done.get(pr) or raw[pr], name=nm + "<-" + pr, vm=False) for pr in preds[nm]]
        best = max(outs, key=lambda o: len(o[0]))
        done[nm] = best[0]
        if not OPT.prof: assert best[1] == Q0, (nm, best[1])
    bend = step('B', None, 0, 0, name='Bend', extra_dma=bend_dma, extra_valu=bend_valu(), extra_post={26: [needvm('cs0')] + flag_store(2)})
    k = [j for j, x in enumerate(bend) if x.kind == 'mfma'][0]
    tailraw = bend[:k] + bend_pre() + bend[k:] + p3p4()
    outs = [finish(tailraw, Q0, [(set(), 'cs0')] + [(set(regs_in(ar(bslot(1, b)))), None) for b in (2, 3)], done[pr], name="tail<-" + pr) for pr in ('FINL', 'BBm')]
    tail = max(outs, key=lambda o: len(o[0]))[0]
    loopx = lambda lab: f" s_sub_u32 s{sCnt}, s{sCnt}, 1\n s_cbranch_scc1 {lab}\n"
    body = text(P) + "\n" + text(aK) + "\n s_branch F_J\nF_V:\n" + text(aV) + "\nF_J:\n" + text(B) + "\n"
    body += f".p2align {val('al', 3)}\nF_AAe:\n" + text(done['AAe']) + "\n" + loopx("F_AAmo") + text(done['AAo']) + "\n s_branch F_AAe\n"
    body += "F_AAmo:\n" + text(done['AAmo']) + "\nF_AAme:\n" + text(done['AAme']) + "\n" + text(done['ABm']) + "\n"
    if flag('bbf'):
        body += f" s_cmp_gt_u32 s{sI}, 4\n s_cbranch_scc1 F_FINL\n" + text(stamp(11) + stamp(12)) + "\n"
        for k in range(4): body += text(done[f'BBf{k}']) + "\n"
        body += f" s_sub_u32 s{sCnt}, 4, s{sI}\n s_branch F_BBe\nF_FINL:\n"
    body += text(done['FINL']) + "\n"
    body += f".p2align {val('al', 3)}\nF_BBe:\n" + text(done['BBe']) + "\n" + loopx("F_BBm") + text(done['BBo']) + "\n s_branch F_BBe\n"
    body += "F_BBm:\n" + text(done['BBm']) + "\nF_Bend:\n" + text(tail) + "\n"
    for typ in 'AB':
        for p in range(2): body += text(rare_redo(typ, p)) + "\n"
    for cur, nxt, p in (('A', 'A', 0), ('A', 'A', 1), ('A', 'B', 1), ('B', 'B', 0), ('B', 'B', 1), ('B', None, 0)):
        body += text(rare_stub(cur, nxt, p)) + "\n"
    hdr = open(f"cdna_kernels/{NAME}.s.ref").read().split("; Override")[0]
    kname = NAME + "_kernel"
    if "--list" in sys.argv: hdr += f"; @launch kernel={kname} grid=(256,1,1) block=(256,1,1) lds=163840\n"
    else: hdr += "; @launch grid=(256,1,1) block=(256,1,1) lds=163840\n"
    doc = """; ---------------------------------------------------------------------------------------------
; Hand-offs: write-through stores, vmcnt wait, then a word tagged with a per-launch epoch; readers poll
; ---------------------------------------------------------------------------------------------
"""
    return hdr + doc + '.amdgcn_target "amdgcn-amd-amdhsa--gfx950"\n' + kernel_text(kname, body, 512, 256)

if __name__ == "__main__":
    OPT.prof = "--prof" in sys.argv
    if "-q" in sys.argv: OPT.verbose = 0
    open(sys.argv[1], "w").write(build())
```

```python
from f_common import *

GC0 = -2.0 * math.sqrt(2.0 / math.pi) * math.log2(math.e)
GC1 = GC0 * 0.044715
sWoff, sCoff, sOb, sM0c, sScale, sType, s1o, sQo, sXL, sXH, sXLc, sXHc, sHL, sHH, sGC0, sB1o, sSt = range(74, 91)
sXrow, sWpf, sRb, sF0me, sF1me, sXcc = 98, 99, 96, 5, 1, 0
sKt, sKm, sVt, sVm = 91, 92, 93, 94
sCL, sCH = 95, 96
ACCB = [0, 64, 128, 0, 64, 0, 128]
WF = 192; NWF = 6
vZero, vPoll, vFt, vP0, vF1, vJ, vBo, vTm2 = range(216, 224)
vL16 = 224; vWtrS = [225, 229]; vWd, vW1d = 233, 237
vXo2, vGC1, vKVd = 241, 242, 243
PK = 244; GT = 237; GP = [244, 248]
vCd, vCr = 180, 178
QF = lambda qb, ks: 128 + (qb*8 + ks)*4
XF = lambda b, ks: (b*16 + ks)*4

def bf16_round(dst, src):
    return [I(f"v_cvt_pk_bf16_f32 v{dst}, v{src}, v{src}"), I(f"v_and_b32 v{dst}, 0xffff0000, v{dst}")]
def sum32(v, t):
    return [I(f"v_add_f32_dpp v{v}, v{v}, v{v} quad_perm:[1,0,3,2] row_mask:0xf bank_mask:0xf"),
            I(f"v_add_f32_dpp v{v}, v{v}, v{v} quad_perm:[2,3,0,1] row_mask:0xf bank_mask:0xf"),
            I(f"v_add_f32_dpp v{v}, v{v}, v{v} row_half_mirror row_mask:0xf bank_mask:0xf"),
            I(f"v_add_f32_dpp v{v}, v{v}, v{v} row_mirror row_mask:0xf bank_mask:0xf"),
            I(f"v_mov_b32 v{t}, v{v}"), I(f"v_permlane16_swap_b32 v{v}, v{t}"), I(f"v_add_f32 v{v}, v{v}, v{t}")]

def c_dma(ch):
    gs = []
    for grp in range(2):
        L = [I(f"s_add_u32 m0, s{sM0c}, {(ch % 3)*8192 + grp*4096}"), I(f"s_add_u32 s{sT}, s{sCoff}, {ch*128 + grp*32768}")]
        L += [I(f"buffer_load_dwordx4 v{vCd+b}, {sr(sC)}, s{sT} offen offset:{1024*b} {'nt' if flag('cnt') else ''} lds", tag=('vm', f'c{ch}')) for b in range(4)]
        gs.append(L)
    return gs
ORDER = [(0, k) for k in range(8)]
for cp in range(4):
    for k in range(8): ORDER += [(cp, 8 + k), (cp + 1, k)]
ORDER += [(4, k) for k in range(8, 16)] + [(5, k) for k in range(16)] + [(6, k) for k in range(16)]
POS = {e: 4*k for k, e in enumerate(ORDER)}
PF = 4
FU = {u: POS[(u//4, 4*(u % 4))] for u in range(28)}
LU = {u: POS[(u//4, 4*(u % 4) + 3)] + 3 for u in range(28)}
def make_plan(dist):
    need = {}; bars = []
    for u in sorted(FU, key=lambda u: FU[u]):
        p = FU[u] - PF
        if bars and (p - bars[-1] <= 4 or (u >= 19 and u % 2 == 1 and not flag('morebar'))): need[u] = bars[-1]
        else: bars.append(p); need[u] = p
    extra = [40, 72]
    bars = sorted(set(bars + extra))
    plan = {0: (-9, 6), 1: (-9, 7), 2: (-9, 8), 4: (-9, 9)}
    free = {sl: 72 for sl in range(6)}
    def rel(u): return min([p for p in bars if p > LU[u]] + [10**6])
    for u, (p, sl) in plan.items(): free[sl] = rel(u)
    rest = [u for u in sorted(FU, key=lambda u: FU[u]) if u not in plan]
    for u in rest:
        allowed = range(10) if u < 22 else (3, 5, 6, 7, 8, 9)
        sl = min(allowed, key=lambda x: (free[x], x in (3, 5, 6, 7, 8, 9) and u >= 16))
        cand = [p for p in bars if p >= free[sl] and p >= need[u] - dist]
        plan[u] = (cand[0], sl); assert cand[0] < need[u], u
        free[sl] = rel(u)
    return plan, need, bars, free
PLAN, NEED, BARS, SLOTFREE = make_plan(val('wdist', 100))
def w_dma(u):
    cp, kq = divmod(u, 4); slot = PLAN[u][1]
    if cp < 4: srd_, vo, so, off = sWkv, vWd, sWoff, kq*4*262144 + cp*128
    elif cp == 4: srd_, vo, so, off = sW1, vW1d, s1o, kq*4*32*3584
    else: srd_, vo, so, off = sWQ, vWd, sQo, kq*4*262144 + (cp - 5)*128
    L = [I(f"s_add_u32 m0, s{sW4096}, {slot*16384}"), I(f"s_add_u32 s{sT}, s{so}, {off}")]
    L += [I(f"buffer_load_dwordx4 v{vo+b}, {sr(srd_)}, s{sT} offen offset:{1024*b} {'nt' if (flag('wnt') or (flag('qnt') and cp >= 4)) else ''} lds", tag=('vm', f'w{u}')) for b in range(4)]
    return L
def kv_dma(which, tag=None):
    srd_, t, m = (sKS, sKt, sKm) if which == 'K' else (sVS, sVt, sVm)
    L = [I(f"s_mov_b32 m0, s{m}") if which == 'K' else I(f"s_add_u32 m0, s{m}, 0x10000"),
         I(f"s_mov_b32 s{sT2}, s{t}"),
         I(f"s_add_u32 s{t}, s{t}, {TS}"), I(f"s_add_u32 s{m}, s{m}, 0x4000"), I(f"s_and_b32 s{m}, s{m}, 0xffff")]
    L += [I(f"buffer_load_dwordx4 v{vKVd}, {sr(srd_)}, s{sT2} offen offset:{1024*b} {val('kvld', LD).replace('_', ' ')} lds", tag=('vm', tag)) for b in range(4)]
    return L

def prologue():
    TMP = 184; ln = 188; cb = val('cb', 3); wb = val('wb', 3)
    P = [I("s_cmp_lt_u32 s2, 256"), I("s_cbranch_scc1 F_go"), I("s_endpgm"), I("F_go:")]
    for s_, off in ((sDBG, A_DBG), (sC, A_CKV), (sWkv, A_WUK), (4, A_WUV), (sX, A_X), (sWS, A_WS), (sWQ, A_WQ), (sW1, A_W1), (sB1, A_B1),
                    (sWO, A_WO), (sW2, A_W2), (sB2, A_B2), (sOUT, A_OUT)):
        P.append(I(f"s_load_dwordx2 s[{s_}:{s_+1}], s[0:1], {off}"))
    P += [I(f"v_and_b32 v{ln}, 63, v0"), I(f"v_lshrrev_b32 v{TMP}, 6, v0"), I(f"v_mov_b32 v{vZero}, 0"),
          I(f"v_readfirstlane_b32 s{sWave}, v{TMP}"), I(f"v_mov_b32 v{vTm2}, 1"),
          I(f"s_getreg_b32 s{sXcd}, hwreg(HW_REG_XCC_ID, 0, 3)"),
          I(f"s_mov_b32 s{sDBG+2}, 256"), I(f"s_mov_b32 s{sDBG+3}, 0x20000"),
          I(f"s_lshl_b32 s{sT}, s{sXcd}, 5"), I(f"s_add_u32 s{sT}, s{sT}, 4"),
          I(f"v_bfe_u32 v{TMP}, v{ln}, {cb}, 3"), I(f"v_and_b32 v{TMP+1}, {(1 << cb) - 1}, v{ln}"), I(f"v_lshlrev_b32 v{TMP}, 10, v{TMP}"),
          I(f"v_lshl_add_u32 v{TMP}, v{TMP+1}, 7, v{TMP}"), *([I(f"v_and_b32 v{TMP+1}, {(8 << wb) - 1}, v{ln}"), I(f"v_lshlrev_b32 v{TMP+1}, 9, v{TMP+1}")] if wb < 3 else
            [I(f"v_lshrrev_b32 v{TMP+1}, 1, v{ln}"), I(f"v_lshlrev_b32 v{TMP+1}, 9, v{TMP+1}"), I(f"v_and_b32 v{TMP+2}, 1, v{ln}"), I(f"v_lshl_add_u32 v{TMP+1}, v{TMP+2}, 7, v{TMP+1}")]),
          I(f"s_lshl_b32 s{sT2}, s2, 13"), I(f"s_lshl_b32 s{sT3}, s2, {12 + min(wb, 2)}"),
          I(f"s_cmp_lt_u32 s{sWave}, 2"), I(f"s_cselect_b32 s{sT2}, s{sT2}, s{sT3}"), I(f"s_cselect_b64 vcc, -1, 0"),
          I(f"s_cselect_b32 s{sKS+2}, 1, 2"), I(f"s_lshl_b32 s{sKS+2}, s{sKS+2}, 21"), I(f"s_mov_b32 s{sKS+3}, 0x20000"),
          I(f"v_cndmask_b32 v{TMP}, v{TMP+1}, v{TMP}, vcc"),
          I("s_waitcnt lgkmcnt(0)")] + stamp(0)
    if not flag('notk'):
        P += [I(f"s_cmp_eq_u32 s{sWave}, 0"), I("s_cbranch_scc0 F_notk"), I("s_mov_b64 exec, 1"),
              I(f"buffer_atomic_add v{vTm2}, v{vZero}, {sr(sDBG)}, s{sT} offen sc0 sc1", tag=('cond', 'tk')),
              I("s_mov_b64 exec, -1"), I("F_notk:")]
    P += [
          I(f"s_bitcmp1_b32 s{sWave}, 0"), I(f"s_cselect_b64 s[{sKS}:{sKS+1}], s[{sC}:{sC+1}], s[{sX}:{sX+1}]"),
          I(f"s_cselect_b64 s[{sVS}:{sVS+1}], s[4:5], s[{sWkv}:{sWkv+1}]"),
          I(f"s_cmp_lt_u32 s{sWave}, 2"), I(f"s_cselect_b64 s[{sKS}:{sKS+1}], s[{sKS}:{sKS+1}], s[{sVS}:{sVS+1}]"),
          pf_load(vJ, TMP, sKS, f"s{sT2}")]
    if flag('blind1'):
        P += [I(f"s_mov_b32 s{sW1+2}, {512*3584:#x}"), I(f"s_mov_b32 s{sW1+3}, 0x20000"), I(f"v_lshlrev_b32 v{TMP}, 5, v{ln}"),
              I(f"s_mul_i32 s{sT}, s2, 7168"), I(f"s_mul_i32 s{sT2}, s{sWave}, 1792"), I(f"s_add_u32 s{sT}, s{sT}, s{sT2}"), pf_load(vJ, TMP, sW1, f"s{sT}")]
    if flag('blindq'):
        P += [I(f"s_mov_b32 s{sWQ+2}, {4*MB:#x}"), I(f"s_mov_b32 s{sWQ+3}, 0x20000"), I(f"v_lshlrev_b32 v{TMP}, 6, v{ln}"),
              I(f"s_lshl_b32 s{sT}, s2, 14"), I(f"s_lshl_b32 s{sT2}, s{sWave}, 12"), I(f"s_add_u32 s{sT}, s{sT}, s{sT2}"), pf_load(vJ, TMP, sWQ, f"s{sT}")]
    P += [I(f"v_lshrrev_b32 v{TMP+1}, 3, v{ln}"),
          I(f"s_mul_i32 s{sM0c}, s{sWave}, 24576"), I(f"s_lshl_b32 s{sW4096}, s{sWave}, 12"),
          I(f"s_mov_b32 s{sC+2}, {2*MB:#x}"), I(f"s_mov_b32 s{sC+3}, 0x20000"),
          I(f"s_mov_b32 s{sWkv+2}, {4*MB:#x}"), I(f"s_mov_b32 s{sWkv+3}, 0x20000"),
          I(f"v_and_b32 v{TMP+2}, 7, v{ln}"), I(f"v_lshrrev_b32 v{TMP}, 4, v{ln}"), I(f"v_xor_b32 v{TMP+2}, v{TMP+2}, v{TMP}"),
          I(f"v_lshlrev_b32 v{TMP}, 10, v{TMP+1}")]
    for b in range(4):
        P += [I(f"v_xor_b32 v{TMP+1}, {4*(b%2)}, v{TMP+2}"), I(f"v_lshl_add_u32 v{vCd+b}, v{TMP+1}, 4, v{TMP}")]
        if b: P.append(I(f"v_add_u32 v{vCd+b}, {7*b*1024}, v{vCd+b}"))
    P += lane_wdma(vWd, 8192, TMP, ln)
    P += lane_wtr(vWtrS[0], PLAN[0][1]*16384, TMP, ln)
    P += [I(f"v_add_u32 v{vWtrS[1]+c}, {(PLAN[4][1] - PLAN[0][1])*16384}, v{vWtrS[0]+c}") for c in range(4)]
    P += lane_wdma(vW1d, 3584, TMP, ln)
    n = lambda x: I(x, tag=('novm',))
    TK = [I(f"s_cmp_eq_u32 s{sWave}, 0"), I("s_cbranch_scc0 F_tk2"), I(f"s_mov_b32 s{sT3}, 7"), I("", tag=('needcond', 'tk')),
          I("F_tk0:"), I(f"v_readfirstlane_b32 s{sT2}, v{vTm2}"), I(f"s_cmp_lt_u32 s{sT2}, 32"), I("s_cbranch_scc1 F_tk1"),
          I(f"s_sub_u32 s{sT3}, s{sT3}, 1"), I("s_cbranch_scc1 F_tk3"),
          I(f"s_add_u32 s{sXcd}, s{sXcd}, 1"), I(f"s_and_b32 s{sXcd}, s{sXcd}, 7"),
          I(f"s_lshl_b32 s{sT}, s{sXcd}, 5"), I(f"s_add_u32 s{sT}, s{sT}, 4"), I(f"v_mov_b32 v{vTm2}, 1"), I("s_mov_b64 exec, 1"),
          n(f"buffer_atomic_add v{vTm2}, v{vZero}, {sr(sDBG)}, s{sT} offen sc0 sc1"), I("s_mov_b64 exec, -1"),
          n("s_waitcnt vmcnt(0)"), I("s_branch F_tk0"),
          I("F_tk1:"), I(f"s_lshl_b32 s{sT2}, s{sT2}, 3"), I(f"s_add_u32 s2, s{sT2}, s{sXcd}"),
          I("F_tk3:"), I(f"v_mov_b32 v{vTm2}, s2"),
          I(f"ds_write_b32 v{vZero}, v{vTm2}", tag=('nolg',)), I("s_waitcnt lgkmcnt(0)", tag=('nolg',)), I("F_tk2:"),
          I("s_barrier"), I(f"ds_read_b32 v{vTm2}, v{vZero}"), I(f"v_readfirstlane_b32 s2, v{vTm2}"), I("s_barrier")]
    if not flag('notk'): P += TK
    P += [
          I(f"s_and_b32 s{sXcd}, s2, 7"), I(f"s_lshr_b32 s{sI}, s2, 5"), I(f"s_bfe_u32 s{sHl}, s2, 0x20003"),
          I(f"s_and_b32 s{sType}, s{sI}, 1"),
          I(f"s_and_b32 s{sRb}, s2, 1"), I(f"s_lshl_b32 s{sRb}, s{sRb}, 2"), I(f"s_add_u32 s{sRb}, s{sRb}, s{sHl}"),
          I(f"s_lshl_b32 s{sCoff}, s{sRb}, 18"), I(f"s_lshl_b32 s{sT}, s{sWave}, 16"), I(f"s_add_u32 s{sCoff}, s{sCoff}, s{sT}"),
          I(f"s_lshr_b32 s3, s{sXcd}, 1"), I("s_lshl_b32 s3, s3, 2"), I(f"s_lshr_b32 s{sT}, s{sI}, 1"), I(f"s_add_u32 s3, s3, s{sT}"),
          I(f"s_lshl_b32 s{sWoff}, s{sWave}, 18"), I(f"s_lshl_b32 s{sT}, s3, 9"), I(f"s_add_u32 s{sWoff}, s{sWoff}, s{sT}")]
    P += stamp(19)
    P += [I(f"s_or_b32 s{sT3}, s2, s{sWave}"), I(f"s_cmp_eq_u32 s{sT3}, 0"), I("s_cbranch_scc0 F_noep0"),
          I(f"s_mov_b32 s{sWS+2}, {WS_SIZE:#x}"), I(f"s_mov_b32 s{sWS+3}, 0x20000"), I(f"s_mov_b32 s{sT}, {FE:#x}"),
          I(f"buffer_load_dword v{vFt}, v{vZero}, {sr(sWS)}, s{sT} offen sc1", tag=('novm',)), I("F_noep0:")]
    nv0 = len(P)
    c0 = c_dma(0)
    P += c0[0] + c0[1]
    P += [I(f"s_cmp_eq_u32 s{sType}, 0"), I(f"s_cselect_b64 s[{sWkv}:{sWkv+1}], s[{sWkv}:{sWkv+1}], s[4:5]")]
    P += w_dma(0)
    P += [I(f"s_mov_b32 s{sX+2}, {2*MB:#x}"), I(f"s_mov_b32 s{sX+3}, 0x20000"),
          I(f"s_lshl_b32 s{sT2}, s2, 13"), I(f"s_lshl_b32 s{sT}, s{sWave}, 11"), I(f"s_add_u32 s{sT2}, s{sT2}, s{sT}"),
          I(f"v_lshlrev_b32 v{vL16}, 4, v{ln}"), I(f"v_and_b32 v{TMP}, 32, v{ln}"), I(f"v_lshl_add_u32 v{TMP}, v{TMP}, 4, v{vL16}"),
          I(f"buffer_load_dwordx4 {vr(144)}, v{TMP}, {sr(sX)}, s{sT2} offen"),
          I(f"buffer_load_dwordx4 {vr(148)}, v{TMP}, {sr(sX)}, s{sT2} offen offset:512")]
    g = c_dma(1); P += g[0] + g[1]
    if flag('early'):
        g = c_dma(2); P += w_dma(1) + g[0] + g[1] + w_dma(2) + w_dma(4)
    for s_, size in ((sWS, WS_SIZE), (sWQ, 4*MB), (sW1, 512*3584), (sB1, 3584), (sWO, 4*MB), (sW2, 1792*1024), (sB2, 1024), (sOUT, 2*MB)):
        P += [I(f"s_mov_b32 s{s_+2}, {size:#x}"), I(f"s_mov_b32 s{s_+3}, 0x20000")]
    P += [I(f"s_lshr_b32 s{sT}, s2, 3"), I(f"s_lshl_b32 s{sT}, s{sT}, 2"), I(f"s_add_u32 s97, s{sT}, s{sWave}"),
          I(f"v_lshlrev_b32 v169, 7, v{ln}"), I(f"s_lshl_b32 s{sT}, s97, 13"), I(f"s_and_b32 s{sT2}, s2, 1"), I(f"s_lshl_b32 s{sT2}, s{sT2}, 20"),
          I(f"s_add_u32 s{sT}, s{sT}, s{sT2}"),
          *([I(f"s_mov_b32 s{sSt}, s{sT}")] if not flag('early') else [pf_load(vJ, 169, sC, f"s{sT}")]),
          I("s_getpc_b64 s[6:7]"), I("F_pc:"),
          I(f"s_lshl_b32 s{sT}, s97, 12"), I(f"v_lshlrev_b32 v{TMP+2}, 6, v{ln}"), I(f"v_add_u32 v{TMP+2}, s{sT}, v{TMP+2}"),
          I(f"v_min_u32 v{TMP+2}, F_RA0-F_pc, v{TMP+2}")]
    P.append(I(f"v_mov_b32 v168, v{TMP+2}"))
    cl = I(f"global_load_dword v{vJ}, v168, s[6:7]"); cl.wr = set()
    LATE = []
    if not flag('early'):
        g = c_dma(2)
        global LATEQ
        LATEQ = [g[0], g[1], w_dma(1)] + ([] if not flag('cpf') else [[pf_load(vJ, 169, sC, f"s{sSt}")]]) + [w_dma(2), w_dma(4)]
        global CODEPF
        CODEPF = cl
        if val('gcode', 14) < 0: LATEQ.append([cl])
        k = val('nlate', 2)
        LATE = sum(LATEQ[:k], []); LATEQ = LATEQ[k:]
    else: P.append(cl)
    if flag('tlb'):
        P += [I(f"v_lshl_add_u32 v{TMP+2}, s97, 6, v{ln}"), I(f"v_mul_u32_u24 v{TMP+2}, {TS}, v{TMP+2}"), I(f"s_mov_b32 s{sT}, 16384"),
              pf_load(vJ, TMP+2, sWS, f"s{sT}")]
    P += [I(f"s_lshr_b32 s{sT}, s{sI}, 1"), I(f"s_lshl_b32 s{sT}, s{sT}, 2"), I(f"s_add_u32 s{sT}, s{sT}, s{sHl}"),
          I(f"s_lshl_b32 s{sT}, s{sT}, 2"), I(f"s_add_u32 s{sT}, s{sT}, s{sWave}"), I(f"s_lshl_b32 s{sT}, s{sT}, 16"),
          I(f"s_lshr_b32 s{sT2}, s{sXcd}, 1"), I(f"s_lshl_b32 s{sT2}, s{sT2}, 11"), I(f"s_add_u32 s{sWpf}, s{sT}, s{sT2}"),
          I(f"v_lshrrev_b32 v{vBo}, 4, v{ln}"), I(f"v_and_b32 v{TMP}, 15, v{ln}"),
          I(f"v_lshlrev_b32 v170, 13, v{vBo}"), I(f"v_lshl_add_u32 v170, v{TMP}, 7, v170"),
          I(f"v_lshlrev_b32 v{vBo}, 3, v{vBo}")]
    nyoung = sum(1 for x in P[nv0:] if x.kind in ('dma', 'vld', 'vst', 'vmisc'))
    P += [I(f"s_cmp_eq_u32 s{sT3}, 0"), I("s_cbranch_scc0 F_noep"),
          I(f"s_mov_b32 s{sT}, {FE:#x}"), I(f"s_waitcnt vmcnt({nyoung})", tag=('novm',)),
          I(f"v_add_u32 v{vFt}, 16, v{vFt}"), I(f"v_max_u32 v{vFt}, 1, v{vFt}"),
          I(f"buffer_store_dword v{vFt}, v{vZero}, {sr(sDBG)}, 0 offen {ST}", tag=('novm',)),
          I(f"buffer_store_dword v{vFt}, v{vZero}, {sr(sWS)}, s{sT} offen {ST}", tag=('novm',)),
          I("F_noep:")]
    P += [I(f"s_lshl_b32 s{sF0me}, s2, 7"), I(f"s_add_u32 s{sF0me}, s{sF0me}, {F0:#x}"),
          I(f"s_lshl_b32 s{sF1me}, s3, 3"), I(f"s_add_u32 s{sF1me}, s{sF1me}, s{sRb}"), I(f"s_lshl_b32 s{sF1me}, s{sF1me}, 1"),
          I(f"s_add_u32 s{sF1me}, s{sF1me}, s{sType}"), I(f"s_lshl_b32 s{sF1me}, s{sF1me}, 7"), I(f"s_add_u32 s{sF1me}, s{sF1me}, {F1:#x}"),
          ]
    P += [I(f"s_lshl_b32 s{sW1024}, s{sWave}, 10"),
          I(f"s_mov_b32 s{sScale}, {f32(QSCALE)}"), I(f"s_mov_b32 s{sGC0}, {f32(GC0)}"),
          I(f"s_lshl_b32 s{sOb}, s3, 6"), I(f"s_lshl_b32 s{sT}, s{sRb}, 2"), I(f"s_add_u32 s{sOb}, s{sOb}, s{sT}"),
          I(f"s_add_u32 s{sOb}, s{sOb}, s{sWave}"), I(f"s_mul_i32 s{sOb}, s{sOb}, {TS}"),
          I(f"s_mul_i32 s{sT}, s{sType}, {WS_V:#x}"), I(f"s_add_u32 s{sOb}, s{sOb}, s{sT}"),
          I(f"s_mov_b32 s{sKt}, 0"), I(f"s_mov_b32 s{sVt}, 0"), I(f"s_mov_b32 s{sKm}, s{sW4096}"), I(f"s_mov_b32 s{sVm}, s{sW4096}"),
          I(f"s_lshr_b32 s{sXrow}, s2, 1"), I(f"s_mul_i32 s{sXrow}, s{sXrow}, {XS}"), I(f"s_and_b32 s{sT}, s2, 1"), I(f"s_lshl_b32 s{sT}, s{sT}, 7"),
          I(f"s_add_u32 s{sXrow}, s{sXrow}, s{sT}"), I(f"s_add_u32 s{sXrow}, s{sXrow}, s{sW4096}"), I(f"s_add_u32 s{sXrow}, s{sXrow}, {WS_XN:#x}")]
    P += [I(f"v_and_b32 v{TMP}, 31, v{ln}"), I(f"v_lshrrev_b32 v{TMP+1}, 5, v{ln}"),
          I(f"v_lshlrev_b32 v152, 7, v{TMP}"), I(f"v_lshl_add_u32 v152, v{TMP+1}, 4, v152"),
          I(f"v_lshl_add_u32 v152, s{sWave}, 5, v152"), I(f"v_add_u32 v152, 90112, v152"),
          I(f"v_lshl_add_u32 v157, s{sWave}, 11, v{vL16}"), I(f"v_add_u32 v157, 90112, v157"),
          I(f"v_lshlrev_b32 v158, 10, v{TMP+1}"), I(f"v_bfe_u32 v{TMP}, v{ln}, 3, 2"), I(f"v_lshl_add_u32 v158, v{TMP}, 8, v158"),
          I(f"v_and_b32 v{TMP}, 7, v{ln}"), I(f"v_lshl_add_u32 v158, v{TMP}, 4, v158")]
    P += [I(f"v_and_b32 v{TMP}, 15, v{ln}"), I(f"v_bfe_u32 v{TMP+1}, v{ln}, 2, 1"), I(f"v_bfe_u32 v{TMP+2}, v{ln}, 3, 1"),
          I(f"v_xor_b32 v{TMP+1}, v{TMP+1}, v{TMP+2}"), I(f"v_mul_u32_u24 v{TMP+1}, 12, v{TMP+1}"),
          I(f"v_mul_lo_u32 v{TMP+1}, v{TMP+1}, s{sType}"), I(f"v_xor_b32 v{TMP}, v{TMP}, v{TMP+1}"),
          I(f"v_lshrrev_b32 v{TMP+1}, 1, v{TMP}"), I(f"v_lshrrev_b32 v{TMP+2}, 4, v{ln}"), I(f"v_xor_b32 v{TMP+1}, v{TMP+1}, v{TMP+2}"),
          I(f"v_lshlrev_b32 v{TMP}, 7, v{TMP}"), I(f"v_add_u32 v{TMP}, s{sM0c}, v{TMP}"),
          I(f"v_lshl_add_u32 v{vCr}, v{TMP+1}, 4, v{TMP}"), I(f"v_xor_b32 v{TMP+1}, 4, v{TMP+1}"),
          I(f"v_lshl_add_u32 v{vCr+1}, v{TMP+1}, 4, v{TMP}"),
          I(f"v_add_u32 v{vXo2}, {XS}, v{vL16}"), I(f"v_mov_b32 v{vGC1}, {f32(GC1)}"), *LATE,
          I(f"s_cmp_eq_u32 s{sType}, 0"), I("s_cbranch_scc0 F_V")]
    return P

def role():
    sT, sT2 = sSt, sT3; ln = 252
    P = [I(f"s_and_b32 s{sXcd}, s2, 7"), I(f"s_lshr_b32 s{sI}, s2, 5"), I(f"s_bfe_u32 s{sHl}, s2, 0x20003"),
         I(f"s_lshr_b32 s97, s2, 3"), I(f"s_lshl_b32 s97, s97, 2"), I(f"s_add_u32 s97, s97, s{sWave}"),
         I(f"v_lshrrev_b32 v{ln}, 4, v{vL16}"),
          I(f"s_lshl_b32 s3, s{sXcd}, 2"), I(f"s_add_u32 s3, s3, s{sHl}"),
          I(f"s_lshl_b32 s4, s{sHl}, 1"), I("s_min_u32 s4, s4, 5"), I(f"s_mul_i32 s{sT}, s{sXcd}, 7"), I(f"s_add_u32 s4, s4, s{sT}"),
          I(f"s_lshl_b32 s{sXL}, s{sI}, 3"), I(f"s_lshl_b32 s{sT}, s{sWave}, 1"), I(f"s_add_u32 s{sXL}, s{sXL}, s{sT}"),
          I(f"s_sub_u32 s{sXH}, 15, s{sI}"), I(f"s_lshl_b32 s{sXH}, s{sXH}, 3"), I(f"s_add_u32 s{sXH}, s{sXH}, s{sT}")]
    for d, q in ((sHL, sXL), (sHH, sXH)):
        P += [I(f"s_mul_i32 s{d}, s{q}, 56"), I(f"s_add_u32 s{d}, s{d}, s4"), I(f"s_lshl_b32 s{d}, s{d}, 10"), I(f"s_add_u32 s{d}, s{d}, {WS_H:#x}")]
    P += [I(f"s_lshl_b32 s{sT}, s3, 12"), I(f"s_add_u32 s{sT}, s{sT}, {WS_CTX:#x}")]
    for d, q in ((sCL, sXL), (sCH, sXH)):
        P += [I(f"s_lshl_b32 s{d}, s{q}, 17"), I(f"s_add_u32 s{d}, s{d}, s{sT}"),
              I(f"s_mul_i32 s{q}, s{q}, {XS}"), I(f"s_add_u32 s{q}, s{q}, {WS_XN:#x}")]
    P += [I(f"s_lshl_b32 s{sQo}, s{sWave}, 18"), I(f"s_lshl_b32 s{sT}, s3, 8"), I(f"s_add_u32 s{sQo}, s{sQo}, s{sT}"),
          I(f"s_lshl_b32 s{sB1o}, s4, 6"), I(f"s_mul_i32 s{s1o}, s{sWave}, {32*3584}"), I(f"s_add_u32 s{s1o}, s{s1o}, s{sB1o}"),
          I(f"s_mul_i32 s{sT}, s3, {32*TS}"),
          [I(f"s_add_u32 s{sKS}, s{sWS}, s{sT}"), I(f"s_addc_u32 s{sKS+1}, s{sWS+1}, 0")],
          [I(f"s_add_u32 s{sVS}, s{sKS}, {WS_V:#x}"), I(f"s_addc_u32 s{sVS+1}, s{sKS+1}, 0")],
          I(f"s_sub_u32 s{sT}, 16, s{sI}"), I(f"s_mul_i32 s{sKS+2}, s{sT}, {2*TS}"), I(f"s_mov_b32 s{sVS+2}, s{sKS+2}"),
          I(f"s_mov_b32 s{sKS+3}, 0x20000"), I(f"s_mov_b32 s{sVS+3}, 0x20000"),
          ]
    P += [
          I(f"s_lshl_b32 s{sFlagMe}, s{sI}, 3"), I(f"s_add_u32 s{sFlagMe}, s{sFlagMe}, s{sXcd}"), I(f"s_lshl_b32 s{sFlagMe}, s{sFlagMe}, 2"),
          I(f"s_add_u32 s{sFlagMe}, s{sFlagMe}, s{sWave}"), I(f"s_lshl_b32 s{sFlagMe}, s{sFlagMe}, 2"), I(f"s_add_u32 s{sFlagMe}, s{sFlagMe}, s{sHl}"),
          I(f"s_lshl_b32 s{sFlagMe}, s{sFlagMe}, 7"), I(f"s_add_u32 s{sFlagMe}, s{sFlagMe}, {F2:#x}"),
          I(f"v_bfe_u32 v253, v{ln}, 2, 1"), I(f"s_lshl_b32 s{sT}, s{sI}, 12"), I(f"s_sub_u32 s{sT}, {15*2048}, s{sT}"),
          I(f"v_mul_lo_u32 v{vP0}, v253, s{sT}"), I(f"v_and_b32 v253, 3, v{ln}"), I(f"v_lshl_add_u32 v{vP0}, v253, 7, v{vP0}"),
          I(f"s_lshl_b32 s{sT}, s{sI}, 11"), I(f"s_lshl_b32 s{sT2}, s{sWave}, 9"), I(f"s_add_u32 s{sT}, s{sT}, s{sT2}"),
          I(f"s_add_u32 s{sT}, s{sT}, {F0:#x}"), I(f"v_add_u32 v{vP0}, s{sT}, v{vP0}"),
          I(f"s_lshl_b32 s{sT}, s{sXcd}, 1"), I(f"s_lshr_b32 s{sT2}, s{sHl}, 1"), I(f"s_add_u32 s{sT}, s{sT}, s{sT2}"),
          I(f"s_lshl_b32 s{sT}, s{sT}, 11"), I(f"s_add_u32 s0, s{sT}, {F1:#x}"),
          I(f"v_and_b32 v253, 1, v{ln}"), I(f"v_lshlrev_b32 v{vF1}, 7, v253")]
    return P

def ln_stream():
    XR = 144; U = 128; S = 153; T2 = 154; MB_ = 155; RS = 156
    P = []
    for k in range(8): P += [I(f"v_lshlrev_b32 v{U+2*k}, 16, v{XR+k}"), I(f"v_and_b32 v{U+2*k+1}, 0xffff0000, v{XR+k}")]
    P += [I(f"v_add_f32 v{S}, v{U}, v{U+1}")] + [I(f"v_add_f32 v{S}, v{S}, v{U+k}") for k in range(2, 16)]
    P += sum32(S, T2) + [I(f"v_mul_f32 v{S}, {f32(1/512)}, v{S}")] + bf16_round(MB_, S)
    P += [I(f"v_sub_f32 v{T2}, v{U}, v{S}"), I(f"v_mul_f32 v{RS}, v{T2}, v{T2}")]
    for k in range(1, 16): P += [I(f"v_sub_f32 v{T2}, v{U+k}, v{S}"), I(f"v_fmac_f32 v{RS}, v{T2}, v{T2}")]
    P += sum32(RS, T2) + [I(f"v_mul_f32 v{RS}, {f32(1/512)}, v{RS}")] + bf16_round(RS, RS)
    P += [I(f"v_add_f32 v{RS}, {f32(1e-5)}, v{RS}")] + bf16_round(RS, RS) + [I(f"v_sqrt_f32 v{RS}, v{RS}")] + bf16_round(RS, RS)
    P += [I(f"v_rcp_f32 v{RS}, v{RS}")]
    for k in range(8):
        a, b = U+2*k, U+2*k+1
        P += [I(f"v_sub_f32 v{a}, v{a}, v{MB_}"), I(f"v_sub_f32 v{b}, v{b}, v{MB_}"), I(f"v_cvt_pk_bf16_f32 v{T2}, v{a}, v{b}"),
              I(f"v_lshlrev_b32 v{a}, 16, v{T2}"), I(f"v_and_b32 v{b}, 0xffff0000, v{T2}"),
              I(f"v_mul_f32 v{a}, v{a}, v{RS}"), I(f"v_mul_f32 v{b}, v{b}, v{RS}"), I(f"v_cvt_pk_bf16_f32 v{XR+k}, v{a}, v{b}")]
    return P
def xn_out():
    XR = 144
    return ([I(f"ds_write_b128 v152, {vr(XR)}"), I(f"ds_write_b128 v152, {vr(XR+4)} offset:4096")],
            [I(f"ds_read_b128 {vr(160)}, v157"), I(f"ds_read_b128 {vr(164)}, v157 offset:1024")],
            [I(f"buffer_store_dwordx4 {vr(160)}, v158, {sr(sWS)}, s{sXrow} offen {ST}", tag=('vm', 'xnst')),
             I(f"buffer_store_dwordx4 {vr(164)}, v158, {sr(sWS)}, s{sXrow} offen offset:2048 {ST}", tag=('vm', 'xnst'))])

def pack_swap(T, X, Y):
    return [I(f"v_cvt_pk_bf16_f32 v{T}, v{X}, v{X+1}"), I(f"v_cvt_pk_bf16_f32 v{T+2}, v{Y}, v{Y+1}"),
            I(f"v_cvt_pk_bf16_f32 v{T+1}, v{X+2}, v{X+3}"), I(f"v_cvt_pk_bf16_f32 v{T+3}, v{Y+2}, v{Y+3}")], \
           [I(f"v_permlane16_swap_b32 v{T}, v{T+2}"), I(f"v_permlane16_swap_b32 v{T+1}, v{T+3}")]

def kv_epilogue(cp, isV):
    acc = ACCB[cp]; out = []
    for k, f in enumerate([7, 5, 0, 1, 2, 3, 4, 6]):
        V = []
        if isV:
            kb, dbl = divmod(f, 2)
            X = acc + ((2*dbl)*4 + kb)*4; Y = X + 16
            soff = (cp//2)*32*TS + kb*4096; ioff = (2*(cp % 2) + dbl)*1024
        else:
            kb32, c = divmod(f, 4)
            X = acc + (c*4 + 2*kb32)*4; Y = X + 4
            soff = (cp//2)*32*TS + kb32*8192 + (cp % 2)*4096; ioff = c*1024
        T = PK + (k % 2)*4
        if not isV: V += [I(f"v_mul_f32 v{r}, s{sScale}, v{r}") for r in list(range(X, X+4)) + list(range(Y, Y+4))]
        else: V += [I("", tag=('pad',)) for r in range(8)]
        a, b = pack_swap(T, X, Y)
        V += a + [I(f"s_add_u32 s{sSt}, s{sOb}, {soff}")] + b
        V += [I(f"buffer_store_dwordx4 {vr(T)}, v{vL16}, {sr(sWS)}, s{sSt} offen offset:{ioff} {'' if flag('kvplain') else ST}", tag=('vm', 'kvst'))]
        if flag('nokvst'): V.pop()
        out.append(V)
    return out

def gelu_stream():
    P = []
    for b in range(4):
        for fs in range(2):
            T = GP[(b*2 + fs) % 2]
            for half in range(2):
                X = ACCB[4] + ((2*fs + half)*4 + b)*4
                regs = list(range(X, X+4)); tt = list(range(GT, GT + 4))
                P += [I(f"v_mul_f32 v{t}, v{r}, v{r}") for t, r in zip(tt, regs)]
                P += [I(f"v_fma_f32 v{t}, v{t}, v{vGC1}, s{sGC0}") for t in tt]
                P += [I(f"v_mul_f32 v{t}, v{t}, v{r}") for t, r in zip(tt, regs)]
                P += [I(f"v_exp_f32 v{t}, v{t}") for t in tt]
                P += [I(f"v_add_f32 v{t}, 1.0, v{t}") for t in tt]
                P += [I(f"v_rcp_f32 v{t}, v{t}") for t in tt]
                P += [I(f"v_mul_f32 v{t}, v{t}, v{r}") for t, r in zip(tt, regs)]
                P += [I(f"v_cvt_pk_bf16_f32 v{T+2*half+j}, v{tt[2*j]}, v{tt[2*j+1]}") for j in range(2)]
            P += [I(f"s_add_u32 s{sSt}, s{sHL if b < 2 else sHH}, {(b % 2)*56*1024}"),
                  I(f"buffer_store_dwordx4 {vr(T)}, v{vL16}, {sr(sWS)}, s{sSt} offen offset:{fs*1024} {ST}")]
    return P
def bias_stream():
    A = ACCB[4]; R = A + 56
    ld = [I(f"buffer_load_dwordx2 v[{R+2*c}:{R+2*c+1}], v{vBo}, {sr(sB1)}, s{sB1o} offen offset:{32*c}") for c in range(4)]
    un = []
    for c in range(4):
        for kb in ([0, 1, 2, 3] if c < 3 else [0]):
            d = A + (c*4 + kb)*4
            for k in range(2): un += [I(f"v_lshlrev_b32 v{d+2*k}, 16, v{R+2*c+k}"), I(f"v_and_b32 v{d+2*k+1}, 0xffff0000, v{R+2*c+k}")]
    un += [I(f"v_mov_b32 v{A+48+4*kb+j}, v{A+48+j}") for kb in (1, 2, 3) for j in range(4)]
    return ld, un

def qconv(cp, qb, c):
    X = ACCB[cp] + (c*4 + 2*qb)*4; T = GP[c % 2]
    a, b = pack_swap(T, X, X + 4)
    return a + b + [I(f"v_accvgpr_write_b32 a{QF(qb, 4*(cp-5) + c)+j}, v{T+j}") for j in range(4)]

def engine(isV):
    NF = 448
    grp = [(cp, ks, c) for cp, ks in ORDER for c in range(4)]
    def c_reads(ch):
        return [I(f"ds_read_b128 {ar(XF(kb, 2*ch + ks2))}, v{vCr+ks2} offset:{(ch % 3)*8192 + kb*2048}") for ks2 in range(2) for kb in range(4)]
    def w_reads(n):
        cp, ks, c = grp[n]; r = WF + (n % NWF)*4; va = vWtrS[cp % 2] + c; off = (ks % 4)*4096
        return [I(f"ds_read_b64_tr_b16 {vr(r,2)}, v{va} offset:{off}"), I(f"ds_read_b64_tr_b16 {vr(r+2,2)}, v{va} offset:{off+1024}")]
    head = stamp(1) + [needvm('c0')] + c_reads(0) + [needvm('w0'), I("s_barrier")] + stamp(2)
    for n in range(PF): head += w_reads(n)
    mf = []; post = {}; valu = []; dmaq = []
    def addpost(g, items): post.setdefault(g, []).extend(items)
    def add(mg, items):
        for it in items: valu.append((mg, it))
    G = lambda n: 4*n
    for n, (cp, ks, c) in enumerate(grp):
        wf = vr(WF + (n % NWF)*4)
        for kb in range(4):
            d = vr(ACCB[cp] + (c*4 + kb)*4); cf = ar(XF(kb, ks))
            cin = d if (ks or cp == 4) else "0"
            mf.append(I(f"{M16} {d}, {cf}, {wf}, {cin}" if (isV and cp < 4) else f"{M16} {d}, {wf}, {cf}, {cin}"))
        if n + 1 < NF: addpost(G(n) + 3, [needlg(regs_in(vr(WF + ((n + 1) % NWF)*4)))])
    cur = {0: PLAN[0][1], 1: PLAN[4][1]}
    for u in sorted(FU, key=lambda u: FU[u]):
        st = (u // 4) % 2; delta = (PLAN[u][1] - cur[st])*16384; cur[st] = PLAN[u][1]
        if delta:
            g = G(FU[u] - PF)
            addpost(g - 3, [I(f"v_add_u32 v{vWtrS[st]+k}, {delta & 0xffffffff:#x}, v{vWtrS[st]+k}") for k in range(2)])
            addpost(g - 2, [I(f"v_add_u32 v{vWtrS[st]+k}, {delta & 0xffffffff:#x}, v{vWtrS[st]+k}") for k in range(2, 4)])
    bs0, bs1 = val('bs0', 124), val('bs1', 348)
    assert bs0 in BARS and bs1 in BARS
    for k, p in enumerate(BARS):
        if p < 0: continue
        names = [f'w{u}' for u in NEED if NEED[u] == p] + (['xnst'] if p == bs0 else []) + (['kvst'] if p == bs1 else [])
        addpost(G(p) - 1, ([I("s_waitcnt lgkmcnt(0)")] if p == 72 else []) + ([needvm(*names)] if names else []) + ([] if flag('nobar') else [I("s_barrier")]) + (stamp(20 + k) if flag('fine') else []))
        for u in sorted(PLAN, key=lambda u: FU[u]):
            if PLAN[u][0] == p and not (flag('nowd') and p > 60): dmaq.append((G(p) + 1, w_dma(u)))
    addpost(G(bs0) + 1, flag_put(vFt, vZero, sF0me, 1))
    addpost(G(bs1) + 1, flag_put(vFt, vZero, sF1me, 1))
    for n in range(NF - PF): addpost(G(n), w_reads(n + PF))
    for q in LATEQ: dmaq.append((0, q, 1))
    if val('gcode', 14) >= 0: dmaq.append((G(val('gcode', 14)), [CODEPF]))
    R = [None, 2, 10, 18, 26, 38, 50, 62]
    D = {3: val('d3', 5), 4: val('d4', 10), 5: val('d5', 18), 6: val('d6', 28), 7: val('d7', 41)}
    for ch in range(1, 8):
        addpost(G(R[ch]) + 1, [needvm(f'c{ch}')])
        rd = c_reads(ch)
        for k in range(4): addpost(G(R[ch]) + 2 + 4*k, rd[2*k:2*k+2])
    for ch, g in D.items():
        old = ch - 3
        assert old == 0 or g >= R[old] + 5
        regs = [r for x in c_reads(old) for r in x.wr]
        addpost(G(g) + 1, [needlg(regs)])
        for q in c_dma(ch): dmaq.append((G(g) + 1, q, 1 if ch < 5 else val('cstep', 3)))
    for ks in range(16):
        L = []
        if ks % 4 == 0: L += [I(f"s_add_u32 s{sXLc}, s{sXL}, {(ks//4)*4096}"), I(f"s_add_u32 s{sXHc}, s{sXH}, {(ks//4)*4096}")]
        L += [I(f"buffer_load_dwordx4 {ar(XF(b, ks))}, v{vXo2 if b % 2 else vL16}, {sr(sWS)}, s{sXHc if b >= 2 else sXLc} offen offset:{(ks % 4)*1024} {'' if flag('xnnosc') else LD}") for b in range(4)]
        if not flag('noxn'): dmaq.append((G(POS[(3, ks)] + 4) + 1, L))
    if not flag('pfwfull'):
        addpost(G(val('pfw', 53)) - 3, [I(f"v_lshrrev_b32 v170, 7, v{vL16}"), I(f"v_lshlrev_b32 v170, 13, v170")])
        addpost(G(val('pfw', 53)) - 2, [I(f"v_bfe_u32 v171, v{vL16}, 5, 2"), I(f"v_lshl_add_u32 v170, v171, 9, v170")])
        addpost(G(val('pfw', 53)) - 1, [I(f"v_bfe_u32 v171, v{vL16}, 4, 1"), I(f"v_lshl_add_u32 v170, v171, 7, v170")])
        dmaq.append((G(val('pfw', 53)), [pf_load(vJ, 170, sWkv, f"s{sWpf}", "offset:256")]))
    elif not flag('nopfw'):
        dmaq.append((G(val('pfw', 53)), [pf_load(vJ, 170, sWkv, f"s{sWpf}")]))
        dmaq.append((G(val('pfw2', 52)), [I(f"s_add_u32 s{sWpf}, s{sWpf}, 32768"), pf_load(vJ, 170, sWkv, f"s{sWpf}")]))
    dmaq.append((G(val('gep', 44)), [poll_issue(vPoll, vZero, sDBG, "0")]))
    addpost(G(110) + 2, epoch_check(vPoll, vZero, sT2))
    gs0 = val('gs0', 150)
    dmaq.append((G(gs0), [poll_issue(vPoll, vP0, sWS, "0")]))
    addpost(G(167) + 2, stamp(50) + poll_check(vPoll, vP0, sWS, "0", 1, sT2, sT3) + stamp(51))
    xw, xr, xs = xn_out()
    add(G(val('gln', 0)) + 2, ln_stream()); add(G(60), xw)
    addpost(G(72) + 2, xr)
    dmaq.append((G(val('gxs', 90)), xs))
    R = role()
    add(G(66), R)
    dmaq.append((G(121), [pf_load(vJ, vBo, sB1, f"s{sB1o}")]))
    bl, bu = bias_stream()
    sp = val('esp', 7)
    for cp, g, w in ((0, 98, sp), (1, 162, val('esp1', 5)), (2, 226, sp), (3, 286, 0)):
        for k, fr in enumerate(kv_epilogue(cp, isV)):
            if not flag('noepi'): add(G(g + k*w), fr)
            if cp == 1 and k == 1: add(0, bl)
        if cp == 1:
            add(G(206), bu)
            if flag('fine'):
                for k, g in enumerate((val('f0', 157), val('f1', 160), val('f2', 163), val('f3', 165))): addpost(G(g) + 3, stamp(44 + k))
    if not flag('nogelu'): add(G(322), gelu_stream())
    for qb in range(2):
        for c in range(4): add(G(384) + 16*(8*qb + c) + 18, qconv(5, qb, c))
    gs1 = val('gs1', 398)
    dmaq.append((G(gs1), [poll_issue(vPoll, vF1, sWS, "s0")]))
    addpost(G(gs1 + 14) + 1, stamp(48) + poll_check(vPoll, vF1, sWS, "s0", 1, sT2, sT3) + stamp(49) + [I(f"v_add_u32 v{vKVd}, s{sW4096}, v{vL16}")])
    assert all(SLOTFREE[sl] <= gs1 + 14 for sl in (0, 4, 1, 2, 5)), SLOTFREE
    assert min(PLAN[u][0] for u in PLAN if PLAN[u][1] == 5) >= 92
    for k, wh in enumerate("KVKKV"): dmaq.append((G(gs1 + 15 + 6*k), kv_dma(wh, f'kv{k}')))
    def warm(g, V, M):
        if V: addpost(G(g) + 1, V[:2])
        if V[2:]: addpost(G(g) + 2, V[2:])
        dmaq.append((G(g + 1), M))
    if flag('pfqs'):
        g0 = val('pfq', 76); dq = val('pfqd', 18)
        for k in range(4):
            warm(g0 + dq*k, [I(f"v_lshlrev_b32 v252, 2, v{vL16}")] if k == 0 else [],
                 [I(f"s_lshl_b32 s{sT}, s2, 14"), I(f"s_add_u32 s{sT}, s{sT}, {4096*k}"), I(f"s_cmp_eq_u32 s{sWave}, {k}"),
                  I(f"s_cselect_b32 s{sT}, s{sT}, 0x1000000"), pf_load(vJ, 252, sWQ, f"s{sT}")])
    elif flag('pfqc'):
        warm(val('pfq', 130), [I(f"v_lshlrev_b32 v252, 2, v{vL16}")],
             [I(f"s_lshl_b32 s{sT}, s2, 14"), I(f"s_add_u32 s{sT}, s{sT}, s{sW4096}"), pf_load(vJ, 252, sWQ, f"s{sT}")])
    elif not flag('nopfq'):
        warm(val('pfq', 130), [I(f"v_bfe_u32 v252, v{vL16}, 4, 4"), I(f"v_lshlrev_b32 v253, 10, v{vBo}"), I(f"v_lshl_add_u32 v252, v252, 6, v253")],
             [I(f"s_lshl_b32 s{sT}, s97, 15"), I(f"s_lshl_b32 s{sT2}, s{sXcd}, 10"), I(f"s_add_u32 s{sT}, s{sT}, s{sT2}"), pf_load(vJ, 252, sWQ, f"s{sT}")])
    if not flag('nopf1'):
        warm(val('pf1', 16), [I(f"v_lshlrev_b32 v253, 1, v{vL16}")],
             [I(f"s_mul_i32 s{sT}, s2, 7168"), I(f"s_mul_i32 s{sT2}, s{sWave}, 1792"), I(f"s_add_u32 s{sT}, s{sT}, s{sT2}"), pf_load(vJ, 253, sW1, f"s{sT}")])
    if flag('pfo_old'):
        warm(330, [I(f"v_lshlrev_b32 v252, 2, v{vL16}"), I(f"v_lshlrev_b32 v253, 1, v{vL16}")],
             [I(f"s_lshl_b32 s{sT}, s{sXcd}, 19"), I(f"s_lshl_b32 s{sT2}, s97, 12"), I(f"s_add_u32 s{sT}, s{sT}, s{sT2}"), pf_load(vJ, 252, sWO, f"s{sT}")])
        dmaq.append((G(334), [I(f"s_mul_i32 s{sT}, s{sXcd}, {224*1024}"), I(f"s_mul_i32 s{sT2}, s97, 1792"), I(f"s_add_u32 s{sT}, s{sT}, s{sT2}"), pf_load(vJ, 253, sW2, f"s{sT}")]))
    if not flag('nopf2'):
        V, M = code_pf("F_AAe", "F_Bend", 252, vJ, vL16, 0); warm(352, V, M)
        V, M = code_pf("F_AAe", "F_Bend", 253, vJ, vL16, 1); warm(368, V, M)
        V, M = code_pf("F_AAe", "F_Bend", 252, vJ, vL16, 2); warm(384, V, M)
    if flag('pf4'):
        V, M = code_pf("F_J", "F_AAe", 252, vJ, vL16); warm(val('gpf4', 270), V, M)
        addpost(G(150) + 1, [I(f"F_mid{int(isV)}:")])
        V, M = code_pf(f"F_mid{int(isV)}", "F_J" if isV else "F_V", 252, vJ, vL16); warm(val('gpf5', 112), V, M)
    place_dma(dmaq, addpost, step=val('estep', 4), ok=lambda g: g % 4 in (1, 2))
    for k, p in enumerate((32, 96, 160, 224, 288, 320)): addpost(G(p) - 1, stamp(3 + k))
    def budget(g, p):
        n = sum(1 for x in p if x.txt or (x.tag and x.tag[0] != 'needvm'))
        if any(x.kind == 'dsr' for x in p): return 1 if n == 1 else 0
        nd = sum(1 for x in p if x.kind in ('dma', 'vld', 'vst'))
        return max(0, 2 - max(0, n - 1) - nd)
    body, left = weave(mf, post, valu, budget)
    if OPT.verbose: print(f"[engine] leftover valu {left}", file=sys.stderr)
    mi = 0; start = {cp: G(POS[(cp, 0)]) for cp in range(7)}; end = {cp: G(POS[(cp, 15)] + 4) for cp in range(7)}
    for x in body:
        if x.kind == 'mfma': mi += 1; continue
        if x.op == 'ds_write_b128': assert G(60) <= mi < G(72) - 1, mi
        if x is R[-1]: assert mi < G(120), mi
        for r in (x.rd | x.wr):
            if r[0] == 'v' and r != 'vcc' and int(r[1:]) < 192:
                q = int(r[1:])
                for cp in range(7):
                    if ACCB[cp] <= q < ACCB[cp] + 64:
                        blk = (q - ACCB[cp]) // 4
                        assert not (start[cp] + blk < mi <= end[cp] - 16 + blk), ("accumulator busy", cp, mi, x.txt)
    idx = [k for k, x in enumerate(body) if x.kind == 'mfma'][G(336)]
    return head + body[:idx], body[idx:]
```

```python
import sys, math, struct
from asmlib import *

NAME = "parallel_sum__compressed_kv_cla__dense_activation_gelu__prompt"
MB = 1 << 20
WS_K, WS_V, WS_XN, WS_H, WS_CTX, WS_P, WS_F = 0, 18*MB, 36*MB, 39*MB, 48*MB, 64*MB, 96*MB
WS_SIZE = 97*MB
_pad = 0 if '--nopad' in sys.argv else 1024
TS = XS = 16384 + _pad
PD = 8192 + _pad
F0, F1, F2, F3, FE = WS_F, WS_F + 32768, WS_F + 65536, WS_F + 196608, WS_F + 327680
sE = 62
A_X, A_CKV, A_WQ, A_WUK, A_WUV, A_WO, A_BX, A_W1, A_B1, A_W2, A_B2, A_OUT, A_DBG, A_WS = [8*i for i in range(14)]
def f32(x): return "0x%08x" % struct.unpack("<I", struct.pack("<f", x))[0]
QSCALE = (128 ** -0.5) * math.log2(math.e)
M16 = "v_mfma_f32_16x16x32_bf16"
M32 = "v_mfma_f32_32x32x16_bf16"
def vr(b, n=4): return f"v[{b}:{b+n-1}]"
def ar(b, n=4): return f"a[{b}:{b+n-1}]"
def sr(b, n=4): return f"s[{b}:{b+n-1}]"
ST = "sc0 sc1"
LD = "sc1"

class Opt:
    prof = False
    verbose = 4
OPT = Opt()
def flag(n): return ('--' + n) in sys.argv
def val(n, d):
    for a in sys.argv:
        if a.startswith('--' + n + '='): return type(d)(a.split('=')[1])
    return d

sWS, sX, sC, sWkv, sWQ, sW1, sB1, sKS, sVS, sWO, sW2, sB2, sOUT, sDBG = [8 + 4*i for i in range(14)]
sWave, sXcd, sI, sHl, sT, sT2, sT3, sW4096, sW1024, sFlagMe = range(64, 74)
PROF_BASE = 128*MB
vPR, vPC = 254, 255

def stamp(k):
    if not OPT.prof: return []
    return [I("s_waitcnt lgkmcnt(0)"), I("s_memrealtime s[100:101]"), I("s_waitcnt lgkmcnt(0)"), I(f"v_writelane_b32 v{vPR}, s100, {k}"), I("s_memtime s[100:101]"), I("s_waitcnt lgkmcnt(0)"),
            I("s_nop 0"), I(f"v_writelane_b32 v{vPC}, s100, {k}")]
def stamp_out(k):
    if not OPT.prof: return []
    if flag('dbgout'):
        return [I("s_waitcnt vmcnt(0)")] + stamp(k) + [
            I(f"s_cmp_eq_u32 s2, {val('dbgwg', 9)}"), I("s_cbranch_scc0 F_nodbg"), I(f"s_cmp_eq_u32 s{sWave}, 0"), I("s_cbranch_scc0 F_nodbg"),
            I(f"s_mov_b32 s{sDBG+2}, 256"), I(f"s_mov_b32 s{sDBG+3}, 0x20000"),
            I(f"v_readlane_b32 s4, v{vPR}, 0"), I("v_mbcnt_lo_u32_b32 v0, -1, 0"), I("v_mbcnt_hi_u32_b32 v0, -1, v0"),
            I(f"v_subrev_u32 v{vPR}, s4, v{vPR}"), I("v_lshlrev_b32 v0, 2, v0"), I("v_subrev_u32 v0, 8, v0"),
            I(f"buffer_store_dword v{vPR}, v0, {sr(sDBG)}, 0 offen"), I("F_nodbg:")]
    return [I("s_waitcnt vmcnt(0)")] + stamp(k) + [
        I(f"s_mov_b32 s{sWS+2}, {PROF_BASE + MB:#x}"),
        I("v_mbcnt_lo_u32_b32 v0, -1, 0"), I("v_mbcnt_hi_u32_b32 v0, -1, v0"), I("v_lshlrev_b32 v0, 3, v0"),
        I(f"s_lshl_b32 s4, s2, 2"), I(f"s_add_u32 s4, s4, s{sWave}"), I("s_lshl_b32 s4, s4, 9"), I(f"s_add_u32 s4, s4, {PROF_BASE:#x}"),
        I(f"buffer_store_dwordx2 v[{vPR}:{vPC}], v0, {sr(sWS)}, s4 offen")]

def finish(ins, lg_init=None, vm_init=None, prev=None, name="", vm=True):
    q1 = None
    if vm: ins, q1 = insert_vm(ins, vm_init)
    ins, q2 = insert_lgkm(ins, lg_init)
    vb = []
    ins, npad = pad_hazards(ins, prev, vb)
    if npad and OPT.verbose:
        print(f"[{name}] padded {npad} wait states", file=sys.stderr)
        for k, a, b in vb[:OPT.verbose]: print(f"    {k}: {a}  ->  {b}", file=sys.stderr)
    return ins, q2, q1

def place_dma(dmaq, addpost, step=2, ok=lambda g: True):
    nxt = 0
    step0 = step
    for ent in sorted(dmaq, key=lambda x: x[0]):
        g, items = ent[0], ent[1]; step = ent[2] if len(ent) > 2 else step0
        g = max(g, nxt)
        while not ok(g): g += 1
        k = 0
        while items[k].kind == 'salu': k += 1
        if k == 1 and 'm0' in items[0].wr:
            addpost(g, items[:1]); g += 1
            while not ok(g): g += 1
            addpost(g, items[1:2])
        else:
            addpost(g, items[:k+1])
        for it in items[k+1:]:
            g += step
            while not ok(g): g += 1
            addpost(g, [it])
        nxt = g + step
    return nxt

def lane_wtr(vdst, base, tmp, ln, natural=True):
    L = [I(f"v_lshrrev_b32 v{tmp}, 4, v{ln}"), I(f"v_bfe_u32 v{tmp+1}, v{ln}, 2, 2"), I(f"v_and_b32 v{tmp+2}, 1, v{tmp}"),
         I(f"v_lshl_add_u32 v{tmp+1}, v{tmp+2}, 2, v{tmp+1}"), I(f"v_lshrrev_b32 v{tmp}, 1, v{tmp}"),
         I(f"v_lshlrev_b32 v{tmp}, {11 if natural else 10}, v{tmp}"), I(f"v_lshl_add_u32 v{tmp}, v{tmp+1}, 7, v{tmp}"),
         I(f"v_and_b32 v{tmp+2}, 1, v{ln}"), I(f"v_lshl_add_u32 v{tmp}, v{tmp+2}, 3, v{tmp}"),
         I(f"v_bfe_u32 v{tmp+2}, v{ln}, 1, 1"), I(f"v_lshl_add_u32 v{tmp}, v{tmp+2}, 4, v{tmp}")]
    if base: L.append(I(f"v_add_u32 v{tmp}, {base}, v{tmp}"))
    L.append(I(f"v_and_b32 v{tmp+1}, 6, v{tmp+1}"))
    for c in range(4):
        L += [I(f"v_xor_b32 v{tmp+2}, {2*c}, v{tmp+1}"), I(f"v_lshl_add_u32 v{vdst+c}, v{tmp+2}, 4, v{tmp}")]
    return L

def lane_wdma(vdst, rowstride, tmp, ln, natural=True, nblk=4):
    L = [I(f"v_lshrrev_b32 v{tmp}, 3, v{ln}"), I(f"v_and_b32 v{tmp+1}, 7, v{ln}"), I(f"v_and_b32 v{tmp+2}, 6, v{tmp}"),
         I(f"v_xor_b32 v{tmp+1}, v{tmp+1}, v{tmp+2}"), I(f"v_lshlrev_b32 v{tmp+1}, 4, v{tmp+1}")]
    if natural:
        L += [I(f"v_and_b32 v{tmp+2}, 4, v{tmp}"), I(f"v_add_u32 v{tmp}, v{tmp}, v{tmp+2}")]
    L += [I(f"v_mul_u32_u24 v{tmp}, {rowstride}, v{tmp}"), I(f"v_add_u32 v{tmp}, v{tmp}, v{tmp+1}")]
    for b in range(nblk):
        rows = (4*(b % 2) + 16*(b // 2)) if natural else 8*b
        off = rows * rowstride - 1024 * b
        L.append(I(f"v_add_u32 v{vdst+b}, {off}, v{tmp}") if off else I(f"v_mov_b32 v{vdst+b}, v{tmp}"))
    return L

def pf_load(vj, voff, srd_, soff, extra=""):
    if (flag('pfnt') and srd_ in (sWkv, sWQ, sC)) or (flag('qnt2') and srd_ == sWQ) or (flag('wnt2') and srd_ == sWkv): extra += " nt"
    i = I(f"buffer_load_dword v{vj}, v{voff}, {sr(srd_)}, {soff} offen {extra}")
    i.wr = set()
    return i

_poll = [0]
def poll_issue(vp, vaddr, srd_, soff):
    return I(f"buffer_load_dword v{vp}, v{vaddr}, {sr(srd_)}, {soff} offen sc1")
def poll_check(vp, vaddr, srd_, soff, level, sc, st):
    _poll[0] += 1; u = _poll[0]
    t = lambda: [I(f"v_subrev_u32 v{vp}, s{st}, v{vp}"), I(f"v_cmp_le_u32 vcc, 8, v{vp}"), I(f"s_cbranch_vccz PL_ok{u}")]
    return [I(f"s_add_u32 s{st}, s{sE}, {level}")] + t() + [
            I(f"s_mov_b32 s{sc}, 0x100000"), I(f"PL_sp{u}:"), I(f"s_sleep {val('psl', 2)}"),
            I(f"buffer_load_dword v{vp}, v{vaddr}, {sr(srd_)}, {soff} offen sc1", tag=('novm',)),
            I("s_waitcnt vmcnt(0)", tag=('novm',))] + t() + [
            I(f"s_sub_u32 s{sc}, s{sc}, 1"), I(f"s_cbranch_scc0 PL_sp{u}"), I(f"PL_ok{u}:")]
def epoch_check(vp, vaddr, sc):
    _poll[0] += 1; u = _poll[0]
    t = lambda: [I(f"v_cmp_eq_u32 vcc, 0, v{vp}"), I(f"s_cbranch_vccz PL_ok{u}")]
    return t() + [I(f"s_mov_b32 s{sc}, 0x100000"), I(f"PL_sp{u}:"), I(f"s_sleep {val('psl', 2)}"),
            I(f"buffer_load_dword v{vp}, v{vaddr}, {sr(sDBG)}, 0 offen sc1", tag=('novm',)),
            I("s_waitcnt vmcnt(0)", tag=('novm',))] + t() + [
            I(f"s_sub_u32 s{sc}, s{sc}, 1"), I(f"s_cbranch_scc0 PL_sp{u}"), I(f"PL_ok{u}:"),
            I(f"v_readfirstlane_b32 s{sE}, v{vp}")]
def flag_put(vt, vz, soff, level, ioff=0):
    return [I(f"v_mov_b32 v{vt}, s{sE}"), I(f"v_add_u32 v{vt}, {level}, v{vt}"),
            I(f"buffer_store_dword v{vt}, v{vz}, {sr(sWS)}, s{soff} offen {ST}")]

def code_pf(lo, hi, vt, vj, vl16, k=0):
    V = [I(f"v_lshlrev_b32 v{vt}, 3, v{vl16}"), I(f"v_lshl_add_u32 v{vt}, s{sWave}, 13, v{vt}"),
         I(f"v_add_u32 v{vt}, {lo}-F_pc+{k*32768}, v{vt}"), I(f"v_min_u32 v{vt}, {hi}-F_pc, v{vt}")]
    i = I(f"global_load_dword v{vj}, v{vt}, s[6:7]"); i.wr = set()
    return V, [i]

def kernel_text(name, body, vgpr, accum, sgpr=102):
    return f""".text
.globl {name}
.p2align 8
.type {name},@function
{name}:
{body}
.section .rodata,"a"
.p2align 6
.amdhsa_kernel {name}
  .amdhsa_next_free_vgpr {vgpr}
  .amdhsa_next_free_sgpr {sgpr}
  .amdhsa_accum_offset {accum}
  .amdhsa_group_segment_fixed_size 0
  .amdhsa_kernarg_size 112
  .amdhsa_user_sgpr_count 2
  .amdhsa_user_sgpr_kernarg_segment_ptr 1
  .amdhsa_system_sgpr_workgroup_id_x 1
.end_amdhsa_kernel
"""
```

```python
from f_common import *
import f_p1 as P1
from f_p1 import QF, kv_dma, sKt, sKm, sVt, sVm, sCL, sCH, vL16, vKVd, qconv

THRESH = 2.0**30
sCnt, sKey, sKr, sVr, sThr, sOffA, sOffB = range(74, 81)
sRet2 = 100
sRet = 82; MK = [84, 86, 88, 98]
sWoO, sW2o, sHLo, sHHo, sPo, sCc, sCc2 = 76, 3, 4, 5, 80, 81, 90
sFb = 97
sSib = [84, 85, 86]
sWoS = [87, 88, 89]
NEG = [128, 144]; T0 = 160
vK, vV, vL16V = 192, 193, 194
Lr = [[196, 197], [198, 199]]; vMx = [200, 201]; vF = [202, 203]; vThr, vNinf, vTm = 204, 205, 206
vPo, vF2, vF3, vZ, vFl = 207, 208, 209, 210, 211
vWtrA, vWtrB, vWd3, vC2, vH2 = 212, 216, 220, 221, 195
PKT = 226
OA = lambda qb, db: (qb*4 + db)*16
RING = 192
NPRE = 8

def blk_q(typ, blk): return (blk % 2) if typ == 'A' else 1
def qk_mfmas(typ, S):
    L = []
    if typ == 'A':
        for kb in range(2):
            for ks in range(8):
                for qb in range(2):
                    d = vr(S + (2*kb + qb)*16, 16)
                    L.append((d, kb*8 + ks, ar(QF(qb, ks)), d if ks else vr(NEG[qb], 16)))
    else:
        for kb in range(4):
            for ks in range(8):
                d = vr(S + kb*16, 16)
                L.append((d, kb*8 + ks, ar(QF(1, ks)), d if ks else vr(NEG[1], 16)))
    return L
def pv_mfmas(typ, S):
    L = []
    if typ == 'A':
        for ks4 in range(4):
            for db in range(4):
                for qb in range(2):
                    d = ar(OA(qb, db), 16)
                    L.append((d, ks4*4 + db, vr(S + (2*(ks4//2) + qb)*16 + 8*(ks4 % 2)), d))
    else:
        for ks8 in range(8):
            for db in range(4):
                d = ar(OA(1, db), 16)
                L.append((d, ks8*4 + db, vr(S + (ks8//2)*16 + 8*(ks8 % 2)), d))
    return L
def expblk(S, qb, first):
    lp = Lr[qb][1]
    E = []; C = []
    for j in range(8):
        a, b = S + 2*j, S + 2*j + 1
        E.append([I(f"v_exp_f32 v{a}, v{a}"), I(f"v_exp_f32 v{b}, v{b}")])
        cv = I(f"v_cvt_pk_bf16_f32 v{S + 8*(j//4) + j % 4}, v{a}, v{b}")
        if first and j == 0: C.append([I(f"v_add_f32 v{lp}, v{a}, v{b}"), cv])
        elif flag('tree'): C.append([I(f"v_add_f32 v{vMx[1]}, v{a}, v{b}"), cv, I(f"v_add_f32 v{lp}, v{lp}, v{vMx[1]}")])
        elif (S + 8*(j//4) + j % 4) in (a, b): C.append([I(f"v_add_f32 v{lp}, v{lp}, v{a}"), I(f"v_add_f32 v{lp}, v{lp}, v{b}"), cv])
        else: C.append([I(f"v_add_f32 v{lp}, v{lp}, v{a}"), cv, I(f"v_add_f32 v{lp}, v{lp}, v{b}")])
    L = []
    if flag('nodelay'):
        for j in range(8): L += E[j] + C[j]
    else:
        L += E[0]
        for j in range(8):
            if j + 1 < 8: L += E[j+1][:1] + C[j][:1] + E[j+1][1:] + C[j][1:]
            else: L += C[j]
    return L
def blk_first(typ, blk): return blk < 2 if typ == 'A' else blk == 0
def maxblk(S, mx, first):
    L = []; r = list(range(S, S + 16))
    if first: L.append(I(f"v_max3_f32 v{mx}, v{r[0]}, v{r[1]}, v{r[2]}")); r = r[3:]
    while len(r) >= 2: L.append(I(f"v_max3_f32 v{mx}, v{mx}, v{r[0]}, v{r[1]}")); r = r[2:]
    if r: L.append(I(f"v_max_f32 v{mx}, v{mx}, v{r[0]}"))
    return L
def maskblk(S, kbg, soff=None):
    L = []
    if soff is not None:
        L.append(I(f"v_add_u32 v{vTm}, s{soff}, v{vThr}"))
        if kbg: L.append(I(f"v_subrev_u32 v{vTm}, {32*kbg}, v{vTm}"))
        t = vTm
    elif kbg: L.append(I(f"v_subrev_u32 v{vTm}, {32*kbg}, v{vThr}")); t = vTm
    else: t = vThr
    for r0 in range(0, 16, 4):
        L += [I(f"v_cmp_le_i32 s[{MK[k]}:{MK[k]+1}], {8*((r0+k)//4) + (r0+k) % 4}, v{t}") for k in range(4)]
        L += [I(f"v_cndmask_b32 v{S+r0+k}, v{vNinf}, v{S+r0+k}, s[{MK[k]}:{MK[k]+1}]") for k in range(4)]
    return L
def xmax(v, t): return [I(f"v_mov_b32 v{t}, v{v}"), I(f"v_permlane32_swap_b32 v{v}, v{t}"), I(f"v_max_f32 v{v}, v{v}, v{t}")]
def kread(f, slot): return I(f"ds_read_b128 {ar(RING + (slot % 16)*4)}, v{vK} offset:{f*1024}")
def vread(f, slot): return I(f"ds_read_b128 {ar(RING + (slot % 16)*4)}, v{vV} offset:{f*1024}")
def kv_dma2(which):
    srd_, t, m = (sKS, sKt, sKm) if which == 'K' else (sVS, sVt, sVm)
    base = 0 if which == 'K' else 0x10000
    d = lambda so: [I(f"buffer_load_dwordx4 v{vKVd}, {sr(srd_)}, s{so} offen offset:{1024*b} {val('kvld', LD).replace('_', ' ')} lds") for b in range(4)]
    return [[I(f"s_add_u32 m0, s{m}, {base:#x}")] + d(t),
            [I(f"s_add_u32 m0, s{m}, {base + 0x4000:#x}"), I(f"s_add_u32 s{sT2}, s{t}, {TS}"),
             I(f"s_add_u32 s{t}, s{t}, {2*TS}"), I(f"s_xor_b32 s{m}, s{m}, 0x8000")] + d(sT2)]

uid = [0]
def step(cur, nxt, p, kadv, mask=None, xwait=16, name="", extra_dma=None, extra_valu=None, extra_post=None, extra_h1=None):
    uid[0] += 1; u = uid[0]
    Sc, Sn = 64*p, 64*(1 - p)
    mf = []; use = []
    qk = qk_mfmas(nxt, Sn) if nxt else []
    nK = (16 if nxt == 'A' else 32) if nxt else 0
    for d, f, q, cin in qk:
        mf.append(I(f"{M32} {d}, {ar(RING + (f % 16)*4)}, {q}, {cin}")); use.append(f)
    for d, f, pf, cin in pv_mfmas(cur, Sc):
        mf.append(I(f"{M32} {d}, {ar(RING + ((nK + f) % 16)*4)}, {pf}, {cin}")); use.append(nK + f)
    nV = 16 if cur == 'A' else 32
    NG = len(mf); fu = {}
    for g, f in enumerate(use): fu.setdefault(f, g)
    post = {}; dmaq = []
    def addpost(g, items): post.setdefault(g, []).extend(items)
    D = val('D', 8); BO = val('bo', 3)
    hasY = nxt is not None and (cur == 'B' or nxt == 'B')
    pre = []
    ring = lambda f: regs_in(ar(RING + (f % 16)*4))
    for f in range(0, nK + nV, 2):
        if fu[f] > 0: addpost(fu[f] - 1, [needlg(ring(f) + ring(f + 1))])
    last = -2
    for f in range(NPRE if nxt else 0, nK, 2):
        last = max(fu[f] - D, last + 1, 0)
        addpost(last, [kread(f, f), kread(f + 1, f + 1)])
    vadv = [I(f"v_add_u32 v{vV}, s{sVr}, v{vL16V}"),
            I(f"s_add_u32 s{sVr}, s{sVr}, {0x4000 if cur == 'A' else 0x8000}"), I(f"s_and_b32 s{sVr}, s{sVr}, 0xffff")]
    vf0 = 0
    if nxt is None:
        pre += vadv[:1] + [vread(f, nK + f) for f in range(8)]; vf0 = 8
    else:
        addpost(last + 1, vadv)
        if hasY:
            gY = last + BO
            addpost(gY, [I("s_waitcnt vmcnt(16) lgkmcnt(0)" if cur == 'B' else "s_waitcnt lgkmcnt(0)"), I("s_barrier")])
            last = gY
        else: last = last + 1
    for f in range(vf0, nV, 2):
        last = max(fu[nK + f] - D, last + 1, 0)
        addpost(last, [vread(f, nK + f), vread(f + 1, nK + f + 1)])
    gX = NG
    if nxt is not None:
        gX = last + BO
        addpost(gX - 1, [I(f"v_add_u32 v{vK}, s{sKr}, v{vL16}")] +
                ([I(f"s_add_u32 s{sKr}, s{sKr}, {kadv*0x4000}"), I(f"s_and_b32 s{sKr}, s{sKr}, 0xffff")] if kadv else []))
        addpost(gX, [I(f"s_waitcnt vmcnt({xwait}) lgkmcnt(0)"), I("s_barrier")])
        gs = [gX + 1, gX + 2, gX + 4, gX + 6] if gX + 6 < NG else [gX + 1, gX + 2, gX + 3, gX + 4]
        assert gs[-1] < NG, (name, gX, NG)
        for j in range(NPRE // 2): addpost(gs[j], [kread(2*j, 2*j), kread(2*j + 1, 2*j + 1)])
    dstep = 2
    if cur == 'A' and nxt == 'A': dmaq = [(1, kv_dma('K')), (1, kv_dma('V'))]; dstep = 3 if extra_dma else 4
    elif cur == 'A' and nxt == 'B': dmaq = [(1, kv_dma('K'))] + [(gY + 2, x) for x in kv_dma2('K')]
    elif cur == 'B' and nxt == 'B':
        dmaq = [(0, x) for x in kv_dma2('V')]
        if not mask: dmaq += [(gY + 3, x) for x in kv_dma2('K')]
    if extra_dma: dmaq += extra_dma
    for g, it in (extra_post or {}).items(): addpost(g, it)
    if dmaq:
        endg = place_dma(dmaq, addpost, step=dstep)
        assert endg - dstep < gX, (name, endg, gX)
        if hasY and cur == 'B': assert max(g for g, l in post.items() if any(x.kind == 'dma' and sr(sVS) in x.txt for x in l)) < gY
    valu = []
    def add(mg, items):
        for it in items: valu.append((mg, it))
    H1 = len(qk)
    for blk in (2, 3): add(0, expblk(Sc + 16*blk, blk_q(cur, blk), False))
    done = {}
    for g, (d, f, q, cin) in enumerate(qk): done[d] = g
    mdict = {m[0]: m for m in (mask or [])}
    def domask(blk):
        if blk in mdict: add(done[vr(Sn + 16*blk, 16)] + 3, maskblk(Sn + 16*blk, mdict[blk][1], mdict[blk][2]))
    domask(0); domask(1)
    add(0, extra_h1 or [])
    qbs = (0, 1) if cur == 'A' else (1,)
    if cur == 'A': add(0, [I(f"v_max_f32 v{vMx[0]}, v{Lr[0][1]}, v{Lr[1][1]}")])
    add(max(H1 - 1, 0), [I(f"v_cmp_lt_f32 vcc, s{sThr}, v{vMx[0] if cur == 'A' else Lr[1][1]}"),
            [I(f"s_cbranch_vccz F_c{u}"), I(f"s_call_b64 s[{sRet}:{sRet+1}], F_X{cur}{nxt or 'n'}{p}"), I(f"F_c{u}:")]])
    force = {H1: len(valu) - 1}
    add(0, [I(f"v_add_f32 v{Lr[q][0]}, v{Lr[q][0]}, v{Lr[q][1]}") for q in qbs])
    if nxt is not None:
        add(0, [I(f"s_add_u32 s{sKey}, s{sKey}, {64 if cur == 'A' else 128}")])
        add(0, expblk(Sn, blk_q(nxt, 0), True))
        domask(2); domask(3)
        add(done[vr(Sn + 16, 16)] + 3, expblk(Sn + 16, blk_q(nxt, 1), blk_first(nxt, 1)))
    add(0, extra_valu or [])
    def budget(g, pp):
        nd = sum(1 for x in pp if x.kind == 'dsr'); nm = sum(1 for x in pp if x.kind in ('dma', 'vld', 'vst'))
        return max(val('bud', 6) - max(0, len(pp) - 1) - (1 if nd else 0) - (val('dmac', 1) if nm else 0), 0)
    if flag('halfrd') and cur == 'B' and nxt == 'B':
        for g in post:
            rd = [x for x in post[g] if x.kind == 'dsr']
            if len(rd) == 2 and g < gX: post[g].remove(rd[1])
    if flag('noexp'):
        valu = [v for v in valu if isinstance(v[1], list) or v[1].op != 'v_exp_f32']
    if flag('nodma') and nxt:
        for g in post: post[g] = [x for x in post[g] if x.kind != 'dma']
    body, left = weave(mf, post, valu, budget, flush_dep=True, force=force if not flag('noexp') else None)
    tail = []
    if OPT.verbose: print(f"[step {name}] leftover valu {left}", file=sys.stderr)
    return pre + body + tail

def finalize(qb, sbase, inter=None, tag='cst'):
    l0, l1 = Lr[qb]; inter = list(inter or [])
    l1 = vTm
    L = [I(f"v_mov_b32 v{l1}, v{l0}"), I(f"v_permlane32_swap_b32 v{l0}, v{l1}"),
         I(f"v_add_f32 v{l0}, v{l0}, v{l1}"), I(f"v_rcp_f32 v{l0}, v{l0}"), I(f"s_add_u32 s{sFb}, s{sbase}, 0x20000")]
    for db in range(4):
        t = T0 + (db % 2)*16; A = PKT + (db % 2)*8; B = A + 4
        for r0 in range(0, 16, 4):
            L += [I(f"v_accvgpr_read_b32 v{t+r}, a{OA(qb, db)+r}") for r in range(r0, r0 + 4)]
            if inter: L += inter.pop(0)
        for r0 in range(0, 16, 4):
            L += [I(f"v_mul_f32 v{t+r}, v{t+r}, v{l0}") for r in range(r0, r0 + 4)]
            if inter: L += inter.pop(0)
        for pc, T in ((0, A), (1, B)):
            L += [I(f"v_cvt_pk_bf16_f32 v{T}, v{t+4*pc}, v{t+4*pc+1}"), I(f"v_cvt_pk_bf16_f32 v{T+1}, v{t+4*pc+2}, v{t+4*pc+3}"),
                  I(f"v_cvt_pk_bf16_f32 v{T+2}, v{t+8+4*pc}, v{t+8+4*pc+1}"), I(f"v_cvt_pk_bf16_f32 v{T+3}, v{t+8+4*pc+2}, v{t+8+4*pc+3}")]
        L += [I(f"v_permlane32_swap_b32 v{A+j}, v{B+j}") for j in range(4)]
        L += [I(f"v_permlane16_swap_b32 v{A+j}, v{B+j}") for j in range(4)]
        L += [I(f"buffer_store_dwordx4 {vr(A)}, v{vL16}, {sr(sWS)}, s{sbase} offen offset:{db*1024} {ST}", tag=('vm', tag)),
              I(f"buffer_store_dwordx4 {vr(B)}, v{vL16}, {sr(sWS)}, s{sFb} offen offset:{db*1024} {ST}", tag=('vm', tag))]
        L += [I(f"v_accvgpr_write_b32 a{16*db + 8*qb + j}, v{A+j}") for j in range(8)]
    for g in inter: L += g
    return L

def fin_parts(qb, sbase):
    l0 = Lr[qb][0]; l1 = vF[0]; t = T0; A = PKT; B = A + 4
    head = [I(f"v_mov_b32 v{l1}, v{l0}"), I(f"s_add_u32 s{sFb}, s{sbase}, 0x20000"), I(f"v_permlane32_swap_b32 v{l0}, v{l1}"),
            I(f"v_add_f32 v{l0}, v{l0}, v{l1}"), I(f"v_rcp_f32 v{l0}, v{l0}")]
    parts = []
    for db in range(4):
        p1 = [I(f"v_accvgpr_read_b32 v{t+r}, a{OA(qb, db)+r}") for r in range(16)] + [I(f"v_mul_f32 v{t+r}, v{t+r}, v{l0}") for r in range(16)]
        p2 = []
        for pc, T in ((0, A), (1, B)):
            p2 += [I(f"v_cvt_pk_bf16_f32 v{T}, v{t+4*pc}, v{t+4*pc+1}"), I(f"v_cvt_pk_bf16_f32 v{T+1}, v{t+4*pc+2}, v{t+4*pc+3}"),
                   I(f"v_cvt_pk_bf16_f32 v{T+2}, v{t+8+4*pc}, v{t+8+4*pc+1}"), I(f"v_cvt_pk_bf16_f32 v{T+3}, v{t+8+4*pc+2}, v{t+8+4*pc+3}")]
        p2 += [I(f"v_permlane32_swap_b32 v{A+j}, v{B+j}") for j in range(4)] + [I(f"v_permlane16_swap_b32 v{A+j}, v{B+j}") for j in range(4)]
        p2 += [I(f"buffer_store_dwordx4 {vr(A)}, v{vL16}, {sr(sWS)}, s{sbase} offen offset:{db*1024} {ST}"),
               I(f"buffer_store_dwordx4 {vr(B)}, v{vL16}, {sr(sWS)}, s{sFb} offen offset:{db*1024} {ST}")]
        p2 += [I(f"v_accvgpr_write_b32 a{16*db + 8*qb + j}, v{A+j}") for j in range(8)]
        parts.append((p1, p2))
    return head, parts

def rare_redo(typ, p):
    S = 64*p; T = T0 + 16
    L = [I(f"F_R{typ}{p}:"), I("s_nop 15"), I(f"s_mul_i32 s{sT3}, s{sKey}, {TS // 64}")]
    qk = qk_mfmas(typ, S)
    nf = 16 if typ == 'A' else 32
    for f0 in range(0, nf, 4):
        L += [I(f"s_add_u32 s{sOffA}, s{sT3}, {(f0 % 16)*1024 + (f0 // 16)*TS}")]
        L += [I(f"buffer_load_dwordx4 {vr(T + 4*k)}, v{vL16}, {sr(sKS)}, s{sOffA} offen offset:{1024*k} {LD}") for k in range(4)]
        L += [I("s_waitcnt vmcnt(0)")]
        L += [I(f"{M32} {d}, {vr(T + 4*(f - f0))}, {q}, {cin}") for d, f, q, cin in qk if f0 <= f < f0 + 4]
        L += [I("s_nop 7")]
    for qb in ((0, 1) if typ == 'A' else (1,)):
        blks = [b for b in range(4) if blk_q(typ, b) == qb]; m = vMx[qb]
        L += [I(f"s_lshl_b32 s{sOffA}, s{sI}, 7")] if qb == 0 else [I(f"s_sub_u32 s{sOffA}, 15, s{sI}"), I(f"s_lshl_b32 s{sOffA}, s{sOffA}, 7")]
        L += [I(f"s_sub_u32 s{sOffA}, s{sOffA}, s{sKey}")]
        for k, b in enumerate(blks): L += maskblk(S + 16*b, k, sOffA)
        for k, b in enumerate(blks): L += maxblk(S + 16*b, m, k == 0)
        L += xmax(m, vTm) + [I(f"v_max_f32 v{m}, 0, v{m}"), I(f"v_exp_f32 v{vF[qb]}, -v{m}")]
        for b in blks: L += [I(f"v_sub_f32 v{S+16*b+r}, v{S+16*b+r}, v{m}") for r in range(16)]
        L += [I(f"v_sub_f32 v{NEG[qb]+r}, v{NEG[qb]+r}, v{m}") for r in range(16)]
        L += [I(f"v_mul_f32 v{Lr[qb][0]}, v{Lr[qb][0]}, v{vF[qb]}")]
        for k, b in enumerate(blks): L += expblk(S + 16*b, qb, k == 0)
        for r0 in range(0, 64, 8):
            a = qb*64 + r0
            L += [I(f"v_accvgpr_read_b32 v{T+k}, a{a+k}") for k in range(8)]
            L += [I(f"v_mul_f32 v{T+k}, v{T+k}, v{vF[qb]}") for k in range(8)]
            L += [I(f"v_accvgpr_write_b32 a{a+k}, v{T+k}") for k in range(8)]
    L += [I("s_nop 1"), I(f"s_setpc_b64 s[{sRet2}:{sRet2+1}]")]
    return pad_hazards(L)[0]
def rare_stub(cur, nxt, p):
    L = [I(f"F_X{cur}{nxt or 'n'}{p}:"), I(f"s_call_b64 s[{sRet2}:{sRet2+1}], F_R{cur}{p}")]
    if nxt:
        S = 64*(1 - p)
        for b in range(4): L += [I(f"v_sub_f32 v{S+16*b+r}, v{S+16*b+r}, v{vMx[blk_q(nxt, b)]}") for r in range(16)]
    L += [I("s_nop 1"), I(f"s_setpc_b64 s[{sRet}:{sRet+1}]")]
    return pad_hazards(L)[0]

def first_tile():
    P = stamp(9) + [I("s_waitcnt lgkmcnt(0)"), needvm('kv0', 'kv1', 'kv2'), I("s_barrier"),
         I(f"v_mov_b32 v{vK}, v{vL16}")]
    P += [kread(f, f) for f in (0, 8, 1, 9, 2, 10, 3, 11)]
    mf = []; post = {}
    order = [(ks, kb) for ks in range(8) for kb in range(2)]
    for k, (ks, kb) in enumerate(order):
        f = kb*8 + ks
        for qb in range(2):
            d = vr((2*kb + qb)*16, 16)
            mf.append(I(f"{M32} {d}, {ar(RING + f*4)}, {ar(QF(qb, ks))}, {d if ks else 0}"))
        if k + 8 < 16:
            ks2, kb2 = order[k + 8]; post.setdefault(2*k, []).append(kread(kb2*8 + ks2, kb2*8 + ks2))
    P += [I(f"v_bfe_u32 v{vF3}, v{vL16}, 4, 4"), I(f"v_lshlrev_b32 v{vF3}, 7, v{vF3}")]
    dq = [(1, kv_dma('K')), (1, kv_dma('V')), (1, [poll_issue(vPo, vF3, sWS, "s0")])]
    place_dma(dq, lambda g, it: post.setdefault(g, []).extend(it), step=2)
    valu = []
    for c in range(4):
        for qb in range(2): valu += [(0, x) for x in qconv(6, qb, c)]
    ln = 248
    C = [I(f"v_add_u32 v{vL16V}, 0x10000, v{vL16}"), I(f"v_lshrrev_b32 v{ln}, 4, v{vL16}"),
         I(f"s_mov_b32 s{sKey}, 0"), I(f"s_mov_b32 s{sThr}, {f32(THRESH)}"),
         I(f"s_lshl_b32 s{sOffB}, s{sI}, 8"), I(f"s_sub_u32 s{sOffB}, {128*14}, s{sOffB}"),
         I(f"v_and_b32 v{ln+1}, 31, v{ln}"), I(f"v_lshrrev_b32 v{ln+2}, 5, v{ln}"),
         I(f"v_lshl_add_u32 v{vThr}, s{sWave}, 5, v{ln+1}"), I(f"v_lshlrev_b32 v{ln+2}, 2, v{ln+2}"), I(f"v_sub_u32 v{vThr}, v{vThr}, v{ln+2}"),
         I(f"v_mov_b32 v{vNinf}, 0xff800000"), I(f"s_mov_b32 s{sKr}, 0x8000"), I(f"s_mov_b32 s{sVr}, 0")]
    C += [I(f"v_mov_b32 v{r}, 0") for r in (196, 198, 244, 245, 246, 247)] + consts_early(ln)
    valu += [(22, x) for x in C]
    body, _ = weave(mf, post, valu, lambda g, p: 5 if len(p) < 2 else 3, flush_dep=True)
    P += body
    P += [I(f"v_add_u32 v{vK}, 0x4000, v{vL16}")]
    P += [kread(f, f) for f in range(NPRE)]
    if not flag('pfo_old'):
        P += [I(f"v_lshlrev_b32 v250, 2, v{vL16}"), I(f"v_lshlrev_b32 v251, 1, v{vL16}"),
              I(f"s_lshl_b32 s{sT}, s2, 14"), I(f"s_add_u32 s{sT}, s{sT}, s{sW4096}"), pf_load(252, 250, sWO, f"s{sT}"),
              I(f"s_mul_i32 s{sT}, s2, 7168"), I(f"s_mul_i32 s{sT2}, s{sWave}, 1792"), I(f"s_add_u32 s{sT}, s{sT}, s{sT2}"), pf_load(252, 251, sW2, f"s{sT}")]
    P += [I(f"s_cmp_lg_u32 s{sI}, 0"), I("s_cbranch_scc1 F_nomask"), I("s_nop 7")]
    for kb in range(2): P += maskblk(16*(2*kb), kb)
    P += [I("F_nomask:")]
    X = []
    for qb in range(2): X += maxblk(16*qb, vMx[qb], True) + maxblk(16*(2 + qb), vMx[qb], False)
    X += [I(f"v_mov_b32 v{vTm}, v{vMx[0]}"), I(f"v_mov_b32 v{vF[0]}, v{vMx[1]}"), I("s_nop 0"),
          I(f"v_permlane32_swap_b32 v{vMx[0]}, v{vTm}"), I(f"v_permlane32_swap_b32 v{vMx[1]}, v{vF[0]}"),
          I(f"v_max_f32 v{vMx[0]}, v{vMx[0]}, v{vTm}"), I(f"v_max_f32 v{vMx[1]}, v{vMx[1]}, v{vF[0]}")]
    for qb in range(2):
        X += [I(f"v_sub_f32 v{NEG[qb] + r}, 0, v{vMx[qb]}") for r in range(16)]
        for blk in (qb, 2 + qb): X += [I(f"v_sub_f32 v{16*blk + r}, v{16*blk + r}, v{vMx[qb]}") for r in range(16)]
    for blk in (0, 1): X += expblk(16*blk, blk, True)
    zm = [I(f"{M32} {ar(16*k, 16)}, v[244:247], v[244:247], 0") for k in range(8)]
    body, _ = weave(zm, {}, [(0, x) for x in X], lambda g, p: 7)
    P += body
    P += poll_check(vPo, vF3, sWS, "s0", 1, sT2, 63)
    P += stamp(10) + [I(f"s_sub_u32 s{sCnt}, s{sI}, 1"), I("s_cbranch_scc1 F_AAme")]
    return P

NE = val('nHe', 10); OW = 10; SB = 14
def w3_addr(s):
    if s < 4: return 131072 + 8192*s
    if s < OW: return 8192*(s - 4)
    if s < SB: return (49152, 57344, 0, 8192)[s - OW]
    return 65536 + 8192*(s - SB)
def bslot(s, b):
    if s < 2: return 32*s + 16*(b // 2) + 8 + 4*(b % 2)
    if s < OW: return 128 + 16*(s - 2) + 4*b
    if s < SB: return 16*(s - OW) + 4*b
    k = 2*(s - SB) + (b % 2)
    if b < 2: return 128 + 4*k
    return 64 + 4*k if k < 16 else 224 + 4*(k - 16)
def w3_dma(s):
    gs = []
    if s < OW: srd_, so, off = sW2, sW2o, s*32768
    elif s < SB: srd_, so, off = sWO, sWoO, (s - OW)*32768
    else: srd_, so, off = sWO, sWoS[(s - SB)//4], ((s - SB) % 4)*32768
    for h in range(2):
        gs.append([I(f"s_add_u32 m0, s{sW1024}, {w3_addr(s) + h*4096}"), I(f"s_add_u32 s{sT}, s{so}, {off + h*128}"),
                   I(f"buffer_load_dwordx4 v{vWd3}, {sr(srd_)}, s{sT} offen lds", tag=('vm', f'x{s}'))])
    return gs
def h_loads(s):
    L = []
    if s % 4 == 0: L += [I(f"s_add_u32 s{sCc}, s{sHLo}, {(s//4)*4096}"), I(f"s_add_u32 s{sCc2}, s{sHHo}, {(s//4)*4096}")]
    return L + [I(f"buffer_load_dwordx4 {ar(bslot(s, b))}, v{vH2 if b % 2 else vL16}, {sr(sWS)}, s{sCc2 if b >= 2 else sCc} offen offset:{(s % 4)*1024} {LD}") for b in range(4)]
def sib_loads(s, hi):
    t = (s - SB) % 4; L = []
    if t == 0: L += [I(f"s_add_u32 s{sCc}, s{sCH if hi else sCL}, s{sSib[(s-SB)//4]}")]
    return L + [I(f"buffer_load_dwordx4 {ar(bslot(s, 2*hi + b))}, v{vC2 if b else vL16}, {sr(sWS)}, s{sCc} offen offset:{t*1024} {LD}") for b in range(2)]
def first_unit(d, t):
    return [I(f"s_and_b32 s{t}, s{sXcd}, 1"), I(f"s_mul_i32 s{t}, s{t}, {NE - 7}"), I(f"s_mul_i32 s{d}, s{sXcd}, 7"), I(f"s_add_u32 s{d}, s{d}, s{t}")]
def flag_store(level): return [I(f"v_add_u32 v{vFl}, 1, v{vFl}"), I(f"buffer_store_dword v{vFl}, v{vZ}, {sr(sWS)}, s{sFlagMe} offen {ST}")]

def consts_early(ln):
    t = ln + 1; a, b = sCnt, sOffA
    return [I(f"v_mov_b32 v{vZ}, 0"), I(f"v_mov_b32 v{vFl}, s{sE}"),
            I(f"s_and_b32 s{a}, s{sFlagMe}, 0xfffffe00"),
            I(f"v_bfe_u32 v{t}, v{vL16}, 4, 2"), I(f"v_lshlrev_b32 v{t}, 7, v{t}"), I(f"v_add_u32 v{vF2}, s{a}, v{t}"),
            I(f"s_lshl_b32 s{a}, s{sWave}, 13"), I(f"s_lshl_b32 s{b}, s{sHl}, 8"), I(f"s_add_u32 s{a}, s{a}, s{b}"),
            *first_unit(sW2o, b), I(f"s_lshl_b32 s{sW2o}, s{sW2o}, 15"), I(f"s_add_u32 s{sW2o}, s{sW2o}, s{a}")] + \
           lane_wdma(vWd3, 1024, t, ln, natural=False, nblk=1)
def h_bases():
    L = [I(f"v_add_u32 v{vH2}, {56*1024}, v{vL16}")] + first_unit(sCc, sCc2)
    for d, c in ((sHLo, sCL), (sHHo, sCH)):
        L += [I(f"s_sub_u32 s{d}, s{c}, {WS_CTX:#x}"), I(f"s_lshr_b32 s{d}, s{d}, 17"), I(f"s_mul_i32 s{d}, s{d}, 56"),
              I(f"s_add_u32 s{d}, s{d}, s{sCc}"), I(f"s_lshl_b32 s{d}, s{d}, 10"), I(f"s_add_u32 s{d}, s{d}, {WS_H:#x}")]
    return L
def code_pf2():
    V, M = code_pf("F_Bend", "F_RA0", 250, 252, vL16)
    V = V[:3] + [I(f"s_and_b32 s{sOffA}, s{sXcd}, 1"), I(f"s_mul_i32 s{sOffA}, s{sOffA}, F_Bodd-F_Bend"), I(f"v_add_u32 v250, s{sOffA}, v250")] + V[3:]
    V2, M2 = code_pf("F_P4", "F_RA0", 251, 252, vL16)
    return V + V2, M + M2
def bbf_steps():
    head, parts = fin_parts(0, sCL)
    lds = {s: [x for x in h_loads(s) if x.kind != 'salu'] for s in range(4)}
    V, _ = code_pf2()
    sp = lambda L, g0: {g0 + 2*k: [x] for k, x in enumerate(L)}
    posts = [{}, {1: poll_check(vPo, vF2, sWS, "0", 1, sT3, 63), **sp(lds[2], 49)}, {**sp(lds[3], 19), **sp(lds[0], 49)}, sp(lds[1], 49)]
    pre = [head, V, [], []]
    out = []
    for k in range(4):
        out.append(step('B', 'B', k % 2, 2, name=f'BBf{k}', extra_h1=pre[k] + parts[k][0],
                        extra_valu=parts[k][1] + (h_bases() + [I(f"s_mov_b32 s{sCc}, s{sHLo}"), I(f"s_mov_b32 s{sCc2}, s{sHHo}")] if k == 0 else []),
                        extra_post=posts[k]))
    return out
def finl_block():
    L = h_bases()
    L += [I("s_waitcnt vmcnt(0)"), I("s_barrier")] + poll_check(vPo, vF2, sWS, "0", 1, sT2, 63)
    inter = []
    pre2 = [I(f"s_mov_b32 s{sCc}, s{sHLo}"), I(f"s_mov_b32 s{sCc2}, s{sHHo}")]
    lds = [x for s in (2, 3, 0, 1) for x in h_loads(s) if x.kind != 'salu']
    for k, x in enumerate(lds): inter += [[x], []] if k < 8 else [[x], []]
    inter = inter[:16] + [[lds[8]], [], [lds[9]], [], [lds[10]], [], [lds[11]], []] + [[], [lds[12]], [], [lds[13]], [], [], [], []] + [[lds[14]], [lds[15]]]
    V, M = code_pf2()
    if flag('nopf3'): V, M = [], []
    return L + pre2 + V + M + finalize(0, sCL, inter, tag='cs0')
def bend_pre():
    L = [I(f"s_lshl_b32 s{sT}, s{sWave}, 13"), I(f"s_lshl_b32 s{sT2}, s{sHl}, 8"), I(f"s_add_u32 s{sT3}, s{sT}, s{sT2}"),
         I(f"s_lshl_b32 s{sT}, s{sXcd}, 19"), I(f"s_add_u32 s{sT}, s{sT}, s{sT3}"),
         I(f"s_lshl_b32 s{sT2}, s{sHl}, 17"), I(f"s_add_u32 s{sWoO}, s{sT}, s{sT2}")]
    for k in range(3):
        L += [I(f"s_add_u32 s{sT2}, s{sHl}, {k+1}"), I(f"s_and_b32 s{sT2}, s{sT2}, 3"),
              I(f"s_lshl_b32 s{sWoS[k]}, s{sT2}, 17"), I(f"s_add_u32 s{sWoS[k]}, s{sWoS[k]}, s{sT}"),
              I(f"s_sub_u32 s{sT2}, s{sT2}, s{sHl}"), I(f"s_lshl_b32 s{sSib[k]}, s{sT2}, 12")]
    return L
def bend_valu():
    t = T0; ln = T0 + 4
    L = [I(f"v_lshrrev_b32 v{ln}, 4, v{vL16}")] + lane_wtr(vWtrB, 0, t, ln, natural=False)
    L += [I(f"v_add_u32 v{vWtrA+c}, 131072, v{vWtrB+c}") for c in range(4)]
    L += [I(f"v_add_u32 v{vC2}, 0x20000, v{vL16}"),
          I(f"s_lshr_b32 s{sT3}, s2, 3"), I(f"s_lshl_b32 s{sT3}, s{sT3}, 2"), I(f"s_lshr_b32 s{sPo}, s{sXcd}, 1"), I(f"s_add_u32 s{sPo}, s{sT3}, s{sPo}"),
          I(f"s_lshl_b32 s{sPo}, s{sPo}, 10"), I(f"s_add_u32 s{sPo}, s{sPo}, {F3:#x}"),
          I(f"v_and_b32 v{t}, 7, v{ln}"), I(f"v_lshlrev_b32 v{t}, 7, v{t}"), I(f"v_add_u32 v{vF3}, s{sPo}, v{t}"),
          I(f"s_add_u32 s{sT3}, s{sT3}, s{sWave}"), I(f"s_lshl_b32 s{sT3}, s{sT3}, 3"), I(f"s_add_u32 s{sT3}, s{sT3}, s{sXcd}"),
          I(f"s_lshl_b32 s{sT3}, s{sT3}, 7"), I(f"s_add_u32 s1, s{sT3}, {F3:#x}"),
          I(f"s_mov_b32 s{sPo}, s2"),
          I(f"s_mul_i32 s{sPo}, s{sPo}, {8*PD}"), I(f"s_mul_i32 s{sT3}, s{sWave}, {2*PD}"), I(f"s_add_u32 s{sPo}, s{sPo}, s{sT3}"),
          I(f"s_add_u32 s{sPo}, s{sPo}, {WS_P:#x}")]
    return L

def p3(nH):
    RG = 128; NR = 8
    HS = list(range(nH)); OS = list(range(OW, SB)); SS = list(range(SB, SB + 12))
    seq = [(s, c8, (0, 1, 2, 3)) for s in HS + OS for c8 in range(8)]
    lo0 = len(seq)
    seq += [(s, c8, (0, 1)) for s in SS for c8 in range(8)] + [(s, c8, (2, 3)) for c8 in range(8) for s in SS]
    NF = len(seq)
    g0s = []; g = 0
    for e in seq: g0s.append(g); g += len(e[2])
    NGP = g; S0 = 8*(nH + 4)
    def w_reads(n):
        s, c8, _ = seq[n]; h, c = divmod(c8, 4); a = w3_addr(s) + h*4096; r = RG + (n % NR)*4
        if a >= 131072: va, off = vWtrA, a - 131072
        elif s < SB: va, off = vWtrB, a
        else: va, off = vWtrB, a - 65536
        return [I(f"ds_read_b64_tr_b16 {vr(r,2)}, v{va+c} offset:{off}"), I(f"ds_read_b64_tr_b16 {vr(r+2,2)}, v{va+c} offset:{off+2048}")]
    big = nH > 4
    L = stamp(13) + [I("s_waitcnt lgkmcnt(0)")] + ([needvm(*[f'x{k}' for k in range(4, min(nH, 8))])] if big else []) + [I("s_barrier")] + stamp(14)
    rd_at = {}
    for m in range(NF):
        n = m
        while n > 0 and m - n < 6 and g0s[m] - g0s[n] < val('p3pf', 14): n -= 1
        rd_at[m] = n if (g0s[m] - g0s[n] >= val('p3pf', 14) or m - n == 6) else -1
    for m in range(NF):
        if rd_at[m] < 0: L += w_reads(m)
    mf = []; post = {}; dmaq = []; valu = []
    def addpost(g, items): post.setdefault(g, []).extend(items)
    firstread = {}
    for m in range(NF): firstread.setdefault(seq[m][0], m)
    bars = {OW: OS, SB: SS[:6], SB + 6: SS[6:]}
    if nH > 8: bars[8] = range(8, nH)
    elif big: bars[nH - 1] = []
    for n, (s, c8, bs) in enumerate(seq):
        for b in bs:
            d = vr((c8*4 + b)*4)
            mf.append(I(f"{M16} {d}, {vr(RG + (n % NR)*4)}, {ar(bslot(s, b))}, {d if s else 0}"))
        if n + 1 < NF: addpost(g0s[n + 1] - 1, [needlg(regs_in(vr(RG + ((n + 1) % NR)*4)))])
    bargap = {}
    for sb, rng in bars.items():
        m = firstread[sb]; g = g0s[rd_at[m]] - 1; bargap[sb] = g
        addpost(g, ([needvm(*[f'x{k}' for k in rng])] if rng else []) + [I("s_barrier")] + stamp({OW: 54, SB: 57, SB + 6: 58}.get(sb, 52)))
    def free_after(s):
        last = max(g0s[m] + len(seq[m][2]) - 1 for m in range(NF) if seq[m][0] == s)
        return min(g for g in bargap.values() if g >= last)
    addpost(g0s[rd_at[lo0 - 1]] + 1, [I(f"v_add_u32 v{vWtrB+k}, 65536, v{vWtrB+k}") for k in range(2)])
    addpost(g0s[rd_at[lo0 - 1]] + 2, [I(f"v_add_u32 v{vWtrB+k}, 65536, v{vWtrB+k}") for k in range(2, 4)])
    for m in range(NF):
        if rd_at[m] >= 0: addpost(g0s[rd_at[m]], w_reads(m))
    rdg = set(g0s[rd_at[m]] for m in range(NF) if rd_at[m] >= 0)
    G = lambda grp: 4*grp
    for s in range(4, min(nH, 7)): dmaq.append((1, h_loads(s)))
    if nH > 7:
        addpost(G(11) + 1, [I(f"s_movk_i32 s{sT3}, 2048")] + poll_check(vMx[0], vF2, sWS, f"s{sT3}", 1, sT2, 63))
        for s in range(7, nH): dmaq.append((G(11) + 2, h_loads(s)))
    inb = bend_stages(nH)
    for s in OS:
        if s not in inb:
            prev = [t for t in HS if w3_addr(t) == w3_addr(s)]
            for g in w3_dma(s): dmaq.append((free_after(prev[0]) + 1 if prev else G(25), g))
    for k, s in enumerate(SS):
        for g in w3_dma(s): dmaq.append(((G(26) if big else 1) + 8*k if k < 8 else free_after(k - 8) + 1, g))
    g2 = S0 - (58 if big else val('g2o', 50)); g3 = val('g3e', 68) if big else val('g3o', 52); g4 = S0 - 8 if big else g3 + val('d4o', 12)
    valu += [((33 if min(int(r[1:]) for r in x.wr) < 32 else 65) if x.op == 'v_accvgpr_write_b32' else 2, x) for x in finalize(1, sCH, tag='cs1')] + [(G(g3), [needvm('cs1')] + flag_store(3))]
    dmaq.append((G(g2), [poll_issue(vPo, vF2, sWS, "0")]))
    addpost(G(g2 + 12) + 1, stamp(55) + poll_check(vPo, vF2, sWS, "0", 2, sT2, 63) + stamp(56))
    e = 0
    for s in (SS[4:] + SS[:4] if not big else SS):
        busy = max([8*(t + 1) for t in HS if any(bslot(t, b) == bslot(s, b2) for b in range(4) for b2 in (0, 1))] + [0])
        e = max(e, G(g2 + 12) + 2, G(busy) + 1)
        dmaq.append((e, sib_loads(s, 0)))
    dmaq.append((G(g4), [poll_issue(vPo, vF2, sWS, "0")]))
    addpost(G(g4 + 12) + 1, stamp(59) + poll_check(vPo, vF2, sWS, "0", 3, sT2, 63) + stamp(60))
    assert g4 + 12 > 8*nH
    for s in SS: dmaq.append((G(g4 + 12) + 2, sib_loads(s, 1), 4 if big else 3))
    PKP = 160
    def piece(c8, pr, k):
        X = (c8*4 + 2*pr)*4; T = PKP + (k % 8)*4
        a, b = P1.pack_swap(T, X, X + 4)
        return a + [I(f"s_add_u32 s{sT3}, s{sPo}, {pr*PD + (c8//4)*4096}")] + b + \
            [I(f"buffer_store_dwordx4 {vr(T)}, v{vL16}, {sr(sWS)}, s{sT3} offen offset:{(c8 % 4)*1024} {ST}", tag=('vm', 'pst'))]
    hi0 = NF - 96
    ev = [(g0s[hi0] + 3, c8, 0) for c8 in range(8)] + [((g0s[hi0 + 12*(c8 + 1)] + 3) if c8 < 7 else NGP, c8, 1) for c8 in range(8)]
    order = sorted(range(16), key=lambda k: (ev[k][0] + (0 if ev[k][2] else 12*ev[k][1])))
    for k, e in enumerate(order): valu += [(ev[e][0], x) for x in piece(ev[e][1], ev[e][2], k)]
    XO = 226; vXa, vBa = 222, 223
    p4pre = [I(f"s_lshr_b32 s{sT}, s{sXcd}, 1"), I(f"s_lshl_b32 s{sT}, s{sT}, 5"),
             I(f"s_sub_u32 s{sT2}, 15, s{sI}"), I(f"s_bitcmp1_b32 s{sXcd}, 0"), I(f"s_cselect_b32 s{sT2}, s{sT2}, s{sI}"),
             I(f"s_lshl_b32 s{sT2}, s{sT2}, 7"), I(f"s_add_u32 s{sT}, s{sT}, s{sT2}"), I(f"s_lshl_b32 s74, s{sT}, 10"),
             I(f"s_lshl_b32 s75, s{sHl}, 8"), I(f"s_lshl_b32 s{sT}, s{sWave}, 6"), I(f"s_add_u32 s75, s75, s{sT}"), I(f"s_add_u32 s74, s74, s75"),
             I(f"v_bfe_u32 v{vXa}, v{vL16}, 4, 5"), I(f"v_lshlrev_b32 v{vXa}, 10, v{vXa}"),
             I(f"v_lshrrev_b32 v{vBa}, 9, v{vL16}"), I(f"v_lshlrev_b32 v{vBa}, 4, v{vBa}"), I(f"v_add_u32 v{vXa}, v{vXa}, v{vBa}")]
    gp = G(S0 + 38)
    dmaq.append((gp, p4pre[:12] + [I(f"buffer_load_dwordx4 {vr(XO + 8*pc)}, v{vXa}, {sr(sX)}, s74 offen offset:{pc*32}") for pc in range(2)] +
                        [I(f"buffer_load_dwordx4 {vr(XO + 4 + 8*pc)}, v{vBa}, {sr(sB2)}, s75 offen offset:{pc*32}") for pc in range(2)]))
    for k, x in enumerate(p4pre[12:]): addpost(gp - 11 + 2*k, [x])
    if flag('p3nold'): dmaq = [d for d in dmaq if not any(x.kind == 'vld' and 'a[' in x.txt for x in d[1])]
    if flag('p3nodma'): dmaq = [d for d in dmaq if not any(x.kind == 'dma' for x in d[1])]
    if flag('p3nofin'): valu = [v for v in valu if isinstance(v[1], list) or v[0] > 100 or v[1].kind == 'vst']
    place_dma(dmaq, addpost, step=val('p3step', 4), ok=lambda g: g not in rdg and (g >= g0s[lo0] or g % 4 in (1, 2)))
    def budget(g, p):
        if any(x.kind == 'dsr' for x in p): return 0
        n = sum(1 for x in p if x.txt or (x.tag and x.tag[0] != 'needvm'))
        nd = sum(1 for x in p if x.kind in ('dma', 'vld', 'vst'))
        return max(0, (3 if (not big and g < G(val('ob', 40))) else 2) - max(0, n - 1) - nd)
    body, left = weave(mf, post, valu, budget, flush_dep=lambda g: 32*nH <= g < g0s[lo0])
    if OPT.verbose:
        mi = 0
        for x in body:
            if x.kind == 'mfma': mi += 1
            if x.tag and x.tag[0] == 'vm' and x.tag[1] in ('cs0', 'cs1', 'pst'): print(f"[p3] {x.tag[1]} store at gap {mi} (group {mi/4:.1f})", file=sys.stderr)
    return L + body + stamp(15)
def bend_stages(nH): return (list(range(4, nH)) + list(range(OW, SB)))[:7] if nH > 4 else list(range(OW, SB))
def p4():
    XO = 226; vXa, vBa = 222, 223
    L = [I(f"s_mov_b32 s{sFlagMe}, s1"), needvm('pst')] + flag_store(1)
    L += [I(f"s_lshr_b32 s{sT}, s2, 3"), I(f"s_mul_i32 s{sT}, s{sT}, {64*PD}"), I(f"s_mul_i32 s{sT2}, s{sXcd}, {PD}"), I(f"s_add_u32 s{sT}, s{sT}, s{sT2}"),
          I(f"s_lshl_b32 s{sT2}, s{sWave}, 11"), I(f"s_add_u32 s{sT}, s{sT}, s{sT2}"), I(f"s_add_u32 s{sT}, s{sT}, {WS_P:#x}"),
          poll_issue(vPo, vF3, sWS, "0")]
    for pc in range(2):
        A = 64 + 8*pc
        for j in range(4):
            L += [I(f"v_lshlrev_b32 v{A+2*j}, 16, v{XO+8*pc+j}"), I(f"v_and_b32 v{A+2*j+1}, 0xffff0000, v{XO+8*pc+j}"),
                  I(f"v_lshlrev_b32 v80, 16, v{XO+4+8*pc+j}"), I(f"v_and_b32 v81, 0xffff0000, v{XO+4+8*pc+j}"),
                  I(f"v_add_f32 v{A+2*j}, v{A+2*j}, v80"), I(f"v_add_f32 v{A+2*j+1}, v{A+2*j+1}, v81")]
    L += poll_check(vPo, vF3, sWS, "0", 1, sT2, 63) + stamp(16)
    for x in range(8):
        L += [I(f"buffer_load_dwordx4 {vr((pc*8 + x)*4)}, v{vL16}, {sr(sWS)}, s{sT} offen offset:{pc*1024} {LD}") for pc in range(2)]
        if x < 7: L += [I(f"s_add_u32 s{sT}, s{sT}, {8*PD:#x}")]
    for x in range(8):
        for pc in range(2):
            A = 64 + 8*pc; r = (pc*8 + x)*4
            for j in range(4):
                L += [I(f"v_lshlrev_b32 v80, 16, v{r+j}"), I(f"v_and_b32 v81, 0xffff0000, v{r+j}"),
                      I(f"v_add_f32 v{A+2*j}, v{A+2*j}, v80"), I(f"v_add_f32 v{A+2*j+1}, v{A+2*j+1}, v81")]
    for pc in range(2):
        A = 64 + 8*pc
        L += [I(f"v_cvt_pk_bf16_f32 v{84+4*pc+j}, v{A+2*j}, v{A+2*j+1}") for j in range(4)]
        if not flag('noout'): L += [I(f"buffer_store_dwordx4 {vr(84+4*pc)}, v{vXa}, {sr(sOUT)}, s74 offen offset:{pc*32} {val('outf', '').replace('_', ' ')}")]
    L += stamp_out(17) + [I("s_endpgm")]
    return L

def l2_warm(with_ctx):
    G = []
    if with_ctx: G.append([pf_load(214, 215, sWS, f"s{sCL}", LD)])
    G.append([I(f"s_add_u32 s{sT}, s{sHLo}, 3072"), pf_load(214, 216, sWS, f"s{sT}", LD)])
    G.append([I(f"s_add_u32 s{sT}, s{sHHo}, 3072"), pf_load(214, 216, sWS, f"s{sT}", LD)])
    G.append([I(f"s_lshr_b32 s{sT}, s2, 3"), I(f"s_lshl_b32 s{sT}, s{sT}, 14"), I(f"s_add_u32 s{sT}, s{sT}, s{sW4096}"),
              I(f"s_lshl_b32 s{sT3}, s{sXcd}, 19"), I(f"s_add_u32 s{sT}, s{sT}, s{sT3}"), pf_load(214, 217, sWO, f"s{sT}")])
    return G
def warm_consts():
    return [I(f"v_bfe_u32 v215, v{vL16}, 4, 5"), I(f"v_lshlrev_b32 v215, 7, v215"), I(f"v_lshrrev_b32 v216, 9, v{vL16}"),
            I(f"v_lshlrev_b32 v217, 2, v{vL16}"),
            I(f"v_mad_u32_u24 v218, v216, s{sT3}, v215"), I(f"v_lshl_add_u32 v215, v216, 17, v215"), I(f"v_mov_b32 v216, v218")]
def bbm_pf():
    d = {}
    if not flag('nopf3'): d[2] = code_pf2()[1][:1]; d[4] = code_pf2()[1][1:]
    return d

def build():
    P = P1.prologue()
    P, lgq, vmq = finish(P, name="pro")
    aK, bK = P1.engine(False); aV, bV = P1.engine(True)
    assert text(bK).replace("PL_", "").count("\n") == text(bV).count("\n")
    aK, lq1, vq1 = finish(aK, lgq, vmq, P, name="engK")
    aV, lq2, vq2 = finish(aV, lgq, vmq, P, name="engV")
    assert lq1 == lq2 and [x[1] for x in vq1] == [x[1] for x in vq2] and [x[0] for x in vq1] == [x[0] for x in vq2]
    B, lq, vq = finish(bK + first_tile(), lq1, vq1, aK, name="engB")
    B2, _, _ = finish(bK + first_tile(), lq1, vq1, aV, name="engB'")
    assert len(B) == len(B2)
    Q0 = [set(regs_in(ar(RING + f*4))) for f in range(NPRE)]
    if not OPT.prof: assert lq == Q0, lq
    aame_dma = [(2, g) for s in range(4) for g in w3_dma(s)]
    raw = {
        'AAe': step('A', 'A', 0, 1, name='AAe'), 'AAo': step('A', 'A', 1, 1, name='AAo'),
        'AAmo': step('A', 'A', 1, 1, mask=[(0, 0, None), (2, 1, None)], name='AAmo'),
        'AAme': step('A', 'A', 0, 2, mask=[(0, 2, None), (2, 3, None)], xwait=16, name='AAme', extra_dma=aame_dma),
        'ABm': step('A', 'B', 1, 2, mask=[(k, k, sOffB) for k in range(4)], xwait=8, name='ABm', extra_post={3: flag_store(1), 45: [poll_issue(vPo, vF2, sWS, "0")]}),
        'BBe': step('B', 'B', 0, 2, name='BBe'), 'BBo': step('B', 'B', 1, 2, name='BBo'),
        'BBm': step('B', 'B', 1, 0, mask=[(k, k, None) for k in range(4)], xwait=0, name='BBm', extra_post=bbm_pf()),
        'FINL': stamp(11) + finl_block() + stamp(12) + [I(f"s_sub_u32 s{sCnt}, 6, s{sI}"), I("s_cbranch_scc1 F_Bend")],
    }
    for k, b in enumerate(bbf_steps()): raw[f'BBf{k}'] = b
    preds = {'AAe': ['PRO', 'AAo'], 'AAo': ['AAe'], 'AAmo': ['AAe'], 'AAme': ['PRO', 'AAmo'], 'ABm': ['AAme'], 'FINL': ['ABm'],
             'BBf0': ['ABm'], 'BBf1': ['BBf0'], 'BBf2': ['BBf1'], 'BBf3': ['BBf2'],
             'BBe': ['FINL', 'BBo', 'BBf3'], 'BBo': ['BBe'], 'BBm': ['BBe']}
    done = {'PRO': B}
    for nm in ['AAe', 'AAo', 'AAmo', 'AAme', 'ABm', 'FINL', 'BBf0', 'BBf1', 'BBf2', 'BBf3', 'BBe', 'BBo', 'BBm']:
        outs = [finish(raw[nm], Q0, None, done.get(pr) or raw[pr], name=nm + "<-" + pr, vm=False) for pr in preds[nm]]
        best = max(outs, key=lambda o: len(o[0]))
        done[nm] = best[0]
        if not OPT.prof: assert best[1] == Q0, (nm, best[1])
    tails = []; P4 = []; p4raw = p4()
    for nH in (NE, 14 - NE):
        ep = {26: [needvm('cs0')] + flag_store(2)}
        if nH > 7: ep[29] = [I(f"s_movk_i32 s{sCc2}, 2048"), poll_issue(vMx[0], vF2, sWS, f"s{sCc2}")]
        bend = step('B', None, 0, 0, name='Bend', extra_dma=[(1, g) for s in bend_stages(nH) for g in w3_dma(s)], extra_valu=bend_valu(), extra_post=ep)
        k = [j for j, x in enumerate(bend) if x.kind == 'mfma'][0]
        tailraw = bend[:k] + bend_pre() + bend[k:] + p3(nH)
        outs = [finish(tailraw, Q0, [(set(), 'cs0')] + [(set(regs_in(ar(bslot(1, b)))), None) for b in (2, 3)], done[pr], name="tail<-" + pr) for pr in ('FINL', 'BBm')]
        best = max(outs, key=lambda o: len(o[0]))
        tails.append(best[0])
        P4.append(finish(p4raw, best[1], best[2], best[0], name="p4")[0])
    assert text(P4[0]) == text(P4[1])
    loopx = lambda lab: f" s_sub_u32 s{sCnt}, s{sCnt}, 1\n s_cbranch_scc1 {lab}\n"
    body = text(P) + "\n" + text(aK) + "\n s_branch F_J\nF_V:\n" + text(aV) + "\nF_J:\n" + text(B) + "\n"
    body += f".p2align {val('al', 3)}\nF_AAe:\n" + text(done['AAe']) + "\n" + loopx("F_AAmo") + text(done['AAo']) + "\n s_branch F_AAe\n"
    body += "F_AAmo:\n" + text(done['AAmo']) + "\nF_AAme:\n" + text(done['AAme']) + "\n" + text(done['ABm']) + "\n"
    if flag('bbf'):
        body += f" s_cmp_gt_u32 s{sI}, 4\n s_cbranch_scc1 F_FINL\n" + text(stamp(11) + stamp(12)) + "\n"
        for k in range(4): body += text(done[f'BBf{k}']) + "\n"
        body += f" s_sub_u32 s{sCnt}, 4, s{sI}\n s_branch F_BBe\nF_FINL:\n"
    body += text(done['FINL']) + "\n"
    body += f".p2align {val('al', 3)}\nF_BBe:\n" + text(done['BBe']) + "\n" + loopx("F_BBm") + text(done['BBo']) + "\n s_branch F_BBe\n"
    body += "F_BBm:\n" + text(done['BBm']) + f"\nF_Bend:\n s_bitcmp1_b32 s{sXcd}, 0\n s_cbranch_scc1 F_Bodd\n" + text(tails[0]) + "\n s_branch F_P4\nF_Bodd:\n" + text(tails[1]) + "\nF_P4:\n" + text(P4[0]) + "\n"
    for typ in 'AB':
        for p in range(2): body += text(rare_redo(typ, p)) + "\n"
    for cur, nxt, p in (('A', 'A', 0), ('A', 'A', 1), ('A', 'B', 1), ('B', 'B', 0), ('B', 'B', 1), ('B', None, 0)):
        body += text(rare_stub(cur, nxt, p)) + "\n"
    hdr = open(f"cdna_kernels/{NAME}.s.ref").read().split("; Override")[0]
    kname = NAME + "_kernel"
    if "--list" in sys.argv: hdr += f"; @launch kernel={kname} grid=(256,1,1) block=(256,1,1) lds=163840\n"
    else: hdr += "; @launch grid=(256,1,1) block=(256,1,1) lds=163840\n"
    doc = """; ---------------------------------------------------------------------------------------------
; Hand-offs: write-through stores, vmcnt wait, then a word tagged with a per-launch epoch; readers poll
; ---------------------------------------------------------------------------------------------
"""
    return hdr + doc + '.amdgcn_target "amdgcn-amd-amdhsa--gfx950"\n' + kernel_text(kname, body, 512, 256)

if __name__ == "__main__":
    OPT.prof = "--prof" in sys.argv
    if "-q" in sys.argv: OPT.verbose = 0
    open(sys.argv[1], "w").write(build())
```

```python
from f_common import *
import f_p1 as P1
from f_p1 import QF, kv_dma, sKt, sKm, sVt, sVm, sCL, sCH, vL16, vKVd, qconv

THRESH = 2.0**30
sCnt, sKey, sKr, sVr, sThr, sOffA, sOffB = range(74, 81)
sRet2 = 100
sRet = 82; MK = [84, 86, 88, 98]
sWoO, sW2o, sHLo, sHHo, sPo, sCc, sCc2 = 76, 3, 4, 5, 80, 81, 90
sFb = 97
sSib = [84, 85, 86]
sWoS = [87, 88, 89]
NEG = [128, 144]; T0 = 160
vK, vV, vL16V = 192, 193, 194
Lr = [[196, 197], [198, 199]]; vMx = [200, 201]; vF = [202, 203]; vThr, vNinf, vTm = 204, 205, 206
vPo, vF2, vF3, vZ, vFl = 207, 208, 209, 210, 211
vWtrA, vWtrB, vWd3, vC2, vH2 = 212, 216, 220, 221, 195
PKT = 226
OA = lambda qb, db: (qb*4 + db)*16
RING = 192
NPRE = 8

def blk_q(typ, blk): return (blk % 2) if typ == 'A' else 1
def qk_mfmas(typ, S):
    L = []
    if typ == 'A':
        for kb in range(2):
            for ks in range(8):
                for qb in range(2):
                    d = vr(S + (2*kb + qb)*16, 16)
                    L.append((d, kb*8 + ks, ar(QF(qb, ks)), d if ks else vr(NEG[qb], 16)))
    else:
        for kb in range(4):
            for ks in range(8):
                d = vr(S + kb*16, 16)
                L.append((d, kb*8 + ks, ar(QF(1, ks)), d if ks else vr(NEG[1], 16)))
    return L
def pv_mfmas(typ, S):
    L = []
    if typ == 'A':
        for ks4 in range(4):
            for db in range(4):
                for qb in range(2):
                    d = ar(OA(qb, db), 16)
                    L.append((d, ks4*4 + db, vr(S + (2*(ks4//2) + qb)*16 + 8*(ks4 % 2)), d))
    else:
        for ks8 in range(8):
            for db in range(4):
                d = ar(OA(1, db), 16)
                L.append((d, ks8*4 + db, vr(S + (ks8//2)*16 + 8*(ks8 % 2)), d))
    return L
def expblk(S, qb, first):
    lp = Lr[qb][1]
    E = []; C = []
    for j in range(8):
        a, b = S + 2*j, S + 2*j + 1
        E.append([I(f"v_exp_f32 v{a}, v{a}"), I(f"v_exp_f32 v{b}, v{b}")])
        cv = I(f"v_cvt_pk_bf16_f32 v{S + 8*(j//4) + j % 4}, v{a}, v{b}")
        if first and j == 0: C.append([I(f"v_add_f32 v{lp}, v{a}, v{b}"), cv])
        elif flag('tree'): C.append([I(f"v_add_f32 v{vMx[1]}, v{a}, v{b}"), cv, I(f"v_add_f32 v{lp}, v{lp}, v{vMx[1]}")])
        elif (S + 8*(j//4) + j % 4) in (a, b): C.append([I(f"v_add_f32 v{lp}, v{lp}, v{a}"), I(f"v_add_f32 v{lp}, v{lp}, v{b}"), cv])
        else: C.append([I(f"v_add_f32 v{lp}, v{lp}, v{a}"), cv, I(f"v_add_f32 v{lp}, v{lp}, v{b}")])
    L = []
    if flag('nodelay'):
        for j in range(8): L += E[j] + C[j]
    else:
        L += E[0]
        for j in range(8):
            if j + 1 < 8: L += E[j+1][:1] + C[j][:1] + E[j+1][1:] + C[j][1:]
            else: L += C[j]
    return L
def blk_first(typ, blk): return blk < 2 if typ == 'A' else blk == 0
def maxblk(S, mx, first):
    L = []; r = list(range(S, S + 16))
    if first: L.append(I(f"v_max3_f32 v{mx}, v{r[0]}, v{r[1]}, v{r[2]}")); r = r[3:]
    while len(r) >= 2: L.append(I(f"v_max3_f32 v{mx}, v{mx}, v{r[0]}, v{r[1]}")); r = r[2:]
    if r: L.append(I(f"v_max_f32 v{mx}, v{mx}, v{r[0]}"))
    return L
def maskblk(S, kbg, soff=None):
    L = []
    if soff is not None:
        L.append(I(f"v_add_u32 v{vTm}, s{soff}, v{vThr}"))
        if kbg: L.append(I(f"v_subrev_u32 v{vTm}, {32*kbg}, v{vTm}"))
        t = vTm
    elif kbg: L.append(I(f"v_subrev_u32 v{vTm}, {32*kbg}, v{vThr}")); t = vTm
    else: t = vThr
    for r0 in range(0, 16, 4):
        L += [I(f"v_cmp_le_i32 s[{MK[k]}:{MK[k]+1}], {8*((r0+k)//4) + (r0+k) % 4}, v{t}") for k in range(4)]
        L += [I(f"v_cndmask_b32 v{S+r0+k}, v{vNinf}, v{S+r0+k}, s[{MK[k]}:{MK[k]+1}]") for k in range(4)]
    return L
def xmax(v, t): return [I(f"v_mov_b32 v{t}, v{v}"), I(f"v_permlane32_swap_b32 v{v}, v{t}"), I(f"v_max_f32 v{v}, v{v}, v{t}")]
def kread(f, slot): return I(f"ds_read_b128 {ar(RING + (slot % 16)*4)}, v{vK} offset:{f*1024}")
def vread(f, slot): return I(f"ds_read_b128 {ar(RING + (slot % 16)*4)}, v{vV} offset:{f*1024}")
def kv_dma2(which):
    srd_, t, m = (sKS, sKt, sKm) if which == 'K' else (sVS, sVt, sVm)
    base = 0 if which == 'K' else 0x10000
    d = lambda so: [I(f"buffer_load_dwordx4 v{vKVd}, {sr(srd_)}, s{so} offen offset:{1024*b} {val('kvld', LD).replace('_', ' ')} lds") for b in range(4)]
    return [[I(f"s_add_u32 m0, s{m}, {base:#x}")] + d(t),
            [I(f"s_add_u32 m0, s{m}, {base + 0x4000:#x}"), I(f"s_add_u32 s{sT2}, s{t}, {TS}"),
             I(f"s_add_u32 s{t}, s{t}, {2*TS}"), I(f"s_xor_b32 s{m}, s{m}, 0x8000")] + d(sT2)]

uid = [0]
def step(cur, nxt, p, kadv, mask=None, xwait=16, name="", extra_dma=None, extra_valu=None, extra_post=None, extra_h1=None):
    uid[0] += 1; u = uid[0]
    Sc, Sn = 64*p, 64*(1 - p)
    mf = []; use = []
    qk = qk_mfmas(nxt, Sn) if nxt else []
    nK = (16 if nxt == 'A' else 32) if nxt else 0
    for d, f, q, cin in qk:
        mf.append(I(f"{M32} {d}, {ar(RING + (f % 16)*4)}, {q}, {cin}")); use.append(f)
    for d, f, pf, cin in pv_mfmas(cur, Sc):
        mf.append(I(f"{M32} {d}, {ar(RING + ((nK + f) % 16)*4)}, {pf}, {cin}")); use.append(nK + f)
    nV = 16 if cur == 'A' else 32
    NG = len(mf); fu = {}
    for g, f in enumerate(use): fu.setdefault(f, g)
    post = {}; dmaq = []
    def addpost(g, items): post.setdefault(g, []).extend(items)
    D = val('D', 8); BO = val('bo', 3)
    hasY = nxt is not None and (cur == 'B' or nxt == 'B')
    pre = []
    ring = lambda f: regs_in(ar(RING + (f % 16)*4))
    for f in range(0, nK + nV, 2):
        if fu[f] > 0: addpost(fu[f] - 1, [needlg(ring(f) + ring(f + 1))])
    last = -2
    for f in range(NPRE if nxt else 0, nK, 2):
        last = max(fu[f] - D, last + 1, 0)
        addpost(last, [kread(f, f), kread(f + 1, f + 1)])
    vadv = [I(f"v_add_u32 v{vV}, s{sVr}, v{vL16V}"),
            I(f"s_add_u32 s{sVr}, s{sVr}, {0x4000 if cur == 'A' else 0x8000}"), I(f"s_and_b32 s{sVr}, s{sVr}, 0xffff")]
    vf0 = 0
    if nxt is None:
        pre += vadv[:1] + [vread(f, nK + f) for f in range(8)]; vf0 = 8
    else:
        addpost(last + 1, vadv)
        if hasY:
            gY = last + BO
            addpost(gY, [I("s_waitcnt vmcnt(16) lgkmcnt(0)" if cur == 'B' else "s_waitcnt lgkmcnt(0)"), I("s_barrier")])
            last = gY
        else: last = last + 1
    for f in range(vf0, nV, 2):
        last = max(fu[nK + f] - D, last + 1, 0)
        addpost(last, [vread(f, nK + f), vread(f + 1, nK + f + 1)])
    gX = NG
    if nxt is not None:
        gX = last + BO
        addpost(gX - 1, [I(f"v_add_u32 v{vK}, s{sKr}, v{vL16}")] +
                ([I(f"s_add_u32 s{sKr}, s{sKr}, {kadv*0x4000}"), I(f"s_and_b32 s{sKr}, s{sKr}, 0xffff")] if kadv else []))
        addpost(gX, [I(f"s_waitcnt vmcnt({xwait}) lgkmcnt(0)"), I("s_barrier")])
        gs = [gX + 1, gX + 2, gX + 4, gX + 6] if gX + 6 < NG else [gX + 1, gX + 2, gX + 3, gX + 4]
        assert gs[-1] < NG, (name, gX, NG)
        for j in range(NPRE // 2): addpost(gs[j], [kread(2*j, 2*j), kread(2*j + 1, 2*j + 1)])
    dstep = 2
    if cur == 'A' and nxt == 'A': dmaq = [(1, kv_dma('K')), (1, kv_dma('V'))]; dstep = 3 if extra_dma else 4
    elif cur == 'A' and nxt == 'B': dmaq = [(1, kv_dma('K'))] + [(gY + 2, x) for x in kv_dma2('K')]
    elif cur == 'B' and nxt == 'B':
        dmaq = [(0, x) for x in kv_dma2('V')]
        if not mask: dmaq += [(gY + 3, x) for x in kv_dma2('K')]
    if extra_dma: dmaq += extra_dma
    for g, it in (extra_post or {}).items(): addpost(g, it)
    if dmaq:
        endg = place_dma(dmaq, addpost, step=dstep)
        assert endg - dstep < gX, (name, endg, gX)
        if hasY and cur == 'B': assert max(g for g, l in post.items() if any(x.kind == 'dma' and sr(sVS) in x.txt for x in l)) < gY
    valu = []
    def add(mg, items):
        for it in items: valu.append((mg, it))
    H1 = len(qk)
    for blk in (2, 3): add(0, expblk(Sc + 16*blk, blk_q(cur, blk), False))
    done = {}
    for g, (d, f, q, cin) in enumerate(qk): done[d] = g
    mdict = {m[0]: m for m in (mask or [])}
    def domask(blk):
        if blk in mdict: add(done[vr(Sn + 16*blk, 16)] + 3, maskblk(Sn + 16*blk, mdict[blk][1], mdict[blk][2]))
    domask(0); domask(1)
    add(0, extra_h1 or [])
    qbs = (0, 1) if cur == 'A' else (1,)
    if cur == 'A': add(0, [I(f"v_max_f32 v{vMx[0]}, v{Lr[0][1]}, v{Lr[1][1]}")])
    add(max(H1 - 1, 0), [I(f"v_cmp_lt_f32 vcc, s{sThr}, v{vMx[0] if cur == 'A' else Lr[1][1]}"),
            [I(f"s_cbranch_vccz F_c{u}"), I(f"s_call_b64 s[{sRet}:{sRet+1}], F_X{cur}{nxt or 'n'}{p}"), I(f"F_c{u}:")]])
    force = {H1: len(valu) - 1}
    add(0, [I(f"v_add_f32 v{Lr[q][0]}, v{Lr[q][0]}, v{Lr[q][1]}") for q in qbs])
    if nxt is not None:
        add(0, [I(f"s_add_u32 s{sKey}, s{sKey}, {64 if cur == 'A' else 128}")])
        add(0, expblk(Sn, blk_q(nxt, 0), True))
        domask(2); domask(3)
        add(done[vr(Sn + 16, 16)] + 3, expblk(Sn + 16, blk_q(nxt, 1), blk_first(nxt, 1)))
    add(0, extra_valu or [])
    def budget(g, pp):
        nd = sum(1 for x in pp if x.kind == 'dsr'); nm = sum(1 for x in pp if x.kind in ('dma', 'vld', 'vst'))
        return max(val('bud', 6) - max(0, len(pp) - 1) - (1 if nd else 0) - (val('dmac', 1) if nm else 0), 0)
    if flag('halfrd') and cur == 'B' and nxt == 'B':
        for g in post:
            rd = [x for x in post[g] if x.kind == 'dsr']
            if len(rd) == 2 and g < gX: post[g].remove(rd[1])
    if flag('noexp'):
        valu = [v for v in valu if isinstance(v[1], list) or v[1].op != 'v_exp_f32']
    if flag('nodma') and nxt:
        for g in post: post[g] = [x for x in post[g] if x.kind != 'dma']
    body, left = weave(mf, post, valu, budget, flush_dep=True, force=force if not flag('noexp') else None)
    tail = []
    if OPT.verbose: print(f"[step {name}] leftover valu {left}", file=sys.stderr)
    return pre + body + tail

def finalize(qb, sbase, inter=None, tag='cst'):
    l0, l1 = Lr[qb]; inter = list(inter or [])
    l1 = vTm
    L = [I(f"v_mov_b32 v{l1}, v{l0}"), I(f"v_permlane32_swap_b32 v{l0}, v{l1}"),
         I(f"v_add_f32 v{l0}, v{l0}, v{l1}"), I(f"v_rcp_f32 v{l0}, v{l0}"), I(f"s_add_u32 s{sFb}, s{sbase}, 0x20000")]
    for db in range(4):
        t = T0 + (db % 2)*16; A = PKT + (db % 2)*8; B = A + 4
        for r0 in range(0, 16, 4):
            L += [I(f"v_accvgpr_read_b32 v{t+r}, a{OA(qb, db)+r}") for r in range(r0, r0 + 4)]
            if inter: L += inter.pop(0)
        for r0 in range(0, 16, 4):
            L += [I(f"v_mul_f32 v{t+r}, v{t+r}, v{l0}") for r in range(r0, r0 + 4)]
            if inter: L += inter.pop(0)
        for pc, T in ((0, A), (1, B)):
            L += [I(f"v_cvt_pk_bf16_f32 v{T}, v{t+4*pc}, v{t+4*pc+1}"), I(f"v_cvt_pk_bf16_f32 v{T+1}, v{t+4*pc+2}, v{t+4*pc+3}"),
                  I(f"v_cvt_pk_bf16_f32 v{T+2}, v{t+8+4*pc}, v{t+8+4*pc+1}"), I(f"v_cvt_pk_bf16_f32 v{T+3}, v{t+8+4*pc+2}, v{t+8+4*pc+3}")]
        L += [I(f"v_permlane32_swap_b32 v{A+j}, v{B+j}") for j in range(4)]
        L += [I(f"v_permlane16_swap_b32 v{A+j}, v{B+j}") for j in range(4)]
        L += [I(f"buffer_store_dwordx4 {vr(A)}, v{vL16}, {sr(sWS)}, s{sbase} offen offset:{db*1024} {ST}", tag=('vm', tag)),
              I(f"buffer_store_dwordx4 {vr(B)}, v{vL16}, {sr(sWS)}, s{sFb} offen offset:{db*1024} {ST}", tag=('vm', tag))]
        L += [I(f"v_accvgpr_write_b32 a{16*db + 8*qb + j}, v{A+j}") for j in range(8)]
    for g in inter: L += g
    return L

def fin_parts(qb, sbase):
    l0 = Lr[qb][0]; l1 = vF[0]; t = T0; A = PKT; B = A + 4
    head = [I(f"v_mov_b32 v{l1}, v{l0}"), I(f"s_add_u32 s{sFb}, s{sbase}, 0x20000"), I(f"v_permlane32_swap_b32 v{l0}, v{l1}"),
            I(f"v_add_f32 v{l0}, v{l0}, v{l1}"), I(f"v_rcp_f32 v{l0}, v{l0}")]
    parts = []
    for db in range(4):
        p1 = [I(f"v_accvgpr_read_b32 v{t+r}, a{OA(qb, db)+r}") for r in range(16)] + [I(f"v_mul_f32 v{t+r}, v{t+r}, v{l0}") for r in range(16)]
        p2 = []
        for pc, T in ((0, A), (1, B)):
            p2 += [I(f"v_cvt_pk_bf16_f32 v{T}, v{t+4*pc}, v{t+4*pc+1}"), I(f"v_cvt_pk_bf16_f32 v{T+1}, v{t+4*pc+2}, v{t+4*pc+3}"),
                   I(f"v_cvt_pk_bf16_f32 v{T+2}, v{t+8+4*pc}, v{t+8+4*pc+1}"), I(f"v_cvt_pk_bf16_f32 v{T+3}, v{t+8+4*pc+2}, v{t+8+4*pc+3}")]
        p2 += [I(f"v_permlane32_swap_b32 v{A+j}, v{B+j}") for j in range(4)] + [I(f"v_permlane16_swap_b32 v{A+j}, v{B+j}") for j in range(4)]
        p2 += [I(f"buffer_store_dwordx4 {vr(A)}, v{vL16}, {sr(sWS)}, s{sbase} offen offset:{db*1024} {ST}"),
               I(f"buffer_store_dwordx4 {vr(B)}, v{vL16}, {sr(sWS)}, s{sFb} offen offset:{db*1024} {ST}")]
        p2 += [I(f"v_accvgpr_write_b32 a{16*db + 8*qb + j}, v{A+j}") for j in range(8)]
        parts.append((p1, p2))
    return head, parts

def rare_redo(typ, p):
    S = 64*p; T = T0 + 16
    L = [I(f"F_R{typ}{p}:"), I("s_nop 15"), I(f"s_mul_i32 s{sT3}, s{sKey}, {TS // 64}")]
    qk = qk_mfmas(typ, S)
    nf = 16 if typ == 'A' else 32
    for f0 in range(0, nf, 4):
        L += [I(f"s_add_u32 s{sOffA}, s{sT3}, {(f0 % 16)*1024 + (f0 // 16)*TS}")]
        L += [I(f"buffer_load_dwordx4 {vr(T + 4*k)}, v{vL16}, {sr(sKS)}, s{sOffA} offen offset:{1024*k} {LD}") for k in range(4)]
        L += [I("s_waitcnt vmcnt(0)")]
        L += [I(f"{M32} {d}, {vr(T + 4*(f - f0))}, {q}, {cin}") for d, f, q, cin in qk if f0 <= f < f0 + 4]
        L += [I("s_nop 7")]
    for qb in ((0, 1) if typ == 'A' else (1,)):
        blks = [b for b in range(4) if blk_q(typ, b) == qb]; m = vMx[qb]
        L += [I(f"s_lshl_b32 s{sOffA}, s{sI}, 7")] if qb == 0 else [I(f"s_sub_u32 s{sOffA}, 15, s{sI}"), I(f"s_lshl_b32 s{sOffA}, s{sOffA}, 7")]
        L += [I(f"s_sub_u32 s{sOffA}, s{sOffA}, s{sKey}")]
        for k, b in enumerate(blks): L += maskblk(S + 16*b, k, sOffA)
        for k, b in enumerate(blks): L += maxblk(S + 16*b, m, k == 0)
        L += xmax(m, vTm) + [I(f"v_max_f32 v{m}, 0, v{m}"), I(f"v_exp_f32 v{vF[qb]}, -v{m}")]
        for b in blks: L += [I(f"v_sub_f32 v{S+16*b+r}, v{S+16*b+r}, v{m}") for r in range(16)]
        L += [I(f"v_sub_f32 v{NEG[qb]+r}, v{NEG[qb]+r}, v{m}") for r in range(16)]
        L += [I(f"v_mul_f32 v{Lr[qb][0]}, v{Lr[qb][0]}, v{vF[qb]}")]
        for k, b in enumerate(blks): L += expblk(S + 16*b, qb, k == 0)
        for r0 in range(0, 64, 8):
            a = qb*64 + r0
            L += [I(f"v_accvgpr_read_b32 v{T+k}, a{a+k}") for k in range(8)]
            L += [I(f"v_mul_f32 v{T+k}, v{T+k}, v{vF[qb]}") for k in range(8)]
            L += [I(f"v_accvgpr_write_b32 a{a+k}, v{T+k}") for k in range(8)]
    L += [I("s_nop 1"), I(f"s_setpc_b64 s[{sRet2}:{sRet2+1}]")]
    return pad_hazards(L)[0]
def rare_stub(cur, nxt, p):
    L = [I(f"F_X{cur}{nxt or 'n'}{p}:"), I(f"s_call_b64 s[{sRet2}:{sRet2+1}], F_R{cur}{p}")]
    if nxt:
        S = 64*(1 - p)
        for b in range(4): L += [I(f"v_sub_f32 v{S+16*b+r}, v{S+16*b+r}, v{vMx[blk_q(nxt, b)]}") for r in range(16)]
    L += [I("s_nop 1"), I(f"s_setpc_b64 s[{sRet}:{sRet+1}]")]
    return pad_hazards(L)[0]

def first_tile():
    P = stamp(9) + [I("s_waitcnt lgkmcnt(0)"), needvm('kv0', 'kv1', 'kv2'), I("s_barrier"),
         I(f"v_mov_b32 v{vK}, v{vL16}")]
    P += [kread(f, f) for f in (0, 8, 1, 9, 2, 10, 3, 11)]
    mf = []; post = {}
    order = [(ks, kb) for ks in range(8) for kb in range(2)]
    for k, (ks, kb) in enumerate(order):
        f = kb*8 + ks
        for qb in range(2):
            d = vr((2*kb + qb)*16, 16)
            mf.append(I(f"{M32} {d}, {ar(RING + f*4)}, {ar(QF(qb, ks))}, {d if ks else 0}"))
        if k + 8 < 16:
            ks2, kb2 = order[k + 8]; post.setdefault(2*k, []).append(kread(kb2*8 + ks2, kb2*8 + ks2))
    P += [I(f"v_bfe_u32 v{vF3}, v{vL16}, 4, 4"), I(f"v_lshlrev_b32 v{vF3}, 7, v{vF3}")]
    dq = [(1, kv_dma('K')), (1, kv_dma('V')), (1, [poll_issue(vPo, vF3, sWS, "s0")])]
    place_dma(dq, lambda g, it: post.setdefault(g, []).extend(it), step=2)
    valu = []
    for c in range(4):
        for qb in range(2): valu += [(0, x) for x in qconv(6, qb, c)]
    ln = 248
    C = [I(f"v_add_u32 v{vL16V}, 0x10000, v{vL16}"), I(f"v_lshrrev_b32 v{ln}, 4, v{vL16}"),
         I(f"s_mov_b32 s{sKey}, 0"), I(f"s_mov_b32 s{sThr}, {f32(THRESH)}"),
         I(f"s_lshl_b32 s{sOffB}, s{sI}, 8"), I(f"s_sub_u32 s{sOffB}, {128*14}, s{sOffB}"),
         I(f"v_and_b32 v{ln+1}, 31, v{ln}"), I(f"v_lshrrev_b32 v{ln+2}, 5, v{ln}"),
         I(f"v_lshl_add_u32 v{vThr}, s{sWave}, 5, v{ln+1}"), I(f"v_lshlrev_b32 v{ln+2}, 2, v{ln+2}"), I(f"v_sub_u32 v{vThr}, v{vThr}, v{ln+2}"),
         I(f"v_mov_b32 v{vNinf}, 0xff800000"), I(f"s_mov_b32 s{sKr}, 0x8000"), I(f"s_mov_b32 s{sVr}, 0")]
    C += [I(f"v_mov_b32 v{r}, 0") for r in (196, 198, 244, 245, 246, 247)] + consts_early(ln)
    valu += [(22, x) for x in C]
    body, _ = weave(mf, post, valu, lambda g, p: 5 if len(p) < 2 else 3, flush_dep=True)
    P += body
    P += [I(f"v_add_u32 v{vK}, 0x4000, v{vL16}")]
    P += [kread(f, f) for f in range(NPRE)]
    if not flag('pfo_old'):
        P += [I(f"v_lshlrev_b32 v250, 2, v{vL16}"), I(f"v_lshlrev_b32 v251, 1, v{vL16}"),
              I(f"s_lshl_b32 s{sT}, s2, 14"), I(f"s_add_u32 s{sT}, s{sT}, s{sW4096}"), pf_load(252, 250, sWO, f"s{sT}"),
              I(f"s_mul_i32 s{sT}, s2, 7168"), I(f"s_mul_i32 s{sT2}, s{sWave}, 1792"), I(f"s_add_u32 s{sT}, s{sT}, s{sT2}"), pf_load(252, 251, sW2, f"s{sT}")]
    P += [I(f"s_cmp_lg_u32 s{sI}, 0"), I("s_cbranch_scc1 F_nomask"), I("s_nop 7")]
    for kb in range(2): P += maskblk(16*(2*kb), kb)
    P += [I("F_nomask:")]
    X = []
    for qb in range(2): X += maxblk(16*qb, vMx[qb], True) + maxblk(16*(2 + qb), vMx[qb], False)
    X += [I(f"v_mov_b32 v{vTm}, v{vMx[0]}"), I(f"v_mov_b32 v{vF[0]}, v{vMx[1]}"), I("s_nop 0"),
          I(f"v_permlane32_swap_b32 v{vMx[0]}, v{vTm}"), I(f"v_permlane32_swap_b32 v{vMx[1]}, v{vF[0]}"),
          I(f"v_max_f32 v{vMx[0]}, v{vMx[0]}, v{vTm}"), I(f"v_max_f32 v{vMx[1]}, v{vMx[1]}, v{vF[0]}")]
    for qb in range(2):
        X += [I(f"v_sub_f32 v{NEG[qb] + r}, 0, v{vMx[qb]}") for r in range(16)]
        for blk in (qb, 2 + qb): X += [I(f"v_sub_f32 v{16*blk + r}, v{16*blk + r}, v{vMx[qb]}") for r in range(16)]
    for blk in (0, 1): X += expblk(16*blk, blk, True)
    zm = [I(f"{M32} {ar(16*k, 16)}, v[244:247], v[244:247], 0") for k in range(8)]
    body, _ = weave(zm, {}, [(0, x) for x in X], lambda g, p: 7)
    P += body
    P += poll_check(vPo, vF3, sWS, "s0", 1, sT2, 63)
    P += stamp(10) + [I(f"s_sub_u32 s{sCnt}, s{sI}, 1"), I("s_cbranch_scc1 F_AAme")]
    return P

NE = val('nHe', 10); OW = 10; SB = 14
def w3_addr(s):
    if s < 4: return 131072 + 8192*s
    if s < OW: return 8192*(s - 4)
    if s < SB: return (49152, 57344, 0, 8192)[s - OW]
    return 65536 + 8192*(s - SB)
def bslot(s, b):
    if s < 2: return 32*s + 16*(b // 2) + 8 + 4*(b % 2)
    if s < OW: return 128 + 16*(s - 2) + 4*b
    if s < SB: return 16*(s - OW) + 4*b
    k = 2*(s - SB) + (b % 2)
    if b < 2: return 128 + 4*k
    return 64 + 4*k if k < 16 else 224 + 4*(k - 16)
def w3_dma(s):
    gs = []
    if s < OW: srd_, so, off = sW2, sW2o, s*32768
    elif s < SB: srd_, so, off = sWO, sWoO, (s - OW)*32768
    else: srd_, so, off = sWO, sWoS[(s - SB)//4], ((s - SB) % 4)*32768
    for h in range(2):
        gs.append([I(f"s_add_u32 m0, s{sW1024}, {w3_addr(s) + h*4096}"), I(f"s_add_u32 s{sT}, s{so}, {off + h*128}"),
                   I(f"buffer_load_dwordx4 v{vWd3}, {sr(srd_)}, s{sT} offen lds", tag=('vm', f'x{s}'))])
    return gs
def h_loads(s):
    L = []
    if s % 4 == 0: L += [I(f"s_add_u32 s{sCc}, s{sHLo}, {(s//4)*4096}"), I(f"s_add_u32 s{sCc2}, s{sHHo}, {(s//4)*4096}")]
    return L + [I(f"buffer_load_dwordx4 {ar(bslot(s, b))}, v{vH2 if b % 2 else vL16}, {sr(sWS)}, s{sCc2 if b >= 2 else sCc} offen offset:{(s % 4)*1024} {LD}") for b in range(4)]
def sib_loads(s, hi):
    t = (s - SB) % 4; L = []
    if t == 0: L += [I(f"s_add_u32 s{sCc}, s{sCH if hi else sCL}, s{sSib[(s-SB)//4]}")]
    return L + [I(f"buffer_load_dwordx4 {ar(bslot(s, 2*hi + b))}, v{vC2 if b else vL16}, {sr(sWS)}, s{sCc} offen offset:{t*1024} {LD}") for b in range(2)]
def first_unit(d, t):
    return [I(f"s_and_b32 s{t}, s{sXcd}, 1"), I(f"s_mul_i32 s{t}, s{t}, {NE - 7}"), I(f"s_mul_i32 s{d}, s{sXcd}, 7"), I(f"s_add_u32 s{d}, s{d}, s{t}")]
def flag_store(level): return [I(f"v_add_u32 v{vFl}, 1, v{vFl}"), I(f"buffer_store_dword v{vFl}, v{vZ}, {sr(sWS)}, s{sFlagMe} offen {ST}")]

def consts_early(ln):
    t = ln + 1; a, b = sCnt, sOffA
    return [I(f"v_mov_b32 v{vZ}, 0"), I(f"v_mov_b32 v{vFl}, s{sE}"),
            I(f"s_and_b32 s{a}, s{sFlagMe}, 0xfffffe00"),
            I(f"v_bfe_u32 v{t}, v{vL16}, 4, 2"), I(f"v_lshlrev_b32 v{t}, 7, v{t}"), I(f"v_add_u32 v{vF2}, s{a}, v{t}"),
            I(f"s_lshl_b32 s{a}, s{sWave}, 13"), I(f"s_lshl_b32 s{b}, s{sHl}, 8"), I(f"s_add_u32 s{a}, s{a}, s{b}"),
            *first_unit(sW2o, b), I(f"s_lshl_b32 s{sW2o}, s{sW2o}, 15"), I(f"s_add_u32 s{sW2o}, s{sW2o}, s{a}")] + \
           lane_wdma(vWd3, 1024, t, ln, natural=False, nblk=1)
def h_bases():
    L = [I(f"v_add_u32 v{vH2}, {56*1024}, v{vL16}")] + first_unit(sCc, sCc2)
    for d, c in ((sHLo, sCL), (sHHo, sCH)):
        L += [I(f"s_sub_u32 s{d}, s{c}, {WS_CTX:#x}"), I(f"s_lshr_b32 s{d}, s{d}, 17"), I(f"s_mul_i32 s{d}, s{d}, 56"),
              I(f"s_add_u32 s{d}, s{d}, s{sCc}"), I(f"s_lshl_b32 s{d}, s{d}, 10"), I(f"s_add_u32 s{d}, s{d}, {WS_H:#x}")]
    return L
def code_pf2():
    V, M = code_pf("F_Bend", "F_RA0", 250, 252, vL16)
    V = V[:3] + [I(f"s_and_b32 s{sOffA}, s{sXcd}, 1"), I(f"s_mul_i32 s{sOffA}, s{sOffA}, F_Bodd-F_Bend"), I(f"v_add_u32 v250, s{sOffA}, v250")] + V[3:]
    V2, M2 = code_pf("F_P4", "F_RA0", 251, 252, vL16)
    return V + V2, M + M2
NBF = val('nbf', 6)
def bbf_steps():
    head, parts = fin_parts(0, sCL)
    lds = {s: [x for x in h_loads(s) if x.kind != 'salu'] for s in range(4)}
    V, _ = code_pf2()
    flat = head + h_bases() + [I(f"s_mov_b32 s{sCc}, s{sHLo}"), I(f"s_mov_b32 s{sCc2}, s{sHHo}")] + parts[0][0] + parts[0][1] + V
    flat += parts[1][0] + parts[1][1] + lds[2] + parts[2][0] + lds[3] + parts[2][1] + lds[0] + parts[3][0] + parts[3][1] + lds[1]
    c = lambda x: 3 if x.kind in ('vld', 'vst') else cost(x)
    tot = sum(map(c, flat)); chunks = [[] for _ in range(2*NBF)]; acc = 0
    for x in flat:
        chunks[min(int(acc * 2*NBF / tot), 2*NBF - 1)].append(x); acc += c(x)
    firstld = min(k for k, ch in enumerate(chunks) if any(x.kind == 'vld' for x in ch))
    assert firstld >= 2
    out = []
    for k in range(NBF):
        post = {1: poll_check(vPo, vF2, sWS, "0", 1, sT3, 63) + [I(f"buffer_store_dword v{vFl}, v{vZ}, {sr(sWS)}, s{sFlagMe} offen {ST}")][:0]} if k == 1 else {}
        out.append(step('B', 'B', k % 2, 2, name=f'BBf{k}', extra_h1=chunks[2*k], extra_valu=chunks[2*k + 1], extra_post=post))
    return out
def finl_block():
    L = h_bases()
    L += [I("s_waitcnt vmcnt(0)"), I("s_barrier")] + poll_check(vPo, vF2, sWS, "0", 1, sT2, 63)
    inter = []
    pre2 = [I(f"s_mov_b32 s{sCc}, s{sHLo}"), I(f"s_mov_b32 s{sCc2}, s{sHHo}")]
    lds = [x for s in (2, 3, 0, 1) for x in h_loads(s) if x.kind != 'salu']
    for k, x in enumerate(lds): inter += [[x], []] if k < 8 else [[x], []]
    inter = inter[:16] + [[lds[8]], [], [lds[9]], [], [lds[10]], [], [lds[11]], []] + [[], [lds[12]], [], [lds[13]], [], [], [], []] + [[lds[14]], [lds[15]]]
    V, M = code_pf2()
    if flag('nopf3'): V, M = [], []
    return L + pre2 + V + M + finalize(0, sCL, inter, tag='cs0')
def bend_pre():
    L = [I(f"s_lshl_b32 s{sT}, s{sWave}, 13"), I(f"s_lshl_b32 s{sT2}, s{sHl}, 8"), I(f"s_add_u32 s{sT3}, s{sT}, s{sT2}"),
         I(f"s_lshl_b32 s{sT}, s{sXcd}, 19"), I(f"s_add_u32 s{sT}, s{sT}, s{sT3}"),
         I(f"s_lshl_b32 s{sT2}, s{sHl}, 17"), I(f"s_add_u32 s{sWoO}, s{sT}, s{sT2}")]
    for k in range(3):
        L += [I(f"s_add_u32 s{sT2}, s{sHl}, {k+1}"), I(f"s_and_b32 s{sT2}, s{sT2}, 3"),
              I(f"s_lshl_b32 s{sWoS[k]}, s{sT2}, 17"), I(f"s_add_u32 s{sWoS[k]}, s{sWoS[k]}, s{sT}"),
              I(f"s_sub_u32 s{sT2}, s{sT2}, s{sHl}"), I(f"s_lshl_b32 s{sSib[k]}, s{sT2}, 12")]
    return L
def bend_valu():
    t = T0; ln = T0 + 4
    L = [I(f"v_lshrrev_b32 v{ln}, 4, v{vL16}")] + lane_wtr(vWtrB, 0, t, ln, natural=False)
    L += [I(f"v_add_u32 v{vWtrA+c}, 131072, v{vWtrB+c}") for c in range(4)]
    L += [I(f"v_add_u32 v{vC2}, 0x20000, v{vL16}"),
          I(f"s_lshr_b32 s{sT3}, s2, 3"), I(f"s_lshl_b32 s{sT3}, s{sT3}, 2"), I(f"s_lshr_b32 s{sPo}, s{sXcd}, 1"), I(f"s_add_u32 s{sPo}, s{sT3}, s{sPo}"),
          I(f"s_lshl_b32 s{sPo}, s{sPo}, 10"), I(f"s_add_u32 s{sPo}, s{sPo}, {F3:#x}"),
          I(f"v_and_b32 v{t}, 7, v{ln}"), I(f"v_lshlrev_b32 v{t}, 7, v{t}"), I(f"v_add_u32 v{vF3}, s{sPo}, v{t}"),
          I(f"s_add_u32 s{sT3}, s{sT3}, s{sWave}"), I(f"s_lshl_b32 s{sT3}, s{sT3}, 3"), I(f"s_add_u32 s{sT3}, s{sT3}, s{sXcd}"),
          I(f"s_lshl_b32 s{sT3}, s{sT3}, 7"), I(f"s_add_u32 s1, s{sT3}, {F3:#x}"),
          I(f"s_mov_b32 s{sPo}, s2"),
          I(f"s_mul_i32 s{sPo}, s{sPo}, {8*PD}"), I(f"s_mul_i32 s{sT3}, s{sWave}, {2*PD}"), I(f"s_add_u32 s{sPo}, s{sPo}, s{sT3}"),
          I(f"s_add_u32 s{sPo}, s{sPo}, {WS_P:#x}")]
    return L

def p3(nH):
    RG = 128; NR = 8
    HS = list(range(nH)); OS = list(range(OW, SB)); SS = list(range(SB, SB + 12))
    seq = [(s, c8, (0, 1, 2, 3)) for s in HS + OS for c8 in range(8)]
    lo0 = len(seq)
    seq += [(s, c8, (0, 1)) for s in SS for c8 in range(8)] + [(s, c8, (2, 3)) for c8 in range(8) for s in SS]
    NF = len(seq)
    g0s = []; g = 0
    for e in seq: g0s.append(g); g += len(e[2])
    NGP = g; S0 = 8*(nH + 4)
    def w_reads(n):
        s, c8, _ = seq[n]; h, c = divmod(c8, 4); a = w3_addr(s) + h*4096; r = RG + (n % NR)*4
        if a >= 131072: va, off = vWtrA, a - 131072
        elif s < SB: va, off = vWtrB, a
        else: va, off = vWtrB, a - 65536
        return [I(f"ds_read_b64_tr_b16 {vr(r,2)}, v{va+c} offset:{off}"), I(f"ds_read_b64_tr_b16 {vr(r+2,2)}, v{va+c} offset:{off+2048}")]
    big = nH > 4
    L = stamp(13) + [I("s_waitcnt lgkmcnt(0)")] + ([needvm(*[f'x{k}' for k in range(4, min(nH, 8))])] if big else []) + [I("s_barrier")] + stamp(14)
    rd_at = {}
    for m in range(NF):
        n = m
        while n > 0 and m - n < 6 and g0s[m] - g0s[n] < val('p3pf', 14): n -= 1
        rd_at[m] = n if (g0s[m] - g0s[n] >= val('p3pf', 14) or m - n == 6) else -1
    for m in range(NF):
        if rd_at[m] < 0: L += w_reads(m)
    mf = []; post = {}; dmaq = []; valu = []
    def addpost(g, items): post.setdefault(g, []).extend(items)
    firstread = {}
    for m in range(NF): firstread.setdefault(seq[m][0], m)
    bars = {OW: OS, SB: SS[:6], SB + 6: SS[6:]}
    if nH > 8: bars[8] = range(8, nH)
    elif big: bars[nH - 1] = []
    for n, (s, c8, bs) in enumerate(seq):
        for b in bs:
            d = vr((c8*4 + b)*4)
            mf.append(I(f"{M16} {d}, {vr(RG + (n % NR)*4)}, {ar(bslot(s, b))}, {d if s else 0}"))
        if n + 1 < NF: addpost(g0s[n + 1] - 1, [needlg(regs_in(vr(RG + ((n + 1) % NR)*4)))])
    bargap = {}
    for sb, rng in bars.items():
        m = firstread[sb]; g = g0s[rd_at[m]] - 1; bargap[sb] = g
        addpost(g, ([needvm(*[f'x{k}' for k in rng])] if rng else []) + [I("s_barrier")] + stamp({OW: 54, SB: 57, SB + 6: 58}.get(sb, 52)))
    def free_after(s):
        last = max(g0s[m] + len(seq[m][2]) - 1 for m in range(NF) if seq[m][0] == s)
        return min(g for g in bargap.values() if g >= last)
    addpost(g0s[rd_at[lo0 - 1]] + 1, [I(f"v_add_u32 v{vWtrB+k}, 65536, v{vWtrB+k}") for k in range(2)])
    addpost(g0s[rd_at[lo0 - 1]] + 2, [I(f"v_add_u32 v{vWtrB+k}, 65536, v{vWtrB+k}") for k in range(2, 4)])
    for m in range(NF):
        if rd_at[m] >= 0: addpost(g0s[rd_at[m]], w_reads(m))
    rdg = set(g0s[rd_at[m]] for m in range(NF) if rd_at[m] >= 0)
    G = lambda grp: 4*grp
    for s in range(4, min(nH, 7)): dmaq.append((1, h_loads(s)))
    if nH > 7:
        addpost(G(11) + 1, [I(f"s_movk_i32 s{sT3}, 2048")] + poll_check(vMx[0], vF2, sWS, f"s{sT3}", 1, sT2, 63))
        for s in range(7, nH): dmaq.append((G(11) + 2, h_loads(s)))
    inb = bend_stages(nH)
    for s in OS:
        if s not in inb:
            prev = [t for t in HS if w3_addr(t) == w3_addr(s)]
            for g in w3_dma(s): dmaq.append((free_after(prev[0]) + 1 if prev else G(25), g))
    for k, s in enumerate(SS):
        for g in w3_dma(s): dmaq.append(((G(26) if big else 1) + 8*k if k < 8 else free_after(k - 8) + 1, g))
    g2 = S0 - (58 if big else val('g2o', 50)); g3 = val('g3e', 68) if big else val('g3o', 52); g4 = S0 - 8 if big else g3 + val('d4o', 12)
    valu += [((33 if min(int(r[1:]) for r in x.wr) < 32 else 65) if x.op == 'v_accvgpr_write_b32' else 2, x) for x in finalize(1, sCH, tag='cs1')] + [(G(g3), [needvm('cs1')] + flag_store(3))]
    dmaq.append((G(g2), [poll_issue(vPo, vF2, sWS, "0")]))
    addpost(G(g2 + 12) + 1, stamp(55) + poll_check(vPo, vF2, sWS, "0", 2, sT2, 63) + stamp(56))
    e = 0
    for s in (SS[4:] + SS[:4] if not big else SS):
        busy = max([8*(t + 1) for t in HS if any(bslot(t, b) == bslot(s, b2) for b in range(4) for b2 in (0, 1))] + [0])
        e = max(e, G(g2 + 12) + 2, G(busy) + 1)
        dmaq.append((e, sib_loads(s, 0)))
    dmaq.append((G(g4), [poll_issue(vPo, vF2, sWS, "0")]))
    addpost(G(g4 + 12) + 1, stamp(59) + poll_check(vPo, vF2, sWS, "0", 3, sT2, 63) + stamp(60))
    assert g4 + 12 > 8*nH
    for s in SS: dmaq.append((G(g4 + 12) + 2, sib_loads(s, 1), 4 if big else 3))
    PKP = 160
    def piece(c8, pr, k):
        X = (c8*4 + 2*pr)*4; T = PKP + (k % 8)*4
        a, b = P1.pack_swap(T, X, X + 4)
        return a + [I(f"s_add_u32 s{sT3}, s{sPo}, {pr*PD + (c8//4)*4096}")] + b + \
            [I(f"buffer_store_dwordx4 {vr(T)}, v{vL16}, {sr(sWS)}, s{sT3} offen offset:{(c8 % 4)*1024} {ST}", tag=('vm', 'pst'))]
    hi0 = NF - 96
    ev = [(g0s[hi0] + 3, c8, 0) for c8 in range(8)] + [((g0s[hi0 + 12*(c8 + 1)] + 3) if c8 < 7 else NGP, c8, 1) for c8 in range(8)]
    order = sorted(range(16), key=lambda k: (ev[k][0] + (0 if ev[k][2] else 12*ev[k][1])))
    for k, e in enumerate(order): valu += [(ev[e][0], x) for x in piece(ev[e][1], ev[e][2], k)]
    XO = 226; vXa, vBa = 222, 223
    p4pre = [I(f"s_lshr_b32 s{sT}, s{sXcd}, 1"), I(f"s_lshl_b32 s{sT}, s{sT}, 5"),
             I(f"s_sub_u32 s{sT2}, 15, s{sI}"), I(f"s_bitcmp1_b32 s{sXcd}, 0"), I(f"s_cselect_b32 s{sT2}, s{sT2}, s{sI}"),
             I(f"s_lshl_b32 s{sT2}, s{sT2}, 7"), I(f"s_add_u32 s{sT}, s{sT}, s{sT2}"), I(f"s_lshl_b32 s74, s{sT}, 10"),
             I(f"s_lshl_b32 s75, s{sHl}, 8"), I(f"s_lshl_b32 s{sT}, s{sWave}, 6"), I(f"s_add_u32 s75, s75, s{sT}"), I(f"s_add_u32 s74, s74, s75"),
             I(f"v_bfe_u32 v{vXa}, v{vL16}, 4, 5"), I(f"v_lshlrev_b32 v{vXa}, 10, v{vXa}"),
             I(f"v_lshrrev_b32 v{vBa}, 9, v{vL16}"), I(f"v_lshlrev_b32 v{vBa}, 4, v{vBa}"), I(f"v_add_u32 v{vXa}, v{vXa}, v{vBa}")]
    gp = G(S0 + 38)
    dmaq.append((gp, p4pre[:12] + [I(f"buffer_load_dwordx4 {vr(XO + 8*pc)}, v{vXa}, {sr(sX)}, s74 offen offset:{pc*32}") for pc in range(2)] +
                        [I(f"buffer_load_dwordx4 {vr(XO + 4 + 8*pc)}, v{vBa}, {sr(sB2)}, s75 offen offset:{pc*32}") for pc in range(2)]))
    for k, x in enumerate(p4pre[12:]): addpost(gp - 11 + 2*k, [x])
    if flag('p3nold'): dmaq = [d for d in dmaq if not any(x.kind == 'vld' and 'a[' in x.txt for x in d[1])]
    if flag('p3nodma'): dmaq = [d for d in dmaq if not any(x.kind == 'dma' for x in d[1])]
    if flag('p3nofin'): valu = [v for v in valu if isinstance(v[1], list) or v[0] > 100 or v[1].kind == 'vst']
    place_dma(dmaq, addpost, step=val('p3step', 4), ok=lambda g: g not in rdg and (g >= g0s[lo0] or g % 4 in (1, 2)))
    def budget(g, p):
        if any(x.kind == 'dsr' for x in p): return 0
        n = sum(1 for x in p if x.txt or (x.tag and x.tag[0] != 'needvm'))
        nd = sum(1 for x in p if x.kind in ('dma', 'vld', 'vst'))
        return max(0, (3 if (not big and g < G(val('ob', 40))) else 2) - max(0, n - 1) - nd)
    body, left = weave(mf, post, valu, budget, flush_dep=lambda g: 32*nH <= g < g0s[lo0])
    if OPT.verbose:
        mi = 0
        for x in body:
            if x.kind == 'mfma': mi += 1
            if x.tag and x.tag[0] == 'vm' and x.tag[1] in ('cs0', 'cs1', 'pst'): print(f"[p3] {x.tag[1]} store at gap {mi} (group {mi/4:.1f})", file=sys.stderr)
    return L + body + stamp(15)
def bend_stages(nH): return (list(range(4, nH)) + list(range(OW, SB)))[:7] if nH > 4 else list(range(OW, SB))
def p4():
    XO = 226; vXa, vBa = 222, 223
    L = [I(f"s_mov_b32 s{sFlagMe}, s1"), needvm('pst')] + flag_store(1)
    L += [I(f"s_lshr_b32 s{sT}, s2, 3"), I(f"s_mul_i32 s{sT}, s{sT}, {64*PD}"), I(f"s_mul_i32 s{sT2}, s{sXcd}, {PD}"), I(f"s_add_u32 s{sT}, s{sT}, s{sT2}"),
          I(f"s_lshl_b32 s{sT2}, s{sWave}, 11"), I(f"s_add_u32 s{sT}, s{sT}, s{sT2}"), I(f"s_add_u32 s{sT}, s{sT}, {WS_P:#x}"),
          poll_issue(vPo, vF3, sWS, "0")]
    for pc in range(2):
        A = 64 + 8*pc
        for j in range(4):
            L += [I(f"v_lshlrev_b32 v{A+2*j}, 16, v{XO+8*pc+j}"), I(f"v_and_b32 v{A+2*j+1}, 0xffff0000, v{XO+8*pc+j}"),
                  I(f"v_lshlrev_b32 v80, 16, v{XO+4+8*pc+j}"), I(f"v_and_b32 v81, 0xffff0000, v{XO+4+8*pc+j}"),
                  I(f"v_add_f32 v{A+2*j}, v{A+2*j}, v80"), I(f"v_add_f32 v{A+2*j+1}, v{A+2*j+1}, v81")]
    L += poll_check(vPo, vF3, sWS, "0", 1, sT2, 63) + stamp(16)
    for x in range(8):
        L += [I(f"buffer_load_dwordx4 {vr((pc*8 + x)*4)}, v{vL16}, {sr(sWS)}, s{sT} offen offset:{pc*1024} {LD}") for pc in range(2)]
        if x < 7: L += [I(f"s_add_u32 s{sT}, s{sT}, {8*PD:#x}")]
    for x in range(8):
        for pc in range(2):
            A = 64 + 8*pc; r = (pc*8 + x)*4
            for j in range(4):
                L += [I(f"v_lshlrev_b32 v80, 16, v{r+j}"), I(f"v_and_b32 v81, 0xffff0000, v{r+j}"),
                      I(f"v_add_f32 v{A+2*j}, v{A+2*j}, v80"), I(f"v_add_f32 v{A+2*j+1}, v{A+2*j+1}, v81")]
    for pc in range(2):
        A = 64 + 8*pc
        L += [I(f"v_cvt_pk_bf16_f32 v{84+4*pc+j}, v{A+2*j}, v{A+2*j+1}") for j in range(4)]
        if not flag('noout'): L += [I(f"buffer_store_dwordx4 {vr(84+4*pc)}, v{vXa}, {sr(sOUT)}, s74 offen offset:{pc*32} {val('outf', '').replace('_', ' ')}")]
    L += stamp_out(17) + [I("s_endpgm")]
    return L

def l2_warm(with_ctx):
    G = []
    if with_ctx: G.append([pf_load(214, 215, sWS, f"s{sCL}", LD)])
    G.append([I(f"s_add_u32 s{sT}, s{sHLo}, 3072"), pf_load(214, 216, sWS, f"s{sT}", LD)])
    G.append([I(f"s_add_u32 s{sT}, s{sHHo}, 3072"), pf_load(214, 216, sWS, f"s{sT}", LD)])
    G.append([I(f"s_lshr_b32 s{sT}, s2, 3"), I(f"s_lshl_b32 s{sT}, s{sT}, 14"), I(f"s_add_u32 s{sT}, s{sT}, s{sW4096}"),
              I(f"s_lshl_b32 s{sT3}, s{sXcd}, 19"), I(f"s_add_u32 s{sT}, s{sT}, s{sT3}"), pf_load(214, 217, sWO, f"s{sT}")])
    return G
def warm_consts():
    return [I(f"v_bfe_u32 v215, v{vL16}, 4, 5"), I(f"v_lshlrev_b32 v215, 7, v215"), I(f"v_lshrrev_b32 v216, 9, v{vL16}"),
            I(f"v_lshlrev_b32 v217, 2, v{vL16}"),
            I(f"v_mad_u32_u24 v218, v216, s{sT3}, v215"), I(f"v_lshl_add_u32 v215, v216, 17, v215"), I(f"v_mov_b32 v216, v218")]
def bbm_pf():
    d = {}
    if not flag('nopf3'): d[2] = code_pf2()[1][:1]; d[4] = code_pf2()[1][1:]
    return d

def build():
    P = P1.prologue()
    P, lgq, vmq = finish(P, name="pro")
    aK, bK = P1.engine(False); aV, bV = P1.engine(True)
    assert text(bK).replace("PL_", "").count("\n") == text(bV).count("\n")
    aK, lq1, vq1 = finish(aK, lgq, vmq, P, name="engK")
    aV, lq2, vq2 = finish(aV, lgq, vmq, P, name="engV")
    assert lq1 == lq2 and [x[1] for x in vq1] == [x[1] for x in vq2] and [x[0] for x in vq1] == [x[0] for x in vq2]
    B, lq, vq = finish(bK + first_tile(), lq1, vq1, aK, name="engB")
    B2, _, _ = finish(bK + first_tile(), lq1, vq1, aV, name="engB'")
    assert len(B) == len(B2)
    Q0 = [set(regs_in(ar(RING + f*4))) for f in range(NPRE)]
    if not OPT.prof: assert lq == Q0, lq
    aame_dma = [(2, g) for s in range(4) for g in w3_dma(s)]
    raw = {
        'AAe': step('A', 'A', 0, 1, name='AAe'), 'AAo': step('A', 'A', 1, 1, name='AAo'),
        'AAmo': step('A', 'A', 1, 1, mask=[(0, 0, None), (2, 1, None)], name='AAmo'),
        'AAme': step('A', 'A', 0, 2, mask=[(0, 2, None), (2, 3, None)], xwait=16, name='AAme', extra_dma=aame_dma),
        'ABm': step('A', 'B', 1, 2, mask=[(k, k, sOffB) for k in range(4)], xwait=8, name='ABm', extra_post={3: flag_store(1), 45: [poll_issue(vPo, vF2, sWS, "0")]}),
        'BBe': step('B', 'B', 0, 2, name='BBe'), 'BBo': step('B', 'B', 1, 2, name='BBo'),
        'BBm': step('B', 'B', 1, 0, mask=[(k, k, None) for k in range(4)], xwait=0, name='BBm', extra_post=bbm_pf()),
        'FINL': stamp(11) + finl_block() + stamp(12) + [I(f"s_sub_u32 s{sCnt}, 6, s{sI}"), I("s_cbranch_scc1 F_Bend")],
    }
    for k, b in enumerate(bbf_steps()): raw[f'BBf{k}'] = b
    preds = {'AAe': ['PRO', 'AAo'], 'AAo': ['AAe'], 'AAmo': ['AAe'], 'AAme': ['PRO', 'AAmo'], 'ABm': ['AAme'], 'FINL': ['ABm'],
             **{f'BBf{k}': ['ABm' if k == 0 else f'BBf{k-1}'] for k in range(NBF)},
             'BBe': ['FINL', 'BBo', f'BBf{NBF-1}'], 'BBo': ['BBe'], 'BBm': ['BBe']}
    done = {'PRO': B}
    for nm in ['AAe', 'AAo', 'AAmo', 'AAme', 'ABm', 'FINL'] + [f'BBf{k}' for k in range(NBF)] + ['BBe', 'BBo', 'BBm']:
        outs = [finish(raw[nm], Q0, None, done.get(pr) or raw[pr], name=nm + "<-" + pr, vm=False) for pr in preds[nm]]
        best = max(outs, key=lambda o: len(o[0]))
        done[nm] = best[0]
        if not OPT.prof: assert best[1] == Q0, (nm, best[1])
    tails = []; P4 = []; p4raw = p4()
    for nH in (NE, 14 - NE):
        ep = {26: [needvm('cs0')] + flag_store(2)}
        if nH > 7: ep[29] = [I(f"s_movk_i32 s{sCc2}, 2048"), poll_issue(vMx[0], vF2, sWS, f"s{sCc2}")]
        bend = step('B', None, 0, 0, name='Bend', extra_dma=[(1, g) for s in bend_stages(nH) for g in w3_dma(s)], extra_valu=bend_valu(), extra_post=ep)
        k = [j for j, x in enumerate(bend) if x.kind == 'mfma'][0]
        tailraw = bend[:k] + bend_pre() + bend[k:] + p3(nH)
        outs = [finish(tailraw, Q0, [(set(), 'cs0')] + [(set(regs_in(ar(bslot(1, b)))), None) for b in (2, 3)], done[pr], name="tail<-" + pr) for pr in ('FINL', 'BBm')]
        best = max(outs, key=lambda o: len(o[0]))
        tails.append(best[0])
        P4.append(finish(p4raw, best[1], best[2], best[0], name="p4")[0])
    assert text(P4[0]) == text(P4[1])
    loopx = lambda lab: f" s_sub_u32 s{sCnt}, s{sCnt}, 1\n s_cbranch_scc1 {lab}\n"
    body = text(P) + "\n" + text(aK) + "\n s_branch F_J\nF_V:\n" + text(aV) + "\nF_J:\n" + text(B) + "\n"
    body += f".p2align {val('al', 3)}\nF_AAe:\n" + text(done['AAe']) + "\n" + loopx("F_AAmo") + text(done['AAo']) + "\n s_branch F_AAe\n"
    body += "F_AAmo:\n" + text(done['AAmo']) + "\nF_AAme:\n" + text(done['AAme']) + "\n" + text(done['ABm']) + "\n"
    if flag('bbf'):
        body += f" s_cmp_gt_u32 s{sI}, {6 - NBF//2}\n s_cbranch_scc1 F_FINL\n" + text(stamp(11) + stamp(12)) + "\n"
        for k in range(NBF): body += text(done[f'BBf{k}']) + "\n"
        body += f" s_sub_u32 s{sCnt}, {6 - NBF//2}, s{sI}\n s_branch F_BBe\nF_FINL:\n"
    body += text(done['FINL']) + "\n"
    body += f".p2align {val('al', 3)}\nF_BBe:\n" + text(done['BBe']) + "\n" + loopx("F_BBm") + text(done['BBo']) + "\n s_branch F_BBe\n"
    body += "F_BBm:\n" + text(done['BBm']) + f"\nF_Bend:\n s_bitcmp1_b32 s{sXcd}, 0\n s_cbranch_scc1 F_Bodd\n" + text(tails[0]) + "\n s_branch F_P4\nF_Bodd:\n" + text(tails[1]) + "\nF_P4:\n" + text(P4[0]) + "\n"
    for typ in 'AB':
        for p in range(2): body += text(rare_redo(typ, p)) + "\n"
    for cur, nxt, p in (('A', 'A', 0), ('A', 'A', 1), ('A', 'B', 1), ('B', 'B', 0), ('B', 'B', 1), ('B', None, 0)):
        body += text(rare_stub(cur, nxt, p)) + "\n"
    hdr = open(f"cdna_kernels/{NAME}.s.ref").read().split("; Override")[0]
    kname = NAME + "_kernel"
    if "--list" in sys.argv: hdr += f"; @launch kernel={kname} grid=(256,1,1) block=(256,1,1) lds=163840\n"
    else: hdr += "; @launch grid=(256,1,1) block=(256,1,1) lds=163840\n"
    doc = """; ---------------------------------------------------------------------------------------------
; Hand-offs: write-through stores, vmcnt wait, then a word tagged with a per-launch epoch; readers poll
; ---------------------------------------------------------------------------------------------
"""
    mac = ""
    for short, full, n in (("M", M16, 4), ("N", M32, 4)):
        mac += f".macro {short} d,a,b,c\n {full} \\d,\\a,\\b,\\c\n.endm\n"
        body = body.replace(f" {full} ", f" {short} ")
    import re as _re
    mac += ".macro T d,a,o\n ds_read_b64_tr_b16 \\d,\\a offset:\\o\n.endm\n.macro W n\n s_waitcnt lgkmcnt(\\n)\n.endm\n"
    body = _re.sub(r" ds_read_b64_tr_b16 (\S+),(v\d+) offset:(\d+)", r" T \1,\2,\3", body)
    body = _re.sub(r" s_waitcnt lgkmcnt\((\d+)\)\n", r" W \1\n", body)
    return hdr + doc + '.amdgcn_target "amdgcn-amd-amdhsa--gfx950"\n' + mac + kernel_text(kname, body, 512, 256)

if __name__ == "__main__":
    OPT.prof = "--prof" in sys.argv
    if "-q" in sys.argv: OPT.verbose = 0
    open(sys.argv[1], "w").write(build())
```

```python
from f_common import *
import f_p1 as P1
from f_p1 import QF, kv_dma, sKt, sKm, sVt, sVm, sCL, sCH, vL16, vKVd, qconv

THRESH = 2.0**30
sCnt, sKey, sKr, sVr, sThr, sOffA, sOffB = range(74, 81)
sRet2 = 100
sRet = 82; MK = [84, 86, 88, 98]
sWoO, sW2o, sHLo, sHHo, sPo, sCc, sCc2 = 76, 3, 4, 5, 80, 81, 90
sFb = 97
sSib = [84, 85, 86]
sWoS = [87, 88, 89]
NEG = [128, 144]; T0 = 160
vK, vV, vL16V = 192, 193, 194
Lr = [[196, 197], [198, 199]]; vMx = [200, 201]; vF = [202, 203]; vThr, vNinf, vTm = 204, 205, 206
vPo, vF2, vF3, vZ, vFl = 207, 208, 209, 210, 211
vWtrA, vWtrB, vWd3, vC2, vH2 = 212, 216, 220, 221, 195
PKT = 226
OA = lambda qb, db: (qb*4 + db)*16
RING = 192
NPRE = 8

def blk_q(typ, blk): return (blk % 2) if typ == 'A' else 1
def qk_mfmas(typ, S):
    L = []
    if typ == 'A':
        for kb in range(2):
            for ks in range(8):
                for qb in range(2):
                    d = vr(S + (2*kb + qb)*16, 16)
                    L.append((d, kb*8 + ks, ar(QF(qb, ks)), d if ks else vr(NEG[qb], 16)))
    else:
        for kb in range(4):
            for ks in range(8):
                d = vr(S + kb*16, 16)
                L.append((d, kb*8 + ks, ar(QF(1, ks)), d if ks else vr(NEG[1], 16)))
    return L
def pv_mfmas(typ, S):
    L = []
    if typ == 'A':
        for ks4 in range(4):
            for db in range(4):
                for qb in range(2):
                    d = ar(OA(qb, db), 16)
                    L.append((d, ks4*4 + db, vr(S + (2*(ks4//2) + qb)*16 + 8*(ks4 % 2)), d))
    else:
        for ks8 in range(8):
            for db in range(4):
                d = ar(OA(1, db), 16)
                L.append((d, ks8*4 + db, vr(S + (ks8//2)*16 + 8*(ks8 % 2)), d))
    return L
def expblk(S, qb, first):
    lp = Lr[qb][1]
    E = []; C = []
    for j in range(8):
        a, b = S + 2*j, S + 2*j + 1
        E.append([I(f"v_exp_f32 v{a}, v{a}"), I(f"v_exp_f32 v{b}, v{b}")])
        cv = I(f"v_cvt_pk_bf16_f32 v{S + 8*(j//4) + j % 4}, v{a}, v{b}")
        if first and j == 0: C.append([I(f"v_add_f32 v{lp}, v{a}, v{b}"), cv])
        elif flag('tree'): C.append([I(f"v_add_f32 v{vMx[1]}, v{a}, v{b}"), cv, I(f"v_add_f32 v{lp}, v{lp}, v{vMx[1]}")])
        elif (S + 8*(j//4) + j % 4) in (a, b): C.append([I(f"v_add_f32 v{lp}, v{lp}, v{a}"), I(f"v_add_f32 v{lp}, v{lp}, v{b}"), cv])
        else: C.append([I(f"v_add_f32 v{lp}, v{lp}, v{a}"), cv, I(f"v_add_f32 v{lp}, v{lp}, v{b}")])
    L = []
    if flag('nodelay'):
        for j in range(8): L += E[j] + C[j]
    else:
        L += E[0]
        for j in range(8):
            if j + 1 < 8: L += E[j+1][:1] + C[j][:1] + E[j+1][1:] + C[j][1:]
            else: L += C[j]
    return L
def blk_first(typ, blk): return blk < 2 if typ == 'A' else blk == 0
def maxblk(S, mx, first):
    L = []; r = list(range(S, S + 16))
    if first: L.append(I(f"v_max3_f32 v{mx}, v{r[0]}, v{r[1]}, v{r[2]}")); r = r[3:]
    while len(r) >= 2: L.append(I(f"v_max3_f32 v{mx}, v{mx}, v{r[0]}, v{r[1]}")); r = r[2:]
    if r: L.append(I(f"v_max_f32 v{mx}, v{mx}, v{r[0]}"))
    return L
def maskblk(S, kbg, soff=None):
    L = []
    if soff is not None:
        L.append(I(f"v_add_u32 v{vTm}, s{soff}, v{vThr}"))
        if kbg: L.append(I(f"v_subrev_u32 v{vTm}, {32*kbg}, v{vTm}"))
        t = vTm
    elif kbg: L.append(I(f"v_subrev_u32 v{vTm}, {32*kbg}, v{vThr}")); t = vTm
    else: t = vThr
    for r0 in range(0, 16, 4):
        L += [I(f"v_cmp_le_i32 s[{MK[k]}:{MK[k]+1}], {8*((r0+k)//4) + (r0+k) % 4}, v{t}") for k in range(4)]
        L += [I(f"v_cndmask_b32 v{S+r0+k}, v{vNinf}, v{S+r0+k}, s[{MK[k]}:{MK[k]+1}]") for k in range(4)]
    return L
def xmax(v, t): return [I(f"v_mov_b32 v{t}, v{v}"), I(f"v_permlane32_swap_b32 v{v}, v{t}"), I(f"v_max_f32 v{v}, v{v}, v{t}")]
def kread(f, slot): return I(f"ds_read_b128 {ar(RING + (slot % 16)*4)}, v{vK} offset:{f*1024}")
def vread(f, slot): return I(f"ds_read_b128 {ar(RING + (slot % 16)*4)}, v{vV} offset:{f*1024}")
def kv_dma2(which):
    srd_, t, m = (sKS, sKt, sKm) if which == 'K' else (sVS, sVt, sVm)
    base = 0 if which == 'K' else 0x10000
    d = lambda so: [I(f"buffer_load_dwordx4 v{vKVd}, {sr(srd_)}, s{so} offen offset:{1024*b} {val('kvld', LD).replace('_', ' ')} lds") for b in range(4)]
    return [[I(f"s_add_u32 m0, s{m}, {base:#x}")] + d(t),
            [I(f"s_add_u32 m0, s{m}, {base + 0x4000:#x}"), I(f"s_add_u32 s{sT2}, s{t}, {TS}"),
             I(f"s_add_u32 s{t}, s{t}, {2*TS}"), I(f"s_xor_b32 s{m}, s{m}, 0x8000")] + d(sT2)]

uid = [0]
def step(cur, nxt, p, kadv, mask=None, xwait=16, name="", extra_dma=None, extra_valu=None, extra_post=None, extra_h1=None, cskip=(), nskip=(), fill=False, lastK=False):
    uid[0] += 1; u = uid[0]
    Sc, Sn = 64*p, 64*(1 - p)
    mf = []; use = []
    qk = qk_mfmas(nxt, Sn) if nxt else []
    nK = (16 if nxt == 'A' else 32) if nxt else 0
    for d, f, q, cin in qk:
        mf.append(I(f"{M32} {d}, {ar(RING + (f % 16)*4)}, {q}, {cin}")); use.append(f)
    for d, f, pf, cin in pv_mfmas(cur, Sc):
        mf.append(I(f"{M32} {d}, {ar(RING + ((nK + f) % 16)*4)}, {pf}, {cin}")); use.append(nK + f)
    nV = 16 if cur == 'A' else 32
    NG = len(mf); fu = {}
    for g, f in enumerate(use): fu.setdefault(f, g)
    post = {}; dmaq = []
    def addpost(g, items): post.setdefault(g, []).extend(items)
    D = val('D', 8); BO = val('bo', 3)
    hasY = nxt is not None and (cur == 'B' or nxt == 'B')
    pre = []
    ring = lambda f: regs_in(ar(RING + (f % 16)*4))
    for f in range(0, nK + nV, 2):
        if fu[f] > 0: addpost(fu[f] - 1, [needlg(ring(f) + ring(f + 1))])
    last = -2
    for f in range(NPRE if nxt else 0, nK, 2):
        last = max(fu[f] - D, last + 1, 0)
        addpost(last, [kread(f, f), kread(f + 1, f + 1)])
    vadv = [I(f"v_add_u32 v{vV}, s{sVr}, v{vL16V}"),
            I(f"s_add_u32 s{sVr}, s{sVr}, {0x4000 if cur == 'A' else 0x8000}"), I(f"s_and_b32 s{sVr}, s{sVr}, 0xffff")]
    vf0 = 0
    if nxt is None:
        pre += vadv[:1] + [vread(f, nK + f) for f in range(8)]; vf0 = 8
    else:
        addpost(last + 1, vadv)
        if hasY:
            gY = last + BO
            addpost(gY, [I("s_waitcnt vmcnt(16) lgkmcnt(0)" if cur == 'B' else "s_waitcnt lgkmcnt(0)"), I("s_barrier")])
            last = gY
        else: last = last + 1
    for f in range(vf0, nV, 2):
        last = max(fu[nK + f] - D, last + 1, 0)
        addpost(last, [vread(f, nK + f), vread(f + 1, nK + f + 1)])
    gX = NG
    if nxt is not None:
        gX = last + BO
        addpost(gX - 1, [I(f"v_add_u32 v{vK}, s{sKr}, v{vL16}")] +
                ([I(f"s_add_u32 s{sKr}, s{sKr}, {kadv*0x4000}"), I(f"s_and_b32 s{sKr}, s{sKr}, 0xffff")] if kadv else []))
        addpost(gX, [I(f"s_waitcnt vmcnt({xwait}) lgkmcnt(0)"), I("s_barrier")])
        gs = [gX + 1, gX + 2, gX + 4, gX + 6] if gX + 6 < NG else [gX + 1, gX + 2, gX + 3, gX + 4]
        assert gs[-1] < NG, (name, gX, NG)
        for j in range(NPRE // 2): addpost(gs[j], [kread(2*j, 2*j), kread(2*j + 1, 2*j + 1)])
    dstep = 2
    if cur == 'A' and nxt == 'A': dmaq = [(1, kv_dma('K')), (1, kv_dma('V'))]; dstep = 3 if extra_dma else 4
    elif cur == 'A' and nxt == 'B': dmaq = [(1, kv_dma('K'))] + [(gY + 2, x) for x in kv_dma2('K')]
    elif cur == 'B' and nxt == 'B':
        dmaq = [(0, x) for x in kv_dma2('V')]
        if not lastK: dmaq += [(gY + 3, x) for x in kv_dma2('K')]
    if extra_dma: dmaq += extra_dma
    for g, it in (extra_post or {}).items(): addpost(g, it)
    if dmaq:
        endg = place_dma(dmaq, addpost, step=dstep)
        assert endg - dstep < gX, (name, endg, gX)
        if hasY and cur == 'B': assert max(g for g, l in post.items() if any(x.kind == 'dma' and sr(sVS) in x.txt for x in l)) < gY
    valu = []
    def add(mg, items):
        for it in items: valu.append((mg, it))
    H1 = len(qk)
    for blk in (2, 3):
        if blk not in cskip: add(0, expblk(Sc + 16*blk, blk_q(cur, blk), False))
    done = {}
    for g, (d, f, q, cin) in enumerate(qk): done[d] = g
    mdict = {m[0]: m for m in (mask or [])}
    def domask(blk):
        if blk in mdict: add(done[vr(Sn + 16*blk, 16)] + 3, maskblk(Sn + 16*blk, mdict[blk][1], mdict[blk][2]))
    domask(0); domask(1)
    add(0, extra_h1 or [])
    qbs = (0, 1) if (cur == 'A' and 0 not in cskip) else (1,)
    if len(qbs) == 2: add(0, [I(f"v_max_f32 v{vMx[0]}, v{Lr[0][1]}, v{Lr[1][1]}")])
    add(max(H1 - 1, 0), [I(f"v_cmp_lt_f32 vcc, s{sThr}, v{vMx[0] if len(qbs) == 2 else Lr[1][1]}"),
            [I(f"s_cbranch_vccz F_c{u}"), I(f"s_call_b64 s[{sRet}:{sRet+1}], F_X{cur}{nxt or 'n'}{p}"), I(f"F_c{u}:")]])
    force = {H1: len(valu) - 1}
    add(0, [I(f"v_add_f32 v{Lr[q][0]}, v{Lr[q][0]}, v{Lr[q][1]}") for q in qbs])
    if nxt is not None:
        add(0, [I(f"s_add_u32 s{sKey}, s{sKey}, {64 if cur == 'A' else 128}")])
        if 0 not in nskip: add(0, expblk(Sn, blk_q(nxt, 0), True))
        domask(2); domask(3)
        if 1 not in nskip: add(done[vr(Sn + 16, 16)] + 3, expblk(Sn + 16, blk_q(nxt, 1), blk_first(nxt, 1)))
        if fill:
            for blk in nskip:
                if blk < 2: add(0, [I(f"v_mov_b32 v{Sn + 16*blk + r}, 0") for r in (0, 1, 2, 3, 8, 9, 10, 11)])
                else: add(0, [I(f"v_mov_b32 v{Sn + 16*blk + r}, v{vNinf}") for r in range(16)])
    add(0, extra_valu or [])
    def budget(g, pp):
        nd = sum(1 for x in pp if x.kind == 'dsr'); nm = sum(1 for x in pp if x.kind in ('dma', 'vld', 'vst'))
        return max(val('bud', 6) - max(0, len(pp) - 1) - (1 if nd else 0) - (val('dmac', 1) if nm else 0), 0)
    if flag('halfrd') and cur == 'B' and nxt == 'B':
        for g in post:
            rd = [x for x in post[g] if x.kind == 'dsr']
            if len(rd) == 2 and g < gX: post[g].remove(rd[1])
    if flag('noexp'):
        valu = [v for v in valu if isinstance(v[1], list) or v[1].op != 'v_exp_f32']
    if flag('nodma') and nxt:
        for g in post: post[g] = [x for x in post[g] if x.kind != 'dma']
    body, left = weave(mf, post, valu, budget, flush_dep=True, force=force if not flag('noexp') else None)
    if cskip or nskip:
        dead = set()
        for blk in nskip: dead |= set(regs_in(vr(Sn + 16*blk, 16)))
        dropped = [m for g, m in enumerate(mf) if (g < H1 and set(m.D) <= dead) or
                   (g >= H1 and any(set(m.B) <= set(regs_in(vr(Sc + 16*blk, 16))) for blk in cskip))]
        keepf = set(use[g] for g, m in enumerate(mf) if m not in dropped)
        unused = set()
        for f in range(NPRE, nK):
            if f not in keepf: unused.add(kread(f, f).txt)
        seenX = False; nb = []
        for x in body:
            if x in post.get(gX, []): seenX = True
            if x in dropped or (x.kind == 'dsr' and x.txt in unused and not seenX): continue
            nb.append(x)
        body = nb
    tail = []
    if OPT.verbose: print(f"[step {name}] leftover valu {left}", file=sys.stderr)
    return pre + body + tail

def finalize(qb, sbase, inter=None, tag='cst'):
    l0, l1 = Lr[qb]; inter = list(inter or [])
    l1 = vTm
    L = [I(f"v_mov_b32 v{l1}, v{l0}"), I(f"v_permlane32_swap_b32 v{l0}, v{l1}"),
         I(f"v_add_f32 v{l0}, v{l0}, v{l1}"), I(f"v_rcp_f32 v{l0}, v{l0}"), I(f"s_add_u32 s{sFb}, s{sbase}, 0x20000")]
    for db in range(4):
        t = T0 + (db % 2)*16; A = PKT + (db % 2)*8; B = A + 4
        for r0 in range(0, 16, 4):
            L += [I(f"v_accvgpr_read_b32 v{t+r}, a{OA(qb, db)+r}") for r in range(r0, r0 + 4)]
            if inter: L += inter.pop(0)
        for r0 in range(0, 16, 4):
            L += [I(f"v_mul_f32 v{t+r}, v{t+r}, v{l0}") for r in range(r0, r0 + 4)]
            if inter: L += inter.pop(0)
        for pc, T in ((0, A), (1, B)):
            L += [I(f"v_cvt_pk_bf16_f32 v{T}, v{t+4*pc}, v{t+4*pc+1}"), I(f"v_cvt_pk_bf16_f32 v{T+1}, v{t+4*pc+2}, v{t+4*pc+3}"),
                  I(f"v_cvt_pk_bf16_f32 v{T+2}, v{t+8+4*pc}, v{t+8+4*pc+1}"), I(f"v_cvt_pk_bf16_f32 v{T+3}, v{t+8+4*pc+2}, v{t+8+4*pc+3}")]
        L += [I(f"v_permlane32_swap_b32 v{A+j}, v{B+j}") for j in range(4)]
        L += [I(f"v_permlane16_swap_b32 v{A+j}, v{B+j}") for j in range(4)]
        L += [I(f"buffer_store_dwordx4 {vr(A)}, v{vL16}, {sr(sWS)}, s{sbase} offen offset:{db*1024} {ST}", tag=('vm', tag)),
              I(f"buffer_store_dwordx4 {vr(B)}, v{vL16}, {sr(sWS)}, s{sFb} offen offset:{db*1024} {ST}", tag=('vm', tag))]
        L += [I(f"v_accvgpr_write_b32 a{16*db + 8*qb + j}, v{A+j}") for j in range(8)]
    for g in inter: L += g
    return L

def fin_parts(qb, sbase):
    l0 = Lr[qb][0]; l1 = vF[0]; t = T0; A = PKT; B = A + 4
    head = [I(f"v_mov_b32 v{l1}, v{l0}"), I(f"s_add_u32 s{sFb}, s{sbase}, 0x20000"), I(f"v_permlane32_swap_b32 v{l0}, v{l1}"),
            I(f"v_add_f32 v{l0}, v{l0}, v{l1}"), I(f"v_rcp_f32 v{l0}, v{l0}")]
    parts = []
    for db in range(4):
        p1 = [I(f"v_accvgpr_read_b32 v{t+r}, a{OA(qb, db)+r}") for r in range(16)] + [I(f"v_mul_f32 v{t+r}, v{t+r}, v{l0}") for r in range(16)]
        p2 = []
        for pc, T in ((0, A), (1, B)):
            p2 += [I(f"v_cvt_pk_bf16_f32 v{T}, v{t+4*pc}, v{t+4*pc+1}"), I(f"v_cvt_pk_bf16_f32 v{T+1}, v{t+4*pc+2}, v{t+4*pc+3}"),
                   I(f"v_cvt_pk_bf16_f32 v{T+2}, v{t+8+4*pc}, v{t+8+4*pc+1}"), I(f"v_cvt_pk_bf16_f32 v{T+3}, v{t+8+4*pc+2}, v{t+8+4*pc+3}")]
        p2 += [I(f"v_permlane32_swap_b32 v{A+j}, v{B+j}") for j in range(4)] + [I(f"v_permlane16_swap_b32 v{A+j}, v{B+j}") for j in range(4)]
        p2 += [I(f"buffer_store_dwordx4 {vr(A)}, v{vL16}, {sr(sWS)}, s{sbase} offen offset:{db*1024} {ST}"),
               I(f"buffer_store_dwordx4 {vr(B)}, v{vL16}, {sr(sWS)}, s{sFb} offen offset:{db*1024} {ST}")]
        p2 += [I(f"v_accvgpr_write_b32 a{16*db + 8*qb + j}, v{A+j}") for j in range(8)]
        parts.append((p1, p2))
    return head, parts

def rare_redo(typ, p):
    S = 64*p; T = T0 + 16
    L = [I(f"F_R{typ}{p}:"), I("s_nop 15"), I(f"s_mul_i32 s{sT3}, s{sKey}, {TS // 64}")]
    qk = qk_mfmas(typ, S)
    nf = 16 if typ == 'A' else 32
    for f0 in range(0, nf, 4):
        L += [I(f"s_add_u32 s{sOffA}, s{sT3}, {(f0 % 16)*1024 + (f0 // 16)*TS}")]
        L += [I(f"buffer_load_dwordx4 {vr(T + 4*k)}, v{vL16}, {sr(sKS)}, s{sOffA} offen offset:{1024*k} {LD}") for k in range(4)]
        L += [I("s_waitcnt vmcnt(0)")]
        L += [I(f"{M32} {d}, {vr(T + 4*(f - f0))}, {q}, {cin}") for d, f, q, cin in qk if f0 <= f < f0 + 4]
        L += [I("s_nop 7")]
    for qb in ((0, 1) if typ == 'A' else (1,)):
        blks = [b for b in range(4) if blk_q(typ, b) == qb]; m = vMx[qb]
        L += [I(f"s_lshl_b32 s{sOffA}, s{sI}, 7")] if qb == 0 else [I(f"s_sub_u32 s{sOffA}, 15, s{sI}"), I(f"s_lshl_b32 s{sOffA}, s{sOffA}, 7")]
        L += [I(f"s_sub_u32 s{sOffA}, s{sOffA}, s{sKey}")]
        for k, b in enumerate(blks): L += maskblk(S + 16*b, k, sOffA)
        for k, b in enumerate(blks): L += maxblk(S + 16*b, m, k == 0)
        L += xmax(m, vTm) + [I(f"v_max_f32 v{m}, 0, v{m}"), I(f"v_exp_f32 v{vF[qb]}, -v{m}")]
        for b in blks: L += [I(f"v_sub_f32 v{S+16*b+r}, v{S+16*b+r}, v{m}") for r in range(16)]
        L += [I(f"v_sub_f32 v{NEG[qb]+r}, v{NEG[qb]+r}, v{m}") for r in range(16)]
        L += [I(f"v_mul_f32 v{Lr[qb][0]}, v{Lr[qb][0]}, v{vF[qb]}")]
        for k, b in enumerate(blks): L += expblk(S + 16*b, qb, k == 0)
        for r0 in range(0, 64, 8):
            a = qb*64 + r0
            L += [I(f"v_accvgpr_read_b32 v{T+k}, a{a+k}") for k in range(8)]
            L += [I(f"v_mul_f32 v{T+k}, v{T+k}, v{vF[qb]}") for k in range(8)]
            L += [I(f"v_accvgpr_write_b32 a{a+k}, v{T+k}") for k in range(8)]
    L += [I("s_nop 1"), I(f"s_setpc_b64 s[{sRet2}:{sRet2+1}]")]
    return pad_hazards(L)[0]
def rare_stub(cur, nxt, p):
    L = [I(f"F_X{cur}{nxt or 'n'}{p}:"), I(f"s_call_b64 s[{sRet2}:{sRet2+1}], F_R{cur}{p}")]
    if nxt:
        S = 64*(1 - p)
        for b in range(4): L += [I(f"v_sub_f32 v{S+16*b+r}, v{S+16*b+r}, v{vMx[blk_q(nxt, b)]}") for r in range(16)]
    L += [I("s_nop 1"), I(f"s_setpc_b64 s[{sRet}:{sRet+1}]")]
    return pad_hazards(L)[0]

def first_tile():
    P = stamp(9) + [I("s_waitcnt lgkmcnt(0)"), needvm('kv0', 'kv1', 'kv2'), I("s_barrier"),
         I(f"v_mov_b32 v{vK}, v{vL16}")]
    P += [kread(f, f) for f in (0, 8, 1, 9, 2, 10, 3, 11)]
    mf = []; post = {}
    order = [(ks, kb) for ks in range(8) for kb in range(2)]
    for k, (ks, kb) in enumerate(order):
        f = kb*8 + ks
        for qb in range(2):
            d = vr((2*kb + qb)*16, 16)
            mf.append(I(f"{M32} {d}, {ar(RING + f*4)}, {ar(QF(qb, ks))}, {d if ks else 0}"))
        if k + 8 < 16:
            ks2, kb2 = order[k + 8]; post.setdefault(2*k, []).append(kread(kb2*8 + ks2, kb2*8 + ks2))
    P += [I(f"v_bfe_u32 v{vF3}, v{vL16}, 4, 4"), I(f"v_lshlrev_b32 v{vF3}, 7, v{vF3}")]
    dq = [(1, kv_dma('K')), (1, kv_dma('V')), (1, [poll_issue(vPo, vF3, sWS, "s0")])]
    place_dma(dq, lambda g, it: post.setdefault(g, []).extend(it), step=2)
    valu = []
    for c in range(4):
        for qb in range(2): valu += [(0, x) for x in qconv(6, qb, c)]
    ln = 248
    C = [I(f"v_add_u32 v{vL16V}, 0x10000, v{vL16}"), I(f"v_lshrrev_b32 v{ln}, 4, v{vL16}"),
         I(f"s_mov_b32 s{sKey}, 0"), I(f"s_mov_b32 s{sThr}, {f32(THRESH)}"),
         I(f"s_lshl_b32 s{sOffB}, s{sI}, 8"), I(f"s_sub_u32 s{sOffB}, {128*14}, s{sOffB}"),
         I(f"v_and_b32 v{ln+1}, 31, v{ln}"), I(f"v_lshrrev_b32 v{ln+2}, 5, v{ln}"),
         I(f"v_lshl_add_u32 v{vThr}, s{sWave}, 5, v{ln+1}"), I(f"v_lshlrev_b32 v{ln+2}, 2, v{ln+2}"), I(f"v_sub_u32 v{vThr}, v{vThr}, v{ln+2}"),
         I(f"v_mov_b32 v{vNinf}, 0xff800000"), I(f"s_mov_b32 s{sKr}, 0x8000"), I(f"s_mov_b32 s{sVr}, 0")]
    C += [I(f"v_mov_b32 v{r}, 0") for r in (196, 198, 244, 245, 246, 247)] + consts_early(ln)
    valu += [(22, x) for x in C]
    body, _ = weave(mf, post, valu, lambda g, p: 5 if len(p) < 2 else 3, flush_dep=True)
    P += body
    P += [I(f"v_add_u32 v{vK}, 0x4000, v{vL16}")]
    P += [kread(f, f) for f in range(NPRE)]
    if not flag('pfo_old'):
        P += [I(f"v_lshlrev_b32 v250, 2, v{vL16}"), I(f"v_lshlrev_b32 v251, 1, v{vL16}"),
              I(f"s_lshl_b32 s{sT}, s2, 14"), I(f"s_add_u32 s{sT}, s{sT}, s{sW4096}"), pf_load(252, 250, sWO, f"s{sT}"),
              I(f"s_mul_i32 s{sT}, s2, 7168"), I(f"s_mul_i32 s{sT2}, s{sWave}, 1792"), I(f"s_add_u32 s{sT}, s{sT}, s{sT2}"), pf_load(252, 251, sW2, f"s{sT}")]
    P += [I(f"s_cmp_lg_u32 s{sI}, 0"), I("s_cbranch_scc1 F_nomask"), I("s_nop 7")]
    for kb in range(2): P += maskblk(16*(2*kb), kb)
    P += [I("F_nomask:")]
    X = []
    for qb in range(2): X += maxblk(16*qb, vMx[qb], True) + maxblk(16*(2 + qb), vMx[qb], False)
    X += [I(f"v_mov_b32 v{vTm}, v{vMx[0]}"), I(f"v_mov_b32 v{vF[0]}, v{vMx[1]}"), I("s_nop 0"),
          I(f"v_permlane32_swap_b32 v{vMx[0]}, v{vTm}"), I(f"v_permlane32_swap_b32 v{vMx[1]}, v{vF[0]}"),
          I(f"v_max_f32 v{vMx[0]}, v{vMx[0]}, v{vTm}"), I(f"v_max_f32 v{vMx[1]}, v{vMx[1]}, v{vF[0]}")]
    for qb in range(2):
        X += [I(f"v_sub_f32 v{NEG[qb] + r}, 0, v{vMx[qb]}") for r in range(16)]
        for blk in (qb, 2 + qb): X += [I(f"v_sub_f32 v{16*blk + r}, v{16*blk + r}, v{vMx[qb]}") for r in range(16)]
    for blk in (0, 1): X += expblk(16*blk, blk, True)
    zm = [I(f"{M32} {ar(16*k, 16)}, v[244:247], v[244:247], 0") for k in range(8)]
    body, _ = weave(zm, {}, [(0, x) for x in X], lambda g, p: 7)
    P += body
    P += poll_check(vPo, vF3, sWS, "s0", 1, sT2, 63)
    P += stamp(10) + [I(f"s_sub_u32 s{sCnt}, s{sI}, 1"), I("s_cbranch_scc1 F_AAme")]
    return P

NE = val('nHe', 10); OW = 10; SB = 14
def w3_addr(s):
    if s < 4: return 131072 + 8192*s
    if s < OW: return 8192*(s - 4)
    if s < SB: return (49152, 57344, 0, 8192)[s - OW]
    return 65536 + 8192*(s - SB)
def bslot(s, b):
    if s < 2: return 32*s + 16*(b // 2) + 8 + 4*(b % 2)
    if s < OW: return 128 + 16*(s - 2) + 4*b
    if s < SB: return 16*(s - OW) + 4*b
    k = 2*(s - SB) + (b % 2)
    if b < 2: return 128 + 4*k
    return 64 + 4*k if k < 16 else 224 + 4*(k - 16)
def w3_dma(s):
    gs = []
    if s < OW: srd_, so, off = sW2, sW2o, s*32768
    elif s < SB: srd_, so, off = sWO, sWoO, (s - OW)*32768
    else: srd_, so, off = sWO, sWoS[(s - SB)//4], ((s - SB) % 4)*32768
    for h in range(2):
        gs.append([I(f"s_add_u32 m0, s{sW1024}, {w3_addr(s) + h*4096}"), I(f"s_add_u32 s{sT}, s{so}, {off + h*128}"),
                   I(f"buffer_load_dwordx4 v{vWd3}, {sr(srd_)}, s{sT} offen lds", tag=('vm', f'x{s}'))])
    return gs
def h_loads(s):
    L = []
    if s % 4 == 0: L += [I(f"s_add_u32 s{sCc}, s{sHLo}, {(s//4)*4096}"), I(f"s_add_u32 s{sCc2}, s{sHHo}, {(s//4)*4096}")]
    return L + [I(f"buffer_load_dwordx4 {ar(bslot(s, b))}, v{vH2 if b % 2 else vL16}, {sr(sWS)}, s{sCc2 if b >= 2 else sCc} offen offset:{(s % 4)*1024} {LD}") for b in range(4)]
def sib_loads(s, hi):
    t = (s - SB) % 4; L = []
    if t == 0: L += [I(f"s_add_u32 s{sCc}, s{sCH if hi else sCL}, s{sSib[(s-SB)//4]}")]
    return L + [I(f"buffer_load_dwordx4 {ar(bslot(s, 2*hi + b))}, v{vC2 if b else vL16}, {sr(sWS)}, s{sCc} offen offset:{t*1024} {LD}") for b in range(2)]
def first_unit(d, t):
    return [I(f"s_and_b32 s{t}, s{sXcd}, 1"), I(f"s_mul_i32 s{t}, s{t}, {NE - 7}"), I(f"s_mul_i32 s{d}, s{sXcd}, 7"), I(f"s_add_u32 s{d}, s{d}, s{t}")]
def flag_store(level): return [I(f"v_add_u32 v{vFl}, 1, v{vFl}"), I(f"buffer_store_dword v{vFl}, v{vZ}, {sr(sWS)}, s{sFlagMe} offen {ST}")]

def consts_early(ln):
    t = ln + 1; a, b = sCnt, sOffA
    return [I(f"v_mov_b32 v{vZ}, 0"), I(f"v_mov_b32 v{vFl}, s{sE}"),
            I(f"s_and_b32 s{a}, s{sFlagMe}, 0xfffffe00"),
            I(f"v_bfe_u32 v{t}, v{vL16}, 4, 2"), I(f"v_lshlrev_b32 v{t}, 7, v{t}"), I(f"v_add_u32 v{vF2}, s{a}, v{t}"),
            I(f"s_lshl_b32 s{a}, s{sWave}, 13"), I(f"s_lshl_b32 s{b}, s{sHl}, 8"), I(f"s_add_u32 s{a}, s{a}, s{b}"),
            *first_unit(sW2o, b), I(f"s_lshl_b32 s{sW2o}, s{sW2o}, 15"), I(f"s_add_u32 s{sW2o}, s{sW2o}, s{a}")] + \
           lane_wdma(vWd3, 1024, t, ln, natural=False, nblk=1)
def h_bases():
    L = [I(f"v_add_u32 v{vH2}, {56*1024}, v{vL16}")] + first_unit(sCc, sCc2)
    for d, c in ((sHLo, sCL), (sHHo, sCH)):
        L += [I(f"s_sub_u32 s{d}, s{c}, {WS_CTX:#x}"), I(f"s_lshr_b32 s{d}, s{d}, 17"), I(f"s_mul_i32 s{d}, s{d}, 56"),
              I(f"s_add_u32 s{d}, s{d}, s{sCc}"), I(f"s_lshl_b32 s{d}, s{d}, 10"), I(f"s_add_u32 s{d}, s{d}, {WS_H:#x}")]
    return L
def code_pf2():
    V, M = code_pf("F_Bend", "F_RA0", 250, 252, vL16)
    V = V[:3] + [I(f"s_and_b32 s{sOffA}, s{sXcd}, 1"), I(f"s_mul_i32 s{sOffA}, s{sOffA}, F_Bodd-F_Bend"), I(f"v_add_u32 v250, s{sOffA}, v250")] + V[3:]
    V2, M2 = code_pf("F_P4", "F_RA0", 251, 252, vL16)
    return V + V2, M + M2
NBF = val('nbf', 6)
def bbf_steps():
    head, parts = fin_parts(0, sCL)
    lds = {s: [x for x in h_loads(s) if x.kind != 'salu'] for s in range(4)}
    V, _ = code_pf2()
    flat = head + h_bases() + [I(f"s_mov_b32 s{sCc}, s{sHLo}"), I(f"s_mov_b32 s{sCc2}, s{sHHo}")] + parts[0][0] + parts[0][1] + V
    flat += parts[1][0] + parts[1][1] + lds[2] + parts[2][0] + lds[3] + parts[2][1] + lds[0] + parts[3][0] + parts[3][1] + lds[1]
    c = lambda x: 3 if x.kind in ('vld', 'vst') else cost(x)
    tot = sum(map(c, flat)); chunks = [[] for _ in range(2*NBF)]; acc = 0
    for x in flat:
        chunks[min(int(acc * 2*NBF / tot), 2*NBF - 1)].append(x); acc += c(x)
    firstld = min(k for k, ch in enumerate(chunks) if any(x.kind == 'vld' for x in ch))
    assert firstld >= 2
    out = []
    for k in range(NBF):
        post = {1: poll_check(vPo, vF2, sWS, "0", 1, sT3, 63) + [I(f"buffer_store_dword v{vFl}, v{vZ}, {sr(sWS)}, s{sFlagMe} offen {ST}")][:0]} if k == 1 else {}
        out.append(step('B', 'B', k % 2, 2, name=f'BBf{k}', extra_h1=chunks[2*k], extra_valu=chunks[2*k + 1], extra_post=post))
    return out
def finl_block():
    L = h_bases()
    L += [I("s_waitcnt vmcnt(0)"), I("s_barrier")] + poll_check(vPo, vF2, sWS, "0", 1, sT2, 63)
    inter = []
    pre2 = [I(f"s_mov_b32 s{sCc}, s{sHLo}"), I(f"s_mov_b32 s{sCc2}, s{sHHo}")]
    lds = [x for s in (2, 3, 0, 1) for x in h_loads(s) if x.kind != 'salu']
    for k, x in enumerate(lds): inter += [[x], []] if k < 8 else [[x], []]
    inter = inter[:16] + [[lds[8]], [], [lds[9]], [], [lds[10]], [], [lds[11]], []] + [[], [lds[12]], [], [lds[13]], [], [], [], []] + [[lds[14]], [lds[15]]]
    V, M = code_pf2()
    if flag('nopf3'): V, M = [], []
    return L + pre2 + V + M + finalize(0, sCL, inter, tag='cs0')
def bend_pre():
    L = [I(f"s_lshl_b32 s{sT}, s{sWave}, 13"), I(f"s_lshl_b32 s{sT2}, s{sHl}, 8"), I(f"s_add_u32 s{sT3}, s{sT}, s{sT2}"),
         I(f"s_lshl_b32 s{sT}, s{sXcd}, 19"), I(f"s_add_u32 s{sT}, s{sT}, s{sT3}"),
         I(f"s_lshl_b32 s{sT2}, s{sHl}, 17"), I(f"s_add_u32 s{sWoO}, s{sT}, s{sT2}")]
    for k in range(3):
        L += [I(f"s_add_u32 s{sT2}, s{sHl}, {k+1}"), I(f"s_and_b32 s{sT2}, s{sT2}, 3"),
              I(f"s_lshl_b32 s{sWoS[k]}, s{sT2}, 17"), I(f"s_add_u32 s{sWoS[k]}, s{sWoS[k]}, s{sT}"),
              I(f"s_sub_u32 s{sT2}, s{sT2}, s{sHl}"), I(f"s_lshl_b32 s{sSib[k]}, s{sT2}, 12")]
    return L
def bend_valu():
    t = T0; ln = T0 + 4
    L = [I(f"v_lshrrev_b32 v{ln}, 4, v{vL16}")] + lane_wtr(vWtrB, 0, t, ln, natural=False)
    L += [I(f"v_add_u32 v{vWtrA+c}, 131072, v{vWtrB+c}") for c in range(4)]
    L += [I(f"v_add_u32 v{vC2}, 0x20000, v{vL16}"),
          I(f"s_lshr_b32 s{sT3}, s2, 3"), I(f"s_lshl_b32 s{sT3}, s{sT3}, 2"), I(f"s_lshr_b32 s{sPo}, s{sXcd}, 1"), I(f"s_add_u32 s{sPo}, s{sT3}, s{sPo}"),
          I(f"s_lshl_b32 s{sPo}, s{sPo}, 10"), I(f"s_add_u32 s{sPo}, s{sPo}, {F3:#x}"),
          I(f"v_and_b32 v{t}, 7, v{ln}"), I(f"v_lshlrev_b32 v{t}, 7, v{t}"), I(f"v_add_u32 v{vF3}, s{sPo}, v{t}"),
          I(f"s_add_u32 s{sT3}, s{sT3}, s{sWave}"), I(f"s_lshl_b32 s{sT3}, s{sT3}, 3"), I(f"s_add_u32 s{sT3}, s{sT3}, s{sXcd}"),
          I(f"s_lshl_b32 s{sT3}, s{sT3}, 7"), I(f"s_add_u32 s1, s{sT3}, {F3:#x}"),
          I(f"s_mov_b32 s{sPo}, s2"),
          I(f"s_mul_i32 s{sPo}, s{sPo}, {8*PD}"), I(f"s_mul_i32 s{sT3}, s{sWave}, {2*PD}"), I(f"s_add_u32 s{sPo}, s{sPo}, s{sT3}"),
          I(f"s_add_u32 s{sPo}, s{sPo}, {WS_P:#x}")]
    return L

def p3(nH):
    RG = 128; NR = 8
    HS = list(range(nH)); OS = list(range(OW, SB)); SS = list(range(SB, SB + 12))
    seq = [(s, c8, (0, 1, 2, 3)) for s in HS + OS for c8 in range(8)]
    lo0 = len(seq)
    seq += [(s, c8, (0, 1)) for s in SS for c8 in range(8)] + [(s, c8, (2, 3)) for c8 in range(8) for s in SS]
    NF = len(seq)
    g0s = []; g = 0
    for e in seq: g0s.append(g); g += len(e[2])
    NGP = g; S0 = 8*(nH + 4)
    def w_reads(n):
        s, c8, _ = seq[n]; h, c = divmod(c8, 4); a = w3_addr(s) + h*4096; r = RG + (n % NR)*4
        if a >= 131072: va, off = vWtrA, a - 131072
        elif s < SB: va, off = vWtrB, a
        else: va, off = vWtrB, a - 65536
        return [I(f"ds_read_b64_tr_b16 {vr(r,2)}, v{va+c} offset:{off}"), I(f"ds_read_b64_tr_b16 {vr(r+2,2)}, v{va+c} offset:{off+2048}")]
    big = nH > 4
    L = stamp(13) + [I("s_waitcnt lgkmcnt(0)")] + ([needvm(*[f'x{k}' for k in range(4, min(nH, 8))])] if big else []) + [I("s_barrier")] + stamp(14)
    rd_at = {}
    for m in range(NF):
        n = m
        while n > 0 and m - n < 6 and g0s[m] - g0s[n] < val('p3pf', 14): n -= 1
        rd_at[m] = n if (g0s[m] - g0s[n] >= val('p3pf', 14) or m - n == 6) else -1
    for m in range(NF):
        if rd_at[m] < 0: L += w_reads(m)
    mf = []; post = {}; dmaq = []; valu = []
    def addpost(g, items): post.setdefault(g, []).extend(items)
    firstread = {}
    for m in range(NF): firstread.setdefault(seq[m][0], m)
    bars = {OW: OS, SB: SS[:6], SB + 6: SS[6:]}
    if nH > 8: bars[8] = range(8, nH)
    elif big: bars[nH - 1] = []
    for n, (s, c8, bs) in enumerate(seq):
        for b in bs:
            d = vr((c8*4 + b)*4)
            mf.append(I(f"{M16} {d}, {vr(RG + (n % NR)*4)}, {ar(bslot(s, b))}, {d if s else 0}"))
        if n + 1 < NF: addpost(g0s[n + 1] - 1, [needlg(regs_in(vr(RG + ((n + 1) % NR)*4)))])
    bargap = {}
    for sb, rng in bars.items():
        m = firstread[sb]; g = g0s[rd_at[m]] - 1; bargap[sb] = g
        addpost(g, ([needvm(*[f'x{k}' for k in rng])] if rng else []) + [I("s_barrier")] + stamp({OW: 54, SB: 57, SB + 6: 58}.get(sb, 52)))
    def free_after(s):
        last = max(g0s[m] + len(seq[m][2]) - 1 for m in range(NF) if seq[m][0] == s)
        return min(g for g in bargap.values() if g >= last)
    addpost(g0s[rd_at[lo0 - 1]] + 1, [I(f"v_add_u32 v{vWtrB+k}, 65536, v{vWtrB+k}") for k in range(2)])
    addpost(g0s[rd_at[lo0 - 1]] + 2, [I(f"v_add_u32 v{vWtrB+k}, 65536, v{vWtrB+k}") for k in range(2, 4)])
    for m in range(NF):
        if rd_at[m] >= 0: addpost(g0s[rd_at[m]], w_reads(m))
    rdg = set(g0s[rd_at[m]] for m in range(NF) if rd_at[m] >= 0)
    G = lambda grp: 4*grp
    for s in range(4, min(nH, 7)): dmaq.append((1, h_loads(s)))
    if nH > 7:
        addpost(G(11) + 1, [I(f"s_movk_i32 s{sT3}, 2048")] + poll_check(vMx[0], vF2, sWS, f"s{sT3}", 1, sT2, 63))
        for s in range(7, nH): dmaq.append((G(11) + 2, h_loads(s)))
    inb = bend_stages(nH)
    for s in OS:
        if s not in inb:
            prev = [t for t in HS if w3_addr(t) == w3_addr(s)]
            for g in w3_dma(s): dmaq.append((free_after(prev[0]) + 1 if prev else G(25), g))
    for k, s in enumerate(SS):
        for g in w3_dma(s): dmaq.append(((G(26) if big else 1) + 8*k if k < 8 else free_after(k - 8) + 1, g))
    g2 = S0 - (58 if big else val('g2o', 50)); g3 = val('g3e', 68) if big else val('g3o', 52); g4 = S0 - 8 if big else g3 + val('d4o', 12)
    valu += [((33 if min(int(r[1:]) for r in x.wr) < 32 else 65) if x.op == 'v_accvgpr_write_b32' else 2, x) for x in finalize(1, sCH, tag='cs1')] + [(G(g3), [needvm('cs1')] + flag_store(3))]
    dmaq.append((G(g2), [poll_issue(vPo, vF2, sWS, "0")]))
    addpost(G(g2 + 12) + 1, stamp(55) + poll_check(vPo, vF2, sWS, "0", 2, sT2, 63) + stamp(56))
    e = 0
    for s in (SS[4:] + SS[:4] if not big else SS):
        busy = max([8*(t + 1) for t in HS if any(bslot(t, b) == bslot(s, b2) for b in range(4) for b2 in (0, 1))] + [0])
        e = max(e, G(g2 + 12) + 2, G(busy) + 1)
        dmaq.append((e, sib_loads(s, 0)))
    dmaq.append((G(g4), [poll_issue(vPo, vF2, sWS, "0")]))
    addpost(G(g4 + 12) + 1, stamp(59) + poll_check(vPo, vF2, sWS, "0", 3, sT2, 63) + stamp(60))
    assert g4 + 12 > 8*nH
    for s in SS: dmaq.append((G(g4 + 12) + 2, sib_loads(s, 1), 4 if big else 3))
    PKP = 160
    def piece(c8, pr, k):
        X = (c8*4 + 2*pr)*4; T = PKP + (k % 8)*4
        a, b = P1.pack_swap(T, X, X + 4)
        return a + [I(f"s_add_u32 s{sT3}, s{sPo}, {pr*PD + (c8//4)*4096}")] + b + \
            [I(f"buffer_store_dwordx4 {vr(T)}, v{vL16}, {sr(sWS)}, s{sT3} offen offset:{(c8 % 4)*1024} {ST}", tag=('vm', 'pst'))]
    hi0 = NF - 96
    ev = [(g0s[hi0] + 3, c8, 0) for c8 in range(8)] + [((g0s[hi0 + 12*(c8 + 1)] + 3) if c8 < 7 else NGP, c8, 1) for c8 in range(8)]
    order = sorted(range(16), key=lambda k: (ev[k][0] + (0 if ev[k][2] else 12*ev[k][1])))
    for k, e in enumerate(order): valu += [(ev[e][0], x) for x in piece(ev[e][1], ev[e][2], k)]
    XO = 226; vXa, vBa = 222, 223
    p4pre = [I(f"s_lshr_b32 s{sT}, s{sXcd}, 1"), I(f"s_lshl_b32 s{sT}, s{sT}, 5"),
             I(f"s_sub_u32 s{sT2}, 15, s{sI}"), I(f"s_bitcmp1_b32 s{sXcd}, 0"), I(f"s_cselect_b32 s{sT2}, s{sT2}, s{sI}"),
             I(f"s_lshl_b32 s{sT2}, s{sT2}, 7"), I(f"s_add_u32 s{sT}, s{sT}, s{sT2}"), I(f"s_lshl_b32 s74, s{sT}, 10"),
             I(f"s_lshl_b32 s75, s{sHl}, 8"), I(f"s_lshl_b32 s{sT}, s{sWave}, 6"), I(f"s_add_u32 s75, s75, s{sT}"), I(f"s_add_u32 s74, s74, s75"),
             I(f"v_bfe_u32 v{vXa}, v{vL16}, 4, 5"), I(f"v_lshlrev_b32 v{vXa}, 10, v{vXa}"),
             I(f"v_lshrrev_b32 v{vBa}, 9, v{vL16}"), I(f"v_lshlrev_b32 v{vBa}, 4, v{vBa}"), I(f"v_add_u32 v{vXa}, v{vXa}, v{vBa}")]
    gp = G(S0 + 38)
    dmaq.append((gp, p4pre[:12] + [I(f"buffer_load_dwordx4 {vr(XO + 8*pc)}, v{vXa}, {sr(sX)}, s74 offen offset:{pc*32}") for pc in range(2)] +
                        [I(f"buffer_load_dwordx4 {vr(XO + 4 + 8*pc)}, v{vBa}, {sr(sB2)}, s75 offen offset:{pc*32}") for pc in range(2)]))
    for k, x in enumerate(p4pre[12:]): addpost(gp - 11 + 2*k, [x])
    if flag('p3nold'): dmaq = [d for d in dmaq if not any(x.kind == 'vld' and 'a[' in x.txt for x in d[1])]
    if flag('p3nodma'): dmaq = [d for d in dmaq if not any(x.kind == 'dma' for x in d[1])]
    if flag('p3nofin'): valu = [v for v in valu if isinstance(v[1], list) or v[0] > 100 or v[1].kind == 'vst']
    place_dma(dmaq, addpost, step=val('p3step', 4), ok=lambda g: g not in rdg and (g >= g0s[lo0] or g % 4 in (1, 2)))
    def budget(g, p):
        if any(x.kind == 'dsr' for x in p): return 0
        n = sum(1 for x in p if x.txt or (x.tag and x.tag[0] != 'needvm'))
        nd = sum(1 for x in p if x.kind in ('dma', 'vld', 'vst'))
        return max(0, (3 if (not big and g < G(val('ob', 40))) else 2) - max(0, n - 1) - nd)
    body, left = weave(mf, post, valu, budget, flush_dep=lambda g: 32*nH <= g < g0s[lo0])
    if OPT.verbose:
        mi = 0
        for x in body:
            if x.kind == 'mfma': mi += 1
            if x.tag and x.tag[0] == 'vm' and x.tag[1] in ('cs0', 'cs1', 'pst'): print(f"[p3] {x.tag[1]} store at gap {mi} (group {mi/4:.1f})", file=sys.stderr)
    return L + body + stamp(15)
def bend_stages(nH): return (list(range(4, nH)) + list(range(OW, SB)))[:7] if nH > 4 else list(range(OW, SB))
def p4():
    XO = 226; vXa, vBa = 222, 223
    L = [I(f"s_mov_b32 s{sFlagMe}, s1"), needvm('pst')] + flag_store(1)
    L += [I(f"s_lshr_b32 s{sT}, s2, 3"), I(f"s_mul_i32 s{sT}, s{sT}, {64*PD}"), I(f"s_mul_i32 s{sT2}, s{sXcd}, {PD}"), I(f"s_add_u32 s{sT}, s{sT}, s{sT2}"),
          I(f"s_lshl_b32 s{sT2}, s{sWave}, 11"), I(f"s_add_u32 s{sT}, s{sT}, s{sT2}"), I(f"s_add_u32 s{sT}, s{sT}, {WS_P:#x}"),
          poll_issue(vPo, vF3, sWS, "0")]
    for pc in range(2):
        A = 64 + 8*pc
        for j in range(4):
            L += [I(f"v_lshlrev_b32 v{A+2*j}, 16, v{XO+8*pc+j}"), I(f"v_and_b32 v{A+2*j+1}, 0xffff0000, v{XO+8*pc+j}"),
                  I(f"v_lshlrev_b32 v80, 16, v{XO+4+8*pc+j}"), I(f"v_and_b32 v81, 0xffff0000, v{XO+4+8*pc+j}"),
                  I(f"v_add_f32 v{A+2*j}, v{A+2*j}, v80"), I(f"v_add_f32 v{A+2*j+1}, v{A+2*j+1}, v81")]
    L += poll_check(vPo, vF3, sWS, "0", 1, sT2, 63) + stamp(16)
    for x in range(8):
        L += [I(f"buffer_load_dwordx4 {vr((pc*8 + x)*4)}, v{vL16}, {sr(sWS)}, s{sT} offen offset:{pc*1024} {LD}") for pc in range(2)]
        if x < 7: L += [I(f"s_add_u32 s{sT}, s{sT}, {8*PD:#x}")]
    for x in range(8):
        for pc in range(2):
            A = 64 + 8*pc; r = (pc*8 + x)*4
            for j in range(4):
                L += [I(f"v_lshlrev_b32 v80, 16, v{r+j}"), I(f"v_and_b32 v81, 0xffff0000, v{r+j}"),
                      I(f"v_add_f32 v{A+2*j}, v{A+2*j}, v80"), I(f"v_add_f32 v{A+2*j+1}, v{A+2*j+1}, v81")]
    for pc in range(2):
        A = 64 + 8*pc
        L += [I(f"v_cvt_pk_bf16_f32 v{84+4*pc+j}, v{A+2*j}, v{A+2*j+1}") for j in range(4)]
        if not flag('noout'): L += [I(f"buffer_store_dwordx4 {vr(84+4*pc)}, v{vXa}, {sr(sOUT)}, s74 offen offset:{pc*32} {val('outf', '').replace('_', ' ')}")]
    L += stamp_out(17) + [I("s_endpgm")]
    return L

def l2_warm(with_ctx):
    G = []
    if with_ctx: G.append([pf_load(214, 215, sWS, f"s{sCL}", LD)])
    G.append([I(f"s_add_u32 s{sT}, s{sHLo}, 3072"), pf_load(214, 216, sWS, f"s{sT}", LD)])
    G.append([I(f"s_add_u32 s{sT}, s{sHHo}, 3072"), pf_load(214, 216, sWS, f"s{sT}", LD)])
    G.append([I(f"s_lshr_b32 s{sT}, s2, 3"), I(f"s_lshl_b32 s{sT}, s{sT}, 14"), I(f"s_add_u32 s{sT}, s{sT}, s{sW4096}"),
              I(f"s_lshl_b32 s{sT3}, s{sXcd}, 19"), I(f"s_add_u32 s{sT}, s{sT}, s{sT3}"), pf_load(214, 217, sWO, f"s{sT}")])
    return G
def warm_consts():
    return [I(f"v_bfe_u32 v215, v{vL16}, 4, 5"), I(f"v_lshlrev_b32 v215, 7, v215"), I(f"v_lshrrev_b32 v216, 9, v{vL16}"),
            I(f"v_lshlrev_b32 v217, 2, v{vL16}"),
            I(f"v_mad_u32_u24 v218, v216, s{sT3}, v215"), I(f"v_lshl_add_u32 v215, v216, 17, v215"), I(f"v_mov_b32 v216, v218")]
def bbm_pf():
    d = {}
    if not flag('nopf3'): d[2] = code_pf2()[1][:1]; d[4] = code_pf2()[1][1:]
    return d

def build():
    P = P1.prologue()
    P, lgq, vmq = finish(P, name="pro")
    aK, bK = P1.engine(False); aV, bV = P1.engine(True)
    assert text(bK).replace("PL_", "").count("\n") == text(bV).count("\n")
    aK, lq1, vq1 = finish(aK, lgq, vmq, P, name="engK")
    aV, lq2, vq2 = finish(aV, lgq, vmq, P, name="engV")
    assert lq1 == lq2 and [x[1] for x in vq1] == [x[1] for x in vq2] and [x[0] for x in vq1] == [x[0] for x in vq2]
    B, lq, vq = finish(bK + first_tile(), lq1, vq1, aK, name="engB")
    B2, _, _ = finish(bK + first_tile(), lq1, vq1, aV, name="engB'")
    assert len(B) == len(B2)
    Q0 = [set(regs_in(ar(RING + f*4))) for f in range(NPRE)]
    if not OPT.prof: assert lq == Q0, lq
    aame_dma = [(2, g) for s in range(4) for g in w3_dma(s)]
    raw = {
        'AAe': step('A', 'A', 0, 1, name='AAe'), 'AAo': step('A', 'A', 1, 1, name='AAo'),
        'AAmo': step('A', 'A', 1, 1, mask=[(0, 0, None), (2, 1, None)], name='AAmo'),
        'AAme': step('A', 'A', 0, 2, mask=[(0, 2, None), (2, 3, None)], xwait=16, name='AAme', extra_dma=aame_dma),
        'ABm': step('A', 'B', 1, 2, mask=[(k, k, sOffB) for k in range(4)], xwait=8, name='ABm', extra_post={3: flag_store(1), 45: [poll_issue(vPo, vF2, sWS, "0")]}),
        'BBe': step('B', 'B', 0, 2, name='BBe'), 'BBo': step('B', 'B', 1, 2, name='BBo'),
        'BBm': step('B', 'B', 1, 0, mask=[(k, k, None) for k in range(4)], xwait=0, name='BBm', extra_post=bbm_pf(), lastK=True),
        'FINL': stamp(11) + finl_block() + stamp(12) + [I(f"s_sub_u32 s{sCnt}, 6, s{sI}"), I("s_cbranch_scc1 F_Bend")],
    }
    for k, b in enumerate(bbf_steps()): raw[f'BBf{k}'] = b
    for w in range(4):
        sk = lambda m: tuple(b for b, kbg in m.items() if kbg > w)
        mk = lambda m: [(b, kbg, None) for b, kbg in m.items() if kbg == w]
        t0, t1, hb = {0: 0, 2: 1}, {0: 2, 2: 3}, {k: k for k in range(4)}
        raw[f'AAmo{w}'] = step('A', 'A', 1, 1, mask=mk(t0), nskip=sk(t0), name=f'AAmo{w}')
        raw[f'AAme{w}'] = step('A', 'A', 0, 2, mask=mk(t1), cskip=sk(t0), nskip=sk(t1), xwait=16, name=f'AAme{w}', extra_dma=[(2, g) for s in range(4) for g in w3_dma(s)])
        raw[f'AB{w}'] = step('A', 'B', 1, 2, cskip=sk(t1), xwait=8, name=f'AB{w}', extra_post={3: flag_store(1), 45: [poll_issue(vPo, vF2, sWS, "0")]})
        raw[f'BBm{w}'] = step('B', 'B', 1, 0, mask=mk(hb), nskip=sk(hb), fill=True, xwait=0, name=f'BBm{w}', extra_post=bbm_pf(), lastK=True)
    preds = {'AAe': ['PRO', 'AAo'], 'AAo': ['AAe'], 'AAmo': ['AAe'], 'AAme': ['PRO', 'AAmo'], 'ABm': ['AAme'], 'FINL': ['ABm'],
             **{f'BBf{k}': ['ABm' if k == 0 else f'BBf{k-1}'] for k in range(NBF)},
             'BBe': ['FINL', 'BBo', f'BBf{NBF-1}'], 'BBo': ['BBe'], 'BBm': ['BBe']}
    WV = [f'{n}{w}' for w in range(4) for n in ('AAmo', 'AAme', 'AB', 'BBm')]
    for w in range(4):
        preds.update({f'AAmo{w}': ['AAe'], f'AAme{w}': ['PRO', f'AAmo{w}'], f'AB{w}': [f'AAme{w}'], f'BBm{w}': ['BBe']})
    preds['FINL'] += [f'AB{w}' for w in range(4)]
    done = {'PRO': B}
    for nm in ['AAe', 'AAo', 'AAmo', 'AAme', 'ABm', 'FINL'] + [f'BBf{k}' for k in range(NBF)] + ['BBe', 'BBo', 'BBm'] + WV:
        outs = [finish(raw[nm], Q0, None, done.get(pr) or raw[pr], name=nm + "<-" + pr, vm=False) for pr in preds[nm]]
        best = max(outs, key=lambda o: len(o[0]))
        done[nm] = best[0]
        if not OPT.prof: assert best[1] == Q0, (nm, best[1])
    tails = []; P4 = []; p4raw = p4()
    for nH in (NE, 14 - NE):
        ep = {26: [needvm('cs0')] + flag_store(2)}
        if nH > 7: ep[29] = [I(f"s_movk_i32 s{sCc2}, 2048"), poll_issue(vMx[0], vF2, sWS, f"s{sCc2}")]
        bend = step('B', None, 0, 0, name='Bend', extra_dma=[(1, g) for s in bend_stages(nH) for g in w3_dma(s)], extra_valu=bend_valu(), extra_post=ep)
        k = [j for j, x in enumerate(bend) if x.kind == 'mfma'][0]
        tailraw = bend[:k] + bend_pre() + bend[k:] + p3(nH)
        outs = [finish(tailraw, Q0, [(set(), 'cs0')] + [(set(regs_in(ar(bslot(1, b)))), None) for b in (2, 3)], done[pr], name="tail<-" + pr) for pr in ['FINL', 'BBm'] + [f'BBm{w}' for w in range(4)]]
        best = max(outs, key=lambda o: len(o[0]))
        tails.append(best[0])
        P4.append(finish(p4raw, best[1], best[2], best[0], name="p4")[0])
    assert text(P4[0]) == text(P4[1])
    loopx = lambda lab: f" s_sub_u32 s{sCnt}, s{sCnt}, 1\n s_cbranch_scc1 {lab}\n"
    body = text(P) + "\n" + text(aK) + "\n s_branch F_J\nF_V:\n" + text(aV) + "\nF_J:\n" + text(B) + "\n"
    body += f".p2align {val('al', 3)}\nF_AAe:\n" + text(done['AAe']) + "\n" + loopx("F_AAmo") + text(done['AAo']) + "\n s_branch F_AAe\n"
    disp = lambda n: "".join(f" s_cmp_eq_u32 s{sWave}, {w}\n s_cbranch_scc1 F_{n}{w}\n" for w in range(3)) + f" s_branch F_{n}3\n"
    if flag('nowv'):
        body += "F_AAmo:\n" + text(done['AAmo']) + "\nF_AAme:\n" + text(done['AAme']) + "\n" + text(done['ABm']) + "\n"
    else:
        body += "F_AAme:\n" + disp("AAme") + f"F_AAmo:\n s_cmp_eq_u32 s{sI}, 7\n s_cbranch_scc1 F_AAmoG\n" + disp("AAmo")
        for w in range(4):
            body += f"F_AAmo{w}:\n" + text(done[f'AAmo{w}']) + f"\nF_AAme{w}:\n" + text(done[f'AAme{w}']) + "\n" + text(done[f'AB{w}']) + "\n s_branch F_FINL\n"
        body += "F_AAmoG:\n" + text(done['AAmo']) + "\n" + text(done['AAme']) + "\n" + text(done['ABm']) + "\nF_FINL:\n"
    if flag('bbf'):
        body += f" s_cmp_gt_u32 s{sI}, {6 - NBF//2}\n s_cbranch_scc1 F_FINL\n" + text(stamp(11) + stamp(12)) + "\n"
        for k in range(NBF): body += text(done[f'BBf{k}']) + "\n"
        body += f" s_sub_u32 s{sCnt}, {6 - NBF//2}, s{sI}\n s_branch F_BBe\nF_FINL:\n"
    body += text(done['FINL']) + "\n"
    body += f".p2align {val('al', 3)}\nF_BBe:\n" + text(done['BBe']) + "\n" + loopx("F_BBm") + text(done['BBo']) + "\n s_branch F_BBe\n"
    if flag('nowv'): body += "F_BBm:\n" + text(done['BBm'])
    else:
        body += "F_BBm:\n" + disp("BBm")
        for w in range(4): body += f"F_BBm{w}:\n" + text(done[f'BBm{w}']) + ("\n s_branch F_Bend\n" if w < 3 else "")
    body += f"\nF_Bend:\n s_bitcmp1_b32 s{sXcd}, 0\n s_cbranch_scc1 F_Bodd\n" + text(tails[0]) + "\n s_branch F_P4\nF_Bodd:\n" + text(tails[1]) + "\nF_P4:\n" + text(P4[0]) + "\n"
    for typ in 'AB':
        for p in range(2): body += text(rare_redo(typ, p)) + "\n"
    for cur, nxt, p in (('A', 'A', 0), ('A', 'A', 1), ('A', 'B', 1), ('B', 'B', 0), ('B', 'B', 1), ('B', None, 0)):
        body += text(rare_stub(cur, nxt, p)) + "\n"
    hdr = open(f"cdna_kernels/{NAME}.s.ref").read().split("; Override")[0]
    kname = NAME + "_kernel"
    if "--list" in sys.argv: hdr += f"; @launch kernel={kname} grid=(256,1,1) block=(256,1,1) lds=163840\n"
    else: hdr += "; @launch grid=(256,1,1) block=(256,1,1) lds=163840\n"
    doc = """; ---------------------------------------------------------------------------------------------
; Hand-offs: write-through stores, vmcnt wait, then a word tagged with a per-launch epoch; readers poll
; ---------------------------------------------------------------------------------------------
"""
    mac = ""
    for short, full, n in (("M", M16, 4), ("N", M32, 4)):
        mac += f".macro {short} d,a,b,c\n {full} \\d,\\a,\\b,\\c\n.endm\n"
        body = body.replace(f" {full} ", f" {short} ")
    import re as _re
    mac += ".macro T d,a,o\n ds_read_b64_tr_b16 \\d,\\a offset:\\o\n.endm\n.macro W n\n s_waitcnt lgkmcnt(\\n)\n.endm\n"
    body = _re.sub(r" ds_read_b64_tr_b16 (\S+),(v\d+) offset:(\d+)", r" T \1,\2,\3", body)
    body = _re.sub(r" s_waitcnt lgkmcnt\((\d+)\)\n", r" W \1\n", body)
    return hdr + doc + '.amdgcn_target "amdgcn-amd-amdhsa--gfx950"\n' + mac + kernel_text(kname, body, 512, 256)

if __name__ == "__main__":
    OPT.prof = "--prof" in sys.argv
    if "-q" in sys.argv: OPT.verbose = 0
    open(sys.argv[1], "w").write(build())
```

```python
from f_common import *
import f_p1 as P1
from f_p1 import QF, kv_dma, sKt, sKm, sVt, sVm, sCL, sCH, vL16, vKVd, qconv

THRESH = 2.0**30
sCnt, sKey, sKr, sVr, sThr, sOffA, sOffB = range(74, 81)
sRet2 = 100
sRet = 82; MK = [84, 86, 88, 98]
sWoO, sW2o, sHLo, sHHo, sPo, sCc, sCc2 = 76, 3, 4, 5, 80, 81, 90
sFb = 97
sSib = [84, 85, 86]
sWoS = [87, 88, 89]
NEG = [128, 144]; T0 = 160
vK, vV, vL16V = 192, 193, 194
Lr = [[196, 197], [198, 199]]; vMx = [200, 201]; vF = [202, 203]; vThr, vNinf, vTm = 204, 205, 206
vPo, vF2, vF3, vZ, vFl = 207, 208, 209, 210, 211
vWtrA, vWtrB, vWd3, vC2, vH2 = 212, 216, 220, 221, 195
PKT = 226
OA = lambda qb, db: (qb*4 + db)*16
RING = 192
NPRE = 8

def blk_q(typ, blk): return (blk % 2) if typ == 'A' else 1
def qk_mfmas(typ, S):
    L = []
    if typ == 'A':
        for kb in range(2):
            for ks in range(8):
                for qb in range(2):
                    d = vr(S + (2*kb + qb)*16, 16)
                    L.append((d, kb*8 + ks, ar(QF(qb, ks)), d if ks else vr(NEG[qb], 16)))
    else:
        for kb in range(4):
            for ks in range(8):
                d = vr(S + kb*16, 16)
                L.append((d, kb*8 + ks, ar(QF(1, ks)), d if ks else vr(NEG[1], 16)))
    return L
def pv_mfmas(typ, S):
    L = []
    if typ == 'A':
        for ks4 in range(4):
            for db in range(4):
                for qb in range(2):
                    d = ar(OA(qb, db), 16)
                    L.append((d, ks4*4 + db, vr(S + (2*(ks4//2) + qb)*16 + 8*(ks4 % 2)), d))
    else:
        for ks8 in range(8):
            for db in range(4):
                d = ar(OA(1, db), 16)
                L.append((d, ks8*4 + db, vr(S + (ks8//2)*16 + 8*(ks8 % 2)), d))
    return L
def expblk(S, qb, first):
    lp = Lr[qb][1]
    E = []; C = []
    for j in range(8):
        a, b = S + 2*j, S + 2*j + 1
        E.append([I(f"v_exp_f32 v{a}, v{a}"), I(f"v_exp_f32 v{b}, v{b}")])
        cv = I(f"v_cvt_pk_bf16_f32 v{S + 8*(j//4) + j % 4}, v{a}, v{b}")
        if first and j == 0: C.append([I(f"v_add_f32 v{lp}, v{a}, v{b}"), cv])
        elif flag('tree'): C.append([I(f"v_add_f32 v{vMx[1]}, v{a}, v{b}"), cv, I(f"v_add_f32 v{lp}, v{lp}, v{vMx[1]}")])
        elif (S + 8*(j//4) + j % 4) in (a, b): C.append([I(f"v_add_f32 v{lp}, v{lp}, v{a}"), I(f"v_add_f32 v{lp}, v{lp}, v{b}"), cv])
        else: C.append([I(f"v_add_f32 v{lp}, v{lp}, v{a}"), cv, I(f"v_add_f32 v{lp}, v{lp}, v{b}")])
    L = []
    if flag('nodelay'):
        for j in range(8): L += E[j] + C[j]
    else:
        L += E[0]
        for j in range(8):
            if j + 1 < 8: L += E[j+1][:1] + C[j][:1] + E[j+1][1:] + C[j][1:]
            else: L += C[j]
    return L
def blk_first(typ, blk): return blk < 2 if typ == 'A' else blk == 0
def maxblk(S, mx, first):
    L = []; r = list(range(S, S + 16))
    if first: L.append(I(f"v_max3_f32 v{mx}, v{r[0]}, v{r[1]}, v{r[2]}")); r = r[3:]
    while len(r) >= 2: L.append(I(f"v_max3_f32 v{mx}, v{mx}, v{r[0]}, v{r[1]}")); r = r[2:]
    if r: L.append(I(f"v_max_f32 v{mx}, v{mx}, v{r[0]}"))
    return L
def maskblk(S, kbg, soff=None):
    L = []
    if soff is not None:
        L.append(I(f"v_add_u32 v{vTm}, s{soff}, v{vThr}"))
        if kbg: L.append(I(f"v_subrev_u32 v{vTm}, {32*kbg}, v{vTm}"))
        t = vTm
    elif kbg: L.append(I(f"v_subrev_u32 v{vTm}, {32*kbg}, v{vThr}")); t = vTm
    else: t = vThr
    for r0 in range(0, 16, 4):
        L += [I(f"v_cmp_le_i32 s[{MK[k]}:{MK[k]+1}], {8*((r0+k)//4) + (r0+k) % 4}, v{t}") for k in range(4)]
        L += [I(f"v_cndmask_b32 v{S+r0+k}, v{vNinf}, v{S+r0+k}, s[{MK[k]}:{MK[k]+1}]") for k in range(4)]
    return L
def xmax(v, t): return [I(f"v_mov_b32 v{t}, v{v}"), I(f"v_permlane32_swap_b32 v{v}, v{t}"), I(f"v_max_f32 v{v}, v{v}, v{t}")]
def kread(f, slot): return I(f"ds_read_b128 {ar(RING + (slot % 16)*4)}, v{vK} offset:{f*1024}")
def vread(f, slot): return I(f"ds_read_b128 {ar(RING + (slot % 16)*4)}, v{vV} offset:{f*1024}")
def kv_dma2(which):
    srd_, t, m = (sKS, sKt, sKm) if which == 'K' else (sVS, sVt, sVm)
    base = 0 if which == 'K' else 0x10000
    d = lambda so: [I(f"buffer_load_dwordx4 v{vKVd}, {sr(srd_)}, s{so} offen offset:{1024*b} {val('kvld', LD).replace('_', ' ')} lds") for b in range(4)]
    return [[I(f"s_add_u32 m0, s{m}, {base:#x}")] + d(t),
            [I(f"s_add_u32 m0, s{m}, {base + 0x4000:#x}"), I(f"s_add_u32 s{sT2}, s{t}, {TS}"),
             I(f"s_add_u32 s{t}, s{t}, {2*TS}"), I(f"s_xor_b32 s{m}, s{m}, 0x8000")] + d(sT2)]

uid = [0]
def step(cur, nxt, p, kadv, mask=None, xwait=16, name="", extra_dma=None, extra_valu=None, extra_post=None, extra_h1=None, cskip=(), nskip=(), fill=False, lastK=False):
    uid[0] += 1; u = uid[0]
    Sc, Sn = 64*p, 64*(1 - p)
    mf = []; use = []
    qk = qk_mfmas(nxt, Sn) if nxt else []
    nK = (16 if nxt == 'A' else 32) if nxt else 0
    for d, f, q, cin in qk:
        mf.append(I(f"{M32} {d}, {ar(RING + (f % 16)*4)}, {q}, {cin}")); use.append(f)
    for d, f, pf, cin in pv_mfmas(cur, Sc):
        mf.append(I(f"{M32} {d}, {ar(RING + ((nK + f) % 16)*4)}, {pf}, {cin}")); use.append(nK + f)
    nV = 16 if cur == 'A' else 32
    NG = len(mf); fu = {}
    for g, f in enumerate(use): fu.setdefault(f, g)
    post = {}; dmaq = []
    def addpost(g, items): post.setdefault(g, []).extend(items)
    D = val('D', 8); BO = val('bo', 3)
    hasY = nxt is not None and (cur == 'B' or nxt == 'B')
    pre = []
    ring = lambda f: regs_in(ar(RING + (f % 16)*4))
    for f in range(0, nK + nV, 2):
        if fu[f] > 0: addpost(fu[f] - 1, [needlg(ring(f) + ring(f + 1))])
    last = -2
    for f in range(NPRE if nxt else 0, nK, 2):
        last = max(fu[f] - D, last + 1, 0)
        addpost(last, [kread(f, f), kread(f + 1, f + 1)])
    vadv = [I(f"v_add_u32 v{vV}, s{sVr}, v{vL16V}"),
            I(f"s_add_u32 s{sVr}, s{sVr}, {0x4000 if cur == 'A' else 0x8000}"), I(f"s_and_b32 s{sVr}, s{sVr}, 0xffff")]
    vf0 = 0
    if nxt is None:
        pre += vadv[:1] + [vread(f, nK + f) for f in range(8)]; vf0 = 8
    else:
        addpost(last + 1, vadv)
        if hasY:
            gY = last + BO
            addpost(gY, [I("s_waitcnt vmcnt(16) lgkmcnt(0)" if cur == 'B' else "s_waitcnt lgkmcnt(0)"), I("s_barrier")])
            last = gY
        else: last = last + 1
    for f in range(vf0, nV, 2):
        last = max(fu[nK + f] - D, last + 1, 0)
        addpost(last, [vread(f, nK + f), vread(f + 1, nK + f + 1)])
    gX = NG
    if nxt is not None:
        gX = last + BO
        addpost(gX - 1, [I(f"v_add_u32 v{vK}, s{sKr}, v{vL16}")] +
                ([I(f"s_add_u32 s{sKr}, s{sKr}, {kadv*0x4000}"), I(f"s_and_b32 s{sKr}, s{sKr}, 0xffff")] if kadv else []))
        addpost(gX, [I(f"s_waitcnt vmcnt({xwait}) lgkmcnt(0)"), I("s_barrier")])
        gs = [gX + 1, gX + 2, gX + 4, gX + 6] if gX + 6 < NG else [gX + 1, gX + 2, gX + 3, gX + 4]
        assert gs[-1] < NG, (name, gX, NG)
        for j in range(NPRE // 2): addpost(gs[j], [kread(2*j, 2*j), kread(2*j + 1, 2*j + 1)])
    dstep = 2
    if cur == 'A' and nxt == 'A': dmaq = [(1, kv_dma('K')), (1, kv_dma('V'))]; dstep = 3 if extra_dma else 4
    elif cur == 'A' and nxt == 'B': dmaq = [(1, kv_dma('K'))] + [(gY + 2, x) for x in kv_dma2('K')]
    elif cur == 'B' and nxt == 'B':
        dmaq = [(0, x) for x in kv_dma2('V')]
        if not lastK: dmaq += [(gY + 3, x) for x in kv_dma2('K')]
    if extra_dma: dmaq += extra_dma
    for g, it in (extra_post or {}).items(): addpost(g, it)
    if dmaq:
        endg = place_dma(dmaq, addpost, step=dstep)
        assert endg - dstep < gX, (name, endg, gX)
        if hasY and cur == 'B': assert max(g for g, l in post.items() if any(x.kind == 'dma' and sr(sVS) in x.txt for x in l)) < gY
    valu = []
    def add(mg, items):
        for it in items: valu.append((mg, it))
    H1 = len(qk)
    for blk in (2, 3):
        if blk not in cskip: add(0, expblk(Sc + 16*blk, blk_q(cur, blk), False))
    done = {}
    for g, (d, f, q, cin) in enumerate(qk): done[d] = g
    mdict = {m[0]: m for m in (mask or [])}
    def domask(blk):
        if blk in mdict: add(done[vr(Sn + 16*blk, 16)] + 3, maskblk(Sn + 16*blk, mdict[blk][1], mdict[blk][2]))
    domask(0); domask(1)
    add(0, extra_h1 or [])
    qbs = (0, 1) if (cur == 'A' and 0 not in cskip) else (1,)
    if len(qbs) == 2: add(0, [I(f"v_max_f32 v{vMx[0]}, v{Lr[0][1]}, v{Lr[1][1]}")])
    add(max(H1 - 1, 0), [I(f"v_cmp_lt_f32 vcc, s{sThr}, v{vMx[0] if len(qbs) == 2 else Lr[1][1]}"),
            [I(f"s_cbranch_vccz F_c{u}"), I(f"s_call_b64 s[{sRet}:{sRet+1}], F_X{cur}{nxt or 'n'}{p}"), I(f"F_c{u}:")]])
    force = {H1: len(valu) - 1}
    add(0, [I(f"v_add_f32 v{Lr[q][0]}, v{Lr[q][0]}, v{Lr[q][1]}") for q in qbs])
    if nxt is not None:
        add(0, [I(f"s_add_u32 s{sKey}, s{sKey}, {64 if cur == 'A' else 128}")])
        if 0 not in nskip: add(0, expblk(Sn, blk_q(nxt, 0), True))
        domask(2); domask(3)
        if 1 not in nskip: add(done[vr(Sn + 16, 16)] + 3, expblk(Sn + 16, blk_q(nxt, 1), blk_first(nxt, 1)))
        if fill:
            for blk in nskip:
                if blk < 2: add(0, [I(f"v_mov_b32 v{Sn + 16*blk + r}, 0") for r in (0, 1, 2, 3, 8, 9, 10, 11)])
                else: add(0, [I(f"v_mov_b32 v{Sn + 16*blk + r}, v{vNinf}") for r in range(16)])
    add(0, extra_valu or [])
    def budget(g, pp):
        nd = sum(1 for x in pp if x.kind == 'dsr'); nm = sum(1 for x in pp if x.kind in ('dma', 'vld', 'vst'))
        return max(val('bud', 6) - max(0, len(pp) - 1) - (1 if nd else 0) - (val('dmac', 1) if nm else 0), 0)
    if flag('halfrd') and cur == 'B' and nxt == 'B':
        for g in post:
            rd = [x for x in post[g] if x.kind == 'dsr']
            if len(rd) == 2 and g < gX: post[g].remove(rd[1])
    if flag('noexp'):
        valu = [v for v in valu if isinstance(v[1], list) or v[1].op != 'v_exp_f32']
    if flag('nodma') and nxt:
        for g in post: post[g] = [x for x in post[g] if x.kind != 'dma']
    body, left = weave(mf, post, valu, budget, flush_dep=True, force=force if not flag('noexp') else None)
    if cskip or nskip:
        dead = set()
        for blk in nskip: dead |= set(regs_in(vr(Sn + 16*blk, 16)))
        dropped = [m for g, m in enumerate(mf) if (g < H1 and set(m.D) <= dead) or
                   (g >= H1 and any(set(m.B) <= set(regs_in(vr(Sc + 16*blk, 16))) for blk in cskip))]
        keepf = set(use[g] for g, m in enumerate(mf) if m not in dropped)
        unused = set()
        for f in range(NPRE, nK):
            if f not in keepf: unused.add(kread(f, f).txt)
        seenX = False; nb = []
        for x in body:
            if x in post.get(gX, []): seenX = True
            if x in dropped or (x.kind == 'dsr' and x.txt in unused and not seenX): continue
            nb.append(x)
        body = nb
    tail = []
    if OPT.verbose: print(f"[step {name}] leftover valu {left}", file=sys.stderr)
    return pre + body + tail

def finalize(qb, sbase, inter=None, tag='cst'):
    l0, l1 = Lr[qb]; inter = list(inter or [])
    l1 = vTm
    L = [I(f"v_mov_b32 v{l1}, v{l0}"), I(f"v_permlane32_swap_b32 v{l0}, v{l1}"),
         I(f"v_add_f32 v{l0}, v{l0}, v{l1}"), I(f"v_rcp_f32 v{l0}, v{l0}"), I(f"s_add_u32 s{sFb}, s{sbase}, 0x20000")]
    for db in range(4):
        t = T0 + (db % 2)*16; A = PKT + (db % 2)*8; B = A + 4
        for r0 in range(0, 16, 4):
            L += [I(f"v_accvgpr_read_b32 v{t+r}, a{OA(qb, db)+r}") for r in range(r0, r0 + 4)]
            if inter: L += inter.pop(0)
        for r0 in range(0, 16, 4):
            L += [I(f"v_mul_f32 v{t+r}, v{t+r}, v{l0}") for r in range(r0, r0 + 4)]
            if inter: L += inter.pop(0)
        for pc, T in ((0, A), (1, B)):
            L += [I(f"v_cvt_pk_bf16_f32 v{T}, v{t+4*pc}, v{t+4*pc+1}"), I(f"v_cvt_pk_bf16_f32 v{T+1}, v{t+4*pc+2}, v{t+4*pc+3}"),
                  I(f"v_cvt_pk_bf16_f32 v{T+2}, v{t+8+4*pc}, v{t+8+4*pc+1}"), I(f"v_cvt_pk_bf16_f32 v{T+3}, v{t+8+4*pc+2}, v{t+8+4*pc+3}")]
        L += [I(f"v_permlane32_swap_b32 v{A+j}, v{B+j}") for j in range(4)]
        L += [I(f"v_permlane16_swap_b32 v{A+j}, v{B+j}") for j in range(4)]
        L += [I(f"buffer_store_dwordx4 {vr(A)}, v{vL16}, {sr(sWS)}, s{sbase} offen offset:{db*1024} {ST}", tag=('vm', tag)),
              I(f"buffer_store_dwordx4 {vr(B)}, v{vL16}, {sr(sWS)}, s{sFb} offen offset:{db*1024} {ST}", tag=('vm', tag))]
        L += [I(f"v_accvgpr_write_b32 a{16*db + 8*qb + j}, v{A+j}") for j in range(8)]
    for g in inter: L += g
    return L

def fin_parts(qb, sbase):
    l0 = Lr[qb][0]; l1 = vF[0]; t = T0; A = PKT; B = A + 4
    head = [I(f"v_mov_b32 v{l1}, v{l0}"), I(f"s_add_u32 s{sFb}, s{sbase}, 0x20000"), I(f"v_permlane32_swap_b32 v{l0}, v{l1}"),
            I(f"v_add_f32 v{l0}, v{l0}, v{l1}"), I(f"v_rcp_f32 v{l0}, v{l0}")]
    parts = []
    for db in range(4):
        p1 = [I(f"v_accvgpr_read_b32 v{t+r}, a{OA(qb, db)+r}") for r in range(16)] + [I(f"v_mul_f32 v{t+r}, v{t+r}, v{l0}") for r in range(16)]
        p2 = []
        for pc, T in ((0, A), (1, B)):
            p2 += [I(f"v_cvt_pk_bf16_f32 v{T}, v{t+4*pc}, v{t+4*pc+1}"), I(f"v_cvt_pk_bf16_f32 v{T+1}, v{t+4*pc+2}, v{t+4*pc+3}"),
                   I(f"v_cvt_pk_bf16_f32 v{T+2}, v{t+8+4*pc}, v{t+8+4*pc+1}"), I(f"v_cvt_pk_bf16_f32 v{T+3}, v{t+8+4*pc+2}, v{t+8+4*pc+3}")]
        p2 += [I(f"v_permlane32_swap_b32 v{A+j}, v{B+j}") for j in range(4)] + [I(f"v_permlane16_swap_b32 v{A+j}, v{B+j}") for j in range(4)]
        p2 += [I(f"buffer_store_dwordx4 {vr(A)}, v{vL16}, {sr(sWS)}, s{sbase} offen offset:{db*1024} {ST}"),
               I(f"buffer_store_dwordx4 {vr(B)}, v{vL16}, {sr(sWS)}, s{sFb} offen offset:{db*1024} {ST}")]
        p2 += [I(f"v_accvgpr_write_b32 a{16*db + 8*qb + j}, v{A+j}") for j in range(8)]
        parts.append((p1, p2))
    return head, parts

def rare_redo(typ, p):
    S = 64*p; T = T0 + 16
    L = [I(f"F_R{typ}{p}:"), I("s_nop 15"), I(f"s_mul_i32 s{sT3}, s{sKey}, {TS // 64}")]
    qk = qk_mfmas(typ, S)
    nf = 16 if typ == 'A' else 32
    for f0 in range(0, nf, 4):
        L += [I(f"s_add_u32 s{sOffA}, s{sT3}, {(f0 % 16)*1024 + (f0 // 16)*TS}")]
        L += [I(f"buffer_load_dwordx4 {vr(T + 4*k)}, v{vL16}, {sr(sKS)}, s{sOffA} offen offset:{1024*k} {LD}") for k in range(4)]
        L += [I("s_waitcnt vmcnt(0)")]
        L += [I(f"{M32} {d}, {vr(T + 4*(f - f0))}, {q}, {cin}") for d, f, q, cin in qk if f0 <= f < f0 + 4]
        L += [I("s_nop 7")]
    for qb in ((0, 1) if typ == 'A' else (1,)):
        blks = [b for b in range(4) if blk_q(typ, b) == qb]; m = vMx[qb]
        L += [I(f"s_lshl_b32 s{sOffA}, s{sI}, 7")] if qb == 0 else [I(f"s_sub_u32 s{sOffA}, 15, s{sI}"), I(f"s_lshl_b32 s{sOffA}, s{sOffA}, 7")]
        L += [I(f"s_sub_u32 s{sOffA}, s{sOffA}, s{sKey}")]
        for k, b in enumerate(blks): L += maskblk(S + 16*b, k, sOffA)
        for k, b in enumerate(blks): L += maxblk(S + 16*b, m, k == 0)
        L += xmax(m, vTm) + [I(f"v_max_f32 v{m}, 0, v{m}"), I(f"v_exp_f32 v{vF[qb]}, -v{m}")]
        for b in blks: L += [I(f"v_sub_f32 v{S+16*b+r}, v{S+16*b+r}, v{m}") for r in range(16)]
        L += [I(f"v_sub_f32 v{NEG[qb]+r}, v{NEG[qb]+r}, v{m}") for r in range(16)]
        L += [I(f"v_mul_f32 v{Lr[qb][0]}, v{Lr[qb][0]}, v{vF[qb]}")]
        for k, b in enumerate(blks): L += expblk(S + 16*b, qb, k == 0)
        for r0 in range(0, 64, 8):
            a = qb*64 + r0
            L += [I(f"v_accvgpr_read_b32 v{T+k}, a{a+k}") for k in range(8)]
            L += [I(f"v_mul_f32 v{T+k}, v{T+k}, v{vF[qb]}") for k in range(8)]
            L += [I(f"v_accvgpr_write_b32 a{a+k}, v{T+k}") for k in range(8)]
    L += [I("s_nop 1"), I(f"s_setpc_b64 s[{sRet2}:{sRet2+1}]")]
    return pad_hazards(L)[0]
def rare_stub(cur, nxt, p):
    L = [I(f"F_X{cur}{nxt or 'n'}{p}:"), I(f"s_call_b64 s[{sRet2}:{sRet2+1}], F_R{cur}{p}")]
    if nxt:
        S = 64*(1 - p)
        for b in range(4): L += [I(f"v_sub_f32 v{S+16*b+r}, v{S+16*b+r}, v{vMx[blk_q(nxt, b)]}") for r in range(16)]
    L += [I("s_nop 1"), I(f"s_setpc_b64 s[{sRet}:{sRet+1}]")]
    return pad_hazards(L)[0]

def first_tile():
    P = stamp(9) + [I("s_waitcnt lgkmcnt(0)"), needvm('kv0', 'kv1', 'kv2'), I("s_barrier"),
         I(f"v_mov_b32 v{vK}, v{vL16}")]
    P += [kread(f, f) for f in (0, 8, 1, 9, 2, 10, 3, 11)]
    mf = []; post = {}
    order = [(ks, kb) for ks in range(8) for kb in range(2)]
    for k, (ks, kb) in enumerate(order):
        f = kb*8 + ks
        for qb in range(2):
            d = vr((2*kb + qb)*16, 16)
            mf.append(I(f"{M32} {d}, {ar(RING + f*4)}, {ar(QF(qb, ks))}, {d if ks else 0}"))
        if k + 8 < 16:
            ks2, kb2 = order[k + 8]; post.setdefault(2*k, []).append(kread(kb2*8 + ks2, kb2*8 + ks2))
    P += [I(f"v_bfe_u32 v{vF3}, v{vL16}, 4, 4"), I(f"v_lshlrev_b32 v{vF3}, 7, v{vF3}")]
    dq = [(1, kv_dma('K')), (1, kv_dma('V')), (1, [poll_issue(vPo, vF3, sWS, "s0")])]
    place_dma(dq, lambda g, it: post.setdefault(g, []).extend(it), step=2)
    valu = []
    for c in range(4):
        for qb in range(2): valu += [(0, x) for x in qconv(6, qb, c)]
    ln = 248
    C = [I(f"v_add_u32 v{vL16V}, 0x10000, v{vL16}"), I(f"v_lshrrev_b32 v{ln}, 4, v{vL16}"),
         I(f"s_mov_b32 s{sKey}, 0"), I(f"s_mov_b32 s{sThr}, {f32(THRESH)}"),
         I(f"s_lshl_b32 s{sOffB}, s{sI}, 8"), I(f"s_sub_u32 s{sOffB}, {128*14}, s{sOffB}"),
         I(f"v_and_b32 v{ln+1}, 31, v{ln}"), I(f"v_lshrrev_b32 v{ln+2}, 5, v{ln}"),
         I(f"v_lshl_add_u32 v{vThr}, s{sWave}, 5, v{ln+1}"), I(f"v_lshlrev_b32 v{ln+2}, 2, v{ln+2}"), I(f"v_sub_u32 v{vThr}, v{vThr}, v{ln+2}"),
         I(f"v_mov_b32 v{vNinf}, 0xff800000"), I(f"s_mov_b32 s{sKr}, 0x8000"), I(f"s_mov_b32 s{sVr}, 0")]
    C += [I(f"v_mov_b32 v{r}, 0") for r in (196, 198, 244, 245, 246, 247)] + consts_early(ln)
    valu += [(22, x) for x in C]
    body, _ = weave(mf, post, valu, lambda g, p: 5 if len(p) < 2 else 3, flush_dep=True)
    P += body
    P += [I(f"v_add_u32 v{vK}, 0x4000, v{vL16}")]
    P += [kread(f, f) for f in range(NPRE)]
    if not flag('pfo_old'):
        P += [I(f"v_lshlrev_b32 v250, 2, v{vL16}"), I(f"v_lshlrev_b32 v251, 1, v{vL16}"),
              I(f"s_lshl_b32 s{sT}, s2, 14"), I(f"s_add_u32 s{sT}, s{sT}, s{sW4096}"), pf_load(252, 250, sWO, f"s{sT}"),
              I(f"s_mul_i32 s{sT}, s2, 7168"), I(f"s_mul_i32 s{sT2}, s{sWave}, 1792"), I(f"s_add_u32 s{sT}, s{sT}, s{sT2}"), pf_load(252, 251, sW2, f"s{sT}")]
    P += [I(f"s_cmp_lg_u32 s{sI}, 0"), I("s_cbranch_scc1 F_nomask"), I("s_nop 7")]
    for kb in range(2): P += maskblk(16*(2*kb), kb)
    P += [I("F_nomask:")]
    X = []
    for qb in range(2): X += maxblk(16*qb, vMx[qb], True) + maxblk(16*(2 + qb), vMx[qb], False)
    X += [I(f"v_mov_b32 v{vTm}, v{vMx[0]}"), I(f"v_mov_b32 v{vF[0]}, v{vMx[1]}"), I("s_nop 0"),
          I(f"v_permlane32_swap_b32 v{vMx[0]}, v{vTm}"), I(f"v_permlane32_swap_b32 v{vMx[1]}, v{vF[0]}"),
          I(f"v_max_f32 v{vMx[0]}, v{vMx[0]}, v{vTm}"), I(f"v_max_f32 v{vMx[1]}, v{vMx[1]}, v{vF[0]}")]
    for qb in range(2):
        X += [I(f"v_sub_f32 v{NEG[qb] + r}, 0, v{vMx[qb]}") for r in range(16)]
        for blk in (qb, 2 + qb): X += [I(f"v_sub_f32 v{16*blk + r}, v{16*blk + r}, v{vMx[qb]}") for r in range(16)]
    for blk in (0, 1): X += expblk(16*blk, blk, True)
    zm = [I(f"{M32} {ar(16*k, 16)}, v[244:247], v[244:247], 0") for k in range(8)]
    body, _ = weave(zm, {}, [(0, x) for x in X], lambda g, p: 7)
    P += body
    P += poll_check(vPo, vF3, sWS, "s0", 1, sT2, 63)
    P += stamp(10) + [I(f"s_sub_u32 s{sCnt}, s{sI}, 1"), I("s_cbranch_scc1 F_AAme")]
    return P

NE = val('nHe', 10); OW = 10; SB = 14
def w3_addr(s):
    if s < 4: return 131072 + 8192*s
    if s < OW: return 8192*(s - 4)
    if s < SB: return (49152, 57344, 0, 8192)[s - OW]
    return 65536 + 8192*(s - SB)
def bslot(s, b):
    if s < 2: return 32*s + 16*(b // 2) + 8 + 4*(b % 2)
    if s < OW: return 128 + 16*(s - 2) + 4*b
    if s < SB: return 16*(s - OW) + 4*b
    k = 2*(s - SB) + (b % 2)
    if b < 2: return 128 + 4*k
    return 64 + 4*k if k < 16 else 224 + 4*(k - 16)
def w3_dma(s):
    gs = []
    if s < OW: srd_, so, off = sW2, sW2o, s*32768
    elif s < SB: srd_, so, off = sWO, sWoO, (s - OW)*32768
    else: srd_, so, off = sWO, sWoS[(s - SB)//4], ((s - SB) % 4)*32768
    for h in range(2):
        gs.append([I(f"s_add_u32 m0, s{sW1024}, {w3_addr(s) + h*4096}"), I(f"s_add_u32 s{sT}, s{so}, {off + h*128}"),
                   I(f"buffer_load_dwordx4 v{vWd3}, {sr(srd_)}, s{sT} offen lds", tag=('vm', f'x{s}'))])
    return gs
def h_loads(s):
    L = []
    if s % 4 == 0: L += [I(f"s_add_u32 s{sCc}, s{sHLo}, {(s//4)*4096}"), I(f"s_add_u32 s{sCc2}, s{sHHo}, {(s//4)*4096}")]
    return L + [I(f"buffer_load_dwordx4 {ar(bslot(s, b))}, v{vH2 if b % 2 else vL16}, {sr(sWS)}, s{sCc2 if b >= 2 else sCc} offen offset:{(s % 4)*1024} {LD}") for b in range(4)]
def sib_loads(s, hi):
    t = (s - SB) % 4; L = []
    if t == 0: L += [I(f"s_add_u32 s{sCc}, s{sCH if hi else sCL}, s{sSib[(s-SB)//4]}")]
    return L + [I(f"buffer_load_dwordx4 {ar(bslot(s, 2*hi + b))}, v{vC2 if b else vL16}, {sr(sWS)}, s{sCc} offen offset:{t*1024} {LD}") for b in range(2)]
def first_unit(d, t):
    return [I(f"s_and_b32 s{t}, s{sXcd}, 1"), I(f"s_mul_i32 s{t}, s{t}, {NE - 7}"), I(f"s_mul_i32 s{d}, s{sXcd}, 7"), I(f"s_add_u32 s{d}, s{d}, s{t}")]
def flag_store(level): return [I(f"v_add_u32 v{vFl}, 1, v{vFl}"), I(f"buffer_store_dword v{vFl}, v{vZ}, {sr(sWS)}, s{sFlagMe} offen {ST}")]

def consts_early(ln):
    t = ln + 1; a, b = sCnt, sOffA
    return [I(f"v_mov_b32 v{vZ}, 0"), I(f"v_mov_b32 v{vFl}, s{sE}"),
            I(f"s_and_b32 s{a}, s{sFlagMe}, 0xfffffe00"),
            I(f"v_bfe_u32 v{t}, v{vL16}, 4, 2"), I(f"v_lshlrev_b32 v{t}, 7, v{t}"), I(f"v_add_u32 v{vF2}, s{a}, v{t}"),
            I(f"s_lshl_b32 s{a}, s{sWave}, 13"), I(f"s_lshl_b32 s{b}, s{sHl}, 8"), I(f"s_add_u32 s{a}, s{a}, s{b}"),
            *first_unit(sW2o, b), I(f"s_lshl_b32 s{sW2o}, s{sW2o}, 15"), I(f"s_add_u32 s{sW2o}, s{sW2o}, s{a}")] + \
           lane_wdma(vWd3, 1024, t, ln, natural=False, nblk=1)
def h_bases():
    L = [I(f"v_add_u32 v{vH2}, {56*1024}, v{vL16}")] + first_unit(sCc, sCc2)
    for d, c in ((sHLo, sCL), (sHHo, sCH)):
        L += [I(f"s_sub_u32 s{d}, s{c}, {WS_CTX:#x}"), I(f"s_lshr_b32 s{d}, s{d}, 17"), I(f"s_mul_i32 s{d}, s{d}, 56"),
              I(f"s_add_u32 s{d}, s{d}, s{sCc}"), I(f"s_lshl_b32 s{d}, s{d}, 10"), I(f"s_add_u32 s{d}, s{d}, {WS_H:#x}")]
    return L
def code_pf2():
    V, M = code_pf("F_Bend", "F_RA0", 250, 252, vL16)
    V = V[:3] + [I(f"s_and_b32 s{sOffA}, s{sXcd}, 1"), I(f"s_mul_i32 s{sOffA}, s{sOffA}, F_Bodd-F_Bend"), I(f"v_add_u32 v250, s{sOffA}, v250")] + V[3:]
    V2, M2 = code_pf("F_P4", "F_RA0", 251, 252, vL16)
    return V + V2, M + M2
NBF = val('nbf', 6)
def bbf_steps():
    head, parts = fin_parts(0, sCL)
    lds = {s: [x for x in h_loads(s) if x.kind != 'salu'] for s in range(4)}
    V, _ = code_pf2()
    flat = head + h_bases() + [I(f"s_mov_b32 s{sCc}, s{sHLo}"), I(f"s_mov_b32 s{sCc2}, s{sHHo}")] + parts[0][0] + parts[0][1] + V
    flat += parts[1][0] + parts[1][1] + lds[2] + parts[2][0] + lds[3] + parts[2][1] + lds[0] + parts[3][0] + parts[3][1] + lds[1]
    c = lambda x: 3 if x.kind in ('vld', 'vst') else cost(x)
    tot = sum(map(c, flat)); chunks = [[] for _ in range(2*NBF)]; acc = 0
    for x in flat:
        chunks[min(int(acc * 2*NBF / tot), 2*NBF - 1)].append(x); acc += c(x)
    firstld = min(k for k, ch in enumerate(chunks) if any(x.kind == 'vld' for x in ch))
    assert firstld >= 2
    out = []
    for k in range(NBF):
        post = {1: poll_check(vPo, vF2, sWS, "0", 1, sT3, 63) + [I(f"buffer_store_dword v{vFl}, v{vZ}, {sr(sWS)}, s{sFlagMe} offen {ST}")][:0]} if k == 1 else {}
        out.append(step('B', 'B', k % 2, 2, name=f'BBf{k}', extra_h1=chunks[2*k], extra_valu=chunks[2*k + 1], extra_post=post))
    return out
def finl_block():
    L = h_bases()
    L += [I("s_waitcnt vmcnt(0)"), I("s_barrier")] + poll_check(vPo, vF2, sWS, "0", 1, sT2, 63)
    inter = []
    pre2 = [I(f"s_mov_b32 s{sCc}, s{sHLo}"), I(f"s_mov_b32 s{sCc2}, s{sHHo}")]
    lds = [x for s in (2, 3, 0, 1) for x in h_loads(s) if x.kind != 'salu']
    for k, x in enumerate(lds): inter += [[x], []] if k < 8 else [[x], []]
    inter = inter[:16] + [[lds[8]], [], [lds[9]], [], [lds[10]], [], [lds[11]], []] + [[], [lds[12]], [], [lds[13]], [], [], [], []] + [[lds[14]], [lds[15]]]
    V, M = code_pf2()
    if flag('nopf3'): V, M = [], []
    return L + pre2 + V + M + finalize(0, sCL, inter, tag='cs0')
def bend_pre():
    L = [I(f"s_lshl_b32 s{sT}, s{sWave}, 13"), I(f"s_lshl_b32 s{sT2}, s{sHl}, 8"), I(f"s_add_u32 s{sT3}, s{sT}, s{sT2}"),
         I(f"s_lshl_b32 s{sT}, s{sXcd}, 19"), I(f"s_add_u32 s{sT}, s{sT}, s{sT3}"),
         I(f"s_lshl_b32 s{sT2}, s{sHl}, 17"), I(f"s_add_u32 s{sWoO}, s{sT}, s{sT2}")]
    for k in range(3):
        L += [I(f"s_add_u32 s{sT2}, s{sHl}, {k+1}"), I(f"s_and_b32 s{sT2}, s{sT2}, 3"),
              I(f"s_lshl_b32 s{sWoS[k]}, s{sT2}, 17"), I(f"s_add_u32 s{sWoS[k]}, s{sWoS[k]}, s{sT}"),
              I(f"s_sub_u32 s{sT2}, s{sT2}, s{sHl}"), I(f"s_lshl_b32 s{sSib[k]}, s{sT2}, 12")]
    return L
def bend_valu():
    t = T0; ln = T0 + 4
    L = [I(f"v_lshrrev_b32 v{ln}, 4, v{vL16}")] + lane_wtr(vWtrB, 0, t, ln, natural=False)
    L += [I(f"v_add_u32 v{vWtrA+c}, 131072, v{vWtrB+c}") for c in range(4)]
    L += [I(f"v_add_u32 v{vC2}, 0x20000, v{vL16}"),
          I(f"s_lshr_b32 s{sT3}, s2, 3"), I(f"s_lshl_b32 s{sT3}, s{sT3}, 2"), I(f"s_lshr_b32 s{sPo}, s{sXcd}, 1"), I(f"s_add_u32 s{sPo}, s{sT3}, s{sPo}"),
          I(f"s_lshl_b32 s{sPo}, s{sPo}, 10"), I(f"s_add_u32 s{sPo}, s{sPo}, {F3:#x}"),
          I(f"v_and_b32 v{t}, 7, v{ln}"), I(f"v_lshlrev_b32 v{t}, 7, v{t}"), I(f"v_add_u32 v{vF3}, s{sPo}, v{t}"),
          I(f"s_add_u32 s{sT3}, s{sT3}, s{sWave}"), I(f"s_lshl_b32 s{sT3}, s{sT3}, 3"), I(f"s_add_u32 s{sT3}, s{sT3}, s{sXcd}"),
          I(f"s_lshl_b32 s{sT3}, s{sT3}, 7"), I(f"s_add_u32 s1, s{sT3}, {F3:#x}"),
          I(f"s_mov_b32 s{sPo}, s2"),
          I(f"s_mul_i32 s{sPo}, s{sPo}, {8*PD}"), I(f"s_mul_i32 s{sT3}, s{sWave}, {2*PD}"), I(f"s_add_u32 s{sPo}, s{sPo}, s{sT3}"),
          I(f"s_add_u32 s{sPo}, s{sPo}, {WS_P:#x}")]
    return L

def p3(nH):
    RG = 128; NR = 8
    HS = list(range(nH)); OS = list(range(OW, SB)); SS = list(range(SB, SB + 12))
    seq = [(s, c8, (0, 1, 2, 3)) for s in HS + OS for c8 in range(8)]
    lo0 = len(seq)
    seq += [(s, c8, (0, 1)) for s in SS for c8 in range(8)] + [(s, c8, (2, 3)) for c8 in range(8) for s in SS]
    NF = len(seq)
    g0s = []; g = 0
    for e in seq: g0s.append(g); g += len(e[2])
    NGP = g; S0 = 8*(nH + 4)
    def w_reads(n):
        s, c8, _ = seq[n]; h, c = divmod(c8, 4); a = w3_addr(s) + h*4096; r = RG + (n % NR)*4
        if a >= 131072: va, off = vWtrA, a - 131072
        elif s < SB: va, off = vWtrB, a
        else: va, off = vWtrB, a - 65536
        return [I(f"ds_read_b64_tr_b16 {vr(r,2)}, v{va+c} offset:{off}"), I(f"ds_read_b64_tr_b16 {vr(r+2,2)}, v{va+c} offset:{off+2048}")]
    big = nH > 4
    L = stamp(13) + [I("s_waitcnt lgkmcnt(0)")] + ([needvm(*[f'x{k}' for k in range(4, min(nH, 8))])] if big else []) + [I("s_barrier")] + stamp(14)
    rd_at = {}
    for m in range(NF):
        n = m
        while n > 0 and m - n < 6 and g0s[m] - g0s[n] < val('p3pf', 14): n -= 1
        rd_at[m] = n if (g0s[m] - g0s[n] >= val('p3pf', 14) or m - n == 6) else -1
    for m in range(NF):
        if rd_at[m] < 0: L += w_reads(m)
    mf = []; post = {}; dmaq = []; valu = []
    def addpost(g, items): post.setdefault(g, []).extend(items)
    firstread = {}
    for m in range(NF): firstread.setdefault(seq[m][0], m)
    bars = {OW: OS, SB: SS[:6], SB + 6: SS[6:]}
    if nH > 8: bars[8] = range(8, nH)
    elif big: bars[nH - 1] = []
    for n, (s, c8, bs) in enumerate(seq):
        for b in bs:
            d = vr((c8*4 + b)*4)
            mf.append(I(f"{M16} {d}, {vr(RG + (n % NR)*4)}, {ar(bslot(s, b))}, {d if s else 0}"))
        if n + 1 < NF: addpost(g0s[n + 1] - 1, [needlg(regs_in(vr(RG + ((n + 1) % NR)*4)))])
    bargap = {}
    for sb, rng in bars.items():
        m = firstread[sb]; g = g0s[rd_at[m]] - 1; bargap[sb] = g
        addpost(g, ([needvm(*[f'x{k}' for k in rng])] if rng else []) + [I("s_barrier")] + stamp({OW: 54, SB: 57, SB + 6: 58}.get(sb, 52)))
    def free_after(s):
        last = max(g0s[m] + len(seq[m][2]) - 1 for m in range(NF) if seq[m][0] == s)
        return min(g for g in bargap.values() if g >= last)
    addpost(g0s[rd_at[lo0 - 1]] + 1, [I(f"v_add_u32 v{vWtrB+k}, 65536, v{vWtrB+k}") for k in range(2)])
    addpost(g0s[rd_at[lo0 - 1]] + 2, [I(f"v_add_u32 v{vWtrB+k}, 65536, v{vWtrB+k}") for k in range(2, 4)])
    for m in range(NF):
        if rd_at[m] >= 0: addpost(g0s[rd_at[m]], w_reads(m))
    rdg = set(g0s[rd_at[m]] for m in range(NF) if rd_at[m] >= 0)
    G = lambda grp: 4*grp
    for s in range(4, min(nH, 7)): dmaq.append((1, h_loads(s)))
    if nH > 7:
        addpost(G(11) + 1, [I(f"s_movk_i32 s{sT3}, 2048")] + poll_check(vMx[0], vF2, sWS, f"s{sT3}", 1, sT2, 63))
        for s in range(7, nH): dmaq.append((G(11) + 2, h_loads(s)))
    inb = bend_stages(nH)
    for s in OS:
        if s not in inb:
            prev = [t for t in HS if w3_addr(t) == w3_addr(s)]
            for g in w3_dma(s): dmaq.append((free_after(prev[0]) + 1 if prev else G(25), g))
    for k, s in enumerate(SS):
        for g in w3_dma(s): dmaq.append(((G(26) if big else 1) + 8*k if k < 8 else free_after(k - 8) + 1, g))
    g2 = S0 - (58 if big else val('g2o', 50)); g3 = val('g3e', 68) if big else val('g3o', 52); g4 = S0 - 8 if big else g3 + val('d4o', 12)
    valu += [((33 if min(int(r[1:]) for r in x.wr) < 32 else 65) if x.op == 'v_accvgpr_write_b32' else 2, x) for x in finalize(1, sCH, tag='cs1')] + [(G(g3), [needvm('cs1')] + flag_store(3))]
    dmaq.append((G(g2), [poll_issue(vPo, vF2, sWS, "0")]))
    addpost(G(g2 + 12) + 1, stamp(55) + poll_check(vPo, vF2, sWS, "0", 2, sT2, 63) + stamp(56))
    e = 0
    for s in (SS[4:] + SS[:4] if not big else SS):
        busy = max([8*(t + 1) for t in HS if any(bslot(t, b) == bslot(s, b2) for b in range(4) for b2 in (0, 1))] + [0])
        e = max(e, G(g2 + 12) + 2, G(busy) + 1)
        dmaq.append((e, sib_loads(s, 0)))
    dmaq.append((G(g4), [poll_issue(vPo, vF2, sWS, "0")]))
    addpost(G(g4 + 12) + 1, stamp(59) + poll_check(vPo, vF2, sWS, "0", 3, sT2, 63) + stamp(60))
    assert g4 + 12 > 8*nH
    for s in SS: dmaq.append((G(g4 + 12) + 2, sib_loads(s, 1), 4 if big else 3))
    PKP = 160
    def piece(c8, pr, k):
        X = (c8*4 + 2*pr)*4; T = PKP + (k % 8)*4
        a, b = P1.pack_swap(T, X, X + 4)
        return a + [I(f"s_add_u32 s{sT3}, s{sPo}, {pr*PD + (c8//4)*4096}")] + b + \
            [I(f"buffer_store_dwordx4 {vr(T)}, v{vL16}, {sr(sWS)}, s{sT3} offen offset:{(c8 % 4)*1024} {ST}", tag=('vm', 'pst'))]
    hi0 = NF - 96
    ev = [(g0s[hi0] + 3, c8, 0) for c8 in range(8)] + [((g0s[hi0 + 12*(c8 + 1)] + 3) if c8 < 7 else NGP, c8, 1) for c8 in range(8)]
    order = sorted(range(16), key=lambda k: (ev[k][0] + (0 if ev[k][2] else 12*ev[k][1])))
    for k, e in enumerate(order): valu += [(ev[e][0], x) for x in piece(ev[e][1], ev[e][2], k)]
    XO = 226; vXa, vBa = 222, 223
    p4pre = [I(f"s_lshr_b32 s{sT}, s{sXcd}, 1"), I(f"s_lshl_b32 s{sT}, s{sT}, 5"),
             I(f"s_sub_u32 s{sT2}, 15, s{sI}"), I(f"s_bitcmp1_b32 s{sXcd}, 0"), I(f"s_cselect_b32 s{sT2}, s{sT2}, s{sI}"),
             I(f"s_lshl_b32 s{sT2}, s{sT2}, 7"), I(f"s_add_u32 s{sT}, s{sT}, s{sT2}"), I(f"s_lshl_b32 s74, s{sT}, 10"),
             I(f"s_lshl_b32 s75, s{sHl}, 8"), I(f"s_lshl_b32 s{sT}, s{sWave}, 6"), I(f"s_add_u32 s75, s75, s{sT}"), I(f"s_add_u32 s74, s74, s75"),
             I(f"v_bfe_u32 v{vXa}, v{vL16}, 4, 5"), I(f"v_lshlrev_b32 v{vXa}, 10, v{vXa}"),
             I(f"v_lshrrev_b32 v{vBa}, 9, v{vL16}"), I(f"v_lshlrev_b32 v{vBa}, 4, v{vBa}"), I(f"v_add_u32 v{vXa}, v{vXa}, v{vBa}")]
    gp = G(S0 + 38)
    dmaq.append((gp, p4pre[:12] + [I(f"buffer_load_dwordx4 {vr(XO + 8*pc)}, v{vXa}, {sr(sX)}, s74 offen offset:{pc*32}") for pc in range(2)] +
                        [I(f"buffer_load_dwordx4 {vr(XO + 4 + 8*pc)}, v{vBa}, {sr(sB2)}, s75 offen offset:{pc*32}") for pc in range(2)]))
    for k, x in enumerate(p4pre[12:]): addpost(gp - 11 + 2*k, [x])
    if flag('p3nold'): dmaq = [d for d in dmaq if not any(x.kind == 'vld' and 'a[' in x.txt for x in d[1])]
    if flag('p3nodma'): dmaq = [d for d in dmaq if not any(x.kind == 'dma' for x in d[1])]
    if flag('p3nofin'): valu = [v for v in valu if isinstance(v[1], list) or v[0] > 100 or v[1].kind == 'vst']
    place_dma(dmaq, addpost, step=val('p3step', 4), ok=lambda g: g not in rdg and (g >= g0s[lo0] or g % 4 in (1, 2)))
    def budget(g, p):
        if any(x.kind == 'dsr' for x in p): return 0
        n = sum(1 for x in p if x.txt or (x.tag and x.tag[0] != 'needvm'))
        nd = sum(1 for x in p if x.kind in ('dma', 'vld', 'vst'))
        return max(0, (3 if (not big and g < G(val('ob', 40))) else 2) - max(0, n - 1) - nd)
    body, left = weave(mf, post, valu, budget, flush_dep=lambda g: 32*nH <= g < g0s[lo0])
    if OPT.verbose:
        mi = 0
        for x in body:
            if x.kind == 'mfma': mi += 1
            if x.tag and x.tag[0] == 'vm' and x.tag[1] in ('cs0', 'cs1', 'pst'): print(f"[p3] {x.tag[1]} store at gap {mi} (group {mi/4:.1f})", file=sys.stderr)
    return L + body + stamp(15)
def bend_stages(nH): return (list(range(4, nH)) + list(range(OW, SB)))[:7] if nH > 4 else list(range(OW, SB))
def p4():
    XO = 226; vXa, vBa = 222, 223
    L = [I(f"s_mov_b32 s{sFlagMe}, s1"), needvm('pst')] + flag_store(1)
    L += [I(f"s_lshr_b32 s{sT}, s2, 3"), I(f"s_mul_i32 s{sT}, s{sT}, {64*PD}"), I(f"s_mul_i32 s{sT2}, s{sXcd}, {PD}"), I(f"s_add_u32 s{sT}, s{sT}, s{sT2}"),
          I(f"s_lshl_b32 s{sT2}, s{sWave}, 11"), I(f"s_add_u32 s{sT}, s{sT}, s{sT2}"), I(f"s_add_u32 s{sT}, s{sT}, {WS_P:#x}"),
          poll_issue(vPo, vF3, sWS, "0")]
    for pc in range(2):
        A = 64 + 8*pc
        for j in range(4):
            L += [I(f"v_lshlrev_b32 v{A+2*j}, 16, v{XO+8*pc+j}"), I(f"v_and_b32 v{A+2*j+1}, 0xffff0000, v{XO+8*pc+j}"),
                  I(f"v_lshlrev_b32 v80, 16, v{XO+4+8*pc+j}"), I(f"v_and_b32 v81, 0xffff0000, v{XO+4+8*pc+j}"),
                  I(f"v_add_f32 v{A+2*j}, v{A+2*j}, v80"), I(f"v_add_f32 v{A+2*j+1}, v{A+2*j+1}, v81")]
    L += poll_check(vPo, vF3, sWS, "0", 1, sT2, 63) + stamp(16)
    for x in range(8):
        L += [I(f"buffer_load_dwordx4 {vr((pc*8 + x)*4)}, v{vL16}, {sr(sWS)}, s{sT} offen offset:{pc*1024} {LD}") for pc in range(2)]
        if x < 7: L += [I(f"s_add_u32 s{sT}, s{sT}, {8*PD:#x}")]
    for x in range(8):
        for pc in range(2):
            A = 64 + 8*pc; r = (pc*8 + x)*4
            for j in range(4):
                L += [I(f"v_lshlrev_b32 v80, 16, v{r+j}"), I(f"v_and_b32 v81, 0xffff0000, v{r+j}"),
                      I(f"v_add_f32 v{A+2*j}, v{A+2*j}, v80"), I(f"v_add_f32 v{A+2*j+1}, v{A+2*j+1}, v81")]
    for pc in range(2):
        A = 64 + 8*pc
        L += [I(f"v_cvt_pk_bf16_f32 v{84+4*pc+j}, v{A+2*j}, v{A+2*j+1}") for j in range(4)]
        if not flag('noout'): L += [I(f"buffer_store_dwordx4 {vr(84+4*pc)}, v{vXa}, {sr(sOUT)}, s74 offen offset:{pc*32} {val('outf', '').replace('_', ' ')}")]
    L += stamp_out(17) + [I("s_endpgm")]
    return L

def l2_warm(with_ctx):
    G = []
    if with_ctx: G.append([pf_load(214, 215, sWS, f"s{sCL}", LD)])
    G.append([I(f"s_add_u32 s{sT}, s{sHLo}, 3072"), pf_load(214, 216, sWS, f"s{sT}", LD)])
    G.append([I(f"s_add_u32 s{sT}, s{sHHo}, 3072"), pf_load(214, 216, sWS, f"s{sT}", LD)])
    G.append([I(f"s_lshr_b32 s{sT}, s2, 3"), I(f"s_lshl_b32 s{sT}, s{sT}, 14"), I(f"s_add_u32 s{sT}, s{sT}, s{sW4096}"),
              I(f"s_lshl_b32 s{sT3}, s{sXcd}, 19"), I(f"s_add_u32 s{sT}, s{sT}, s{sT3}"), pf_load(214, 217, sWO, f"s{sT}")])
    return G
def warm_consts():
    return [I(f"v_bfe_u32 v215, v{vL16}, 4, 5"), I(f"v_lshlrev_b32 v215, 7, v215"), I(f"v_lshrrev_b32 v216, 9, v{vL16}"),
            I(f"v_lshlrev_b32 v217, 2, v{vL16}"),
            I(f"v_mad_u32_u24 v218, v216, s{sT3}, v215"), I(f"v_lshl_add_u32 v215, v216, 17, v215"), I(f"v_mov_b32 v216, v218")]
def bbm_pf():
    d = {}
    if not flag('nopf3'): d[2] = code_pf2()[1][:1]; d[4] = code_pf2()[1][1:]
    return d

def build():
    P = P1.prologue()
    P, lgq, vmq = finish(P, name="pro")
    aK, bK = P1.engine(False); aV, bV = P1.engine(True)
    assert text(bK).replace("PL_", "").count("\n") == text(bV).count("\n")
    aK, lq1, vq1 = finish(aK, lgq, vmq, P, name="engK")
    aV, lq2, vq2 = finish(aV, lgq, vmq, P, name="engV")
    assert lq1 == lq2 and [x[1] for x in vq1] == [x[1] for x in vq2] and [x[0] for x in vq1] == [x[0] for x in vq2]
    B, lq, vq = finish(bK + first_tile(), lq1, vq1, aK, name="engB")
    B2, _, _ = finish(bK + first_tile(), lq1, vq1, aV, name="engB'")
    assert len(B) == len(B2)
    Q0 = [set(regs_in(ar(RING + f*4))) for f in range(NPRE)]
    if not OPT.prof: assert lq == Q0, lq
    aame_dma = [(2, g) for s in range(4) for g in w3_dma(s)]
    raw = {
        'AAe': step('A', 'A', 0, 1, name='AAe'), 'AAo': step('A', 'A', 1, 1, name='AAo'),
        'AAmo': step('A', 'A', 1, 1, mask=[(0, 0, None), (2, 1, None)], name='AAmo'),
        'AAme': step('A', 'A', 0, 2, mask=[(0, 2, None), (2, 3, None)], xwait=16, name='AAme', extra_dma=aame_dma),
        'ABm': step('A', 'B', 1, 2, mask=[(k, k, sOffB) for k in range(4)], xwait=8, name='ABm', extra_post={3: flag_store(1), 45: [poll_issue(vPo, vF2, sWS, "0")]}),
        'BBe': step('B', 'B', 0, 2, name='BBe'), 'BBo': step('B', 'B', 1, 2, name='BBo'),
        'BBm': step('B', 'B', 1, 0, mask=[(k, k, None) for k in range(4)], xwait=0, name='BBm', extra_post=bbm_pf(), lastK=True),
        'FINL': stamp(11) + finl_block() + stamp(12) + [I(f"s_sub_u32 s{sCnt}, 6, s{sI}"), I("s_cbranch_scc1 F_Bend")],
    }
    for k, b in enumerate(bbf_steps()): raw[f'BBf{k}'] = b
    for w in range(4):
        sk = lambda m: tuple(b for b, kbg in m.items() if kbg > w)
        mk = lambda m: [(b, kbg, None) for b, kbg in m.items() if kbg == w]
        t0, t1, hb = {0: 0, 2: 1}, {0: 2, 2: 3}, {k: k for k in range(4)}
        raw[f'AAmo{w}'] = step('A', 'A', 1, 1, mask=mk(t0), nskip=sk(t0), name=f'AAmo{w}')
        raw[f'AAme{w}'] = step('A', 'A', 0, 2, mask=mk(t1), cskip=sk(t0), nskip=sk(t1), xwait=16, name=f'AAme{w}', extra_dma=[(2, g) for s in range(4) for g in w3_dma(s)])
        raw[f'AB{w}'] = step('A', 'B', 1, 2, cskip=sk(t1), xwait=8, name=f'AB{w}', extra_post={3: flag_store(1), 45: [poll_issue(vPo, vF2, sWS, "0")]})
        raw[f'AC{w}'] = step('A', 'B', 1, 2, mask=mk(hb), cskip=sk(t1), nskip=sk(hb), fill=True, xwait=8, name=f'AC{w}', extra_post={3: flag_store(1), 45: [poll_issue(vPo, vF2, sWS, "0")]})
        raw[f'BBm{w}'] = step('B', 'B', 1, 0, mask=mk(hb), nskip=sk(hb), fill=True, xwait=0, name=f'BBm{w}', extra_post=bbm_pf(), lastK=True)
    preds = {'AAe': ['PRO', 'AAo'], 'AAo': ['AAe'], 'AAmo': ['AAe'], 'AAme': ['PRO', 'AAmo'], 'ABm': ['AAme'], 'FINL': ['ABm'],
             **{f'BBf{k}': ['ABm' if k == 0 else f'BBf{k-1}'] for k in range(NBF)},
             'BBe': ['FINL', 'BBo', f'BBf{NBF-1}'], 'BBo': ['BBe'], 'BBm': ['BBe']}
    WV = [f'{n}{w}' for w in range(4) for n in ('AAmo', 'AAme', 'AB', 'AC', 'BBm')]
    for w in range(4):
        preds.update({f'AAmo{w}': ['AAe'], f'AAme{w}': ['PRO', f'AAmo{w}'], f'AB{w}': [f'AAme{w}'], f'AC{w}': [f'AAme{w}'], f'BBm{w}': ['BBe']})
    preds['FINL'] += [f'A{c}{w}' for w in range(4) for c in 'BC']
    done = {'PRO': B}
    for nm in ['AAe', 'AAo', 'AAmo', 'AAme', 'ABm', 'FINL'] + [f'BBf{k}' for k in range(NBF)] + ['BBe', 'BBo', 'BBm'] + WV:
        outs = [finish(raw[nm], Q0, None, done.get(pr) or raw[pr], name=nm + "<-" + pr, vm=False) for pr in preds[nm]]
        best = max(outs, key=lambda o: len(o[0]))
        done[nm] = best[0]
        if not OPT.prof: assert best[1] == Q0, (nm, best[1])
    tails = []; P4 = []; p4raw = p4()
    for nH in (NE, 14 - NE):
        ep = {26: [needvm('cs0')] + flag_store(2)}
        if nH > 7: ep[29] = [I(f"s_movk_i32 s{sCc2}, 2048"), poll_issue(vMx[0], vF2, sWS, f"s{sCc2}")]
        bend = step('B', None, 0, 0, name='Bend', extra_dma=[(1, g) for s in bend_stages(nH) for g in w3_dma(s)], extra_valu=bend_valu(), extra_post=ep)
        k = [j for j, x in enumerate(bend) if x.kind == 'mfma'][0]
        tailraw = bend[:k] + bend_pre() + bend[k:] + p3(nH)
        outs = [finish(tailraw, Q0, [(set(), 'cs0')] + [(set(regs_in(ar(bslot(1, b)))), None) for b in (2, 3)], done[pr], name="tail<-" + pr) for pr in ['FINL', 'BBm'] + [f'BBm{w}' for w in range(4)]]
        best = max(outs, key=lambda o: len(o[0]))
        tails.append(best[0])
        P4.append(finish(p4raw, best[1], best[2], best[0], name="p4")[0])
    assert text(P4[0]) == text(P4[1])
    loopx = lambda lab: f" s_sub_u32 s{sCnt}, s{sCnt}, 1\n s_cbranch_scc1 {lab}\n"
    body = text(P) + "\n" + text(aK) + "\n s_branch F_J\nF_V:\n" + text(aV) + "\nF_J:\n" + text(B) + "\n"
    body += f".p2align {val('al', 3)}\nF_AAe:\n" + text(done['AAe']) + "\n" + loopx("F_AAmo") + text(done['AAo']) + "\n s_branch F_AAe\n"
    disp = lambda n: "".join(f" s_cmp_eq_u32 s{sWave}, {w}\n s_cbranch_scc1 F_{n}{w}\n" for w in range(3)) + f" s_branch F_{n}3\n"
    if flag('nowv'):
        body += "F_AAmo:\n" + text(done['AAmo']) + "\nF_AAme:\n" + text(done['AAme']) + "\n" + text(done['ABm']) + "\n"
    else:
        body += "F_AAme:\n" + disp("AAme") + "F_AAmo:\n" + disp("AAmo")
        for w in range(4):
            body += f"F_AAmo{w}:\n" + text(done[f'AAmo{w}']) + f"\nF_AAme{w}:\n" + text(done[f'AAme{w}']) + f"\n s_cmp_eq_u32 s{sI}, 7\n s_cbranch_scc1 F_AC{w}\n"
            body += text(done[f'AB{w}']) + "\n s_branch F_FINL\n"
        for w in range(4): body += f"F_AC{w}:\n" + text(done[f'AC{w}']) + ("\n s_branch F_FINL\n" if w < 3 else "\n")
        body += "F_FINL:\n"
    if flag('bbf'):
        body += f" s_cmp_gt_u32 s{sI}, {6 - NBF//2}\n s_cbranch_scc1 F_FINL\n" + text(stamp(11) + stamp(12)) + "\n"
        for k in range(NBF): body += text(done[f'BBf{k}']) + "\n"
        body += f" s_sub_u32 s{sCnt}, {6 - NBF//2}, s{sI}\n s_branch F_BBe\nF_FINL:\n"
    body += text(done['FINL']) + "\n"
    body += f".p2align {val('al', 3)}\nF_BBe:\n" + text(done['BBe']) + "\n" + loopx("F_BBm") + text(done['BBo']) + "\n s_branch F_BBe\n"
    if flag('nowv'): body += "F_BBm:\n" + text(done['BBm'])
    else:
        body += "F_BBm:\n" + disp("BBm")
        for w in range(4): body += f"F_BBm{w}:\n" + text(done[f'BBm{w}']) + ("\n s_branch F_Bend\n" if w < 3 else "")
    body += f"\nF_Bend:\n s_bitcmp1_b32 s{sXcd}, 0\n s_cbranch_scc1 F_Bodd\n" + text(tails[0]) + "\n s_branch F_P4\nF_Bodd:\n" + text(tails[1]) + "\nF_P4:\n" + text(P4[0]) + "\n"
    for typ in 'AB':
        for p in range(2): body += text(rare_redo(typ, p)) + "\n"
    for cur, nxt, p in (('A', 'A', 0), ('A', 'A', 1), ('A', 'B', 1), ('B', 'B', 0), ('B', 'B', 1), ('B', None, 0)):
        body += text(rare_stub(cur, nxt, p)) + "\n"
    hdr = open(f"cdna_kernels/{NAME}.s.ref").read().split("; Override")[0]
    kname = NAME + "_kernel"
    if "--list" in sys.argv: hdr += f"; @launch kernel={kname} grid=(256,1,1) block=(256,1,1) lds=163840\n"
    else: hdr += "; @launch grid=(256,1,1) block=(256,1,1) lds=163840\n"
    doc = """; ---------------------------------------------------------------------------------------------
; Hand-offs: write-through stores, vmcnt wait, then a word tagged with a per-launch epoch; readers poll
; ---------------------------------------------------------------------------------------------
"""
    mac = ""
    for short, full, n in (("M", M16, 4), ("N", M32, 4)):
        mac += f".macro {short} d,a,b,c\n {full} \\d,\\a,\\b,\\c\n.endm\n"
        body = body.replace(f" {full} ", f" {short} ")
    import re as _re
    mac += ".macro T d,a,o\n ds_read_b64_tr_b16 \\d,\\a offset:\\o\n.endm\n.macro W n\n s_waitcnt lgkmcnt(\\n)\n.endm\n"
    body = _re.sub(r" ds_read_b64_tr_b16 (\S+),(v\d+) offset:(\d+)", r" T \1,\2,\3", body)
    body = _re.sub(r" s_waitcnt lgkmcnt\((\d+)\)\n", r" W \1\n", body)
    return hdr + doc + '.amdgcn_target "amdgcn-amd-amdhsa--gfx950"\n' + mac + kernel_text(kname, body, 512, 256)

if __name__ == "__main__":
    OPT.prof = "--prof" in sys.argv
    if "-q" in sys.argv: OPT.verbose = 0
    open(sys.argv[1], "w").write(build())
```
